```python
import torch

def _softmax(x, axis=-1):
    return torch.softmax(x, dim=axis)
def _gelu(x):
    return torch.nn.functional.gelu(x, approximate="tanh")
def _silu(x):
    return torch.nn.functional.silu(x)
def _sigmoid(x):
    return torch.sigmoid(x)
def _layernorm(x, axis=-1, eps=1e-5):
    m = x.mean(dim=axis, keepdim=True)
    v = x.var(dim=axis, keepdim=True, unbiased=False)
    return (x - m) / torch.sqrt(v + eps)
def _scatter_add(tgt, idx, src, axis=0):
    return tgt.clone().index_add_(axis, idx, src)
def _segment_sum(src, seg, n):
    out = torch.zeros((n,) + src.shape[1:], dtype=src.dtype)
    return out.index_add_(0, seg, src)
def _pad(x, pw):
    flat = tuple(v for pair in reversed(pw) for v in pair)
    return torch.nn.functional.pad(x, flat)

kernel_name = 'gated_mix__mha_block__dense_activation_mish__prompt'

def setup_inputs():

    _w = (lambda a: (lambda t: t.to(torch.bfloat16) if t.is_floating_point() else t)(torch.as_tensor(a)))
    def _A_setup():
        B, S, D, H = 1, 2048, 512, 32
        return {
            "x": _w((lambda *s: torch.randn(*s, dtype=torch.bfloat16) * 0.05)(B, S, D)),
            "wqkv": _w((lambda *s: torch.randn(*s, dtype=torch.bfloat16) * 0.8)(D, 3 * D)),
            "wo": _w((lambda *s: torch.randn(*s, dtype=torch.bfloat16) * 0.05)(D, D)),
        }
    _A_in = _A_setup()

    def _B_setup():
        B, S, D, F = 1, 2048, 512, 1792
        return {
            "x": _w((lambda *s: torch.randn(*s, dtype=torch.bfloat16) * 0.05)(B, S, D)),
            "w1": _w((lambda *s: torch.randn(*s, dtype=torch.bfloat16) * 12.8)(D, F) * (D ** -0.5)),
            "b1": _w((lambda *s: torch.randn(*s, dtype=torch.bfloat16) * 0.2)(F)),
            "w2": _w((lambda *s: torch.randn(*s, dtype=torch.bfloat16) * 0.1)(F, D) * (F ** -0.5)),
        }
    _B_in = _B_setup()

    return {
        "A_x": _A_in["x"],
        "A_wqkv": _A_in["wqkv"],
        "A_wo": _A_in["wo"],
        "B_x": _B_in["x"],
        "B_w1": _B_in["w1"],
        "B_b1": _B_in["b1"],
        "B_w2": _B_in["w2"],
        "gate_w": _w((lambda *s: torch.randn(*s, dtype=torch.bfloat16) * 0.05)(512) * 16.0),
    }

def reference(A_x, A_wqkv, A_wo, B_x, B_w1, B_b1, B_w2, gate_w):
    def _A_ref(x, wqkv, wo):
        B, S, D = x.shape
        H = 32
        Dh = D // H
        qkv = (lambda x, *d: x.permute(*d))((x @ wqkv).reshape(B, S, 3, H, Dh), 2, 0, 3, 1, 4)
        q, k, v = qkv[0], qkv[1], qkv[2]
        scores = torch.einsum("bhqd,bhkd->bhqk", q, k) * (Dh ** -0.5)
        p = _softmax(scores, axis=-1)
        o = torch.einsum("bhqk,bhkd->bhqd", p, v)
        return (lambda x, *d: x.permute(*d))(o, 0, 2, 1, 3).reshape(B, S, D) @ wo

    def _B_ref(x, w1, b1, w2):
        h = torch.einsum("bsd,df->bsf", x, w1) + b1
        sp = torch.log1p(torch.exp(-torch.abs(h))) + torch.where(h > 0, h, torch.zeros_like(h))
        act = h * torch.tanh(sp)
        return torch.einsum("bsf,fd->bsd", act, w2)

    x = A_x
    g = _sigmoid((x * gate_w).sum(-1, keepdims=True))
    a = _A_ref(x, A_wqkv, A_wo)
    b = _B_ref(x, B_w1, B_b1, B_w2)
    return g * a + (1 - g) * b
```

```python
import struct, sys, math

NAME = "gated_mix__mha_block__dense_activation_mish__prompt"

def f32(x):
    return "0x%08x" % struct.unpack("<I", struct.pack("<f", x))[0]

LOG2E = math.log2(math.e)

WS_QF  = 0x0000000
WS_KV  = 0x0200000
WS_ACT = 0x0600000
WS_W2F = 0x0D00000
WS_WOF = 0x0EC0000
WS_G   = 0x0F40000
WS_OF  = 0x1000000
WS_BP  = 0x1200000
WS_SIZE = 0x10000000


import os
STAMPS = int(os.environ.get("STAMPS", "0"))
WS_STAMP = 0x2000000

def stamp(a, i, real=False):
    if not STAMPS: return
    a(f"{'s_memrealtime' if real else 's_memtime'} s[{80+2*i}:{81+2*i}]")
    a("s_waitcnt lgkmcnt(0)")

def stamp_flush(a, kidx, sws, swave, n=10):
    if not STAMPS: return
    a("s_mov_b64 exec, 1")
    for i in range(n):
        a(f"v_mov_b32 v{i+1}, s{80+2*i}")
    a(f"s_lshl_b32 s78, s2, 4")
    a(f"s_add_u32 s78, s78, s{swave}")
    a(f"s_lshl_b32 s78, s78, 6")
    a(f"s_add_u32 s78, s78, {WS_STAMP + kidx * 0x100000:#x}")
    a("v_mov_b32 v0, 0")
    for i in range(n):
        a(f"buffer_store_dword v{i+1}, v0, s[{sws}:{sws+3}], s78 offen offset:{4*i}")

class A:
    def __init__(self):
        self.l = []
    def __call__(self, s):
        for line in s.strip("\n").split("\n"):
            self.l.append("    " + line.strip())
    def label(self, s):
        self.l.append(s + ":")
    def raw(self, s):
        self.l.append(s)
    def text(self):
        return "\n".join(self.l) + "\n"


def vr(b, n):
    return "v[%d:%d]" % (b, b + n - 1)

def sr(b, n):
    return "s[%d:%d]" % (b, b + n - 1)

def srd(a, dst, ptr, nbytes):
    a(f"s_mov_b32 s{dst}, s{ptr}")
    a(f"s_and_b32 s{dst+1}, s{ptr+1}, 0xffff")
    a(f"s_mov_b32 s{dst+2}, {nbytes:#x}")
    a(f"s_mov_b32 s{dst+3}, 0x00020000")


def kd(name, vgpr, sgpr):
    if STAMPS: sgpr = 102
    acc = (vgpr + 3) // 4 * 4
    return f""".section .rodata,"a"
.p2align 6
.amdhsa_kernel {name}
  .amdhsa_next_free_vgpr {vgpr}
  .amdhsa_next_free_sgpr {sgpr}
  .amdhsa_accum_offset {acc}
  .amdhsa_group_segment_fixed_size 0
  .amdhsa_kernarg_size 88
  .amdhsa_user_sgpr_count 2
  .amdhsa_user_sgpr_kernarg_segment_ptr 1
  .amdhsa_system_sgpr_workgroup_id_x 1
.end_amdhsa_kernel
"""

def khead(a, name):
    a.raw(".text")
    a.raw(f".globl {name}")
    a.raw(".p2align 8")
    a.raw(f".type {name},@function")
    a.label(name)


K1_LDS_X = 0
K1_LDS_WA = 48 * 1024
K1_LDS_WB = 96 * 1024
K1_LDS_G = 132 * 1024
K1_LDS = 133 * 1024

def mish16(a, acc, tmp):
    for g in range(4):
        e = [acc + 4 * g + i for i in range(4)]
        t = [tmp + i for i in range(4)]
        u = [tmp + 4 + i for i in range(4)]
        for i in range(4): a(f"v_mul_f32 v{t[i]}, {f32(LOG2E)}, v{e[i]}")
        for i in range(4): a(f"v_min_f32 v{t[i]}, {f32(40.0)}, v{t[i]}")
        for i in range(4): a(f"v_exp_f32 v{t[i]}, v{t[i]}")
        for i in range(4): a(f"v_add_f32 v{u[i]}, 2.0, v{t[i]}")
        for i in range(4): a(f"v_mul_f32 v{t[i]}, v{t[i]}, v{u[i]}")
        for i in range(4): a(f"v_add_f32 v{u[i]}, 2.0, v{t[i]}")
        for i in range(4): a(f"v_rcp_f32 v{u[i]}, v{u[i]}")
        for i in range(4): a(f"v_mul_f32 v{t[i]}, v{t[i]}, v{u[i]}")
        for i in range(4): a(f"v_mul_f32 v{t[i]}, v{e[i]}, v{t[i]}")
        a(f"v_cvt_pk_bf16_f32 v{acc + 2 * g}, v{t[0]}, v{t[1]}")
        a(f"v_cvt_pk_bf16_f32 v{acc + 2 * g + 1}, v{t[2]}, v{t[3]}")


def cvt16(a, acc):
    for i in range(8):
        a(f"v_cvt_pk_bf16_f32 v{acc + i}, v{acc + 2 * i}, v{acc + 2 * i + 1}")


def gen_k1(a):
    name = "k1_proj_kernel"
    khead(a, name)
    S_X, S_WQ, S_W1, S_WS, S_B1, S_WT, S_GW = 24, 28, 32, 36, 40, 44, 52
    sRB, sCG, sW, sTG = 56, 57, 58, 59
    sT0, sT1, sT2, sT3 = 60, 61, 62, 63
    sXoff = 64
    sLX = 65
    sLW = 66
    sWQ0 = 67
    sW10 = 68
    sFT0 = 69
    sTT = 70
    sSJ = 71
    vLane = 1
    vXrd = 2
    vWrd = 6
    vDX0, vDX1, vDWq, vDW1 = 7, 8, 9, 10
    vT0, vT1, vT2 = 11, 12, 13
    vGrd = 14
    vL16 = 15
    FA, FB = 16, 36
    vSJ0, vSJ1 = 56, 132
    ACC = 64
    vSJoff = 128
    TMP = 16

    a("s_cmp_ge_u32 s2, 256")
    a("s_cbranch_scc1 K1_END")
    stamp(a, 0, True); stamp(a, 1)
    a("s_load_dwordx4 s[4:7], s[0:1], 0")
    a("s_load_dwordx4 s[8:11], s[0:1], 16")
    a("s_load_dwordx4 s[12:15], s[0:1], 32")
    a("s_load_dwordx4 s[16:19], s[0:1], 48")
    a("s_load_dwordx2 s[20:21], s[0:1], 80")
    a(f"v_and_b32 v{vLane}, 63, v0")
    a(f"v_lshrrev_b32 v{vT0}, 6, v0")
    a("s_nop 0")
    a(f"v_readfirstlane_b32 s{sW}, v{vT0}")
    a(f"s_and_b32 s{sT0}, s2, 7")
    a(f"s_lshr_b32 s{sT1}, s2, 3")
    a(f"s_and_b32 s{sRB}, s{sT0}, 1")
    a(f"s_lshl_b32 s{sRB}, s{sRB}, 3")
    a(f"s_and_b32 s{sT2}, s{sT1}, 7")
    a(f"s_add_u32 s{sRB}, s{sRB}, s{sT2}")
    a(f"s_lshr_b32 s{sCG}, s{sT0}, 1")
    a(f"s_lshl_b32 s{sCG}, s{sCG}, 2")
    a(f"s_lshr_b32 s{sT2}, s{sT1}, 3")
    a(f"s_add_u32 s{sCG}, s{sCG}, s{sT2}")
    a(f"s_and_b32 s{sTG}, s{sW}, 3")
    a(f"s_lshl_b32 s{sTT}, s{sRB}, 2")
    a(f"s_add_u32 s{sTT}, s{sTT}, s{sTG}")
    a(f"s_lshl_b32 s{sXoff}, s{sTT}, 15")
    a(f"s_lshl_b32 s{sLX}, s{sTG}, 12")
    a(f"s_lshl_b32 s{sLW}, s{sTG}, 10")
    a(f"s_mul_i32 s{sWQ0}, s{sTG}, {16*3072}")
    a(f"s_lshl_b32 s{sT0}, s{sCG}, 6")
    a(f"s_add_u32 s{sWQ0}, s{sWQ0}, s{sT0}")
    a(f"s_lshr_b32 s{sT0}, s{sCG}, 1")
    a(f"s_mul_i32 s{sFT0}, s{sT0}, 7")
    a(f"s_and_b32 s{sT0}, s{sCG}, 1")
    a(f"s_lshl_b32 s{sT0}, s{sT0}, 2")
    a(f"s_add_u32 s{sFT0}, s{sFT0}, s{sT0}")
    a(f"s_mul_i32 s{sW10}, s{sTG}, {16*3584}")
    a(f"s_lshl_b32 s{sT0}, s{sFT0}, 6")
    a(f"s_add_u32 s{sW10}, s{sW10}, s{sT0}")
    a(f"s_mul_i32 s{sSJ}, s2, 9")
    a(f"s_add_u32 s{sSJ}, s{sSJ}, s{sW}")
    a(f"v_lshlrev_b32 v{vL16}, 4, v{vLane}")
    a(f"v_lshrrev_b32 v{vT0}, 3, v{vLane}")
    a(f"v_lshrrev_b32 v{vT1}, 4, v{vLane}")
    a(f"v_and_b32 v{vT2}, 7, v{vLane}")
    a(f"v_xor_b32 v{vT2}, v{vT2}, v{vT1}")
    a(f"v_lshlrev_b32 v{vDX0}, 10, v{vT0}")
    a(f"v_lshl_add_u32 v{vDX0}, v{vT2}, 4, v{vDX0}")
    a(f"v_xor_b32 v{vDX1}, 64, v{vDX0}")
    a(f"v_add_u32 v{vDX1}, 8192, v{vDX1}")
    a(f"v_lshrrev_b32 v{vT0}, 2, v{vLane}")
    a(f"v_and_b32 v{vT1}, 3, v{vLane}")
    a(f"v_lshlrev_b32 v{vT1}, 4, v{vT1}")
    a(f"v_mul_u32_u24 v{vDWq}, 3072, v{vT0}")
    a(f"v_add_u32 v{vDWq}, v{vDWq}, v{vT1}")
    a(f"v_mul_u32_u24 v{vDW1}, 3584, v{vT0}")
    a(f"v_add_u32 v{vDW1}, v{vDW1}, v{vT1}")
    a(f"v_and_b32 v{vT0}, 31, v{vLane}")
    a(f"v_lshrrev_b32 v{vT1}, 5, v{vLane}")
    a(f"v_bfe_u32 v{vT2}, v{vLane}, 1, 3")
    a(f"v_xor_b32 v{vT2}, v{vT2}, v{vT1}")
    a(f"v_lshlrev_b32 v{vT0}, 7, v{vT0}")
    a(f"v_add_u32 v{vT0}, s{sLX}, v{vT0}")
    for ks in range(4):
        a(f"v_xor_b32 v{vXrd+ks}, {2*ks}, v{vT2}")
        a(f"v_lshl_add_u32 v{vXrd+ks}, v{vXrd+ks}, 4, v{vT0}")
    a(f"v_lshlrev_b32 v{vGrd}, 4, v{vT1}")
    a(f"v_add_u32 v{vGrd}, {K1_LDS_G}, v{vGrd}")
    a(f"v_bfe_u32 v{vT0}, v{vLane}, 2, 2")
    a(f"v_lshl_add_u32 v{vT0}, v{vT1}, 3, v{vT0}")
    a(f"v_lshlrev_b32 v{vWrd}, 6, v{vT0}")
    a(f"v_bfe_u32 v{vT0}, v{vLane}, 4, 1")
    a(f"v_lshl_add_u32 v{vWrd}, v{vT0}, 5, v{vWrd}")
    a(f"v_and_b32 v{vT0}, 3, v{vLane}")
    a(f"v_lshl_add_u32 v{vWrd}, v{vT0}, 3, v{vWrd}")
    a(f"v_bfe_u32 v{vT0}, v{vLane}, 2, 1")
    a(f"v_lshlrev_b32 v{vSJoff}, 4, v{vT0}")
    a(f"v_bfe_u32 v{vT0}, v{vLane}, 3, 2")
    a(f"v_lshl_add_u32 v{vSJoff}, v{vT0}, 2, v{vSJoff}")
    a(f"v_and_b32 v{vT0}, 3, v{vLane}")
    a(f"v_add_u32 v{vSJoff}, v{vSJoff}, v{vT0}")
    a(f"v_lshlrev_b32 v{vSJoff}, 1, v{vSJoff}")
    a(f"v_lshl_add_u32 v{vSJoff}, v{vT1}, 12, v{vSJoff}")
    a("s_waitcnt lgkmcnt(0)")
    srd(a, S_X, 4, 2048 * 512 * 2)
    srd(a, S_WQ, 6, 512 * 1536 * 2)
    srd(a, S_W1, 12, 512 * 1792 * 2)
    srd(a, S_WS, 20, WS_SIZE)
    srd(a, S_B1, 14, 1792 * 2)
    srd(a, S_GW, 18, 1024)

    def side_job_loads(dst, sfrag):
        a(f"s_cmp_lt_u32 s{sfrag}, 1792")
        a(f"s_cselect_b32 s{S_WT}, s16, s8")
        a(f"s_cselect_b32 s{S_WT+1}, s17, s9")
        a(f"s_and_b32 s{S_WT+1}, s{S_WT+1}, 0xffff")
        a(f"s_cmp_lt_u32 s{sfrag}, 1792")
        a(f"s_mov_b32 s{sT0}, {512*1024}")
        a(f"s_cselect_b32 s{S_WT+2}, {1792*1024}, s{sT0}")
        a(f"s_mov_b32 s{S_WT+3}, 0x00020000")
        a(f"s_mul_hi_u32 s{sT0}, s{sfrag}, {(2**32 + 111) // 112}")
        a(f"s_mul_i32 s{sT1}, s{sT0}, 112")
        a(f"s_sub_u32 s{sT1}, s{sfrag}, s{sT1}")
        a(f"s_sub_u32 s{sT2}, s{sfrag}, 1792")
        a(f"s_lshr_b32 s{sT3}, s{sT2}, 5")
        a(f"s_and_b32 s{sT2}, s{sT2}, 31")
        a(f"s_cmp_lt_u32 s{sfrag}, 1792")
        a(f"s_cselect_b32 s{sT0}, s{sT0}, s{sT3}")
        a(f"s_cselect_b32 s{sT1}, s{sT1}, s{sT2}")
        a(f"s_lshl_b32 s{sT1}, s{sT1}, 14")
        a(f"s_lshl_b32 s{sT0}, s{sT0}, 6")
        a(f"s_add_u32 s{sT0}, s{sT0}, s{sT1}")
        a(f"s_add_u32 s{sT1}, s{sT0}, 8192")
        for j in range(8):
            so = sT0 if j < 4 else sT1
            a(f"buffer_load_ushort v{dst + j}, v{vSJoff}, {sr(S_WT,4)}, s{so} offen offset:{(j & 3) * 1024}")

    def side_job_store(src, sfrag):
        for j in range(4):
            a(f"v_lshl_or_b32 v{src + j}, v{src + 2 * j + 1}, 16, v{src + 2 * j}")
        a(f"s_lshl_b32 s{sT0}, s{sfrag}, 10")
        a(f"s_add_u32 s{sT0}, s{sT0}, {WS_W2F:#x}")
        a(f"buffer_store_dwordx4 {vr(src,4)}, v{vL16}, {sr(S_WS,4)}, s{sT0} offen")

    side_job_loads(vSJ0, sSJ)

    a(f"s_cmp_ge_u32 s{sW}, 4")
    a("s_cbranch_scc1 K1_ROLE1")

    def bias_init(acc, ftl):
        a(f"s_add_u32 s{sT0}, s{sFT0}, {ftl}")
        a(f"s_lshl_b32 s{sT0}, s{sT0}, 6")
        for g in range(4):
            a(f"buffer_load_dwordx2 {vr(acc + 4 * g + 2, 2)}, v{vT2}, {sr(S_B1,4)}, s{sT0} offen offset:{g*16}")

    def bias_unpack(acc):
        for g in range(4):
            b = acc + 4 * g
            a(f"v_lshlrev_b32 v{b}, 16, v{b+2}")
            a(f"v_and_b32 v{b+1}, 0xffff0000, v{b+2}")
            a(f"v_lshlrev_b32 v{b+2}, 16, v{b+3}")
            a(f"v_and_b32 v{b+3}, 0xffff0000, v{b+3}")

    def dma(lds_off_s, lds_imm, voff, srdn, soff_expr):
        a(f"s_add_u32 m0, s{lds_off_s}, {lds_imm}")
        a(f"s_add_u32 s{sT0}, s{soff_expr[0]}, {soff_expr[1]}")
        a(f"buffer_load_dwordx4 v{voff}, {sr(srdn,4)}, s{sT0} offen lds")

    def role(r, odd):
        if r == 0:
            tiles = ["Q", "K", "F0", "F1"]
            wbase, wslot = K1_LDS_WA, 16384
        else:
            tiles = ["V", "F2", "G" if odd else "F3"]
            wbase, wslot = K1_LDS_WB, 12288
        nt = len(tiles)

        def issue_stage(s):
            slot = s % 3
            if r == 0:
                for j in range(4):
                    dma(sLX, K1_LDS_X + slot * 16384 + j * 1024, vDX0 if j % 2 == 0 else vDX1, S_X,
                        (sXoff, (j >> 1) * 16384 + s * 128))
                dma(sLW, K1_LDS_WA + slot * 16384 + 0 * 4096, vDWq, S_WQ, (sWQ0, s * 64 * 3072 + 0))
                dma(sLW, K1_LDS_WA + slot * 16384 + 1 * 4096, vDWq, S_WQ, (sWQ0, s * 64 * 3072 + 1024))
                return 6
            else:
                dma(sLW, K1_LDS_WB + slot * 12288 + 0 * 4096, vDWq, S_WQ, (sWQ0, s * 64 * 3072 + 2048))
                dma(sLW, K1_LDS_WA + slot * 16384 + 2 * 4096, vDW1, S_W1, (sW10, s * 64 * 3584 + 0))
                dma(sLW, K1_LDS_WA + slot * 16384 + 3 * 4096, vDW1, S_W1, (sW10, s * 64 * 3584 + 64))
                dma(sLW, K1_LDS_WB + slot * 12288 + 1 * 4096, vDW1, S_W1, (sW10, s * 64 * 3584 + 128))
                if not odd:
                    dma(sLW, K1_LDS_WB + slot * 12288 + 2 * 4096, vDW1, S_W1, (sW10, s * 64 * 3584 + 192))
                    return 5
                return 4

        def reads(s, ks, F):
            slot = s % 3
            n = 0
            a(f"ds_read_b128 {vr(F,4)}, v{vXrd+ks} offset:{K1_LDS_X + slot * 16384}")
            n += 1
            for t, kind in enumerate(tiles):
                if kind == "G":
                    a(f"ds_read_b128 {vr(F+4+4*t,4)}, v{vGrd} offset:{(s*4+ks)*32}")
                    n += 1
                else:
                    off = slot * wslot + t * 4096 + ks * 1024
                    a(f"ds_read_b64_tr_b16 {vr(F+4+4*t,2)}, v{vWrd} offset:{off}")
                    a(f"ds_read_b64_tr_b16 {vr(F+4+4*t+2,2)}, v{vWrd} offset:{off+256}")
                    n += 2
            return n

        def mfmas(F, first):
            for t, kind in enumerate(tiles):
                acc = ACC + 16 * t
                c = "0" if (first and kind[0] != "F") else vr(acc, 16)
                if kind == "V":
                    a(f"v_mfma_f32_32x32x16_bf16 {vr(acc,16)}, {vr(F,4)}, {vr(F+4+4*t,4)}, {c}")
                else:
                    a(f"v_mfma_f32_32x32x16_bf16 {vr(acc,16)}, {vr(F+4+4*t,4)}, {vr(F,4)}, {c}")

        a(f"v_add_u32 v{vWrd}, {wbase}, v{vWrd}")
        a(f"v_lshrrev_b32 v{vT2}, 5, v{vLane}")
        a(f"v_lshlrev_b32 v{vT2}, 3, v{vT2}")
        for t, kind in enumerate(tiles):
            if kind[0] == "F":
                bias_init(ACC + 16 * t, int(kind[1]))
        if r == 1:
            a(f"s_cmp_eq_u32 s{sW}, 7")
            a(f"s_cbranch_scc0 K1_NOSJ_{int(odd)}")
            a(f"s_add_u32 s72, s{sSJ}, 1")
            side_job_loads(vSJ1, 72)
            a.label(f"K1_NOSJ_{int(odd)}")
            if odd:
                a(f"s_mov_b32 m0, {K1_LDS_G}")
                a("s_nop 0")
                a(f"buffer_load_dwordx4 v{vL16}, {sr(S_GW,4)}, 0 offen lds")
        n = 0
        for s in range(3):
            n = issue_stage(s)
        stamp(a, 2)
        a(f"s_waitcnt vmcnt({2*n})")
        stamp(a, 3)
        for t, kind in enumerate(tiles):
            if kind[0] == "F":
                bias_unpack(ACC + 16 * t)
        a("s_barrier")
        stamp(a, 4)
        reads(0, 0, FA)
        for s in range(8):
            for ks in range(4):
                cur, nxt = (FA, FB) if ks % 2 == 0 else (FB, FA)
                if ks < 3:
                    nr = reads(s, ks + 1, nxt)
                    a(f"s_waitcnt lgkmcnt({nr})")
                else:
                    a("s_waitcnt lgkmcnt(0)")
                    if s < 7:
                        a(f"s_waitcnt vmcnt({n if s + 2 <= 7 else 0})")
                        a("s_barrier")
                        if s + 3 <= 7:
                            issue_stage(s + 3)
                        reads(s + 1, 0, nxt)
                mfmas(cur, s == 0 and ks == 0)
        a("s_nop 7")
        a("s_nop 7")
        stamp(a, 5)
        for t, kind in enumerate(tiles):
            acc = ACC + 16 * t
            if kind == "Q":
                for i in range(16):
                    a(f"v_mul_f32 v{acc+i}, {f32(0.25 * LOG2E)}, v{acc+i}")
                cvt16(a, acc)
                a(f"s_lshl_b32 s{sT0}, s{sCG}, 17")
                a(f"s_lshl_b32 s{sT1}, s{sTT}, 10")
                a(f"s_add_u32 s{sT0}, s{sT0}, s{sT1}")
                a(f"s_add_u32 s{sT0}, s{sT0}, {WS_QF:#x}")
                a(f"s_add_u32 s{sT1}, s{sT0}, 65536")
                a(f"buffer_store_dwordx4 {vr(acc,4)}, v{vL16}, {sr(S_WS,4)}, s{sT0} offen")
                a(f"buffer_store_dwordx4 {vr(acc+4,4)}, v{vL16}, {sr(S_WS,4)}, s{sT1} offen")
            elif kind == "K":
                cvt16(a, acc)
                a(f"v_and_b32 v{vT0}, 0x33, v{vLane}")
                a(f"v_bfe_u32 v{vT1}, v{vLane}, 2, 1")
                a(f"v_lshl_add_u32 v{vT0}, v{vT1}, 3, v{vT0}")
                a(f"v_bfe_u32 v{vT1}, v{vLane}, 3, 1")
                a(f"v_lshl_add_u32 v{vT0}, v{vT1}, 2, v{vT0}")
                a(f"v_lshlrev_b32 v{vT0}, 4, v{vT0}")
                a(f"s_lshl_b32 s{sT0}, s{sCG}, 18")
                a(f"s_lshl_b32 s{sT1}, s{sTT}, 11")
                a(f"s_add_u32 s{sT0}, s{sT0}, s{sT1}")
                a(f"s_add_u32 s{sT0}, s{sT0}, {WS_KV:#x}")
                a(f"s_add_u32 s{sT1}, s{sT0}, 131072")
                a(f"buffer_store_dwordx4 {vr(acc,4)}, v{vT0}, {sr(S_WS,4)}, s{sT0} offen")
                a(f"buffer_store_dwordx4 {vr(acc+4,4)}, v{vT0}, {sr(S_WS,4)}, s{sT1} offen")
            elif kind == "V":
                cvt16(a, acc)
                a(f"v_and_b32 v{vT0}, 0x2f, v{vLane}")
                a(f"v_lshlrev_b32 v{vT0}, 4, v{vT0}")
                a(f"v_bfe_u32 v{vT1}, v{vLane}, 4, 1")
                a(f"v_lshl_add_u32 v{vT0}, v{vT1}, 17, v{vT0}")
                a(f"s_lshl_b32 s{sT0}, s{sCG}, 18")
                a(f"s_lshl_b32 s{sT1}, s{sTT}, 11")
                a(f"s_add_u32 s{sT0}, s{sT0}, s{sT1}")
                a(f"s_add_u32 s{sT0}, s{sT0}, {WS_KV:#x}")
                a(f"buffer_store_dwordx4 {vr(acc,4)}, v{vT0}, {sr(S_WS,4)}, s{sT0} offen offset:1024")
                a(f"buffer_store_dwordx4 {vr(acc+4,4)}, v{vT0}, {sr(S_WS,4)}, s{sT0} offen offset:1280")
            elif kind == "G":
                a(f"v_mul_f32 v{acc}, {f32(-LOG2E)}, v{acc}")
                a(f"v_exp_f32 v{acc}, v{acc}")
                a("s_nop 0")
                a(f"v_add_f32 v{acc}, 1.0, v{acc}")
                a(f"v_rcp_f32 v{acc}, v{acc}")
                a(f"v_and_b32 v{vT0}, 31, v{vLane}")
                a(f"v_lshlrev_b32 v{vT0}, 2, v{vT0}")
                a(f"s_lshl_b32 s{sT0}, s{sTT}, 7")
                a(f"s_add_u32 s{sT0}, s{sT0}, {WS_G:#x}")
                a(f"buffer_store_dword v{acc}, v{vT0}, {sr(S_WS,4)}, s{sT0} offen")
            else:
                ftl = int(kind[1])
                mish16(a, acc, TMP)
                a(f"s_mul_i32 s{sT0}, s{sTT}, 112")
                a(f"s_lshl_b32 s{sT1}, s{sFT0}, 1")
                a(f"s_add_u32 s{sT0}, s{sT0}, s{sT1}")
                a(f"s_lshl_b32 s{sT0}, s{sT0}, 10")
                a(f"s_add_u32 s{sT0}, s{sT0}, {WS_ACT + ftl * 2048:#x}")
                a(f"buffer_store_dwordx4 {vr(acc,4)}, v{vL16}, {sr(S_WS,4)}, s{sT0} offen")
                a(f"buffer_store_dwordx4 {vr(acc+4,4)}, v{vL16}, {sr(S_WS,4)}, s{sT0} offen offset:1024")
        side_job_store(vSJ0, sSJ)
        if r == 1:
            a(f"s_cmp_eq_u32 s{sW}, 7")
            a(f"s_cbranch_scc0 K1_FIN_{int(odd)}")
            a(f"s_add_u32 s72, s{sSJ}, 1")
            side_job_store(vSJ1, 72)
            a.label(f"K1_FIN_{int(odd)}")
        stamp(a, 6)
        if STAMPS: a("s_waitcnt vmcnt(0)")
        stamp(a, 7); stamp(a, 8, True)
        stamp_flush(a, 0, S_WS, sW)
        a("s_endpgm")

    role(0, False)
    a.label("K1_ROLE1")
    a(f"s_bitcmp1_b32 s{sCG}, 0")
    a("s_cbranch_scc1 K1_ROLE1_ODD")
    role(1, False)
    a.label("K1_ROLE1_ODD")
    role(1, True)
    a.label("K1_END")
    a("s_endpgm")
    return name, 140, 80


K2_LDS_RED = 128 * 1024
K2_LDS_CNT = 144 * 1024
K2_LDS = 144 * 1024 + 64

def gen_k2(a):
    name = "k2_attn_kernel"
    khead(a, name)
    S_WS = 8
    sW, sHead, sQB, sT0, sT1, sT2, sT3 = 12, 13, 14, 15, 16, 17, 18
    sI, sB1, sB2, sTT, sPass = 19, 20, 21, 22, 23
    sMask = 24
    sKV = 26
    vLane, vL16, vT0, vT1 = 1, 2, 3, 4
    a("s_cmp_ge_u32 s2, 256")
    a("s_cbranch_scc1 K2_END")
    stamp(a, 0, True); stamp(a, 1)
    a("s_load_dwordx2 s[4:5], s[0:1], 80")
    a(f"v_and_b32 v{vLane}, 63, v0")
    a(f"v_lshrrev_b32 v{vT0}, 6, v0")
    a(f"v_lshlrev_b32 v{vL16}, 4, v{vLane}")
    a(f"v_readfirstlane_b32 s{sW}, v{vT0}")
    a("s_waitcnt lgkmcnt(0)")
    srd(a, S_WS, 4, WS_SIZE)
    a(f"s_cmp_ge_u32 s{sW}, 8")
    a("s_cbranch_scc1 K2_GEMM")

    vAddr, vIdx, vG = 5, 6, 7
    Q = 8
    KB = [12, 16]
    VB = [20, 28]
    S = [36, 52]
    C = 68
    O = 84
    a(f"s_and_b32 s{sT0}, s2, 7")
    a(f"s_lshl_b32 s{sHead}, s{sT0}, 2")
    a(f"s_bfe_u32 s{sT0}, s2, 0x20003")
    a(f"s_add_u32 s{sHead}, s{sHead}, s{sT0}")
    a(f"s_lshr_b32 s{sQB}, s2, 5")
    a(f"s_lshl_b32 s{sTT}, s{sQB}, 3")
    a(f"s_add_u32 s{sTT}, s{sTT}, s{sW}")
    a(f"s_lshl_b32 s{sT0}, s{sHead}, 16")
    a(f"s_lshl_b32 s{sT1}, s{sTT}, 10")
    a(f"s_add_u32 s{sT0}, s{sT0}, s{sT1}")
    a(f"s_add_u32 s{sT0}, s{sT0}, {WS_QF:#x}")
    a(f"buffer_load_dwordx4 {vr(Q,4)}, v{vL16}, {sr(S_WS,4)}, s{sT0} offen")
    a(f"v_and_b32 v{vT0}, 31, v{vLane}")
    a(f"v_lshlrev_b32 v{vT0}, 2, v{vT0}")
    a(f"s_lshl_b32 s{sT0}, s{sTT}, 7")
    a(f"s_add_u32 s{sT0}, s{sT0}, {WS_G:#x}")
    a(f"buffer_load_dword v{vG}, v{vT0}, {sr(S_WS,4)}, s{sT0} offen")
    a(f"s_lshl_b32 s{sKV}, s{sHead}, 17")
    a(f"s_add_u32 s{sKV}, s{sKV}, {WS_KV:#x}")
    a(f"s_lshl_b32 s{sT0}, s{sW}, 10")
    a(f"s_add_u32 s{sKV}, s{sKV}, s{sT0}")
    for i in range(2):
        a(f"s_add_u32 m0, s{sT0}, {i * 8192}")
        a(f"s_add_u32 s{sT1}, s{sKV}, {i * 8192}")
        a(f"buffer_load_dwordx4 v{vL16}, {sr(S_WS,4)}, s{sT1} offen lds")
    a(f"v_mov_b32 v{vIdx}, 0xdddddddd")
    a(f"s_mov_b32 s{sMask}, 0x0000ffff")
    a(f"s_mov_b32 s{sMask+1}, 0x0000ffff")
    for b in VB:
        for i in range(8):
            a(f"v_mov_b32 v{b+i}, 0x3f803f80")
    for i in range(16):
        a(f"v_mov_b32 v{O+i}, 0")
    a(f"v_mov_b32 v{vAddr}, v{vL16}")
    a(f"s_mov_b32 s{sB1}, 1")
    a(f"s_mov_b32 s{sB2}, 3")
    a(f"s_mov_b32 s{sPass}, 0")
    stamp(a, 2)
    a("s_waitcnt vmcnt(0)")
    a("s_barrier")
    stamp(a, 3)
    a(f"ds_read_b128 {vr(KB[0],4)}, v{vAddr} offset:0")
    a("s_waitcnt lgkmcnt(0)")
    a(f"v_mfma_f32_32x32x16_bf16 {vr(S[0],16)}, {vr(KB[0],4)}, {vr(Q,4)}, 0")
    a("s_nop 7")
    a("s_nop 7")
    s0 = S[0]
    a(f"v_max3_f32 v{vT0}, v{s0}, v{s0+1}, v{s0+2}")
    for i in range(3, 15, 2):
        a(f"v_max3_f32 v{vT0}, v{vT0}, v{s0+i}, v{s0+i+1}")
    a(f"v_max_f32 v{vT0}, v{vT0}, v{s0+15}")
    a.label("K2_SETMAX")
    a(f"v_mov_b32 v{vT1}, v{vT0}")
    a("s_nop 1")
    a(f"v_permlane32_swap_b32 v{vT0}, v{vT1}")
    a("s_nop 1")
    a(f"v_max_f32 v{vT0}, v{vT0}, v{vT1}")
    for i in range(16):
        a(f"v_sub_f32 v{C+i}, 0, v{vT0}")
    a(f"ds_read_b128 {vr(KB[0],4)}, v{vAddr} offset:0")
    a(f"ds_read_b128 {vr(KB[1],4)}, v{vAddr} offset:2048")
    a(f"s_mov_b64 exec, {sr(sMask,2)}")
    a(f"ds_read_b128 {vr(VB[0],4)}, v{vAddr} offset:1024")
    a(f"ds_read_b128 {vr(VB[0]+4,4)}, v{vAddr} offset:1280")
    a("s_mov_b64 exec, -1")
    a("s_waitcnt lgkmcnt(0)")
    a(f"v_mfma_f32_32x32x16_bf16 {vr(S[0],16)}, {vr(KB[0],4)}, {vr(Q,4)}, {vr(C,16)}")
    a(f"s_mov_b32 s{sI}, 0")
    a("s_nop 7")
    a("s_nop 3")
    stamp(a, 4)
    a.raw(".p2align 6")
    a.label("K2_LOOP")
    a(f"s_cmp_eq_u32 s{sI}, s{sB1}")
    a("s_cbranch_scc0 K2_NB1")
    a("s_barrier")
    a.label("K2_NB1")
    a(f"s_cmp_eq_u32 s{sI}, s{sB2}")
    a("s_cbranch_scc0 K2_NB2")
    stamp(a, 5)
    a("s_barrier")
    stamp(a, 6)
    a.label("K2_NB2")
    for u in range(4):
        p = u & 1
        cur, nxt = S[p], S[1 - p]
        a("s_waitcnt lgkmcnt(0)")
        a(f"v_mfma_f32_32x32x16_bf16 {vr(nxt,16)}, {vr(KB[1-p],4)}, {vr(Q,4)}, {vr(C,16)}")
        a(f"ds_read_b128 {vr(KB[p],4)}, v{vAddr} offset:{(u+2)*2048}")
        a(f"s_mov_b64 exec, {sr(sMask,2)}")
        a(f"ds_read_b128 {vr(VB[1-p],4)}, v{vAddr} offset:{(u+1)*2048+1024}")
        a(f"ds_read_b128 {vr(VB[1-p]+4,4)}, v{vAddr} offset:{(u+1)*2048+1280}")
        a("s_mov_b64 exec, -1")
        for i in range(10):
            a(f"v_exp_f32 v{cur+i}, v{cur+i}")
        a(f"v_smfmac_f32_32x32x32_bf16 {vr(O,16)}, {vr(VB[p],4)}, {vr(cur,8)}, v{vIdx}")
        for i in range(10, 16):
            a(f"v_exp_f32 v{cur+i}, v{cur+i}")
        if u == 3:
            a(f"v_add_u32 v{vAddr}, 8192, v{vAddr}")
            a(f"s_add_u32 s{sI}, s{sI}, 1")
            a(f"s_cmp_lt_u32 s{sI}, 16")
        else:
            a("s_nop 1")
        a(f"v_smfmac_f32_32x32x32_bf16 {vr(O,16)}, {vr(VB[p]+4,4)}, {vr(cur+8,8)}, v{vIdx}")
    a("s_cbranch_scc1 K2_LOOP")
    a("s_nop 7")
    a("s_nop 7")
    a(f"s_cmp_lg_u32 s{sPass}, 0")
    a("s_cbranch_scc1 K2_FIN")
    a(f"v_max3_f32 v{vT0}, |v{O}|, |v{O+1}|, |v{O+2}|")
    a(f"v_max3_f32 v{vT0}, v{vT0}, |v{O+3}|, |v{O+4}|")
    a(f"v_max3_f32 v{vT0}, v{vT0}, |v{O+5}|, |v{O+6}|")
    a(f"v_max_f32 v{vT0}, v{vT0}, |v{O+7}|")
    a(f"v_mov_b32 v{vT1}, 0x7f800000")
    a(f"v_cmp_nlt_f32 vcc, v{vT0}, v{vT1}")
    a(f"v_mov_b32 v{vT1}, {f32(2.0**30)}")
    a(f"v_cmp_nlt_f32 {sr(sT2+1,2)}, v{O+8}, v{vT1}")
    a("s_nop 1")
    a(f"s_or_b64 vcc, vcc, {sr(sT2+1,2)}")
    a("s_cbranch_scc0 K2_FIN")
    a(f"s_mov_b32 s{sPass}, 1")
    a(f"s_mov_b32 s{sB1}, 100")
    a(f"s_mov_b32 s{sB2}, 100")
    a(f"v_mov_b32 v{vAddr}, v{vL16}")
    a(f"v_mov_b32 v{vT0}, 0xff800000")
    a(f"s_mov_b32 s{sI}, 0")
    a.label("K2_MAXLOOP")
    a(f"ds_read_b128 {vr(KB[0],4)}, v{vAddr} offset:0")
    a("s_waitcnt lgkmcnt(0)")
    a(f"v_mfma_f32_32x32x16_bf16 {vr(S[0],16)}, {vr(KB[0],4)}, {vr(Q,4)}, 0")
    a(f"v_add_u32 v{vAddr}, 2048, v{vAddr}")
    a("s_nop 7")
    a("s_nop 7")
    for i in range(0, 16, 2):
        a(f"v_max3_f32 v{vT0}, v{vT0}, v{s0+i}, v{s0+i+1}")
    a(f"s_add_u32 s{sI}, s{sI}, 1")
    a(f"s_cmp_lt_u32 s{sI}, 64")
    a("s_cbranch_scc1 K2_MAXLOOP")
    a(f"v_mov_b32 v{vAddr}, v{vL16}")
    for i in range(16):
        a(f"v_mov_b32 v{O+i}, 0")
    a("s_branch K2_SETMAX")
    a.label("K2_FIN")
    a(f"v_rcp_f32 v{vT0}, v{O+8}")
    a("s_nop 0")
    a(f"v_mul_f32 v{vT0}, v{vT0}, v{vG}")
    for i in range(8):
        a(f"v_mul_f32 v{O+i}, v{O+i}, v{vT0}")
    for i in range(4):
        a(f"v_cvt_pk_bf16_f32 v{O+i}, v{O+2*i}, v{O+2*i+1}")
    a(f"s_lshl_b32 s{sT0}, s{sTT}, 15")
    a(f"s_lshl_b32 s{sT1}, s{sHead}, 10")
    a(f"s_add_u32 s{sT0}, s{sT0}, s{sT1}")
    a(f"s_add_u32 s{sT0}, s{sT0}, {WS_OF:#x}")
    a(f"buffer_store_dwordx4 {vr(O,4)}, v{vL16}, {sr(S_WS,4)}, s{sT0} offen")
    stamp(a, 7); stamp(a, 8, True)
    stamp_flush(a, 1, S_WS, sW)
    a("s_endpgm")

    a.label("K2_GEMM")
    sGW, sA0, sA1, sN0, sN1, sOT, sON = 13, 14, 26, 27, 28, 29, 30
    ACC = 8
    FR = 72
    vG = 6
    vRed = 5
    NST = 4
    a(f"s_sub_u32 s{sGW}, s{sW}, 8")
    a(f"s_and_b32 s{sT0}, s2, 7")
    a(f"s_lshr_b32 s{sT1}, s2, 3")
    a(f"s_lshr_b32 s{sT2}, s{sT0}, 1")
    a(f"s_lshl_b32 s{sT2}, s{sT2}, 3")
    a(f"s_and_b32 s{sT3}, s{sT1}, 7")
    a(f"s_add_u32 s{sT2}, s{sT2}, s{sT3}")
    a(f"s_and_b32 s{sT0}, s{sT0}, 1")
    a(f"s_lshl_b32 s{sT0}, s{sT0}, 2")
    a(f"s_lshr_b32 s{sT1}, s{sT1}, 3")
    a(f"s_add_u32 s{sT0}, s{sT0}, s{sT1}")
    a(f"s_lshr_b32 s{sT1}, s{sGW}, 1")
    a(f"s_lshl_b32 s{sOT}, s{sT2}, 1")
    a(f"s_add_u32 s{sOT}, s{sOT}, s{sT1}")
    a(f"s_and_b32 s{sT1}, s{sGW}, 1")
    a(f"s_lshl_b32 s{sON}, s{sT0}, 1")
    a(f"s_add_u32 s{sON}, s{sON}, s{sT1}")
    a(f"s_mul_i32 s{sT3}, s{sGW}, {28*1024}")
    a(f"s_mul_i32 s{sA0}, s{sOT}, {112*1024}")
    a(f"s_add_u32 s{sA0}, s{sA0}, s{sT3}")
    a(f"s_add_u32 s{sA0}, s{sA0}, {WS_ACT:#x}")
    a(f"s_xor_b32 s{sT1}, s{sOT}, 1")
    a(f"s_mul_i32 s{sA1}, s{sT1}, {112*1024}")
    a(f"s_add_u32 s{sA1}, s{sA1}, s{sT3}")
    a(f"s_add_u32 s{sA1}, s{sA1}, {WS_ACT:#x}")
    a(f"s_mul_i32 s{sN0}, s{sON}, {112*1024}")
    a(f"s_add_u32 s{sN0}, s{sN0}, s{sT3}")
    a(f"s_add_u32 s{sN0}, s{sN0}, {WS_W2F:#x}")
    a(f"s_xor_b32 s{sT1}, s{sON}, 1")
    a(f"s_mul_i32 s{sN1}, s{sT1}, {112*1024}")
    a(f"s_add_u32 s{sN1}, s{sN1}, s{sT3}")
    a(f"s_add_u32 s{sN1}, s{sN1}, {WS_W2F:#x}")
    a(f"v_mov_b32 v{ACC}, 0")
    a(f"v_mov_b32 v{vT1}, {K2_LDS_CNT}")
    a(f"ds_write_b32 v{vT1}, v{ACC}")
    a(f"v_and_b32 v{vT0}, 31, v{vLane}")
    a(f"v_lshlrev_b32 v{vT0}, 2, v{vT0}")
    a(f"s_lshl_b32 s{sT0}, s{sOT}, 7")
    a(f"s_add_u32 s{sT0}, s{sT0}, {WS_G:#x}")
    a(f"buffer_load_dword v{vG}, v{vT0}, {sr(S_WS,4)}, s{sT0} offen")
    a(f"s_and_b32 s{sT0}, s2, 7")
    a(f"s_lshl_b32 s{sT1}, s{sT0}, 2")
    a(f"s_bfe_u32 s{sT0}, s2, 0x20003")
    a(f"s_add_u32 s{sT1}, s{sT1}, s{sT0}")
    a(f"s_lshl_b32 s{sT1}, s{sT1}, 17")
    a(f"s_add_u32 s{sT1}, s{sT1}, {WS_KV:#x}")
    a(f"s_lshl_b32 s{sT0}, s{sGW}, 10")
    a(f"s_add_u32 s{sT1}, s{sT1}, s{sT0}")
    for i in range(28):
        a(f"s_add_u32 m0, s{sT0}, {16384 + i * 4096}")
        a(f"s_add_u32 s{sT2}, s{sT1}, {16384 + i * 4096}")
        a(f"buffer_load_dwordx4 v{vL16}, {sr(S_WS,4)}, s{sT2} offen lds")
    a("s_waitcnt lgkmcnt(0)")
    stamp(a, 2)
    a("s_barrier")
    a("s_waitcnt vmcnt(24)")
    a("s_barrier")
    a("s_waitcnt vmcnt(0)")
    a("s_barrier")
    stamp(a, 3)

    def gloads(st, imm):
        f = FR + 16 * st
        a(f"buffer_load_dwordx4 {vr(f,4)}, v{vL16}, {sr(S_WS,4)}, s{sA0} offen offset:{imm}")
        a(f"buffer_load_dwordx4 {vr(f+4,4)}, v{vL16}, {sr(S_WS,4)}, s{sA1} offen offset:{imm}")
        a(f"buffer_load_dwordx4 {vr(f+8,4)}, v{vL16}, {sr(S_WS,4)}, s{sN0} offen offset:{imm}")
        a(f"buffer_load_dwordx4 {vr(f+12,4)}, v{vL16}, {sr(S_WS,4)}, s{sN1} offen offset:{imm}")

    def gadv():
        for s_ in (sA0, sA1, sN0, sN1):
            a(f"s_add_u32 s{s_}, s{s_}, 4096")

    def gmfma(st, first):
        f = FR + 16 * st
        for ap in range(2):
            for jp in range(2):
                acc = ACC + 16 * (ap * 2 + jp)
                c = "0" if first else vr(acc, 16)
                a(f"v_mfma_f32_32x32x16_bf16 {vr(acc,16)}, {vr(f+8+4*jp,4)}, {vr(f+4*ap,4)}, {c}")

    for st in range(4):
        gloads(st, st * 1024)
    gadv()
    for st in range(4):
        a("s_waitcnt vmcnt(12)")
        gmfma(st, st == 0)
        gloads(st, st * 1024)
    gadv()
    a(f"s_mov_b32 s{sI}, 0")
    a.label("K2_GLOOP")
    for st in range(4):
        a("s_waitcnt vmcnt(12)")
        gmfma(st, False)
        gloads(st, st * 1024)
    gadv()
    a(f"s_add_u32 s{sI}, s{sI}, 1")
    a(f"s_cmp_lt_u32 s{sI}, 5")
    a("s_cbranch_scc1 K2_GLOOP")
    for st in range(4):
        a(f"s_waitcnt vmcnt({12 - 4 * st})")
        gmfma(st, False)
    a("s_nop 7")
    a("s_nop 7")
    stamp(a, 4)
    vOwn = 7
    a(f"s_lshl_b32 s{sT0}, s{sGW}, 12")
    a(f"s_add_u32 s{sT0}, s{sT0}, {K2_LDS_RED}")
    a(f"v_add_u32 v{vOwn}, s{sT0}, v{vL16}")
    a(f"v_mov_b32 v{vT0}, 1")
    def gsync(n):
        a("s_waitcnt lgkmcnt(0)")
        a("s_mov_b64 exec, 1")
        a(f"ds_add_u32 v{vT1}, v{vT0}")
        a("s_mov_b64 exec, -1")
        a.label(f"K2_GSPIN{n}")
        a(f"ds_read_b32 v{vRed}, v{vT1}")
        a("s_waitcnt lgkmcnt(0)")
        a(f"v_readfirstlane_b32 s{sT0}, v{vRed}")
        a(f"s_cmp_ge_u32 s{sT0}, {4*n}")
        a(f"s_cbranch_scc1 K2_GDONE{n}")
        a("s_sleep 2")
        a(f"s_branch K2_GSPIN{n}")
        a.label(f"K2_GDONE{n}")
    for q in range(1, 4):
        a(f"v_xor_b32 v{vRed}, {q << 12}, v{vOwn}")
        for i in range(4):
            a(f"ds_write_b128 v{vRed}, {vr(ACC + 16 * q + 4 * i, 4)} offset:{i*1024}")
        gsync(2 * q - 1)
        for i in range(4):
            a(f"ds_read_b128 {vr(FR + 4 * i, 4)}, v{vOwn} offset:{i*1024}")
        if q < 3:
            gsync(2 * q)
        else:
            a("s_waitcnt lgkmcnt(0)")
        for i in range(16):
            a(f"v_add_f32 v{ACC+i}, v{ACC+i}, v{FR+i}")
    stamp(a, 5)
    a(f"v_sub_f32 v{vG}, 1.0, v{vG}")
    for i in range(16):
        a(f"v_mul_f32 v{ACC+i}, v{ACC+i}, v{vG}")
    a(f"s_lshl_b32 s{sT0}, s{sOT}, 4")
    a(f"s_add_u32 s{sT0}, s{sT0}, s{sON}")
    a(f"s_lshl_b32 s{sT0}, s{sT0}, 12")
    a(f"s_add_u32 s{sT0}, s{sT0}, {WS_BP:#x}")
    for i in range(4):
        a(f"buffer_store_dwordx4 {vr(ACC+4*i,4)}, v{vL16}, {sr(S_WS,4)}, s{sT0} offen offset:{i*1024}")
    stamp(a, 7); stamp(a, 8, True)
    stamp_flush(a, 1, S_WS, sW)
    a.label("K2_END")
    a("s_endpgm")
    return name, 136, 40


K3_LDS = 48 * 1024

def gen_k3(a):
    name = "k3_out_kernel"
    khead(a, name)
    S_WS, S_OUT = 8, 12
    sW, sT0, sT1, sT2, sT3 = 16, 17, 18, 19, 20
    sA0, sA1, sN0, sN1, sOT, sON = 21, 22, 23, 24, 25, 26
    vLane, vL16, vT0, vT1 = 1, 2, 3, 4
    ACC = 8
    FR = 72
    a("s_cmp_ge_u32 s2, 256")
    a("s_cbranch_scc1 K3_END")
    stamp(a, 0, True); stamp(a, 1)
    a("s_load_dwordx2 s[4:5], s[0:1], 80")
    a("s_load_dwordx2 s[6:7], s[0:1], 64")
    a(f"v_and_b32 v{vLane}, 63, v0")
    a(f"v_lshrrev_b32 v{vT0}, 6, v0")
    a(f"v_lshlrev_b32 v{vL16}, 4, v{vLane}")
    a(f"v_readfirstlane_b32 s{sW}, v{vT0}")
    a(f"s_and_b32 s{sT0}, s2, 7")
    a(f"s_lshr_b32 s{sT1}, s2, 3")
    a(f"s_lshr_b32 s{sT2}, s{sT0}, 1")
    a(f"s_lshl_b32 s{sT2}, s{sT2}, 3")
    a(f"s_and_b32 s{sT3}, s{sT1}, 7")
    a(f"s_add_u32 s{sT2}, s{sT2}, s{sT3}")
    a(f"s_and_b32 s{sT0}, s{sT0}, 1")
    a(f"s_lshl_b32 s{sT0}, s{sT0}, 2")
    a(f"s_lshr_b32 s{sT1}, s{sT1}, 3")
    a(f"s_add_u32 s{sT0}, s{sT0}, s{sT1}")
    a(f"s_lshr_b32 s{sT1}, s{sW}, 1")
    a(f"s_lshl_b32 s{sOT}, s{sT2}, 1")
    a(f"s_add_u32 s{sOT}, s{sOT}, s{sT1}")
    a(f"s_and_b32 s{sT1}, s{sW}, 1")
    a(f"s_lshl_b32 s{sON}, s{sT0}, 1")
    a(f"s_add_u32 s{sON}, s{sON}, s{sT1}")
    a(f"s_lshl_b32 s{sT3}, s{sW}, 13")
    a(f"s_lshl_b32 s{sA0}, s{sOT}, 15")
    a(f"s_add_u32 s{sA0}, s{sA0}, s{sT3}")
    a(f"s_add_u32 s{sA0}, s{sA0}, {WS_OF:#x}")
    a(f"s_xor_b32 s{sA1}, s{sA0}, 32768")
    a(f"s_lshl_b32 s{sN0}, s{sON}, 15")
    a(f"s_add_u32 s{sN0}, s{sN0}, s{sT3}")
    a(f"s_add_u32 s{sN0}, s{sN0}, {WS_WOF:#x}")
    a(f"s_xor_b32 s{sN1}, s{sN0}, 32768")
    a("s_waitcnt lgkmcnt(0)")
    srd(a, S_WS, 4, WS_SIZE)
    srd(a, S_OUT, 6, 2048 * 512 * 2)
    a(f"s_lshl_b32 s{sT0}, s{sOT}, 4")
    a(f"s_add_u32 s{sT0}, s{sT0}, s{sON}")
    a(f"s_lshl_b32 s{sT0}, s{sT0}, 12")
    a(f"s_add_u32 s{sT0}, s{sT0}, {WS_BP:#x}")
    for i in range(4):
        a(f"buffer_load_dwordx4 {vr(ACC+4*i,4)}, v{vL16}, {sr(S_WS,4)}, s{sT0} offen offset:{i*1024}")
    for ks in range(8):
        f = FR + 16 * ks
        imm = (ks & 3) * 1024
        if ks == 4:
            for s_ in (sA0, sA1, sN0, sN1):
                a(f"s_add_u32 s{s_}, s{s_}, 4096")
        a(f"buffer_load_dwordx4 {vr(f,4)}, v{vL16}, {sr(S_WS,4)}, s{sA0} offen offset:{imm}")
        a(f"buffer_load_dwordx4 {vr(f+4,4)}, v{vL16}, {sr(S_WS,4)}, s{sA1} offen offset:{imm}")
        a(f"buffer_load_dwordx4 {vr(f+8,4)}, v{vL16}, {sr(S_WS,4)}, s{sN0} offen offset:{imm}")
        a(f"buffer_load_dwordx4 {vr(f+12,4)}, v{vL16}, {sr(S_WS,4)}, s{sN1} offen offset:{imm}")
    for ks in range(8):
        f = FR + 16 * ks
        a(f"s_waitcnt vmcnt({28 - 4 * ks})")
        for ap in range(2):
            for jp in range(2):
                q = ap * 2 + jp
                acc = ACC + 16 * q
                c = "0" if (ks == 0 and q != 0) else vr(acc, 16)
                a(f"v_mfma_f32_32x32x16_bf16 {vr(acc,16)}, {vr(f+8+4*jp,4)}, {vr(f+4*ap,4)}, {c}")
    a("s_nop 7")
    a("s_nop 7")
    stamp(a, 2)
    for q in range(1, 4):
        a(f"s_xor_b32 s{sT0}, s{sW}, {q}")
        a(f"s_mul_i32 s{sT0}, s{sT0}, 12288")
        a(f"v_add_u32 v{vT0}, s{sT0}, v{vL16}")
        for i in range(4):
            a(f"ds_write_b128 v{vT0}, {vr(ACC+16*q+4*i,4)} offset:{(q-1)*4096 + i*1024}")
    a(f"s_mul_i32 s{sT0}, s{sW}, 12288")
    a(f"v_add_u32 v{vT0}, s{sT0}, v{vL16}")
    a("s_waitcnt lgkmcnt(0)")
    a("s_barrier")
    for q in range(3):
        for i in range(4):
            a(f"ds_read_b128 {vr(FR+16*q+4*i,4)}, v{vT0} offset:{q*4096 + i*1024}")
    a(f"v_and_b32 v{vT0}, 31, v{vLane}")
    a(f"v_lshlrev_b32 v{vT0}, 10, v{vT0}")
    a(f"v_lshrrev_b32 v{vT1}, 5, v{vLane}")
    a(f"v_lshl_add_u32 v{vT0}, v{vT1}, 5, v{vT0}")
    a(f"s_lshl_b32 s{sT0}, s{sOT}, 15")
    a(f"s_lshl_b32 s{sT1}, s{sON}, 6")
    a(f"s_add_u32 s{sT0}, s{sT0}, s{sT1}")
    for q in range(3):
        a(f"s_waitcnt lgkmcnt({8 - 4 * q})")
        for i in range(16):
            a(f"v_add_f32 v{ACC+i}, v{ACC+i}, v{FR+16*q+i}")
    cvt16(a, ACC)
    a(f"buffer_store_dwordx4 {vr(ACC,4)}, v{vT0}, {sr(S_OUT,4)}, s{sT0} offen")
    a(f"buffer_store_dwordx4 {vr(ACC+4,4)}, v{vT0}, {sr(S_OUT,4)}, s{sT0} offen offset:16")
    stamp(a, 6)
    if STAMPS: a("s_waitcnt vmcnt(0)")
    stamp(a, 7); stamp(a, 8, True)
    stamp_flush(a, 2, S_WS, sW)
    a.label("K3_END")
    a("s_endpgm")
    return name, 200, 32


def main():
    ref = open(f"cdna_kernels/{NAME}.s.ref").read().split("\n")
    head = [l for l in ref if l.startswith(";") and "@launch" not in l and "Override launch" not in l and "grid=ceil" not in l]
    a = A()
    k1 = gen_k1(a)
    k2 = gen_k2(a)
    k3 = gen_k3(a)
    out = "\n".join(head) + "\n"
    out += f"; @launch kernel={k1[0]} grid=(256,1,1) block=(512,1,1) lds={K1_LDS}\n"
    out += f"; @launch kernel={k2[0]} grid=(256,1,1) block=(768,1,1) lds={K2_LDS}\n"
    out += f"; @launch kernel={k3[0]} grid=(256,1,1) block=(256,1,1) lds={K3_LDS}\n"
    out += '.amdgcn_target "amdgcn-amd-amdhsa--gfx950"\n'
    out += a.text()
    for k in (k1, k2, k3):
        out += kd(*k)
    path = sys.argv[1] if len(sys.argv) > 1 else f"cdna_kernels/{NAME}.s"
    open(path, "w").write(out)
    print("wrote", path, len(out), "bytes")

main()
```

```python
import struct, sys, math, os

NAME = "gated_mix__mha_block__dense_activation_mish__prompt"
STAMPS = int(os.environ.get("STAMPS", "0"))
ASLIST = int(os.environ.get("ASLIST", "0"))
X = os.environ.get("X", "")

def f32(x):
    return "0x%08x" % struct.unpack("<I", struct.pack("<f", x))[0]

LOG2E = math.log2(math.e)

WS_QF  = 0x0000000
WS_KV  = 0x0200000
WS_ACT = 0x0600000
WS_G   = 0x0F40000
WS_OF  = 0x1000000
WS_FKV = 0x1800000
WS_FACT = 0x1804000
WS_FO  = 0x1808000
WS_STAMP = 0x2000000
WS_SIZE = 0x10000000

L_X = 0
L_WA = 48 * 1024
L_WB = 96 * 1024
L_GW = 132 * 1024
L_EP = 150 * 1024
L_CNT = 150 * 1024 + 16
L_RING = 128 * 1024
L_Q = 152 * 1024
L_EXCH = 64 * 1024
LDS_TOTAL = 160 * 1024

SPIN_MAX = 200000


class A:
    def __init__(self):
        self.l = []
        self.n = 0
    def __call__(self, s):
        for line in s.strip("\n").split("\n"):
            self.l.append("    " + line.strip())
    def label(self, s):
        self.l.append(s + ":")
    def raw(self, s):
        self.l.append(s)
    def uniq(self, p):
        self.n += 1
        return f"{p}_{self.n}"
    def text(self):
        return "\n".join(self.l) + "\n"


def vr(b, n):
    return "v[%d:%d]" % (b, b + n - 1)

def sr(b, n):
    return "s[%d:%d]" % (b, b + n - 1)

def srd(a, dst, ptr, nbytes):
    a(f"s_mov_b32 s{dst}, s{ptr}")
    a(f"s_and_b32 s{dst+1}, s{ptr+1}, 0xffff")
    a(f"s_mov_b32 s{dst+2}, {nbytes:#x}")
    a(f"s_mov_b32 s{dst+3}, 0x00020000")

S_X, S_WQ, S_W1, S_WS, S_B1, S_W2, S_WO, S_GW, S_OUT, S_DBG = 28, 32, 36, 40, 44, 48, 52, 56, 60, 64
sW, sRB, sCG, sTG, sTT, sFT0 = 68, 69, 70, 71, 72, 73
sT0, sT1, sT2, sT3 = 74, 75, 76, 77
sEP = 78
vLane, vL16, vT0, vT1 = 1, 2, 3, 4

def stamp(a, i, real=False):
    if not STAMPS: return
    a(f"{'s_memrealtime' if real else 's_memtime'} s[{82+2*i}:{83+2*i}]")
    a("s_waitcnt lgkmcnt(0)")

def stamp_flush(a, n=10):
    if not STAMPS: return
    a("s_mov_b64 exec, 1")
    for i in range(n):
        a(f"v_mov_b32 v{i+1}, s{82+2*i}")
    a(f"s_lshl_b32 s80, s2, 4")
    a(f"s_add_u32 s80, s80, s{sW}")
    a(f"s_lshl_b32 s80, s80, 6")
    a(f"s_add_u32 s80, s80, {WS_STAMP:#x}")
    for i in range(n):
        a(f"buffer_store_dword v{i+1}, off, {sr(S_WS,4)}, s80 offset:{4*i}")


def mish16(a, acc, tmp, dst):
    for g in range(4):
        e = [acc + 4 * g + i for i in range(4)]
        t = [tmp + i for i in range(4)]
        u = [tmp + 4 + i for i in range(4)]
        for i in range(4): a(f"v_mul_f32 v{t[i]}, {f32(LOG2E)}, v{e[i]}")
        for i in range(4): a(f"v_min_f32 v{t[i]}, {f32(40.0)}, v{t[i]}")
        for i in range(4): a(f"v_exp_f32 v{t[i]}, v{t[i]}")
        for i in range(4): a(f"v_add_f32 v{u[i]}, 2.0, v{t[i]}")
        for i in range(4): a(f"v_mul_f32 v{t[i]}, v{t[i]}, v{u[i]}")
        for i in range(4): a(f"v_add_f32 v{u[i]}, 2.0, v{t[i]}")
        for i in range(4): a(f"v_rcp_f32 v{u[i]}, v{u[i]}")
        for i in range(4): a(f"v_mul_f32 v{t[i]}, v{t[i]}, v{u[i]}")
        for i in range(4): a(f"v_mul_f32 v{t[i]}, v{e[i]}, v{t[i]}")
        a(f"v_cvt_pk_bf16_f32 v{dst + 2 * g}, v{t[0]}, v{t[1]}")
        a(f"v_cvt_pk_bf16_f32 v{dst + 2 * g + 1}, v{t[2]}, v{t[3]}")

def cvt16(a, acc):
    for i in range(8):
        a(f"v_cvt_pk_bf16_f32 v{acc + i}, v{acc + 2 * i}, v{acc + 2 * i + 1}")

def flag_store(a, soff, vtmp, cnt):
    L = a.uniq("NOFLAG")
    if cnt is None:
        a(f"v_mov_b32 v{vtmp}, s{sEP}")
        a(f"v_mov_b32 v{vtmp+1}, s{sEP+1}")
        a("s_mov_b64 exec, 1")
        a(f"buffer_store_dwordx2 {vr(vtmp,2)}, off, {sr(S_WS,4)}, s{soff} sc1")
        a("s_mov_b64 exec, -1")
        return
    a("s_mov_b64 exec, 1")
    a(f"v_mov_b32 v{vtmp}, {cnt}")
    a(f"v_mov_b32 v{vtmp+1}, 1")
    a(f"ds_add_rtn_u32 v{vtmp}, v{vtmp}, v{vtmp+1}")
    a("s_waitcnt lgkmcnt(0)")
    a(f"v_readfirstlane_b32 s{sT3}, v{vtmp}")
    a(f"v_mov_b32 v{vtmp}, s{sEP}")
    a(f"v_mov_b32 v{vtmp+1}, s{sEP+1}")
    a(f"s_cmp_eq_u32 s{sT3}, 7")
    a(f"s_cbranch_scc0 {L}")
    a(f"buffer_store_dwordx2 {vr(vtmp,2)}, off, {sr(S_WS,4)}, s{soff} sc1")
    a.label(L)
    a("s_mov_b64 exec, -1")

def poll(a, loads, scnt):
    L = a.uniq("POLL"); D = a.uniq("POLLD")
    a(f"s_mov_b32 s{scnt}, 0")
    a.label(L)
    for nf, vd, vo, so in loads:
        op = "buffer_load_dwordx4" if nf == 2 else "buffer_load_dwordx2"
        a(f"{op} {vr(vd, 2*nf)}, v{vo}, {sr(S_WS,4)}, s{so} offen sc1")
    a("s_waitcnt vmcnt(0)")
    first = True
    for nf, vd, vo, so in loads:
        for k in range(nf):
            if first:
                a(f"v_cmp_ne_u64 vcc, {sr(sEP,2)}, {vr(vd+2*k,2)}")
                first = False
            else:
                a(f"v_cmp_ne_u64 {sr(sT2,2)}, {sr(sEP,2)}, {vr(vd+2*k,2)}")
                a("s_nop 1")
                a(f"s_or_b64 vcc, vcc, {sr(sT2,2)}")
    a("s_nop 1")
    a("s_cmp_eq_u64 vcc, 0")
    a(f"s_cbranch_scc1 {D}")
    a("s_sleep 4")
    a(f"s_add_u32 s{scnt}, s{scnt}, 1")
    a(f"s_cmp_lt_u32 s{scnt}, {SPIN_MAX}")
    a(f"s_cbranch_scc1 {L}")
    a.label(D)


def gen(a):
    name = NAME + "_kernel"
    a.raw(".text")
    a.raw(f".globl {name}")
    a.raw(".p2align 8")
    a.raw(f".type {name},@function")
    a.label(name)
    a("s_cmp_ge_u32 s2, 256")
    a("s_cbranch_scc1 K_END")
    stamp(a, 0, True); stamp(a, 1)
    a("s_load_dwordx16 s[4:19], s[0:1], 0")
    a("s_load_dwordx4 s[20:23], s[0:1], 64")
    a("s_load_dwordx2 s[24:25], s[0:1], 80")
    a(f"v_and_b32 v{vLane}, 63, v0")
    a(f"v_lshrrev_b32 v{vT0}, 6, v0")
    a(f"v_lshlrev_b32 v{vL16}, 4, v{vLane}")
    a(f"v_readfirstlane_b32 s{sW}, v{vT0}")
    a(f"s_and_b32 s{sT0}, s2, 7")
    a(f"s_lshr_b32 s{sT1}, s2, 3")
    a(f"s_and_b32 s{sRB}, s{sT0}, 1")
    a(f"s_lshl_b32 s{sRB}, s{sRB}, 3")
    a(f"s_and_b32 s{sT2}, s{sT1}, 7")
    a(f"s_add_u32 s{sRB}, s{sRB}, s{sT2}")
    a(f"s_lshr_b32 s{sCG}, s{sT0}, 1")
    a(f"s_lshl_b32 s{sCG}, s{sCG}, 2")
    a(f"s_lshr_b32 s{sT2}, s{sT1}, 3")
    a(f"s_add_u32 s{sCG}, s{sCG}, s{sT2}")
    a(f"s_and_b32 s{sTG}, s{sW}, 3")
    a(f"s_lshl_b32 s{sTT}, s{sRB}, 2")
    a(f"s_add_u32 s{sTT}, s{sTT}, s{sTG}")
    a(f"s_lshr_b32 s{sT0}, s{sCG}, 1")
    a(f"s_mul_i32 s{sFT0}, s{sT0}, 7")
    a(f"s_and_b32 s{sT0}, s{sCG}, 1")
    a(f"s_lshl_b32 s{sT0}, s{sT0}, 2")
    a(f"s_add_u32 s{sFT0}, s{sFT0}, s{sT0}")
    a("s_waitcnt lgkmcnt(0)")
    srd(a, S_X, 4, 2048 * 512 * 2)
    srd(a, S_WQ, 6, 512 * 1536 * 2)
    srd(a, S_W1, 12, 512 * 1792 * 2)
    srd(a, S_WS, 24, WS_SIZE)
    srd(a, S_B1, 14, 1792 * 2)
    srd(a, S_W2, 16, 1792 * 512 * 2)
    srd(a, S_WO, 8, 512 * 512 * 2)
    srd(a, S_GW, 18, 1024)
    srd(a, S_OUT, 20, 2048 * 512 * 2)
    srd(a, S_DBG, 22, 256)
    a(f"s_cmp_ge_u32 s{sW}, 8")
    a("s_cbranch_scc1 G_START")

    gen_A(a)
    gen_G(a)
    a.label("K_END")
    a("s_endpgm")
    return name


def gen_A(a):
    vXrd, vWrd, vGrd, vT2 = 5, 9, 10, 11
    FA, FB = 16, 36
    ACC = 64
    TMP = 16
    vFl = 14
    a(f"s_lshl_b32 s{sT0}, s{sTG}, 12")
    a(f"v_and_b32 v{vT0}, 31, v{vLane}")
    a(f"v_lshrrev_b32 v{vT1}, 5, v{vLane}")
    a(f"v_bfe_u32 v{vT2}, v{vLane}, 1, 3")
    a(f"v_xor_b32 v{vT2}, v{vT2}, v{vT1}")
    a(f"v_lshlrev_b32 v{vT0}, 7, v{vT0}")
    a(f"v_add_u32 v{vT0}, s{sT0}, v{vT0}")
    for ks in range(4):
        a(f"v_xor_b32 v{vXrd+ks}, {2*ks}, v{vT2}")
        a(f"v_lshl_add_u32 v{vXrd+ks}, v{vXrd+ks}, 4, v{vT0}")
    a(f"v_lshlrev_b32 v{vGrd}, 4, v{vT1}")
    a(f"v_add_u32 v{vGrd}, {L_GW}, v{vGrd}")
    a(f"v_bfe_u32 v{vT0}, v{vLane}, 2, 2")
    a(f"v_lshl_add_u32 v{vT0}, v{vT1}, 3, v{vT0}")
    a(f"v_lshlrev_b32 v{vWrd}, 6, v{vT0}")
    a(f"v_bfe_u32 v{vT0}, v{vLane}, 4, 1")
    a(f"v_lshl_add_u32 v{vWrd}, v{vT0}, 5, v{vWrd}")
    a(f"v_and_b32 v{vT0}, 3, v{vLane}")
    a(f"v_lshl_add_u32 v{vWrd}, v{vT0}, 3, v{vWrd}")
    a(f"v_lshlrev_b32 v{vT2}, 3, v{vT1}")
    a(f"s_cmp_ge_u32 s{sW}, 4")
    a("s_cbranch_scc1 A_ROLE1")

    def bias_init(acc, ftl):
        a(f"s_add_u32 s{sT0}, s{sFT0}, {ftl}")
        a(f"s_lshl_b32 s{sT0}, s{sT0}, 6")
        for g in range(4):
            a(f"buffer_load_dwordx2 {vr(acc + 4 * g + 2, 2)}, v{vT2}, {sr(S_B1,4)}, s{sT0} offen offset:{g*16}")

    def bias_unpack(acc):
        for g in range(4):
            b = acc + 4 * g
            a(f"v_lshlrev_b32 v{b}, 16, v{b+2}")
            a(f"v_and_b32 v{b+1}, 0xffff0000, v{b+2}")
            a(f"v_lshlrev_b32 v{b+2}, 16, v{b+3}")
            a(f"v_and_b32 v{b+3}, 0xffff0000, v{b+3}")

    def role(r, odd):
        if r == 0:
            tiles = ["Q", "K", "F0", "F1"]
            wbase, wslot = L_WA, 16384
        else:
            tiles = ["V", "F2", "G" if odd else "F3"]
            wbase, wslot = L_WB, 12288

        def reads(s, ks, F):
            slot = s % 3
            n = 0
            a(f"ds_read_b128 {vr(F,4)}, v{vXrd+ks} offset:{L_X + slot * 16384}")
            n += 1
            for t, kind in enumerate(tiles):
                if kind == "G":
                    a(f"ds_read_b128 {vr(F+4+4*t,4)}, v{vGrd} offset:{(s*4+ks)*32}")
                    n += 1
                else:
                    off = slot * wslot + t * 4096 + ks * 1024
                    a(f"ds_read_b64_tr_b16 {vr(F+4+4*t,2)}, v{vWrd} offset:{off}")
                    a(f"ds_read_b64_tr_b16 {vr(F+4+4*t+2,2)}, v{vWrd} offset:{off+256}")
                    n += 2
            return n

        def mfmas(F, first):
            for t, kind in enumerate(tiles):
                acc = ACC + 16 * t
                c = "0" if (first and kind[0] != "F") else vr(acc, 16)
                if kind == "V":
                    a(f"v_mfma_f32_32x32x16_bf16 {vr(acc,16)}, {vr(F,4)}, {vr(F+4+4*t,4)}, {c}")
                else:
                    a(f"v_mfma_f32_32x32x16_bf16 {vr(acc,16)}, {vr(F+4+4*t,4)}, {vr(F,4)}, {c}")

        a(f"v_add_u32 v{vWrd}, {wbase}, v{vWrd}")
        for t, kind in enumerate(tiles):
            if kind[0] == "F":
                bias_init(ACC + 16 * t, int(kind[1]))
        a("s_waitcnt vmcnt(0)")
        for t, kind in enumerate(tiles):
            if kind[0] == "F":
                bias_unpack(ACC + 16 * t)
        a("s_barrier")
        stamp(a, 2)
        reads(0, 0, FA)
        for s in range(8):
            for ks in range(4):
                cur, nxt = (FA, FB) if ks % 2 == 0 else (FB, FA)
                if ks < 3:
                    nr = reads(s, ks + 1, nxt)
                    a(f"s_waitcnt lgkmcnt({nr})")
                else:
                    a("s_waitcnt lgkmcnt(0)")
                    a("s_barrier")
                    if s < 7:
                        reads(s + 1, 0, nxt)
                    else:
                        a(f"v_mov_b32 v{vT0}, {L_EP}")
                        a(f"ds_read_b64 {vr(vFl,2)}, v{vT0}")
                mfmas(cur, s == 0 and ks == 0)
        a("s_waitcnt lgkmcnt(0)")
        a(f"v_readfirstlane_b32 s{sEP}, v{vFl}")
        a(f"v_readfirstlane_b32 s{sEP+1}, v{vFl+1}")
        a("s_nop 7")
        a("s_nop 4")
        stamp(a, 3)
        for t, kind in enumerate(tiles):
            acc = ACC + 16 * t
            if kind == "Q":
                for i in range(16):
                    a(f"v_mul_f32 v{acc+i}, {f32(0.25 * LOG2E)}, v{acc+i}")
                cvt16(a, acc)
                a(f"s_lshl_b32 s{sT0}, s{sCG}, 17")
                a(f"s_lshl_b32 s{sT1}, s{sTT}, 10")
                a(f"s_add_u32 s{sT0}, s{sT0}, s{sT1}")
                a(f"s_add_u32 s{sT0}, s{sT0}, {WS_QF:#x}")
                a(f"s_add_u32 s{sT1}, s{sT0}, 65536")
                a(f"buffer_store_dwordx4 {vr(acc,4)}, v{vL16}, {sr(S_WS,4)}, s{sT0} offen sc1")
                a(f"buffer_store_dwordx4 {vr(acc+4,4)}, v{vL16}, {sr(S_WS,4)}, s{sT1} offen sc1")
            elif kind == "K":
                cvt16(a, acc)
                a(f"v_and_b32 v{vT0}, 0x33, v{vLane}")
                a(f"v_bfe_u32 v{vT1}, v{vLane}, 2, 1")
                a(f"v_lshl_add_u32 v{vT0}, v{vT1}, 3, v{vT0}")
                a(f"v_bfe_u32 v{vT1}, v{vLane}, 3, 1")
                a(f"v_lshl_add_u32 v{vT0}, v{vT1}, 2, v{vT0}")
                a(f"v_lshlrev_b32 v{vT0}, 4, v{vT0}")
                a(f"s_lshl_b32 s{sT0}, s{sCG}, 18")
                a(f"s_lshl_b32 s{sT1}, s{sTT}, 11")
                a(f"s_add_u32 s{sT0}, s{sT0}, s{sT1}")
                a(f"s_add_u32 s{sT0}, s{sT0}, {WS_KV:#x}")
                a(f"s_add_u32 s{sT1}, s{sT0}, 131072")
                a(f"buffer_store_dwordx4 {vr(acc,4)}, v{vT0}, {sr(S_WS,4)}, s{sT0} offen sc1")
                a(f"buffer_store_dwordx4 {vr(acc+4,4)}, v{vT0}, {sr(S_WS,4)}, s{sT1} offen sc1")
            elif kind == "V":
                cvt16(a, acc)
                a(f"v_and_b32 v{vT0}, 0x2f, v{vLane}")
                a(f"v_lshlrev_b32 v{vT0}, 4, v{vT0}")
                a(f"v_bfe_u32 v{vT1}, v{vLane}, 4, 1")
                a(f"v_lshl_add_u32 v{vT0}, v{vT1}, 17, v{vT0}")
                a(f"s_lshl_b32 s{sT0}, s{sCG}, 18")
                a(f"s_lshl_b32 s{sT1}, s{sTT}, 11")
                a(f"s_add_u32 s{sT0}, s{sT0}, s{sT1}")
                a(f"s_add_u32 s{sT0}, s{sT0}, {WS_KV:#x}")
                a(f"buffer_store_dwordx4 {vr(acc,4)}, v{vT0}, {sr(S_WS,4)}, s{sT0} offen offset:1024 sc1")
                a(f"buffer_store_dwordx4 {vr(acc+4,4)}, v{vT0}, {sr(S_WS,4)}, s{sT0} offen offset:1280 sc1")
            elif kind == "G":
                a(f"v_mul_f32 v{acc}, {f32(-LOG2E)}, v{acc}")
                a(f"v_exp_f32 v{acc}, v{acc}")
                a("s_nop 0")
                a(f"v_add_f32 v{acc}, 1.0, v{acc}")
                a(f"v_rcp_f32 v{acc}, v{acc}")
                a(f"v_and_b32 v{vT0}, 31, v{vLane}")
                a(f"v_lshlrev_b32 v{vT0}, 2, v{vT0}")
                a(f"s_lshl_b32 s{sT0}, s{sTT}, 7")
                a(f"s_add_u32 s{sT0}, s{sT0}, {WS_G:#x}")
                a(f"buffer_store_dword v{acc}, v{vT0}, {sr(S_WS,4)}, s{sT0} offen sc1")
        ft = [(t, int(kind[1])) for t, kind in enumerate(tiles) if kind[0] == "F"]
        for n, (t, ftl) in enumerate(ft):
            acc = ACC + 16 * t
            mish16(a, acc, TMP, 128 + 8 * n)
            if n == 0:
                a("s_waitcnt vmcnt(0)")
                a(f"s_lshl_b32 s{sT0}, s{sCG}, 7")
                a(f"s_lshl_b32 s{sT1}, s{sRB}, 3")
                a(f"s_add_u32 s{sT0}, s{sT0}, s{sT1}")
                a(f"s_add_u32 s{sT0}, s{sT0}, {WS_FKV:#x}")
                flag_store(a, sT0, vFl, L_CNT)
                stamp(a, 4)
        a(f"s_mul_i32 s13, s{sTT}, 112")
        a(f"s_lshl_b32 s{sT1}, s{sFT0}, 1")
        a(f"s_add_u32 s13, s13, s{sT1}")
        a(f"s_lshl_b32 s13, s13, 10")
        a(f"s_add_u32 s13, s13, {WS_ACT + ft[0][1] * 2048:#x}")
        a(f"s_mov_b32 s14, {len(ft)}")
        a("s_branch A_PH2")

    role(0, False)
    a.label("A_ROLE1")
    a(f"s_bitcmp1_b32 s{sCG}, 0")
    a("s_cbranch_scc1 A_ROLE1_ODD")
    role(1, False)
    a.label("A_ROLE1_ODD")
    role(1, True)

    a.label("A_PH2")
    sHead, sQT, sI, sB1, sB2, sPass = 4, 5, 6, 7, 8, 9
    sMask = 10
    vAddr, vIdx, vG = 5, 6, 7
    Q = 8
    KB = [12, 16]
    VB = [20, 28]
    S = [36, 52]
    C = 68
    O = 84
    vFl = 100
    a(f"s_lshl_b32 s12, s{sRB}, 7")
    a(f"s_lshl_b32 s{sT1}, s{sCG}, 3")
    a(f"s_add_u32 s12, s12, s{sT1}")
    a(f"s_add_u32 s12, s12, {WS_FACT:#x}")
    a(f"s_and_b32 s{sT0}, s2, 7")
    a(f"s_lshl_b32 s{sHead}, s{sT0}, 2")
    a(f"s_bfe_u32 s{sT0}, s2, 0x20003")
    a(f"s_add_u32 s{sHead}, s{sHead}, s{sT0}")
    a(f"s_lshr_b32 s{sQT}, s2, 5")
    a(f"s_lshl_b32 s{sQT}, s{sQT}, 3")
    a(f"s_add_u32 s{sQT}, s{sQT}, s{sW}")
    a(f"v_mov_b32 v{vIdx}, 0xdddddddd")
    a(f"s_mov_b32 s{sMask}, 0x0000ffff")
    a(f"s_mov_b32 s{sMask+1}, 0x0000ffff")
    a(f"v_and_b32 v{vT0}, 27, v{vLane}")
    a(f"v_cmp_eq_u32 vcc, 16, v{vT0}")
    a(f"v_mov_b32 v{vT1}, 0x3f803f80")
    a("s_nop 0")
    a(f"v_cndmask_b32 v{vT0}, 0, v{vT1}, vcc")
    for b in VB:
        for i in range(8):
            a(f"v_mov_b32 v{b+i}, v{vT0}")
    a(f"v_mov_b32 v{vAddr}, v{vL16}")
    a(f"s_mov_b32 s{sB1}, 1")
    a(f"s_mov_b32 s{sB2}, 3")
    a(f"s_mov_b32 s{sPass}, 0")
    a(f"s_lshl_b32 s{sT0}, s{sW}, 10")
    a(f"s_add_u32 s{sT0}, s{sT0}, {L_Q}")
    a(f"v_add_u32 v{vT1}, s{sT0}, v{vL16}")
    for i in range(16):
        a(f"v_mov_b32 v{O+i}, 0")
    a("s_setprio 2")
    stamp(a, 5)
    a("s_barrier")
    stamp(a, 6)
    a(f"ds_read_b128 {vr(Q,4)}, v{vT1}")
    a(f"ds_read_b128 {vr(KB[0],4)}, v{vAddr} offset:0")
    a(f"v_and_b32 v{vT0}, 31, v{vLane}")
    a(f"v_lshlrev_b32 v{vT0}, 2, v{vT0}")
    a(f"s_lshl_b32 s{sT0}, s{sQT}, 7")
    a(f"s_add_u32 s{sT0}, s{sT0}, {WS_G:#x}")
    a(f"buffer_load_dword v{vG}, v{vT0}, {sr(S_WS,4)}, s{sT0} offen sc1")
    a(f"buffer_store_dwordx4 {vr(128,4)}, v{vL16}, {sr(S_WS,4)}, s13 offen sc1")
    a(f"buffer_store_dwordx4 {vr(132,4)}, v{vL16}, {sr(S_WS,4)}, s13 offen offset:1024 sc1")
    a("s_cmp_lt_u32 s14, 2")
    a("s_cbranch_scc1 A_NOACT2")
    a(f"buffer_store_dwordx4 {vr(136,4)}, v{vL16}, {sr(S_WS,4)}, s13 offen offset:2048 sc1")
    a(f"buffer_store_dwordx4 {vr(140,4)}, v{vL16}, {sr(S_WS,4)}, s13 offen offset:3072 sc1")
    a.label("A_NOACT2")
    a("s_waitcnt lgkmcnt(0)")
    a(f"v_mfma_f32_32x32x16_bf16 {vr(S[0],16)}, {vr(KB[0],4)}, {vr(Q,4)}, 0")
    a("s_nop 7")
    a("s_nop 7")
    s0 = S[0]
    a(f"v_max3_f32 v{vT0}, v{s0}, v{s0+1}, v{s0+2}")
    for i in range(3, 15, 2):
        a(f"v_max3_f32 v{vT0}, v{vT0}, v{s0+i}, v{s0+i+1}")
    a(f"v_max_f32 v{vT0}, v{vT0}, v{s0+15}")
    a.label("A_SETMAX")
    a(f"v_mov_b32 v{vT1}, v{vT0}")
    a("s_nop 1")
    a(f"v_permlane32_swap_b32 v{vT0}, v{vT1}")
    a("s_nop 1")
    a(f"v_max_f32 v{vT0}, v{vT0}, v{vT1}")
    for i in range(16):
        a(f"v_sub_f32 v{C+i}, 0, v{vT0}")
    a(f"ds_read_b128 {vr(KB[0],4)}, v{vAddr} offset:0")
    a(f"ds_read_b128 {vr(KB[1],4)}, v{vAddr} offset:2048")
    a(f"s_mov_b64 exec, {sr(sMask,2)}")
    a(f"ds_read_b128 {vr(VB[0],4)}, v{vAddr} offset:1024")
    a(f"ds_read_b128 {vr(VB[0]+4,4)}, v{vAddr} offset:1280")
    a("s_mov_b64 exec, -1")
    a("s_waitcnt lgkmcnt(0)")
    a(f"v_mfma_f32_32x32x16_bf16 {vr(S[0],16)}, {vr(KB[0],4)}, {vr(Q,4)}, {vr(C,16)}")
    a(f"s_mov_b32 s{sI}, 0")
    for i in range(8, 16):
        a(f"v_mov_b32 v{S[1]+i}, 0")
    a("s_nop 7")
    a.raw(".p2align 6")
    a.label("A_LOOP")
    a(f"s_cmp_eq_u32 s{sI}, s{sB1}")
    a("s_cbranch_scc0 A_NB1")
    a("s_barrier")
    a("s_nop 0")
    a.label("A_NB1")
    a(f"s_cmp_eq_u32 s{sI}, s{sB2}")
    a("s_cbranch_scc0 A_NB2")
    a("s_waitcnt vmcnt(0)")
    flag_store(a, 12, vFl, L_CNT + 4)
    a("s_barrier")
    a.raw(".p2align 3")
    a.label("A_NB2")
    a(f"s_cmp_eq_u32 s{sI}, 10")
    a("s_cbranch_scc0 A_NP1")
    a("s_setprio 1")
    a("s_nop 0")
    a.label("A_NP1")
    a(f"s_cmp_eq_u32 s{sI}, 14")
    a("s_cbranch_scc0 A_NP2")
    a("s_setprio 0")
    a("s_nop 0")
    a.label("A_NP2")
    for u in range(4):
        p = u & 1
        cur, nxt = S[p], S[1 - p]
        def E(lo, hi):
            for i in range(lo, hi):
                a(f"v_exp_f32 v{cur+i}, v{cur+i}")
        E(0, 2)
        a(f"v_smfmac_f32_32x32x32_bf16 {vr(O,16)}, {vr(VB[1-p]+4,4)}, {vr(nxt+8,8)}, v{vIdx}")
        E(2, 7)
        a("s_waitcnt lgkmcnt(0)")
        a(f"v_mfma_f32_32x32x16_bf16 {vr(nxt,16)}, {vr(KB[1-p],4)}, {vr(Q,4)}, {vr(C,16)}")
        a(f"ds_read_b128 {vr(KB[p],4)}, v{vAddr} offset:{(u+2)*2048}")
        E(7, 8)
        a(f"s_mov_b64 exec, {sr(sMask,2)}")
        a(f"ds_read_b128 {vr(VB[1-p],4)}, v{vAddr} offset:{(u+1)*2048+1024}")
        a(f"ds_read_b128 {vr(VB[1-p]+4,4)}, v{vAddr} offset:{(u+1)*2048+1280}")
        a("s_mov_b64 exec, -1")
        E(8, 13)
        a(f"v_smfmac_f32_32x32x32_bf16 {vr(O,16)}, {vr(VB[p],4)}, {vr(cur,8)}, v{vIdx}")
        if u == 3:
            a(f"v_add_u32 v{vAddr}, 8192, v{vAddr}")
            E(13, 16)
            a(f"s_add_u32 s{sI}, s{sI}, 1")
            a(f"s_cmp_lt_u32 s{sI}, 16")
        else:
            a(f"v_exp_f32_e64 v{cur+13}, v{cur+13}")
            E(14, 16)
    a("s_cbranch_scc1 A_LOOP")
    a("s_nop 1")
    a(f"v_smfmac_f32_32x32x32_bf16 {vr(O,16)}, {vr(VB[1]+4,4)}, {vr(S[1]+8,8)}, v{vIdx}")
    a("s_waitcnt lgkmcnt(0)")
    a("s_nop 7")
    a("s_nop 7")
    a(f"s_cmp_lg_u32 s{sPass}, 0")
    a("s_cbranch_scc1 A_FIN")
    a(f"v_max3_f32 v{vT0}, |v{O}|, |v{O+1}|, |v{O+2}|")
    a(f"v_max3_f32 v{vT0}, v{vT0}, |v{O+3}|, |v{O+4}|")
    a(f"v_max3_f32 v{vT0}, v{vT0}, |v{O+5}|, |v{O+6}|")
    a(f"v_max_f32 v{vT0}, v{vT0}, |v{O+7}|")
    a(f"v_mov_b32 v{vT1}, 0x7f800000")
    a(f"v_cmp_nlt_f32 vcc, v{vT0}, v{vT1}")
    a(f"v_mov_b32 v{vT1}, {f32(2.0**30)}")
    a(f"v_cmp_nlt_f32 {sr(sT2,2)}, v{O+8}, v{vT1}")
    a("s_nop 1")
    a(f"s_or_b64 vcc, vcc, {sr(sT2,2)}")
    a("s_cbranch_scc0 A_FIN")
    a(f"s_mov_b32 s{sPass}, 1")
    a(f"s_mov_b32 s{sB1}, 100")
    a(f"s_mov_b32 s{sB2}, 100")
    a(f"v_mov_b32 v{vAddr}, v{vL16}")
    a(f"v_mov_b32 v{vT0}, 0xff800000")
    a(f"s_mov_b32 s{sI}, 0")
    a.label("A_MAXLOOP")
    a(f"ds_read_b128 {vr(KB[0],4)}, v{vAddr} offset:0")
    a("s_waitcnt lgkmcnt(0)")
    a(f"v_mfma_f32_32x32x16_bf16 {vr(S[0],16)}, {vr(KB[0],4)}, {vr(Q,4)}, 0")
    a(f"v_add_u32 v{vAddr}, 2048, v{vAddr}")
    a("s_nop 7")
    a("s_nop 7")
    for i in range(0, 16, 2):
        a(f"v_max3_f32 v{vT0}, v{vT0}, v{s0+i}, v{s0+i+1}")
    a(f"s_add_u32 s{sI}, s{sI}, 1")
    a(f"s_cmp_lt_u32 s{sI}, 64")
    a("s_cbranch_scc1 A_MAXLOOP")
    a(f"v_mov_b32 v{vAddr}, v{vL16}")
    for i in range(16):
        a(f"v_mov_b32 v{O+i}, 0")
    a("s_branch A_SETMAX")
    a.label("A_FIN")
    stamp(a, 7)
    a(f"v_rcp_f32 v{vT0}, v{O+8}")
    a("s_waitcnt vmcnt(0)")
    a(f"v_mul_f32 v{vT0}, v{vT0}, v{vG}")
    for i in range(8):
        a(f"v_mul_f32 v{O+i}, v{O+i}, v{vT0}")
    for i in range(4):
        a(f"v_cvt_pk_bf16_f32 v{O+i}, v{O+2*i}, v{O+2*i+1}")
    a(f"s_lshl_b32 s{sT0}, s{sQT}, 15")
    a(f"s_lshl_b32 s{sT1}, s{sHead}, 10")
    a(f"s_add_u32 s{sT0}, s{sT0}, s{sT1}")
    a(f"s_add_u32 s{sT0}, s{sT0}, {WS_OF:#x}")
    a(f"buffer_store_dwordx4 {vr(O,4)}, v{vL16}, {sr(S_WS,4)}, s{sT0} offen sc1")
    a(f"s_lshr_b32 s{sT0}, s{sQT}, 1")
    a(f"s_lshl_b32 s{sT0}, s{sT0}, 9")
    a(f"s_lshl_b32 s{sT1}, s{sHead}, 4")
    a(f"s_add_u32 s{sT0}, s{sT0}, s{sT1}")
    a(f"s_and_b32 s{sT1}, s{sQT}, 1")
    a(f"s_lshl_b32 s{sT1}, s{sT1}, 3")
    a(f"s_add_u32 s{sT0}, s{sT0}, s{sT1}")
    a(f"s_add_u32 s{sT0}, s{sT0}, {WS_FO:#x}")
    a("s_waitcnt vmcnt(0)")
    flag_store(a, sT0, vFl, None)
    stamp(a, 9); stamp(a, 8, True)
    stamp_flush(a)
    a("s_endpgm")


def gen_G(a):
    a.label("G_START")
    sXoff, sLX, sLW, sWQ0, sW10 = 4, 5, 6, 7, 8
    sGW = sTG
    vDX0, vDX1, vDWq, vDW1, vT2 = 5, 6, 7, 8, 9
    vEp = 14
    a("s_setprio 3")
    a(f"s_lshl_b32 s{sXoff}, s{sTT}, 15")
    a(f"s_lshl_b32 s{sLX}, s{sTG}, 12")
    a(f"s_lshl_b32 s{sLW}, s{sTG}, 10")
    a(f"s_mul_i32 s{sWQ0}, s{sTG}, {16*3072}")
    a(f"s_lshl_b32 s{sT0}, s{sCG}, 6")
    a(f"s_add_u32 s{sWQ0}, s{sWQ0}, s{sT0}")
    a(f"s_mul_i32 s{sW10}, s{sTG}, {16*3584}")
    a(f"s_lshl_b32 s{sT0}, s{sFT0}, 6")
    a(f"s_add_u32 s{sW10}, s{sW10}, s{sT0}")
    a(f"v_lshrrev_b32 v{vT0}, 3, v{vLane}")
    a(f"v_lshrrev_b32 v{vT1}, 4, v{vLane}")
    a(f"v_and_b32 v{vT2}, 7, v{vLane}")
    a(f"v_xor_b32 v{vT2}, v{vT2}, v{vT1}")
    a(f"v_lshlrev_b32 v{vDX0}, 10, v{vT0}")
    a(f"v_lshl_add_u32 v{vDX0}, v{vT2}, 4, v{vDX0}")
    a(f"v_xor_b32 v{vDX1}, 64, v{vDX0}")
    a(f"v_add_u32 v{vDX1}, 8192, v{vDX1}")
    a(f"v_lshrrev_b32 v{vT0}, 2, v{vLane}")
    a(f"v_and_b32 v{vT1}, 3, v{vLane}")
    a(f"v_lshlrev_b32 v{vT1}, 4, v{vT1}")
    a(f"v_mul_u32_u24 v{vDWq}, 3072, v{vT0}")
    a(f"v_add_u32 v{vDWq}, v{vDWq}, v{vT1}")
    a(f"v_mul_u32_u24 v{vDW1}, 3584, v{vT0}")
    a(f"v_add_u32 v{vDW1}, v{vDW1}, v{vT1}")

    def dma(lds_s, lds_imm, voff, srdn, s_base, imm, extra=""):
        a(f"s_add_u32 m0, s{lds_s}, {lds_imm}")
        a(f"s_add_u32 s{sT0}, s{s_base}, {imm}")
        a(f"buffer_load_dwordx4 v{voff}, {sr(srdn,4)}, s{sT0} offen{extra} lds")

    def issue_stage(s):
        slot = s % 3
        for j in range(4):
            dma(sLX, L_X + slot * 16384 + j * 1024, vDX0 if j % 2 == 0 else vDX1, S_X, sXoff, (j >> 1) * 16384 + s * 128)
        dma(sLW, L_WA + slot * 16384 + 0 * 4096, vDWq, S_WQ, sWQ0, s * 64 * 3072 + 0)
        dma(sLW, L_WA + slot * 16384 + 1 * 4096, vDWq, S_WQ, sWQ0, s * 64 * 3072 + 1024)
        dma(sLW, L_WB + slot * 12288 + 0 * 4096, vDWq, S_WQ, sWQ0, s * 64 * 3072 + 2048)
        dma(sLW, L_WA + slot * 16384 + 2 * 4096, vDW1, S_W1, sW10, s * 64 * 3584 + 0)
        dma(sLW, L_WA + slot * 16384 + 3 * 4096, vDW1, S_W1, sW10, s * 64 * 3584 + 64)
        dma(sLW, L_WB + slot * 12288 + 1 * 4096, vDW1, S_W1, sW10, s * 64 * 3584 + 128)
        L = a.uniq("G_NOF3")
        a(f"s_bitcmp1_b32 s{sCG}, 0")
        a(f"s_cbranch_scc1 {L}")
        dma(sLW, L_WB + slot * 12288 + 2 * 4096, vDW1, S_W1, sW10, s * 64 * 3584 + 192)
        a.label(L)

    a(f"s_mov_b32 m0, {L_GW}")
    a("s_nop 0")
    a(f"buffer_load_dwordx4 v{vL16}, {sr(S_GW,4)}, 0 offen lds")
    issue_stage(0)
    a(f"s_lshl_b32 s{sT0}, s2, 4")
    a(f"s_add_u32 s{sT0}, s{sT0}, s{sW}")
    a(f"s_cmp_eq_u32 s{sT0}, 8")
    a("s_cbranch_scc0 G_NOEP")
    a(f"s_memrealtime {sr(sEP,2)}")
    a("s_waitcnt lgkmcnt(0)")
    a(f"s_or_b32 s{sEP}, s{sEP}, 1")
    a(f"v_mov_b32 v{vEp}, s{sEP}")
    a(f"v_mov_b32 v{vEp+1}, s{sEP+1}")
    a("s_mov_b64 exec, 1")
    a(f"buffer_store_dwordx2 {vr(vEp,2)}, off, {sr(S_DBG,4)}, 0 sc1")
    a("s_mov_b64 exec, -1")
    a.label("G_NOEP")
    issue_stage(1)
    a(f"v_mov_b32 v{vT0}, {L_CNT}")
    a(f"v_mov_b32 v10, 0")
    a(f"v_mov_b32 v11, 0")
    a(f"ds_write_b64 v{vT0}, v[10:11]")
    a("s_waitcnt vmcnt(10) lgkmcnt(0)")
    a("s_barrier")
    stamp(a, 2)
    issue_stage(2)
    for s in range(7):
        a(f"s_waitcnt vmcnt({10 if s + 2 <= 7 else 0})")
        if s == 6:
            a(f"s_mov_b32 s{sT1}, 0")
            a.label("G_EPL")
            a(f"v_readfirstlane_b32 s{sEP}, v{vEp}")
            a(f"v_readfirstlane_b32 s{sEP+1}, v{vEp+1}")
            a(f"s_cmp_lg_u32 s{sEP}, 0")
            a("s_cbranch_scc1 G_EPD")
            a("s_sleep 4")
            a(f"buffer_load_dwordx2 {vr(vEp,2)}, off, {sr(S_DBG,4)}, 0 sc1")
            a("s_waitcnt vmcnt(0)")
            a(f"s_add_u32 s{sT1}, s{sT1}, 1")
            a(f"s_cmp_lt_u32 s{sT1}, {SPIN_MAX}")
            a("s_cbranch_scc1 G_EPL")
            a.label("G_EPD")
            a(f"v_mov_b32 v{vT0}, {L_EP}")
            a(f"ds_write_b64 v{vT0}, {vr(vEp,2)}")
            a("s_waitcnt lgkmcnt(0)")
        a("s_barrier")
        if s + 3 <= 7:
            issue_stage(s + 3)
        if s == 4:
            a(f"buffer_load_dwordx2 {vr(vEp,2)}, off, {sr(S_DBG,4)}, 0 sc1")
    sHead, sKV, sLK, sFK, sFG, sQ = 4, 5, 6, 7, 8, 9
    sA0, sA1, sW2, sOT, sON, sI, sRing, sTT64, sNB = 10, 11, 12, 13, 14, 15, 16, 17, 18
    vL8, vF16 = 5, 6
    FL = 124
    a(f"s_and_b32 s{sT0}, s2, 7")
    a(f"s_lshl_b32 s{sHead}, s{sT0}, 2")
    a(f"s_bfe_u32 s{sT0}, s2, 0x20003")
    a(f"s_add_u32 s{sHead}, s{sHead}, s{sT0}")
    a(f"s_lshl_b32 s{sLK}, s{sGW}, 10")
    a(f"s_lshl_b32 s{sKV}, s{sHead}, 17")
    a(f"s_add_u32 s{sKV}, s{sKV}, {WS_KV:#x}")
    a(f"s_add_u32 s{sKV}, s{sKV}, s{sLK}")
    a(f"s_lshr_b32 s{sT0}, s{sHead}, 1")
    a(f"s_lshl_b32 s{sFK}, s{sT0}, 7")
    a(f"s_add_u32 s{sFK}, s{sFK}, {WS_FKV:#x}")
    a(f"s_or_b32 s{sFG}, s{sFK}, 128")
    a(f"s_lshr_b32 s{sT1}, s2, 5")
    a(f"s_lshl_b32 s{sT0}, s{sT1}, 4")
    a(f"s_add_u32 s{sFG}, s{sFG}, s{sT0}")
    a(f"s_sub_u32 s{sFG}, s{sFG}, s{sFK}")
    a(f"s_lshl_b32 s{sQ}, s{sHead}, 16")
    a(f"s_lshl_b32 s{sT0}, s{sT1}, 13")
    a(f"s_add_u32 s{sQ}, s{sQ}, s{sT0}")
    a(f"s_add_u32 s{sQ}, s{sQ}, s{sLK}")
    a(f"s_add_u32 s{sQ}, s{sQ}, {WS_QF:#x}")
    a(f"v_lshlrev_b32 v{vL8}, 3, v{vLane}")
    a(f"v_and_b32 v{vF16}, 0x78, v{vL8}")
    a(f"v_and_b32 v{vT0}, 8, v{vL8}")
    a(f"v_add_u32 v{vT0}, s{sFG}, v{vT0}")
    a(f"v_bfe_u32 v{vT1}, v{vLane}, 4, 2")
    a(f"v_cmp_eq_u32 vcc, 1, v{vT1}")
    a("s_nop 1")
    a(f"v_cndmask_b32 v{vT0}, v{vF16}, v{vT0}, vcc")
    a("s_barrier")
    stamp(a, 3)
    poll(a, [(1, FL, vT0, sFK)], sT1)
    stamp(a, 4)
    def kvdma(i):
        dma(sLK, i * 4096, vL16, S_WS, sKV, i * 4096, " sc1")
    dma(sLK, L_Q, vL16, S_WS, sQ, 0, " sc1")
    dma(sLK, L_Q + 4096, vL16, S_WS, sQ, 4096, " sc1")
    for i in range(8): kvdma(i)
    a("s_waitcnt vmcnt(4)")
    a("s_barrier")
    for i in range(8, 16): kvdma(i)
    a("s_waitcnt vmcnt(8)")
    a("s_barrier")
    for i in range(16, 32): kvdma(i)
    ACC = 8
    AF = 72
    WF = 104
    vG0, vG1 = 120, 121
    vDW, vTr0, vTr1 = 7, 122, 123
    a(f"s_and_b32 s{sT0}, s2, 7")
    a(f"s_lshr_b32 s{sT1}, s2, 3")
    a(f"s_lshr_b32 s{sTT64}, s{sT0}, 1")
    a(f"s_lshl_b32 s{sTT64}, s{sTT64}, 3")
    a(f"s_and_b32 s{sT3}, s{sT1}, 7")
    a(f"s_add_u32 s{sTT64}, s{sTT64}, s{sT3}")
    a(f"s_and_b32 s{sNB}, s{sT0}, 1")
    a(f"s_lshl_b32 s{sNB}, s{sNB}, 2")
    a(f"s_lshr_b32 s{sT1}, s{sT1}, 3")
    a(f"s_add_u32 s{sNB}, s{sNB}, s{sT1}")
    a(f"s_lshr_b32 s{sT1}, s{sGW}, 1")
    a(f"s_lshl_b32 s{sOT}, s{sTT64}, 1")
    a(f"s_add_u32 s{sOT}, s{sOT}, s{sT1}")
    a(f"s_and_b32 s{sT1}, s{sGW}, 1")
    a(f"s_lshl_b32 s{sON}, s{sNB}, 1")
    a(f"s_add_u32 s{sON}, s{sON}, s{sT1}")
    a(f"s_mul_i32 s{sT3}, s{sGW}, {28*1024}")
    a(f"s_mul_i32 s{sA0}, s{sOT}, {112*1024}")
    a(f"s_add_u32 s{sA0}, s{sA0}, s{sT3}")
    a(f"s_add_u32 s{sA0}, s{sA0}, {WS_ACT:#x}")
    a(f"s_xor_b32 s{sT1}, s{sOT}, 1")
    a(f"s_mul_i32 s{sA1}, s{sT1}, {112*1024}")
    a(f"s_add_u32 s{sA1}, s{sA1}, s{sT3}")
    a(f"s_add_u32 s{sA1}, s{sA1}, {WS_ACT:#x}")
    a(f"s_mul_i32 s{sW2}, s{sGW}, {28*16384}")
    a(f"s_lshl_b32 s{sT1}, s{sNB}, 7")
    a(f"s_add_u32 s{sW2}, s{sW2}, s{sT1}")
    a(f"s_lshl_b32 s{sRing}, s{sGW}, 13")
    a(f"s_add_u32 s{sRing}, s{sRing}, {L_RING}")
    a(f"v_lshrrev_b32 v{vT0}, 3, v{vLane}")
    a(f"v_bfe_u32 v{vT1}, v{vLane}, 4, 1")
    a(f"v_lshlrev_b32 v{vT1}, 2, v{vT1}")
    a(f"v_and_b32 v{vDW}, 7, v{vLane}")
    a(f"v_xor_b32 v{vDW}, v{vDW}, v{vT1}")
    a(f"v_lshlrev_b32 v{vDW}, 4, v{vDW}")
    a(f"v_lshl_add_u32 v{vDW}, v{vT0}, 10, v{vDW}")
    a(f"v_bfe_u32 v{vT0}, v{vLane}, 2, 2")
    a(f"v_lshrrev_b32 v{vT1}, 5, v{vLane}")
    a(f"v_lshl_add_u32 v{vT0}, v{vT1}, 2, v{vT0}")
    a(f"v_lshlrev_b32 v{vTr0}, 7, v{vT0}")
    a(f"v_bfe_u32 v{vT0}, v{vLane}, 3, 1")
    a(f"v_lshl_add_u32 v{vTr0}, v{vT0}, 6, v{vTr0}")
    a(f"v_and_b32 v{vT0}, 1, v{vLane}")
    a(f"v_lshl_add_u32 v{vTr0}, v{vT0}, 5, v{vTr0}")
    a(f"v_bfe_u32 v{vT0}, v{vLane}, 4, 1")
    a(f"v_lshl_add_u32 v{vTr0}, v{vT0}, 4, v{vTr0}")
    a(f"v_bfe_u32 v{vT0}, v{vLane}, 1, 1")
    a(f"v_lshl_add_u32 v{vTr0}, v{vT0}, 3, v{vTr0}")
    a(f"s_and_b32 s{sT1}, s{sGW}, 1")
    a(f"s_lshl_b32 s{sT1}, s{sT1}, 6")
    a(f"v_xor_b32 v{vTr0}, s{sT1}, v{vTr0}")
    a(f"v_add_u32 v{vTr0}, s{sRing}, v{vTr0}")
    a(f"v_xor_b32 v{vTr1}, 64, v{vTr0}")
    a(f"s_lshl_b32 s{sFG}, s{sTT64}, 9")
    a(f"s_add_u32 s{sFG}, s{sFG}, {WS_FO:#x}")
    a(f"s_lshr_b32 s{sFK}, s{sTT64}, 1")
    a(f"s_lshl_b32 s{sFK}, s{sFK}, 7")
    a(f"s_add_u32 s{sFK}, s{sFK}, {WS_FACT:#x}")
    a("s_waitcnt vmcnt(0)")
    a("s_barrier")
    a("s_setprio 0")
    stamp(a, 5)
    poll(a, [(1, FL, vF16, sFK)], sT1)
    a(f"v_and_b32 v{vT0}, 31, v{vLane}")
    a(f"v_lshlrev_b32 v{vT0}, 2, v{vT0}")
    a(f"s_lshl_b32 s{sT0}, s{sOT}, 7")
    a(f"s_add_u32 s{sT0}, s{sT0}, {WS_G:#x}")
    a(f"s_xor_b32 s{sT1}, s{sT0}, 128")
    a(f"buffer_load_dword v{vG0}, v{vT0}, {sr(S_WS,4)}, s{sT0} offen sc1")
    a(f"buffer_load_dword v{vG1}, v{vT0}, {sr(S_WS,4)}, s{sT1} offen sc1")

    def wdma(st, srdn):
        a(f"s_add_u32 m0, s{sRing}, {st * 2048}")
        a(f"s_add_u32 s{sT0}, s{sW2}, 8192")
        a(f"buffer_load_dwordx4 v{vDW}, {sr(srdn,4)}, s{sW2} offen lds")
        a(f"s_add_u32 m0, s{sRing}, {st * 2048 + 1024}")
        a(f"s_add_u32 s{sW2}, s{sW2}, 16384")
        a(f"buffer_load_dwordx4 v{vDW}, {sr(srdn,4)}, s{sT0} offen lds")

    def group(st):
        wdma(st, S_W2)
        f = AF + 8 * st
        a(f"buffer_load_dwordx4 {vr(f,4)}, v{vL16}, {sr(S_WS,4)}, s{sA0} offen offset:{st*1024} sc1")
        a(f"buffer_load_dwordx4 {vr(f+4,4)}, v{vL16}, {sr(S_WS,4)}, s{sA1} offen offset:{st*1024} sc1")
        if st == 3:
            a(f"s_add_u32 s{sA0}, s{sA0}, 4096")
            a(f"s_add_u32 s{sA1}, s{sA1}, 4096")

    def trreads(st, w):
        for jp, vt in enumerate((vTr0, vTr1)):
            a(f"ds_read_b64_tr_b16 {vr(w+4*jp,2)}, v{vt} offset:{st*2048}")
            a(f"ds_read_b64_tr_b16 {vr(w+4*jp+2,2)}, v{vt} offset:{st*2048+1024}")

    def gmfma(w, f, first):
        for ap in range(2):
            for jp in range(2):
                acc = ACC + 16 * (ap * 2 + jp)
                c = "0" if first else vr(acc, 16)
                a(f"v_mfma_f32_32x32x16_bf16 {vr(acc,16)}, {vr(w+4*jp,4)}, {vr(f+4*ap,4)}, {c}")

    def step(st, first, more, nwait=12):
        a(f"s_waitcnt vmcnt({nwait})")
        w = WF + 8 * (st & 1)
        trreads(st, w)
        a("s_waitcnt lgkmcnt(0)")
        gmfma(w, AF + 8 * st, first)
        if more:
            group(st)

    for st in range(4): group(st)
    for st in range(4): step(st, st == 0, True)
    a(f"s_mov_b32 s{sI}, 0")
    a.label("G_LOOP")
    for st in range(4): step(st, False, True)
    a(f"s_add_u32 s{sI}, s{sI}, 1")
    a(f"s_cmp_lt_u32 s{sI}, 5")
    a("s_cbranch_scc1 G_LOOP")
    for st in range(4): step(st, False, False, 12 - 4 * st)
    stamp(a, 6)
    WOR = 72
    OFR = 136
    a(f"s_lshl_b32 s{sW2}, s{sGW}, 17")
    a(f"s_lshl_b32 s{sT1}, s{sNB}, 7")
    a(f"s_add_u32 s{sW2}, s{sW2}, s{sT1}")
    for st in range(4): wdma(st, S_WO)
    a(f"v_sub_f32 v{vT0}, 1.0, v{vG0}")
    a(f"v_sub_f32 v{vT1}, 1.0, v{vG1}")
    a(f"v_mov_b32 v152, v{vTr0}")
    a(f"v_mov_b32 v153, v{vTr1}")
    vTr0, vTr1 = 152, 153
    a("s_nop 7")
    for q in range(4):
        for i in range(16):
            a(f"v_mul_f32 v{ACC+16*q+i}, v{ACC+16*q+i}, v{vT0 if q < 2 else vT1}")
    def trreads2(st, w):
        for jp, vt in enumerate((vTr0, vTr1)):
            a(f"ds_read_b64_tr_b16 {vr(w+4*jp,2)}, v{vt} offset:{st*2048}")
            a(f"ds_read_b64_tr_b16 {vr(w+4*jp+2,2)}, v{vt} offset:{st*2048+1024}")
    for ks in range(8):
        st = ks & 3
        a(f"s_waitcnt vmcnt({6 if ks < 4 else 6 - 2 * (ks - 4)})")
        trreads2(st, WOR + 8 * ks)
        if ks < 4:
            a("s_waitcnt lgkmcnt(0)")
            wdma(st, S_WO)
    FL = 156
    a(f"s_lshl_b32 s{sA0}, s{sOT}, 15")
    a(f"s_lshl_b32 s{sT3}, s{sGW}, 13")
    a(f"s_add_u32 s{sA0}, s{sA0}, s{sT3}")
    a(f"s_add_u32 s{sA0}, s{sA0}, {WS_OF:#x}")
    a(f"s_xor_b32 s{sA1}, s{sA0}, 32768")
    a(f"s_lshl_b32 s{sLK}, s{sGW}, 14")
    a(f"v_add_u32 v154, s{sLK}, v{vL16}")
    a("s_waitcnt lgkmcnt(0)")
    a("s_barrier")
    a("s_setprio 3")
    poll(a, [(1, FL, vL8, sFG)], sT1)
    stamp(a, 7)
    for ks in range(8):
        dma(sLK, ks * 2048, vL16, S_WS, sA0, ks * 1024, " sc1")
        dma(sLK, ks * 2048 + 1024, vL16, S_WS, sA1, ks * 1024, " sc1")
    for ks in range(8):
        f = OFR + 8 * (ks & 1)
        a(f"s_waitcnt vmcnt({14 - 2 * ks})")
        a(f"ds_read_b128 {vr(f,4)}, v154 offset:{ks*2048}")
        a(f"ds_read_b128 {vr(f+4,4)}, v154 offset:{ks*2048+1024}")
        a("s_waitcnt lgkmcnt(0)")
        gmfma(WOR + 8 * ks, f, False)
    a("s_nop 7")
    a("s_nop 7")
    for q in range(1, 4):
        a(f"s_xor_b32 s{sT0}, s{sGW}, {q}")
        a(f"s_mul_i32 s{sT0}, s{sT0}, 12288")
        a(f"s_add_u32 s{sT0}, s{sT0}, {L_EXCH}")
        a(f"v_add_u32 v{vT0}, s{sT0}, v{vL16}")
        for i in range(4):
            a(f"ds_write_b128 v{vT0}, {vr(ACC+16*q+4*i,4)} offset:{(q-1)*4096 + i*1024}")
    a(f"s_mul_i32 s{sT0}, s{sGW}, 12288")
    a(f"s_add_u32 s{sT0}, s{sT0}, {L_EXCH}")
    a(f"v_add_u32 v{vT0}, s{sT0}, v{vL16}")
    a("s_waitcnt lgkmcnt(0)")
    a("s_barrier")
    R = 72
    for q in range(3):
        for i in range(4):
            a(f"ds_read_b128 {vr(R+16*q+4*i,4)}, v{vT0} offset:{q*4096 + i*1024}")
    a(f"v_and_b32 v{vT0}, 31, v{vLane}")
    a(f"v_lshlrev_b32 v{vT0}, 10, v{vT0}")
    a(f"v_lshrrev_b32 v{vT1}, 5, v{vLane}")
    a(f"v_lshl_add_u32 v{vT0}, v{vT1}, 5, v{vT0}")
    a(f"s_lshl_b32 s{sT0}, s{sOT}, 15")
    a(f"s_lshl_b32 s{sT1}, s{sON}, 6")
    a(f"s_add_u32 s{sT0}, s{sT0}, s{sT1}")
    for q in range(3):
        a(f"s_waitcnt lgkmcnt({8 - 4 * q})")
        for i in range(16):
            a(f"v_add_f32 v{ACC+i}, v{ACC+i}, v{R+16*q+i}")
    cvt16(a, ACC)
    a(f"buffer_store_dwordx4 {vr(ACC,4)}, v{vT0}, {sr(S_OUT,4)}, s{sT0} offen")
    a(f"buffer_store_dwordx4 {vr(ACC+4,4)}, v{vT0}, {sr(S_OUT,4)}, s{sT0} offen offset:16")
    if STAMPS: a("s_waitcnt vmcnt(0)")
    stamp(a, 9); stamp(a, 8, True)
    stamp_flush(a)


def main():
    ref = open(f"cdna_kernels/{NAME}.s.ref").read().split("\n")
    head = [l for l in ref if l.startswith(";") and "@launch" not in l]
    a = A()
    name = gen(a)
    out = "\n".join(head) + "\n"
    if ASLIST:
        out += f"; @launch kernel={name} grid=(256,1,1) block=(768,1,1) lds={LDS_TOTAL}\n"
    else:
        out += f"; @launch grid=(256,1,1) block=(768,1,1) lds={LDS_TOTAL}\n"
    out += '.amdgcn_target "amdgcn-amd-amdhsa--gfx950"\n'
    out += a.text()
    out += f""".section .rodata,"a"
.p2align 6
.amdhsa_kernel {name}
  .amdhsa_next_free_vgpr 168
  .amdhsa_next_free_sgpr {102 if STAMPS else 82}
  .amdhsa_accum_offset 168
  .amdhsa_group_segment_fixed_size 0
  .amdhsa_kernarg_size 88
  .amdhsa_user_sgpr_count 2
  .amdhsa_user_sgpr_kernarg_segment_ptr 1
  .amdhsa_system_sgpr_workgroup_id_x 1
.end_amdhsa_kernel
"""
    path = sys.argv[1] if len(sys.argv) > 1 else f"cdna_kernels/{NAME}.s"
    open(path, "w").write(out)
    print("wrote", path, len(out), "bytes")

main()
```

```python
import struct, sys, math, os

NAME = "gated_mix__mha_block__dense_activation_mish__prompt"
STAMPS = int(os.environ.get("STAMPS", "0"))
ASLIST = int(os.environ.get("ASLIST", "0"))
X = os.environ.get("X", "")

def f32(x):
    return "0x%08x" % struct.unpack("<I", struct.pack("<f", x))[0]

LOG2E = math.log2(math.e)

WS_QF  = 0x0000000
WS_KV  = 0x0200000
WS_ACT = 0x0600000
WS_G   = 0x0F40000
WS_OF  = 0x1000000
WS_FKV = 0x1800000
WS_FACT = 0x1804000
WS_FO  = 0x1808000
WS_STAMP = 0x2000000
WS_SIZE = 0x10000000

L_X = 0
L_WA = 48 * 1024
L_WB = 96 * 1024
L_GW = 132 * 1024
L_EP = 150 * 1024
L_CNT = 150 * 1024 + 16
L_RING = 128 * 1024
L_Q = 152 * 1024
L_EXCH = 64 * 1024
LDS_TOTAL = 160 * 1024

SPIN_MAX = 200000


class A:
    def __init__(self):
        self.l = []
        self.n = 0
    def __call__(self, s):
        for line in s.strip("\n").split("\n"):
            self.l.append("    " + line.strip())
    def label(self, s):
        self.l.append(s + ":")
    def raw(self, s):
        self.l.append(s)
    def uniq(self, p):
        self.n += 1
        return f"{p}_{self.n}"
    def text(self):
        return "\n".join(self.l) + "\n"


def vr(b, n):
    return "v[%d:%d]" % (b, b + n - 1)

def sr(b, n):
    return "s[%d:%d]" % (b, b + n - 1)

def srd(a, dst, ptr, nbytes):
    a(f"s_mov_b32 s{dst}, s{ptr}")
    a(f"s_and_b32 s{dst+1}, s{ptr+1}, 0xffff")
    a(f"s_mov_b32 s{dst+2}, {nbytes:#x}")
    a(f"s_mov_b32 s{dst+3}, 0x00020000")

S_X, S_WQ, S_W1, S_WS, S_B1, S_W2, S_WO, S_GW, S_OUT, S_DBG = 28, 32, 36, 40, 44, 48, 52, 56, 60, 64
sW, sRB, sCG, sTG, sTT, sFT0 = 68, 69, 70, 71, 72, 73
sT0, sT1, sT2, sT3 = 74, 75, 76, 77
sEP = 78
vLane, vL16, vT0, vT1 = 1, 2, 3, 4

def stamp(a, i, real=False):
    if not STAMPS: return
    a(f"{'s_memrealtime' if real else 's_memtime'} s[{82+2*i}:{83+2*i}]")
    a("s_waitcnt lgkmcnt(0)")

def stamp_flush(a, n=10):
    if not STAMPS: return
    a("s_mov_b64 exec, 1")
    for i in range(n):
        a(f"v_mov_b32 v{i+1}, s{82+2*i}")
    a(f"s_lshl_b32 s80, s2, 4")
    a(f"s_add_u32 s80, s80, s{sW}")
    a(f"s_lshl_b32 s80, s80, 6")
    a(f"s_add_u32 s80, s80, {WS_STAMP:#x}")
    for i in range(n):
        a(f"buffer_store_dword v{i+1}, off, {sr(S_WS,4)}, s80 offset:{4*i}")
    if STAMPS == 2:
        L = a.uniq("NODBG")
        a(f"s_lshl_b32 s80, s2, 4")
        a(f"s_add_u32 s80, s80, s{sW}")
        a(f"s_cmp_eq_u32 s80, {77*16+8}")
        a(f"s_cbranch_scc0 {L}")
        a("v_sub_u32 v9, v9, v1")
        for i in (3, 4, 5, 6, 7, 8, 10):
            a(f"v_sub_u32 v{i}, v{i}, v2")
        for i in range(2, n):
            a(f"buffer_store_dword v{i+1}, off, {sr(S_DBG,4)}, 0 offset:{4*i}")
        a.label(L)


def mish16(a, acc, tmp, dst):
    for g in range(4):
        e = [acc + 4 * g + i for i in range(4)]
        t = [tmp + i for i in range(4)]
        u = [tmp + 4 + i for i in range(4)]
        for i in range(4): a(f"v_mul_f32 v{t[i]}, {f32(LOG2E)}, v{e[i]}")
        for i in range(4): a(f"v_min_f32 v{t[i]}, {f32(40.0)}, v{t[i]}")
        for i in range(4): a(f"v_exp_f32 v{t[i]}, v{t[i]}")
        for i in range(4): a(f"v_add_f32 v{u[i]}, 2.0, v{t[i]}")
        for i in range(4): a(f"v_mul_f32 v{t[i]}, v{t[i]}, v{u[i]}")
        for i in range(4): a(f"v_add_f32 v{u[i]}, 2.0, v{t[i]}")
        for i in range(4): a(f"v_rcp_f32 v{u[i]}, v{u[i]}")
        for i in range(4): a(f"v_mul_f32 v{t[i]}, v{t[i]}, v{u[i]}")
        for i in range(4): a(f"v_mul_f32 v{t[i]}, v{e[i]}, v{t[i]}")
        a(f"v_cvt_pk_bf16_f32 v{dst + 2 * g}, v{t[0]}, v{t[1]}")
        a(f"v_cvt_pk_bf16_f32 v{dst + 2 * g + 1}, v{t[2]}, v{t[3]}")

def cvt16(a, acc):
    for i in range(8):
        a(f"v_cvt_pk_bf16_f32 v{acc + i}, v{acc + 2 * i}, v{acc + 2 * i + 1}")

def flag_store(a, soff, vtmp, cnt):
    L = a.uniq("NOFLAG")
    if cnt is None:
        a(f"v_mov_b32 v{vtmp}, s{sEP}")
        a(f"v_mov_b32 v{vtmp+1}, s{sEP+1}")
        a("s_mov_b64 exec, 1")
        a(f"buffer_store_dwordx2 {vr(vtmp,2)}, off, {sr(S_WS,4)}, s{soff} sc1")
        a("s_mov_b64 exec, -1")
        return
    a("s_mov_b64 exec, 1")
    a(f"v_mov_b32 v{vtmp}, {cnt}")
    a(f"v_mov_b32 v{vtmp+1}, 1")
    a(f"ds_add_rtn_u32 v{vtmp}, v{vtmp}, v{vtmp+1}")
    a("s_waitcnt lgkmcnt(0)")
    a(f"v_readfirstlane_b32 s{sT3}, v{vtmp}")
    a(f"v_mov_b32 v{vtmp}, s{sEP}")
    a(f"v_mov_b32 v{vtmp+1}, s{sEP+1}")
    a(f"s_cmp_eq_u32 s{sT3}, 7")
    a(f"s_cbranch_scc0 {L}")
    a(f"buffer_store_dwordx2 {vr(vtmp,2)}, off, {sr(S_WS,4)}, s{soff} sc1")
    a.label(L)
    a("s_mov_b64 exec, -1")

def poll(a, loads, scnt):
    L = a.uniq("POLL"); D = a.uniq("POLLD")
    a(f"s_mov_b32 s{scnt}, 0")
    a.label(L)
    for nf, vd, vo, so in loads:
        op = "buffer_load_dwordx4" if nf == 2 else "buffer_load_dwordx2"
        a(f"{op} {vr(vd, 2*nf)}, v{vo}, {sr(S_WS,4)}, s{so} offen sc1")
    a("s_waitcnt vmcnt(0)")
    first = True
    for nf, vd, vo, so in loads:
        for k in range(nf):
            if first:
                a(f"v_cmp_ne_u64 vcc, {sr(sEP,2)}, {vr(vd+2*k,2)}")
                first = False
            else:
                a(f"v_cmp_ne_u64 {sr(sT2,2)}, {sr(sEP,2)}, {vr(vd+2*k,2)}")
                a("s_nop 1")
                a(f"s_or_b64 vcc, vcc, {sr(sT2,2)}")
    a("s_nop 1")
    a("s_cmp_eq_u64 vcc, 0")
    a(f"s_cbranch_scc1 {D}")
    a("s_sleep 4")
    a(f"s_add_u32 s{scnt}, s{scnt}, 1")
    a(f"s_cmp_lt_u32 s{scnt}, {SPIN_MAX}")
    a(f"s_cbranch_scc1 {L}")
    a.label(D)


def gen(a):
    name = NAME + "_kernel"
    a.raw(".text")
    a.raw(f".globl {name}")
    a.raw(".p2align 8")
    a.raw(f".type {name},@function")
    a.label(name)
    a("s_cmp_ge_u32 s2, 256")
    a("s_cbranch_scc1 K_END")
    stamp(a, 0, True); stamp(a, 1)
    a("s_load_dwordx16 s[4:19], s[0:1], 0")
    a("s_load_dwordx4 s[20:23], s[0:1], 64")
    a("s_load_dwordx2 s[24:25], s[0:1], 80")
    a(f"v_and_b32 v{vLane}, 63, v0")
    a(f"v_lshrrev_b32 v{vT0}, 6, v0")
    a(f"v_lshlrev_b32 v{vL16}, 4, v{vLane}")
    a(f"v_readfirstlane_b32 s{sW}, v{vT0}")
    a(f"s_and_b32 s{sT0}, s2, 7")
    a(f"s_lshr_b32 s{sT1}, s2, 3")
    a(f"s_and_b32 s{sRB}, s{sT0}, 1")
    a(f"s_lshl_b32 s{sRB}, s{sRB}, 3")
    a(f"s_and_b32 s{sT2}, s{sT1}, 7")
    a(f"s_add_u32 s{sRB}, s{sRB}, s{sT2}")
    a(f"s_lshr_b32 s{sCG}, s{sT0}, 1")
    a(f"s_lshl_b32 s{sCG}, s{sCG}, 2")
    a(f"s_lshr_b32 s{sT2}, s{sT1}, 3")
    a(f"s_add_u32 s{sCG}, s{sCG}, s{sT2}")
    a(f"s_and_b32 s{sTG}, s{sW}, 3")
    a(f"s_lshl_b32 s{sTT}, s{sRB}, 2")
    a(f"s_add_u32 s{sTT}, s{sTT}, s{sTG}")
    a(f"s_lshr_b32 s{sT0}, s{sCG}, 1")
    a(f"s_mul_i32 s{sFT0}, s{sT0}, 7")
    a(f"s_and_b32 s{sT0}, s{sCG}, 1")
    a(f"s_lshl_b32 s{sT0}, s{sT0}, 2")
    a(f"s_add_u32 s{sFT0}, s{sFT0}, s{sT0}")
    a("s_waitcnt lgkmcnt(0)")
    srd(a, S_X, 4, 2048 * 512 * 2)
    srd(a, S_WQ, 6, 512 * 1536 * 2)
    srd(a, S_W1, 12, 512 * 1792 * 2)
    srd(a, S_WS, 24, WS_SIZE)
    srd(a, S_B1, 14, 1792 * 2)
    srd(a, S_W2, 16, 1792 * 512 * 2)
    srd(a, S_WO, 8, 512 * 512 * 2)
    srd(a, S_GW, 18, 1024)
    srd(a, S_OUT, 20, 2048 * 512 * 2)
    srd(a, S_DBG, 22, 256)
    a(f"s_cmp_ge_u32 s{sW}, 8")
    a("s_cbranch_scc1 G_START")

    gen_A(a)
    gen_G(a)
    a.label("K_END")
    a("s_endpgm")
    return name


def gen_A(a):
    vXrd, vWrd, vGrd, vT2 = 5, 9, 10, 11
    FA, FB = 16, 36
    ACC = 64
    TMP = 16
    vFl = 14
    a(f"s_lshl_b32 s{sT0}, s{sTG}, 12")
    a(f"v_and_b32 v{vT0}, 31, v{vLane}")
    a(f"v_lshrrev_b32 v{vT1}, 5, v{vLane}")
    a(f"v_bfe_u32 v{vT2}, v{vLane}, 1, 3")
    a(f"v_xor_b32 v{vT2}, v{vT2}, v{vT1}")
    a(f"v_lshlrev_b32 v{vT0}, 7, v{vT0}")
    a(f"v_add_u32 v{vT0}, s{sT0}, v{vT0}")
    for ks in range(4):
        a(f"v_xor_b32 v{vXrd+ks}, {2*ks}, v{vT2}")
        a(f"v_lshl_add_u32 v{vXrd+ks}, v{vXrd+ks}, 4, v{vT0}")
    a(f"v_lshlrev_b32 v{vGrd}, 4, v{vT1}")
    a(f"v_add_u32 v{vGrd}, {L_GW}, v{vGrd}")
    a(f"v_bfe_u32 v{vT0}, v{vLane}, 2, 2")
    a(f"v_lshl_add_u32 v{vT0}, v{vT1}, 3, v{vT0}")
    a(f"v_lshlrev_b32 v{vWrd}, 6, v{vT0}")
    a(f"v_bfe_u32 v{vT0}, v{vLane}, 4, 1")
    a(f"v_lshl_add_u32 v{vWrd}, v{vT0}, 5, v{vWrd}")
    a(f"v_and_b32 v{vT0}, 3, v{vLane}")
    a(f"v_lshl_add_u32 v{vWrd}, v{vT0}, 3, v{vWrd}")
    a(f"v_lshlrev_b32 v{vT2}, 3, v{vT1}")
    a(f"s_cmp_ge_u32 s{sW}, 4")
    a("s_cbranch_scc1 A_ROLE1")

    def bias_init(acc, ftl):
        a(f"s_add_u32 s{sT0}, s{sFT0}, {ftl}")
        a(f"s_lshl_b32 s{sT0}, s{sT0}, 6")
        for g in range(4):
            a(f"buffer_load_dwordx2 {vr(acc + 4 * g + 2, 2)}, v{vT2}, {sr(S_B1,4)}, s{sT0} offen offset:{g*16}")

    def bias_unpack(acc):
        for g in range(4):
            b = acc + 4 * g
            a(f"v_lshlrev_b32 v{b}, 16, v{b+2}")
            a(f"v_and_b32 v{b+1}, 0xffff0000, v{b+2}")
            a(f"v_lshlrev_b32 v{b+2}, 16, v{b+3}")
            a(f"v_and_b32 v{b+3}, 0xffff0000, v{b+3}")

    def role(r, odd):
        if r == 0:
            tiles = ["Q", "K", "F0", "F1"]
            wbase, wslot = L_WA, 16384
        else:
            tiles = ["V", "F2", "G" if odd else "F3"]
            wbase, wslot = L_WB, 12288

        def reads(s, ks, F):
            slot = s % 3
            n = 0
            a(f"ds_read_b128 {vr(F,4)}, v{vXrd+ks} offset:{L_X + slot * 16384}")
            n += 1
            for t, kind in enumerate(tiles):
                if kind == "G":
                    a(f"ds_read_b128 {vr(F+4+4*t,4)}, v{vGrd} offset:{(s*4+ks)*32}")
                    n += 1
                else:
                    off = slot * wslot + t * 4096 + ks * 1024
                    a(f"ds_read_b64_tr_b16 {vr(F+4+4*t,2)}, v{vWrd} offset:{off}")
                    a(f"ds_read_b64_tr_b16 {vr(F+4+4*t+2,2)}, v{vWrd} offset:{off+256}")
                    n += 2
            return n

        def mfmas(F, first):
            for t, kind in enumerate(tiles):
                acc = ACC + 16 * t
                c = "0" if (first and kind[0] != "F") else vr(acc, 16)
                if kind == "V":
                    a(f"v_mfma_f32_32x32x16_bf16 {vr(acc,16)}, {vr(F,4)}, {vr(F+4+4*t,4)}, {c}")
                else:
                    a(f"v_mfma_f32_32x32x16_bf16 {vr(acc,16)}, {vr(F+4+4*t,4)}, {vr(F,4)}, {c}")

        a(f"v_add_u32 v{vWrd}, {wbase}, v{vWrd}")
        for t, kind in enumerate(tiles):
            if kind[0] == "F":
                bias_init(ACC + 16 * t, int(kind[1]))
        a("s_waitcnt vmcnt(0)")
        for t, kind in enumerate(tiles):
            if kind[0] == "F":
                bias_unpack(ACC + 16 * t)
        a("s_barrier")
        stamp(a, 2)
        reads(0, 0, FA)
        for s in range(8):
            for ks in range(4):
                cur, nxt = (FA, FB) if ks % 2 == 0 else (FB, FA)
                if ks < 3:
                    nr = reads(s, ks + 1, nxt)
                    a(f"s_waitcnt lgkmcnt({nr})")
                else:
                    a("s_waitcnt lgkmcnt(0)")
                    a("s_barrier")
                    if s < 7:
                        reads(s + 1, 0, nxt)
                    else:
                        a(f"v_mov_b32 v{vT0}, {L_EP}")
                        a(f"ds_read_b64 {vr(vFl,2)}, v{vT0}")
                mfmas(cur, s == 0 and ks == 0)
        a("s_waitcnt lgkmcnt(0)")
        a(f"v_readfirstlane_b32 s{sEP}, v{vFl}")
        a(f"v_readfirstlane_b32 s{sEP+1}, v{vFl+1}")
        a("s_nop 7")
        a("s_nop 4")
        stamp(a, 3)
        for t, kind in enumerate(tiles):
            acc = ACC + 16 * t
            if kind == "Q":
                for i in range(16):
                    a(f"v_mul_f32 v{acc+i}, {f32(0.25 * LOG2E)}, v{acc+i}")
                cvt16(a, acc)
                a(f"s_lshl_b32 s{sT0}, s{sCG}, 17")
                a(f"s_lshl_b32 s{sT1}, s{sTT}, 10")
                a(f"s_add_u32 s{sT0}, s{sT0}, s{sT1}")
                a(f"s_add_u32 s{sT0}, s{sT0}, {WS_QF:#x}")
                a(f"s_add_u32 s{sT1}, s{sT0}, 65536")
                a(f"buffer_store_dwordx4 {vr(acc,4)}, v{vL16}, {sr(S_WS,4)}, s{sT0} offen sc1")
                a(f"buffer_store_dwordx4 {vr(acc+4,4)}, v{vL16}, {sr(S_WS,4)}, s{sT1} offen sc1")
            elif kind == "K":
                cvt16(a, acc)
                a(f"v_and_b32 v{vT0}, 0x33, v{vLane}")
                a(f"v_bfe_u32 v{vT1}, v{vLane}, 2, 1")
                a(f"v_lshl_add_u32 v{vT0}, v{vT1}, 3, v{vT0}")
                a(f"v_bfe_u32 v{vT1}, v{vLane}, 3, 1")
                a(f"v_lshl_add_u32 v{vT0}, v{vT1}, 2, v{vT0}")
                a(f"v_lshlrev_b32 v{vT0}, 4, v{vT0}")
                a(f"s_lshl_b32 s{sT0}, s{sCG}, 18")
                a(f"s_lshl_b32 s{sT1}, s{sTT}, 11")
                a(f"s_add_u32 s{sT0}, s{sT0}, s{sT1}")
                a(f"s_add_u32 s{sT0}, s{sT0}, {WS_KV:#x}")
                a(f"s_add_u32 s{sT1}, s{sT0}, 131072")
                a(f"buffer_store_dwordx4 {vr(acc,4)}, v{vT0}, {sr(S_WS,4)}, s{sT0} offen sc1")
                a(f"buffer_store_dwordx4 {vr(acc+4,4)}, v{vT0}, {sr(S_WS,4)}, s{sT1} offen sc1")
            elif kind == "V":
                cvt16(a, acc)
                a(f"v_and_b32 v{vT0}, 0x2f, v{vLane}")
                a(f"v_lshlrev_b32 v{vT0}, 4, v{vT0}")
                a(f"v_bfe_u32 v{vT1}, v{vLane}, 4, 1")
                a(f"v_lshl_add_u32 v{vT0}, v{vT1}, 17, v{vT0}")
                a(f"s_lshl_b32 s{sT0}, s{sCG}, 18")
                a(f"s_lshl_b32 s{sT1}, s{sTT}, 11")
                a(f"s_add_u32 s{sT0}, s{sT0}, s{sT1}")
                a(f"s_add_u32 s{sT0}, s{sT0}, {WS_KV:#x}")
                a(f"buffer_store_dwordx4 {vr(acc,4)}, v{vT0}, {sr(S_WS,4)}, s{sT0} offen offset:1024 sc1")
                a(f"buffer_store_dwordx4 {vr(acc+4,4)}, v{vT0}, {sr(S_WS,4)}, s{sT0} offen offset:1280 sc1")
            elif kind == "G":
                a(f"v_mul_f32 v{acc}, {f32(-LOG2E)}, v{acc}")
                a(f"v_exp_f32 v{acc}, v{acc}")
                a("s_nop 0")
                a(f"v_add_f32 v{acc}, 1.0, v{acc}")
                a(f"v_rcp_f32 v{acc}, v{acc}")
                a(f"v_and_b32 v{vT0}, 31, v{vLane}")
                a(f"v_lshlrev_b32 v{vT0}, 2, v{vT0}")
                a(f"s_lshl_b32 s{sT0}, s{sTT}, 7")
                a(f"s_add_u32 s{sT0}, s{sT0}, {WS_G:#x}")
                a(f"buffer_store_dword v{acc}, v{vT0}, {sr(S_WS,4)}, s{sT0} offen sc1")
        ft = [(t, int(kind[1])) for t, kind in enumerate(tiles) if kind[0] == "F"]
        for n, (t, ftl) in enumerate(ft):
            acc = ACC + 16 * t
            mish16(a, acc, TMP, 128 + 8 * n)
            if n == 0:
                a("s_waitcnt vmcnt(0)")
                a(f"s_lshl_b32 s{sT0}, s{sCG}, 7")
                a(f"s_lshl_b32 s{sT1}, s{sRB}, 3")
                a(f"s_add_u32 s{sT0}, s{sT0}, s{sT1}")
                a(f"s_add_u32 s{sT0}, s{sT0}, {WS_FKV:#x}")
                flag_store(a, sT0, vFl, L_CNT)
                stamp(a, 4)
        a(f"s_mul_i32 s13, s{sTT}, 112")
        a(f"s_lshl_b32 s{sT1}, s{sFT0}, 1")
        a(f"s_add_u32 s13, s13, s{sT1}")
        a(f"s_lshl_b32 s13, s13, 10")
        a(f"s_add_u32 s13, s13, {WS_ACT + ft[0][1] * 2048:#x}")
        a(f"s_mov_b32 s14, {len(ft)}")
        a("s_branch A_PH2")

    role(0, False)
    a.label("A_ROLE1")
    a(f"s_bitcmp1_b32 s{sCG}, 0")
    a("s_cbranch_scc1 A_ROLE1_ODD")
    role(1, False)
    a.label("A_ROLE1_ODD")
    role(1, True)

    a.label("A_PH2")
    sHead, sQT, sI, sB1, sB2, sPass = 4, 5, 6, 7, 8, 9
    sMask = 10
    vAddr, vIdx, vG = 5, 6, 7
    Q = 8
    KB = [12, 16]
    VB = [20, 28]
    S = [36, 52]
    C = 68
    O = 84
    vFl = 100
    a(f"s_lshl_b32 s12, s{sRB}, 7")
    a(f"s_lshl_b32 s{sT1}, s{sCG}, 3")
    a(f"s_add_u32 s12, s12, s{sT1}")
    a(f"s_add_u32 s12, s12, {WS_FACT:#x}")
    a(f"s_and_b32 s{sT0}, s2, 7")
    a(f"s_lshl_b32 s{sHead}, s{sT0}, 2")
    a(f"s_bfe_u32 s{sT0}, s2, 0x20003")
    a(f"s_add_u32 s{sHead}, s{sHead}, s{sT0}")
    a(f"s_lshr_b32 s{sQT}, s2, 5")
    a(f"s_lshl_b32 s{sQT}, s{sQT}, 3")
    a(f"s_add_u32 s{sQT}, s{sQT}, s{sW}")
    a(f"v_mov_b32 v{vIdx}, 0xdddddddd")
    a(f"s_mov_b32 s{sMask}, 0x0000ffff")
    a(f"s_mov_b32 s{sMask+1}, 0x0000ffff")
    a(f"v_and_b32 v{vT0}, 27, v{vLane}")
    a(f"v_cmp_eq_u32 vcc, 16, v{vT0}")
    a(f"v_mov_b32 v{vT1}, 0x3f803f80")
    a("s_nop 0")
    a(f"v_cndmask_b32 v{vT0}, 0, v{vT1}, vcc")
    for b in VB:
        for i in range(8):
            a(f"v_mov_b32 v{b+i}, v{vT0}")
    a(f"v_mov_b32 v{vAddr}, v{vL16}")
    a(f"s_mov_b32 s{sB1}, 1")
    a(f"s_mov_b32 s{sB2}, 3")
    a(f"s_mov_b32 s{sPass}, 0")
    a(f"s_lshl_b32 s{sT0}, s{sW}, 10")
    a(f"s_add_u32 s{sT0}, s{sT0}, {L_Q}")
    a(f"v_add_u32 v{vT1}, s{sT0}, v{vL16}")
    for i in range(16):
        a(f"v_mov_b32 v{O+i}, 0")
    a("s_setprio 2")
    stamp(a, 5)
    a("s_barrier")
    stamp(a, 6)
    a(f"ds_read_b128 {vr(Q,4)}, v{vT1}")
    a(f"ds_read_b128 {vr(KB[0],4)}, v{vAddr} offset:0")
    a(f"v_and_b32 v{vT0}, 31, v{vLane}")
    a(f"v_lshlrev_b32 v{vT0}, 2, v{vT0}")
    a(f"s_lshl_b32 s{sT0}, s{sQT}, 7")
    a(f"s_add_u32 s{sT0}, s{sT0}, {WS_G:#x}")
    a(f"buffer_load_dword v{vG}, v{vT0}, {sr(S_WS,4)}, s{sT0} offen sc1")
    a(f"buffer_store_dwordx4 {vr(128,4)}, v{vL16}, {sr(S_WS,4)}, s13 offen sc1")
    a(f"buffer_store_dwordx4 {vr(132,4)}, v{vL16}, {sr(S_WS,4)}, s13 offen offset:1024 sc1")
    a("s_cmp_lt_u32 s14, 2")
    a("s_cbranch_scc1 A_NOACT2")
    a(f"buffer_store_dwordx4 {vr(136,4)}, v{vL16}, {sr(S_WS,4)}, s13 offen offset:2048 sc1")
    a(f"buffer_store_dwordx4 {vr(140,4)}, v{vL16}, {sr(S_WS,4)}, s13 offen offset:3072 sc1")
    a.label("A_NOACT2")
    a("s_waitcnt lgkmcnt(0)")
    a(f"v_mfma_f32_32x32x16_bf16 {vr(S[0],16)}, {vr(KB[0],4)}, {vr(Q,4)}, 0")
    a("s_nop 7")
    a("s_nop 7")
    s0 = S[0]
    a(f"v_max3_f32 v{vT0}, v{s0}, v{s0+1}, v{s0+2}")
    for i in range(3, 15, 2):
        a(f"v_max3_f32 v{vT0}, v{vT0}, v{s0+i}, v{s0+i+1}")
    a(f"v_max_f32 v{vT0}, v{vT0}, v{s0+15}")
    a.label("A_SETMAX")
    a(f"v_mov_b32 v{vT1}, v{vT0}")
    a("s_nop 1")
    a(f"v_permlane32_swap_b32 v{vT0}, v{vT1}")
    a("s_nop 1")
    a(f"v_max_f32 v{vT0}, v{vT0}, v{vT1}")
    for i in range(16):
        a(f"v_sub_f32 v{C+i}, 0, v{vT0}")
    a(f"ds_read_b128 {vr(KB[0],4)}, v{vAddr} offset:0")
    a(f"ds_read_b128 {vr(KB[1],4)}, v{vAddr} offset:2048")
    a(f"s_mov_b64 exec, {sr(sMask,2)}")
    a(f"ds_read_b128 {vr(VB[0],4)}, v{vAddr} offset:1024")
    a(f"ds_read_b128 {vr(VB[0]+4,4)}, v{vAddr} offset:1280")
    a("s_mov_b64 exec, -1")
    a("s_waitcnt lgkmcnt(0)")
    a(f"v_mfma_f32_32x32x16_bf16 {vr(S[0],16)}, {vr(KB[0],4)}, {vr(Q,4)}, {vr(C,16)}")
    a(f"s_mov_b32 s{sI}, 0")
    for i in range(8, 16):
        a(f"v_mov_b32 v{S[1]+i}, 0")
    a("s_nop 7")
    a.raw(".p2align 6")
    a.label("A_LOOP")
    a(f"s_cmp_eq_u32 s{sI}, s{sB1}")
    a("s_cbranch_scc0 A_NB1")
    a("s_barrier")
    a("s_nop 0")
    a.label("A_NB1")
    a(f"s_cmp_eq_u32 s{sI}, s{sB2}")
    a("s_cbranch_scc0 A_NB2")
    a("s_waitcnt vmcnt(0)")
    flag_store(a, 12, vFl, L_CNT + 4)
    a("s_barrier")
    a.raw(".p2align 3")
    a.label("A_NB2")
    a(f"s_cmp_eq_u32 s{sI}, 10")
    a("s_cbranch_scc0 A_NP1")
    a("s_setprio 1")
    a("s_nop 0")
    a.label("A_NP1")
    a(f"s_cmp_eq_u32 s{sI}, 14")
    a("s_cbranch_scc0 A_NP2")
    a("s_setprio 0")
    a("s_nop 0")
    a.label("A_NP2")
    for u in range(4):
        p = u & 1
        cur, nxt = S[p], S[1 - p]
        def E(lo, hi):
            for i in range(lo, hi):
                a(f"v_exp_f32 v{cur+i}, v{cur+i}")
        E(0, 2)
        a(f"v_smfmac_f32_32x32x32_bf16 {vr(O,16)}, {vr(VB[1-p]+4,4)}, {vr(nxt+8,8)}, v{vIdx}")
        E(2, 7)
        a("s_waitcnt lgkmcnt(0)")
        a(f"v_mfma_f32_32x32x16_bf16 {vr(nxt,16)}, {vr(KB[1-p],4)}, {vr(Q,4)}, {vr(C,16)}")
        a(f"ds_read_b128 {vr(KB[p],4)}, v{vAddr} offset:{(u+2)*2048}")
        E(7, 8)
        a(f"s_mov_b64 exec, {sr(sMask,2)}")
        a(f"ds_read_b128 {vr(VB[1-p],4)}, v{vAddr} offset:{(u+1)*2048+1024}")
        a(f"ds_read_b128 {vr(VB[1-p]+4,4)}, v{vAddr} offset:{(u+1)*2048+1280}")
        a("s_mov_b64 exec, -1")
        E(8, 13)
        a(f"v_smfmac_f32_32x32x32_bf16 {vr(O,16)}, {vr(VB[p],4)}, {vr(cur,8)}, v{vIdx}")
        if u == 3:
            a(f"v_add_u32 v{vAddr}, 8192, v{vAddr}")
            E(13, 16)
            a(f"s_add_u32 s{sI}, s{sI}, 1")
            a(f"s_cmp_lt_u32 s{sI}, 16")
        else:
            a(f"v_exp_f32_e64 v{cur+13}, v{cur+13}")
            E(14, 16)
    a("s_cbranch_scc1 A_LOOP")
    a("s_nop 1")
    a(f"v_smfmac_f32_32x32x32_bf16 {vr(O,16)}, {vr(VB[1]+4,4)}, {vr(S[1]+8,8)}, v{vIdx}")
    a("s_waitcnt lgkmcnt(0)")
    a("s_nop 7")
    a("s_nop 7")
    a(f"s_cmp_lg_u32 s{sPass}, 0")
    a("s_cbranch_scc1 A_FIN")
    a(f"v_max3_f32 v{vT0}, |v{O}|, |v{O+1}|, |v{O+2}|")
    a(f"v_max3_f32 v{vT0}, v{vT0}, |v{O+3}|, |v{O+4}|")
    a(f"v_max3_f32 v{vT0}, v{vT0}, |v{O+5}|, |v{O+6}|")
    a(f"v_max_f32 v{vT0}, v{vT0}, |v{O+7}|")
    a(f"v_mov_b32 v{vT1}, 0x7f800000")
    a(f"v_cmp_nlt_f32 vcc, v{vT0}, v{vT1}")
    a(f"v_mov_b32 v{vT1}, {f32(2.0**30)}")
    a(f"v_cmp_nlt_f32 {sr(sT2,2)}, v{O+8}, v{vT1}")
    a("s_nop 1")
    a(f"s_or_b64 vcc, vcc, {sr(sT2,2)}")
    a("s_cbranch_scc0 A_FIN")
    a(f"s_mov_b32 s{sPass}, 1")
    a(f"s_mov_b32 s{sB1}, 100")
    a(f"s_mov_b32 s{sB2}, 100")
    a(f"v_mov_b32 v{vAddr}, v{vL16}")
    a(f"v_mov_b32 v{vT0}, 0xff800000")
    a(f"s_mov_b32 s{sI}, 0")
    a.label("A_MAXLOOP")
    a(f"ds_read_b128 {vr(KB[0],4)}, v{vAddr} offset:0")
    a("s_waitcnt lgkmcnt(0)")
    a(f"v_mfma_f32_32x32x16_bf16 {vr(S[0],16)}, {vr(KB[0],4)}, {vr(Q,4)}, 0")
    a(f"v_add_u32 v{vAddr}, 2048, v{vAddr}")
    a("s_nop 7")
    a("s_nop 7")
    for i in range(0, 16, 2):
        a(f"v_max3_f32 v{vT0}, v{vT0}, v{s0+i}, v{s0+i+1}")
    a(f"s_add_u32 s{sI}, s{sI}, 1")
    a(f"s_cmp_lt_u32 s{sI}, 64")
    a("s_cbranch_scc1 A_MAXLOOP")
    a(f"v_mov_b32 v{vAddr}, v{vL16}")
    for i in range(16):
        a(f"v_mov_b32 v{O+i}, 0")
    a("s_branch A_SETMAX")
    a.label("A_FIN")
    stamp(a, 7)
    a(f"v_rcp_f32 v{vT0}, v{O+8}")
    a("s_waitcnt vmcnt(0)")
    a(f"v_mul_f32 v{vT0}, v{vT0}, v{vG}")
    for i in range(8):
        a(f"v_mul_f32 v{O+i}, v{O+i}, v{vT0}")
    for i in range(4):
        a(f"v_cvt_pk_bf16_f32 v{O+i}, v{O+2*i}, v{O+2*i+1}")
    a(f"s_lshl_b32 s{sT0}, s{sQT}, 15")
    a(f"s_lshl_b32 s{sT1}, s{sHead}, 10")
    a(f"s_add_u32 s{sT0}, s{sT0}, s{sT1}")
    a(f"s_add_u32 s{sT0}, s{sT0}, {WS_OF:#x}")
    a(f"buffer_store_dwordx4 {vr(O,4)}, v{vL16}, {sr(S_WS,4)}, s{sT0} offen sc1")
    a(f"s_lshr_b32 s{sT0}, s{sQT}, 1")
    a(f"s_lshl_b32 s{sT0}, s{sT0}, 9")
    a(f"s_lshl_b32 s{sT1}, s{sHead}, 4")
    a(f"s_add_u32 s{sT0}, s{sT0}, s{sT1}")
    a(f"s_and_b32 s{sT1}, s{sQT}, 1")
    a(f"s_lshl_b32 s{sT1}, s{sT1}, 3")
    a(f"s_add_u32 s{sT0}, s{sT0}, s{sT1}")
    a(f"s_add_u32 s{sT0}, s{sT0}, {WS_FO:#x}")
    a("s_waitcnt vmcnt(0)")
    flag_store(a, sT0, vFl, None)
    stamp(a, 9); stamp(a, 8, True)
    stamp_flush(a)
    a("s_endpgm")


def gen_G(a):
    a.label("G_START")
    sXoff, sLX, sLW, sWQ0, sW10 = 4, 5, 6, 7, 8
    sGW = sTG
    vDX0, vDX1, vDWq, vDW1, vT2 = 5, 6, 7, 8, 9
    vEp = 14
    a("s_setprio 3")
    a(f"s_lshl_b32 s{sXoff}, s{sTT}, 15")
    a(f"s_lshl_b32 s{sLX}, s{sTG}, 12")
    a(f"s_lshl_b32 s{sLW}, s{sTG}, 10")
    a(f"s_mul_i32 s{sWQ0}, s{sTG}, {16*3072}")
    a(f"s_lshl_b32 s{sT0}, s{sCG}, 6")
    a(f"s_add_u32 s{sWQ0}, s{sWQ0}, s{sT0}")
    a(f"s_mul_i32 s{sW10}, s{sTG}, {16*3584}")
    a(f"s_lshl_b32 s{sT0}, s{sFT0}, 6")
    a(f"s_add_u32 s{sW10}, s{sW10}, s{sT0}")
    a(f"v_lshrrev_b32 v{vT0}, 3, v{vLane}")
    a(f"v_lshrrev_b32 v{vT1}, 4, v{vLane}")
    a(f"v_and_b32 v{vT2}, 7, v{vLane}")
    a(f"v_xor_b32 v{vT2}, v{vT2}, v{vT1}")
    a(f"v_lshlrev_b32 v{vDX0}, 10, v{vT0}")
    a(f"v_lshl_add_u32 v{vDX0}, v{vT2}, 4, v{vDX0}")
    a(f"v_xor_b32 v{vDX1}, 64, v{vDX0}")
    a(f"v_add_u32 v{vDX1}, 8192, v{vDX1}")
    a(f"v_lshrrev_b32 v{vT0}, 2, v{vLane}")
    a(f"v_and_b32 v{vT1}, 3, v{vLane}")
    a(f"v_lshlrev_b32 v{vT1}, 4, v{vT1}")
    a(f"v_mul_u32_u24 v{vDWq}, 3072, v{vT0}")
    a(f"v_add_u32 v{vDWq}, v{vDWq}, v{vT1}")
    a(f"v_mul_u32_u24 v{vDW1}, 3584, v{vT0}")
    a(f"v_add_u32 v{vDW1}, v{vDW1}, v{vT1}")

    def dma(lds_s, lds_imm, voff, srdn, s_base, imm, extra=""):
        a(f"s_add_u32 m0, s{lds_s}, {lds_imm}")
        a(f"s_add_u32 s{sT0}, s{s_base}, {imm}")
        a(f"buffer_load_dwordx4 v{voff}, {sr(srdn,4)}, s{sT0} offen{extra} lds")

    def issue_stage(s):
        slot = s % 3
        for j in range(4):
            dma(sLX, L_X + slot * 16384 + j * 1024, vDX0 if j % 2 == 0 else vDX1, S_X, sXoff, (j >> 1) * 16384 + s * 128)
        dma(sLW, L_WA + slot * 16384 + 0 * 4096, vDWq, S_WQ, sWQ0, s * 64 * 3072 + 0)
        dma(sLW, L_WA + slot * 16384 + 1 * 4096, vDWq, S_WQ, sWQ0, s * 64 * 3072 + 1024)
        dma(sLW, L_WB + slot * 12288 + 0 * 4096, vDWq, S_WQ, sWQ0, s * 64 * 3072 + 2048)
        dma(sLW, L_WA + slot * 16384 + 2 * 4096, vDW1, S_W1, sW10, s * 64 * 3584 + 0)
        dma(sLW, L_WA + slot * 16384 + 3 * 4096, vDW1, S_W1, sW10, s * 64 * 3584 + 64)
        dma(sLW, L_WB + slot * 12288 + 1 * 4096, vDW1, S_W1, sW10, s * 64 * 3584 + 128)
        L = a.uniq("G_NOF3")
        a(f"s_bitcmp1_b32 s{sCG}, 0")
        a(f"s_cbranch_scc1 {L}")
        dma(sLW, L_WB + slot * 12288 + 2 * 4096, vDW1, S_W1, sW10, s * 64 * 3584 + 192)
        a.label(L)

    a(f"s_mov_b32 m0, {L_GW}")
    a("s_nop 0")
    a(f"buffer_load_dwordx4 v{vL16}, {sr(S_GW,4)}, 0 offen lds")
    issue_stage(0)
    a(f"s_lshl_b32 s{sT0}, s2, 4")
    a(f"s_add_u32 s{sT0}, s{sT0}, s{sW}")
    a(f"s_cmp_eq_u32 s{sT0}, 8")
    a("s_cbranch_scc0 G_NOEP")
    a(f"s_memrealtime {sr(sEP,2)}")
    a("s_waitcnt lgkmcnt(0)")
    a(f"s_or_b32 s{sEP}, s{sEP}, 1")
    a(f"v_mov_b32 v{vEp}, s{sEP}")
    a(f"v_mov_b32 v{vEp+1}, s{sEP+1}")
    a("s_mov_b64 exec, 1")
    a(f"buffer_store_dwordx2 {vr(vEp,2)}, off, {sr(S_DBG,4)}, 0 sc1")
    a("s_mov_b64 exec, -1")
    a.label("G_NOEP")
    issue_stage(1)
    a(f"v_mov_b32 v{vT0}, {L_CNT}")
    a(f"v_mov_b32 v10, 0")
    a(f"v_mov_b32 v11, 0")
    a(f"ds_write_b64 v{vT0}, v[10:11]")
    a("s_waitcnt vmcnt(10) lgkmcnt(0)")
    a("s_barrier")
    stamp(a, 2)
    issue_stage(2)
    for s in range(7):
        a(f"s_waitcnt vmcnt({10 if s + 2 <= 7 else 0})")
        if s == 6:
            a(f"s_mov_b32 s{sT1}, 0")
            a.label("G_EPL")
            a(f"v_readfirstlane_b32 s{sEP}, v{vEp}")
            a(f"v_readfirstlane_b32 s{sEP+1}, v{vEp+1}")
            a(f"s_cmp_lg_u32 s{sEP}, 0")
            a("s_cbranch_scc1 G_EPD")
            a("s_sleep 4")
            a(f"buffer_load_dwordx2 {vr(vEp,2)}, off, {sr(S_DBG,4)}, 0 sc1")
            a("s_waitcnt vmcnt(0)")
            a(f"s_add_u32 s{sT1}, s{sT1}, 1")
            a(f"s_cmp_lt_u32 s{sT1}, {SPIN_MAX}")
            a("s_cbranch_scc1 G_EPL")
            a.label("G_EPD")
            a(f"v_mov_b32 v{vT0}, {L_EP}")
            a(f"ds_write_b64 v{vT0}, {vr(vEp,2)}")
            a("s_waitcnt lgkmcnt(0)")
        a("s_barrier")
        if s + 3 <= 7:
            issue_stage(s + 3)
        if s == 4:
            a(f"buffer_load_dwordx2 {vr(vEp,2)}, off, {sr(S_DBG,4)}, 0 sc1")
    sHead, sKV, sLK, sFK, sFG, sQ = 4, 5, 6, 7, 8, 9
    sA0, sA1, sW2, sOT, sON, sI, sRing, sTT64, sNB = 10, 11, 12, 13, 14, 15, 16, 17, 18
    vL8, vF16 = 5, 6
    FL = 124
    a(f"s_and_b32 s{sT0}, s2, 7")
    a(f"s_lshl_b32 s{sHead}, s{sT0}, 2")
    a(f"s_bfe_u32 s{sT0}, s2, 0x20003")
    a(f"s_add_u32 s{sHead}, s{sHead}, s{sT0}")
    a(f"s_lshl_b32 s{sLK}, s{sGW}, 10")
    a(f"s_lshl_b32 s{sKV}, s{sHead}, 17")
    a(f"s_add_u32 s{sKV}, s{sKV}, {WS_KV:#x}")
    a(f"s_add_u32 s{sKV}, s{sKV}, s{sLK}")
    a(f"s_lshr_b32 s{sT0}, s{sHead}, 1")
    a(f"s_lshl_b32 s{sFK}, s{sT0}, 7")
    a(f"s_add_u32 s{sFK}, s{sFK}, {WS_FKV:#x}")
    a(f"s_or_b32 s{sFG}, s{sFK}, 128")
    a(f"s_lshr_b32 s{sT1}, s2, 5")
    a(f"s_lshl_b32 s{sT0}, s{sT1}, 4")
    a(f"s_add_u32 s{sFG}, s{sFG}, s{sT0}")
    a(f"s_sub_u32 s{sFG}, s{sFG}, s{sFK}")
    a(f"s_lshl_b32 s{sQ}, s{sHead}, 16")
    a(f"s_lshl_b32 s{sT0}, s{sT1}, 13")
    a(f"s_add_u32 s{sQ}, s{sQ}, s{sT0}")
    a(f"s_add_u32 s{sQ}, s{sQ}, s{sLK}")
    a(f"s_add_u32 s{sQ}, s{sQ}, {WS_QF:#x}")
    a(f"v_lshlrev_b32 v{vL8}, 3, v{vLane}")
    a(f"v_and_b32 v{vF16}, 0x78, v{vL8}")
    a(f"v_and_b32 v{vT0}, 8, v{vL8}")
    a(f"v_add_u32 v{vT0}, s{sFG}, v{vT0}")
    a(f"v_bfe_u32 v{vT1}, v{vLane}, 4, 2")
    a(f"v_cmp_eq_u32 vcc, 1, v{vT1}")
    a("s_nop 1")
    a(f"v_cndmask_b32 v{vT0}, v{vF16}, v{vT0}, vcc")
    a("s_barrier")
    stamp(a, 3)
    poll(a, [(1, FL, vT0, sFK)], sT1)
    stamp(a, 4)
    def kvdma(i):
        dma(sLK, i * 4096, vL16, S_WS, sKV, i * 4096, " sc1")
    dma(sLK, L_Q, vL16, S_WS, sQ, 0, " sc1")
    dma(sLK, L_Q + 4096, vL16, S_WS, sQ, 4096, " sc1")
    for i in range(8): kvdma(i)
    a("s_waitcnt vmcnt(4)")
    a("s_barrier")
    for i in range(8, 16): kvdma(i)
    a("s_waitcnt vmcnt(8)")
    a("s_barrier")
    for i in range(16, 32): kvdma(i)
    ACC = 8
    AF = 72
    WF = 104
    vG0, vG1 = 120, 121
    vDW, vTr0, vTr1 = 7, 122, 123
    a(f"s_and_b32 s{sT0}, s2, 7")
    a(f"s_lshr_b32 s{sT1}, s2, 3")
    a(f"s_lshr_b32 s{sTT64}, s{sT0}, 1")
    a(f"s_lshl_b32 s{sTT64}, s{sTT64}, 3")
    a(f"s_and_b32 s{sT3}, s{sT1}, 7")
    a(f"s_add_u32 s{sTT64}, s{sTT64}, s{sT3}")
    a(f"s_and_b32 s{sNB}, s{sT0}, 1")
    a(f"s_lshl_b32 s{sNB}, s{sNB}, 2")
    a(f"s_lshr_b32 s{sT1}, s{sT1}, 3")
    a(f"s_add_u32 s{sNB}, s{sNB}, s{sT1}")
    a(f"s_lshr_b32 s{sT1}, s{sGW}, 1")
    a(f"s_lshl_b32 s{sOT}, s{sTT64}, 1")
    a(f"s_add_u32 s{sOT}, s{sOT}, s{sT1}")
    a(f"s_and_b32 s{sT1}, s{sGW}, 1")
    a(f"s_lshl_b32 s{sON}, s{sNB}, 1")
    a(f"s_add_u32 s{sON}, s{sON}, s{sT1}")
    a(f"s_mul_i32 s{sT3}, s{sGW}, {28*1024}")
    a(f"s_mul_i32 s{sA0}, s{sOT}, {112*1024}")
    a(f"s_add_u32 s{sA0}, s{sA0}, s{sT3}")
    a(f"s_add_u32 s{sA0}, s{sA0}, {WS_ACT:#x}")
    a(f"s_xor_b32 s{sT1}, s{sOT}, 1")
    a(f"s_mul_i32 s{sA1}, s{sT1}, {112*1024}")
    a(f"s_add_u32 s{sA1}, s{sA1}, s{sT3}")
    a(f"s_add_u32 s{sA1}, s{sA1}, {WS_ACT:#x}")
    a(f"s_mul_i32 s{sW2}, s{sGW}, {28*16384}")
    a(f"s_lshl_b32 s{sT1}, s{sNB}, 7")
    a(f"s_add_u32 s{sW2}, s{sW2}, s{sT1}")
    a(f"s_lshl_b32 s{sRing}, s{sGW}, 13")
    a(f"s_add_u32 s{sRing}, s{sRing}, {L_RING}")
    a(f"v_lshrrev_b32 v{vT0}, 3, v{vLane}")
    a(f"v_bfe_u32 v{vT1}, v{vLane}, 4, 1")
    a(f"v_lshlrev_b32 v{vT1}, 2, v{vT1}")
    a(f"v_and_b32 v{vDW}, 7, v{vLane}")
    a(f"v_xor_b32 v{vDW}, v{vDW}, v{vT1}")
    a(f"v_lshlrev_b32 v{vDW}, 4, v{vDW}")
    a(f"v_lshl_add_u32 v{vDW}, v{vT0}, 10, v{vDW}")
    a(f"v_bfe_u32 v{vT0}, v{vLane}, 2, 2")
    a(f"v_lshrrev_b32 v{vT1}, 5, v{vLane}")
    a(f"v_lshl_add_u32 v{vT0}, v{vT1}, 2, v{vT0}")
    a(f"v_lshlrev_b32 v{vTr0}, 7, v{vT0}")
    a(f"v_bfe_u32 v{vT0}, v{vLane}, 3, 1")
    a(f"v_lshl_add_u32 v{vTr0}, v{vT0}, 6, v{vTr0}")
    a(f"v_and_b32 v{vT0}, 1, v{vLane}")
    a(f"v_lshl_add_u32 v{vTr0}, v{vT0}, 5, v{vTr0}")
    a(f"v_bfe_u32 v{vT0}, v{vLane}, 4, 1")
    a(f"v_lshl_add_u32 v{vTr0}, v{vT0}, 4, v{vTr0}")
    a(f"v_bfe_u32 v{vT0}, v{vLane}, 1, 1")
    a(f"v_lshl_add_u32 v{vTr0}, v{vT0}, 3, v{vTr0}")
    a(f"s_and_b32 s{sT1}, s{sGW}, 1")
    a(f"s_lshl_b32 s{sT1}, s{sT1}, 6")
    a(f"v_xor_b32 v{vTr0}, s{sT1}, v{vTr0}")
    a(f"v_add_u32 v{vTr0}, s{sRing}, v{vTr0}")
    a(f"v_xor_b32 v{vTr1}, 64, v{vTr0}")
    a(f"s_lshl_b32 s{sFG}, s{sTT64}, 9")
    a(f"s_add_u32 s{sFG}, s{sFG}, {WS_FO:#x}")
    a(f"s_lshr_b32 s{sFK}, s{sTT64}, 1")
    a(f"s_lshl_b32 s{sFK}, s{sFK}, 7")
    a(f"s_add_u32 s{sFK}, s{sFK}, {WS_FACT:#x}")
    a("s_waitcnt vmcnt(0)")
    a("s_barrier")
    a("s_setprio 0")
    stamp(a, 5)
    poll(a, [(1, FL, vF16, sFK)], sT1)
    a(f"v_and_b32 v{vT0}, 31, v{vLane}")
    a(f"v_lshlrev_b32 v{vT0}, 2, v{vT0}")
    a(f"s_lshl_b32 s{sT0}, s{sOT}, 7")
    a(f"s_add_u32 s{sT0}, s{sT0}, {WS_G:#x}")
    a(f"s_xor_b32 s{sT1}, s{sT0}, 128")
    a(f"buffer_load_dword v{vG0}, v{vT0}, {sr(S_WS,4)}, s{sT0} offen sc1")
    a(f"buffer_load_dword v{vG1}, v{vT0}, {sr(S_WS,4)}, s{sT1} offen sc1")

    def wdma(st, srdn):
        a(f"s_add_u32 m0, s{sRing}, {st * 2048}")
        a(f"s_add_u32 s{sT0}, s{sW2}, 8192")
        a(f"buffer_load_dwordx4 v{vDW}, {sr(srdn,4)}, s{sW2} offen lds")
        a(f"s_add_u32 m0, s{sRing}, {st * 2048 + 1024}")
        a(f"s_add_u32 s{sW2}, s{sW2}, 16384")
        a(f"buffer_load_dwordx4 v{vDW}, {sr(srdn,4)}, s{sT0} offen lds")

    def group(st):
        wdma(st, S_W2)
        f = AF + 8 * st
        a(f"buffer_load_dwordx4 {vr(f,4)}, v{vL16}, {sr(S_WS,4)}, s{sA0} offen offset:{st*1024} sc1")
        a(f"buffer_load_dwordx4 {vr(f+4,4)}, v{vL16}, {sr(S_WS,4)}, s{sA1} offen offset:{st*1024} sc1")
        if st == 3:
            a(f"s_add_u32 s{sA0}, s{sA0}, 4096")
            a(f"s_add_u32 s{sA1}, s{sA1}, 4096")

    def trreads(st, w):
        for jp, vt in enumerate((vTr0, vTr1)):
            a(f"ds_read_b64_tr_b16 {vr(w+4*jp,2)}, v{vt} offset:{st*2048}")
            a(f"ds_read_b64_tr_b16 {vr(w+4*jp+2,2)}, v{vt} offset:{st*2048+1024}")

    def gmfma(w, f, first):
        for ap in range(2):
            for jp in range(2):
                acc = ACC + 16 * (ap * 2 + jp)
                c = "0" if first else vr(acc, 16)
                a(f"v_mfma_f32_32x32x16_bf16 {vr(acc,16)}, {vr(w+4*jp,4)}, {vr(f+4*ap,4)}, {c}")

    def step(st, first, more, nwait=12):
        a(f"s_waitcnt vmcnt({nwait})")
        w = WF + 8 * (st & 1)
        trreads(st, w)
        a("s_waitcnt lgkmcnt(0)")
        gmfma(w, AF + 8 * st, first)
        if more:
            group(st)

    for st in range(4): group(st)
    for st in range(4): step(st, st == 0, True)
    a(f"s_mov_b32 s{sI}, 0")
    a.label("G_LOOP")
    for st in range(4): step(st, False, True)
    a(f"s_add_u32 s{sI}, s{sI}, 1")
    a(f"s_cmp_lt_u32 s{sI}, 5")
    a("s_cbranch_scc1 G_LOOP")
    for st in range(4): step(st, False, False, 12 - 4 * st)
    stamp(a, 6)
    WOR = 72
    OFR = 136
    a(f"s_lshl_b32 s{sW2}, s{sGW}, 17")
    a(f"s_lshl_b32 s{sT1}, s{sNB}, 7")
    a(f"s_add_u32 s{sW2}, s{sW2}, s{sT1}")
    for st in range(4): wdma(st, S_WO)
    a(f"v_sub_f32 v{vT0}, 1.0, v{vG0}")
    a(f"v_sub_f32 v{vT1}, 1.0, v{vG1}")
    a(f"v_mov_b32 v152, v{vTr0}")
    a(f"v_mov_b32 v153, v{vTr1}")
    vTr0, vTr1 = 152, 153
    a("s_nop 7")
    for q in range(4):
        for i in range(16):
            a(f"v_mul_f32 v{ACC+16*q+i}, v{ACC+16*q+i}, v{vT0 if q < 2 else vT1}")
    def trreads2(st, w):
        for jp, vt in enumerate((vTr0, vTr1)):
            a(f"ds_read_b64_tr_b16 {vr(w+4*jp,2)}, v{vt} offset:{st*2048}")
            a(f"ds_read_b64_tr_b16 {vr(w+4*jp+2,2)}, v{vt} offset:{st*2048+1024}")
    for ks in range(8):
        st = ks & 3
        a(f"s_waitcnt vmcnt({6 if ks < 4 else 6 - 2 * (ks - 4)})")
        trreads2(st, WOR + 8 * ks)
        if ks < 4:
            a("s_waitcnt lgkmcnt(0)")
            wdma(st, S_WO)
    FL = 156
    a(f"s_lshl_b32 s{sA0}, s{sOT}, 15")
    a(f"s_lshl_b32 s{sT3}, s{sGW}, 13")
    a(f"s_add_u32 s{sA0}, s{sA0}, s{sT3}")
    a(f"s_add_u32 s{sA0}, s{sA0}, {WS_OF:#x}")
    a(f"s_xor_b32 s{sA1}, s{sA0}, 32768")
    a(f"s_lshl_b32 s{sLK}, s{sGW}, 14")
    a(f"v_add_u32 v154, s{sLK}, v{vL16}")
    a("s_waitcnt lgkmcnt(0)")
    a("s_barrier")
    a("s_setprio 3")
    poll(a, [(1, FL, vL8, sFG)], sT1)
    stamp(a, 7)
    for ks in range(8):
        dma(sLK, ks * 2048, vL16, S_WS, sA0, ks * 1024, " sc1")
        dma(sLK, ks * 2048 + 1024, vL16, S_WS, sA1, ks * 1024, " sc1")
    for ks in range(8):
        f = OFR + 8 * (ks & 1)
        a(f"s_waitcnt vmcnt({14 - 2 * ks})")
        a(f"ds_read_b128 {vr(f,4)}, v154 offset:{ks*2048}")
        a(f"ds_read_b128 {vr(f+4,4)}, v154 offset:{ks*2048+1024}")
        a("s_waitcnt lgkmcnt(0)")
        gmfma(WOR + 8 * ks, f, False)
    a("s_nop 7")
    a("s_nop 7")
    for q in range(1, 4):
        a(f"s_xor_b32 s{sT0}, s{sGW}, {q}")
        a(f"s_mul_i32 s{sT0}, s{sT0}, 12288")
        a(f"s_add_u32 s{sT0}, s{sT0}, {L_EXCH}")
        a(f"v_add_u32 v{vT0}, s{sT0}, v{vL16}")
        for i in range(4):
            a(f"ds_write_b128 v{vT0}, {vr(ACC+16*q+4*i,4)} offset:{(q-1)*4096 + i*1024}")
    a(f"s_mul_i32 s{sT0}, s{sGW}, 12288")
    a(f"s_add_u32 s{sT0}, s{sT0}, {L_EXCH}")
    a(f"v_add_u32 v{vT0}, s{sT0}, v{vL16}")
    a("s_waitcnt lgkmcnt(0)")
    a("s_barrier")
    R = 72
    for q in range(3):
        for i in range(4):
            a(f"ds_read_b128 {vr(R+16*q+4*i,4)}, v{vT0} offset:{q*4096 + i*1024}")
    a(f"v_and_b32 v{vT0}, 31, v{vLane}")
    a(f"v_lshlrev_b32 v{vT0}, 10, v{vT0}")
    a(f"v_lshrrev_b32 v{vT1}, 5, v{vLane}")
    a(f"v_lshl_add_u32 v{vT0}, v{vT1}, 5, v{vT0}")
    a(f"s_lshl_b32 s{sT0}, s{sOT}, 15")
    a(f"s_lshl_b32 s{sT1}, s{sON}, 6")
    a(f"s_add_u32 s{sT0}, s{sT0}, s{sT1}")
    for q in range(3):
        a(f"s_waitcnt lgkmcnt({8 - 4 * q})")
        for i in range(16):
            a(f"v_add_f32 v{ACC+i}, v{ACC+i}, v{R+16*q+i}")
    cvt16(a, ACC)
    a(f"buffer_store_dwordx4 {vr(ACC,4)}, v{vT0}, {sr(S_OUT,4)}, s{sT0} offen")
    a(f"buffer_store_dwordx4 {vr(ACC+4,4)}, v{vT0}, {sr(S_OUT,4)}, s{sT0} offen offset:16")
    if STAMPS: a("s_waitcnt vmcnt(0)")
    stamp(a, 9); stamp(a, 8, True)
    stamp_flush(a)


def main():
    ref = open(f"cdna_kernels/{NAME}.s.ref").read().split("\n")
    head = [l for l in ref if l.startswith(";") and "@launch" not in l]
    a = A()
    name = gen(a)
    out = "\n".join(head) + "\n"
    if ASLIST:
        out += f"; @launch kernel={name} grid=(256,1,1) block=(768,1,1) lds={LDS_TOTAL}\n"
    else:
        out += f"; @launch grid=(256,1,1) block=(768,1,1) lds={LDS_TOTAL}\n"
    out += '.amdgcn_target "amdgcn-amd-amdhsa--gfx950"\n'
    out += a.text()
    out += f""".section .rodata,"a"
.p2align 6
.amdhsa_kernel {name}
  .amdhsa_next_free_vgpr 168
  .amdhsa_next_free_sgpr {102 if STAMPS else 82}
  .amdhsa_accum_offset 168
  .amdhsa_group_segment_fixed_size 0
  .amdhsa_kernarg_size 88
  .amdhsa_user_sgpr_count 2
  .amdhsa_user_sgpr_kernarg_segment_ptr 1
  .amdhsa_system_sgpr_workgroup_id_x 1
.end_amdhsa_kernel
"""
    path = sys.argv[1] if len(sys.argv) > 1 else f"cdna_kernels/{NAME}.s"
    open(path, "w").write(out)
    print("wrote", path, len(out), "bytes")

main()
```

```python
import struct, sys, math, os

NAME = "gated_mix__mha_block__dense_activation_mish__prompt"
STAMPS = int(os.environ.get("STAMPS", "0"))
ASLIST = int(os.environ.get("ASLIST", "0"))
X = os.environ.get("X", "")

def f32(x):
    return "0x%08x" % struct.unpack("<I", struct.pack("<f", x))[0]

LOG2E = math.log2(math.e)

WS_QF  = 0x0000000
WS_KV  = 0x0200000
WS_ACT = 0x0600000
WS_G   = 0x0F40000
WS_OF  = 0x1000000
WS_FKV = 0x1800000
WS_FACT = 0x1804000
WS_FO  = 0x1808000
WS_STAMP = 0x2000000
WS_SIZE = 0x10000000

L_X = 0
L_W = 128 * 1024
L_RING = 128 * 1024
L_Q = 128 * 1024
L_EXCH = 64 * 1024
LDS_TOTAL = 160 * 1024

SPIN_MAX = 200000


class A:
    def __init__(self):
        self.l = []
        self.n = 0
    def __call__(self, s):
        for line in s.strip("\n").split("\n"):
            self.l.append("    " + line.strip())
    def label(self, s):
        self.l.append(s + ":")
    def raw(self, s):
        self.l.append(s)
    def uniq(self, p):
        self.n += 1
        return f"{p}_{self.n}"
    def text(self):
        return "\n".join(self.l) + "\n"


def vr(b, n):
    return "v[%d:%d]" % (b, b + n - 1)

def sr(b, n):
    return "s[%d:%d]" % (b, b + n - 1)

def srd(a, dst, ptr, nbytes):
    a(f"s_mov_b32 s{dst}, s{ptr}")
    a(f"s_and_b32 s{dst+1}, s{ptr+1}, 0xffff")
    a(f"s_mov_b32 s{dst+2}, {nbytes:#x}")
    a(f"s_mov_b32 s{dst+3}, 0x00020000")

S_X, S_WQ, S_W1, S_WS, S_B1, S_W2, S_WO, S_GW, S_OUT, S_DBG = 28, 32, 36, 40, 44, 48, 52, 56, 60, 64
sW, sRB, sCG, sTG, sTT, sFT0 = 68, 69, 70, 71, 72, 73
sT0, sT1, sT2, sT3 = 74, 75, 76, 77
sEP = 78
vLane, vL16, vT0, vT1 = 1, 2, 3, 4

def estamp(a, i):
    if "E" in X and STAMPS:
        a(f"s_memtime s[{82+2*i}:{83+2*i}]")
        a("s_waitcnt lgkmcnt(0)")

def stamp(a, i, real=False):
    if not STAMPS: return
    if ("E" in X or "P" in X) and 2 <= i <= 7: return
    a(f"{'s_memrealtime' if real else 's_memtime'} s[{82+2*i}:{83+2*i}]")
    a("s_waitcnt lgkmcnt(0)")

def stamp_flush(a, n=10):
    if not STAMPS: return
    a("s_mov_b64 exec, 1")
    for i in range(n):
        a(f"v_mov_b32 v{i+1}, s{82+2*i}")
    a(f"s_lshl_b32 s80, s2, 4")
    a(f"s_add_u32 s80, s80, s{sW}")
    a(f"s_lshl_b32 s80, s80, 6")
    a(f"s_add_u32 s80, s80, {WS_STAMP:#x}")
    for i in range(n):
        a(f"buffer_store_dword v{i+1}, off, {sr(S_WS,4)}, s80 offset:{4*i}")
    if STAMPS == 2:
        L = a.uniq("NODBG")
        a(f"s_lshl_b32 s80, s2, 4")
        a(f"s_add_u32 s80, s80, s{sW}")
        a(f"s_cmp_eq_u32 s80, {77*16+8}")
        a(f"s_cbranch_scc0 {L}")
        a("v_sub_u32 v9, v9, v1")
        for i in (3, 4, 5, 6, 7, 8, 10):
            a(f"v_sub_u32 v{i}, v{i}, v2")
        for i in range(2, n):
            a(f"buffer_store_dword v{i+1}, off, {sr(S_DBG,4)}, 0 offset:{4*i}")
        a.label(L)


def mish16(a, acc, tmp, dst):
    for g in range(4):
        e = [acc + 4 * g + i for i in range(4)]
        t = [tmp + i for i in range(4)]
        u = [tmp + 4 + i for i in range(4)]
        for i in range(4): a(f"v_mul_f32 v{t[i]}, {f32(LOG2E)}, v{e[i]}")
        for i in range(4): a(f"v_min_f32 v{t[i]}, {f32(40.0)}, v{t[i]}")
        for i in range(4): a(f"v_exp_f32 v{t[i]}, v{t[i]}")
        for i in range(4): a(f"v_add_f32 v{u[i]}, 2.0, v{t[i]}")
        for i in range(4): a(f"v_mul_f32 v{t[i]}, v{t[i]}, v{u[i]}")
        for i in range(4): a(f"v_add_f32 v{u[i]}, 2.0, v{t[i]}")
        for i in range(4): a(f"v_rcp_f32 v{u[i]}, v{u[i]}")
        for i in range(4): a(f"v_mul_f32 v{t[i]}, v{t[i]}, v{u[i]}")
        for i in range(4): a(f"v_mul_f32 v{t[i]}, v{e[i]}, v{t[i]}")
        a(f"v_cvt_pk_bf16_f32 v{dst + 2 * g}, v{t[0]}, v{t[1]}")
        a(f"v_cvt_pk_bf16_f32 v{dst + 2 * g + 1}, v{t[2]}, v{t[3]}")

def cvt16(a, acc):
    for i in range(8):
        a(f"v_cvt_pk_bf16_f32 v{acc + i}, v{acc + 2 * i}, v{acc + 2 * i + 1}")

def flag_store(a, soff, vtmp, cnt):
    L = a.uniq("NOFLAG")
    if cnt is None:
        a(f"v_mov_b32 v{vtmp}, s{sEP}")
        a(f"v_mov_b32 v{vtmp+1}, s{sEP+1}")
        a("s_mov_b64 exec, 1")
        a(f"buffer_store_dwordx2 {vr(vtmp,2)}, off, {sr(S_WS,4)}, s{soff} sc1")
        a("s_mov_b64 exec, -1")
        return
    a("s_mov_b64 exec, 1")
    a(f"v_mov_b32 v{vtmp}, {cnt}")
    a(f"v_mov_b32 v{vtmp+1}, 1")
    a(f"ds_add_rtn_u32 v{vtmp}, v{vtmp}, v{vtmp+1}")
    a("s_waitcnt lgkmcnt(0)")
    a(f"v_readfirstlane_b32 s{sT3}, v{vtmp}")
    a(f"v_mov_b32 v{vtmp}, s{sEP}")
    a(f"v_mov_b32 v{vtmp+1}, s{sEP+1}")
    a(f"s_cmp_eq_u32 s{sT3}, 7")
    a(f"s_cbranch_scc0 {L}")
    a(f"buffer_store_dwordx2 {vr(vtmp,2)}, off, {sr(S_WS,4)}, s{soff} sc1")
    a.label(L)
    a("s_mov_b64 exec, -1")

def poll(a, loads, scnt):
    L = a.uniq("POLL"); D = a.uniq("POLLD")
    a(f"s_mov_b32 s{scnt}, 0")
    a.label(L)
    for nf, vd, vo, so in loads:
        op = "buffer_load_dwordx4" if nf == 2 else "buffer_load_dwordx2"
        a(f"{op} {vr(vd, 2*nf)}, v{vo}, {sr(S_WS,4)}, s{so} offen sc1")
    a("s_waitcnt vmcnt(0)")
    first = True
    for nf, vd, vo, so in loads:
        for k in range(nf):
            if first:
                a(f"v_cmp_ne_u64 vcc, {sr(sEP,2)}, {vr(vd+2*k,2)}")
                first = False
            else:
                a(f"v_cmp_ne_u64 {sr(sT2,2)}, {sr(sEP,2)}, {vr(vd+2*k,2)}")
                a("s_nop 1")
                a(f"s_or_b64 vcc, vcc, {sr(sT2,2)}")
    a("s_nop 1")
    a("s_cmp_eq_u64 vcc, 0")
    a(f"s_cbranch_scc1 {D}")
    a("s_sleep 4")
    a(f"s_add_u32 s{scnt}, s{scnt}, 1")
    a(f"s_cmp_lt_u32 s{scnt}, {SPIN_MAX}")
    a(f"s_cbranch_scc1 {L}")
    a.label(D)


def gen(a):
    name = NAME + "_kernel"
    a.raw(".text")
    a.raw(f".globl {name}")
    a.raw(".p2align 8")
    a.raw(f".type {name},@function")
    a.label(name)
    a("s_cmp_ge_u32 s2, 256")
    a("s_cbranch_scc1 K_END")
    stamp(a, 0, True); stamp(a, 1)
    a("s_load_dwordx16 s[4:19], s[0:1], 0")
    a("s_load_dwordx4 s[20:23], s[0:1], 64")
    a("s_load_dwordx2 s[24:25], s[0:1], 80")
    a(f"v_and_b32 v{vLane}, 63, v0")
    a(f"v_lshrrev_b32 v{vT0}, 6, v0")
    a(f"v_lshlrev_b32 v{vL16}, 4, v{vLane}")
    a(f"v_readfirstlane_b32 s{sW}, v{vT0}")
    a(f"s_and_b32 s{sT0}, s2, 7")
    a(f"s_lshr_b32 s{sT1}, s2, 3")
    a(f"s_and_b32 s{sRB}, s{sT0}, 1")
    a(f"s_lshl_b32 s{sRB}, s{sRB}, 3")
    a(f"s_and_b32 s{sT2}, s{sT1}, 7")
    a(f"s_add_u32 s{sRB}, s{sRB}, s{sT2}")
    a(f"s_lshr_b32 s{sCG}, s{sT0}, 1")
    a(f"s_lshl_b32 s{sCG}, s{sCG}, 2")
    a(f"s_lshr_b32 s{sT2}, s{sT1}, 3")
    a(f"s_add_u32 s{sCG}, s{sCG}, s{sT2}")
    a(f"s_and_b32 s{sTG}, s{sW}, 3")
    a(f"s_lshl_b32 s{sTT}, s{sRB}, 2")
    a(f"s_add_u32 s{sTT}, s{sTT}, s{sTG}")
    a(f"s_sub_u32 s{sT0}, s{sCG}, 2")
    a(f"s_cmp_ge_u32 s{sCG}, 14")
    a(f"s_cselect_b32 s{sFT0}, s{sT0}, s{sCG}")
    a(f"s_lshl_b32 s{sFT0}, s{sFT0}, 2")
    a(f"s_cmp_lt_u32 s{sW}, 8")
    a("s_cbranch_scc1 A_START")
    gen_G(a)
    a("s_endpgm")
    gen_A(a)
    a.label("K_END")
    a("s_endpgm")
    return name

def srds_rest(a):
    srd(a, S_WS, 24, WS_SIZE)
    srd(a, S_B1, 14, 1792 * 2)
    srd(a, S_W2, 16, 1792 * 512 * 2)
    srd(a, S_WO, 8, 512 * 512 * 2)
    srd(a, S_OUT, 20, 2048 * 512 * 2)
    srd(a, S_DBG, 22, 256)


def gen_A(a):
    a.label("A_START")
    vXrd, vW0, vW1, vT2 = 5, 9, 10, 11
    FA, FB = 16, 28
    ACC = 64
    BIAS = 96
    PK = 128
    TMP = 16
    sN, sD = 26, 27
    a(f"s_lshl_b32 s{sT0}, s{sTG}, 12")
    a(f"v_and_b32 v{vT0}, 31, v{vLane}")
    a(f"v_lshrrev_b32 v{vT1}, 5, v{vLane}")
    a(f"v_bfe_u32 v{vT2}, v{vLane}, 1, 3")
    a(f"v_xor_b32 v{vT2}, v{vT2}, v{vT1}")
    a(f"v_lshlrev_b32 v{vT0}, 7, v{vT0}")
    a(f"v_add_u32 v{vT0}, s{sT0}, v{vT0}")
    for ks in range(4):
        a(f"v_xor_b32 v{vXrd+ks}, {2*ks}, v{vT2}")
        a(f"v_lshl_add_u32 v{vXrd+ks}, v{vXrd+ks}, 4, v{vT0}")
    a(f"v_bfe_u32 v{vT0}, v{vLane}, 2, 2")
    a(f"v_lshl_add_u32 v{vT0}, v{vT1}, 3, v{vT0}")
    a(f"v_lshlrev_b32 v{vW0}, 6, v{vT0}")
    a(f"v_bfe_u32 v{vT0}, v{vLane}, 4, 1")
    a(f"v_lshl_add_u32 v{vW0}, v{vT0}, 5, v{vW0}")
    a(f"v_and_b32 v{vT0}, 3, v{vLane}")
    a(f"v_lshl_add_u32 v{vW0}, v{vT0}, 3, v{vW0}")
    a(f"s_lshr_b32 s{sT0}, s{sW}, 2")
    a(f"s_lshl_b32 s{sT0}, s{sT0}, 13")
    a(f"s_add_u32 s{sT0}, s{sT0}, {L_W}")
    a(f"v_add_u32 v{vW0}, s{sT0}, v{vW0}")
    a(f"v_xor_b32 v{vW1}, {4096 + 64}, v{vW0}")
    a(f"v_lshlrev_b32 v{vT2}, 3, v{vT1}")
    for i in range(32):
        a(f"v_mov_b32 v{ACC+i}, 0")
    a(f"s_mov_b32 s{sN}, 0")
    a("s_waitcnt lgkmcnt(0)")
    srds_rest(a)
    estamp(a, 3)
    a("s_barrier")
    stamp(a, 2)
    estamp(a, 6)

    def reads(ks, F, par):
        if "R" in X: return
        a(f"ds_read_b128 {vr(F,4)}, v{vXrd+ks} offset:{par*16384}")
        for t, vw in enumerate((vW0, vW1)):
            a(f"ds_read_b64_tr_b16 {vr(F+4+4*t,2)}, v{vw} offset:{par*16384+ks*1024}")
            a(f"ds_read_b64_tr_b16 {vr(F+4+4*t+2,2)}, v{vw} offset:{par*16384+ks*1024+256}")

    def mfmas(F, swap0):
        if "M" in X: return
        for t in range(2):
            acc = ACC + 16 * t
            if swap0 and t == 0:
                a(f"v_mfma_f32_32x32x16_bf16 {vr(acc,16)}, {vr(F,4)}, {vr(F+4+4*t,4)}, {vr(acc,16)}")
            else:
                a(f"v_mfma_f32_32x32x16_bf16 {vr(acc,16)}, {vr(F+4+4*t,4)}, {vr(F,4)}, {vr(acc,16)}")

    FS = [16 + 12 * i for i in range(4)] + [112 + 12 * i for i in range(4)]
    def loop(lab, swap0):
        a.raw(".p2align 3")
        a.label(lab)
        for par in range(2):
            B, Bn = FS[4*par:4*par+4], FS[4*(1-par):4*(1-par)+4]
            mfmas(B[0], swap0)
            a("s_waitcnt lgkmcnt(10)")
            if par == 0:
                a(f"s_add_u32 s{sN}, s{sN}, 2")
            else:
                a(f"s_cmp_eq_u32 s{sN}, 8")
                a(f"s_cselect_b32 s{sD}, {-6*16384 & 0xffffffff:#x}, s{sT3}")
            mfmas(B[1], swap0)
            if par == 1:
                for k in range(4):
                    a(f"v_add_u32 v{vXrd+k}, s{sD}, v{vXrd+k}")
                if not swap0:
                    L = a.uniq("A_NOVM")
                    a(f"s_cmp_eq_u32 s{sN}, 12")
                    a(f"s_cbranch_scc0 {L}")
                    a("s_waitcnt vmcnt(0)")
                    a("s_nop 0")
                    a.label(L)
                    a(f"s_cmp_eq_u32 s{sN}, 16")
                    a("s_waitcnt lgkmcnt(0)")
                    L = a.uniq("A_NOBAR")
                    a(f"s_cbranch_scc1 {L}")
                    a("s_barrier")
                    a.label(L)
                else:
                    a("s_waitcnt lgkmcnt(0)")
                    a("s_barrier")
            else:
                a("s_waitcnt lgkmcnt(0)")
                a("s_barrier")
            for ks in range(3):
                reads(ks, Bn[ks], 1 - par)
            mfmas(B[2], swap0)
            mfmas(B[3], swap0)
            a("s_waitcnt lgkmcnt(10)")
            if par == 1:
                a(f"s_and_b32 s{sD}, s{sN}, 7")
            else:
                a("s_nop 0")
            reads(3, Bn[3], 1 - par)
        a(f"s_cbranch_scc1 {lab}")

    for ks in range(3):
        reads(ks, FS[ks], 0)
    a("s_waitcnt lgkmcnt(10)")
    reads(3, FS[3], 0)
    a(f"s_lshr_b32 s{sT0}, s{sW}, 2")
    a(f"s_lshl_b32 s{sT0}, s{sT0}, 1")
    a(f"s_add_u32 s{sT0}, s{sT0}, s{sFT0}")
    a(f"s_lshl_b32 s{sT0}, s{sT0}, 6")
    for g in range(8):
        a(f"buffer_load_dwordx2 {vr(BIAS + 2 * g, 2)}, v{vT2}, {sr(S_B1,4)}, s{sT0} offen offset:{g*16}")
    a(f"s_mov_b32 s{sT3}, 32768")
    a(f"s_cmp_ge_u32 s{sW}, 4")
    a("s_cbranch_scc1 A_L2")
    loop("A_L1", False)
    a(f"s_cmp_eq_u32 s{sN}, 16")
    a("s_cbranch_scc1 A_MISH")
    stamp(a, 3)
    a(f"v_and_b32 v{vT0}, 0x33, v{vLane}")
    a(f"v_bfe_u32 v{vT1}, v{vLane}, 2, 1")
    a(f"v_lshl_add_u32 v{vT0}, v{vT1}, 3, v{vT0}")
    a(f"v_bfe_u32 v{vT1}, v{vLane}, 3, 1")
    a(f"v_lshl_add_u32 v{vT0}, v{vT1}, 2, v{vT0}")
    a(f"v_lshlrev_b32 v{vT0}, 4, v{vT0}")
    a(f"s_lshl_b32 s4, s{sCG}, 17")
    a(f"s_lshl_b32 s5, s{sTT}, 10")
    a(f"s_add_u32 s4, s4, s5")
    a(f"s_lshl_b32 s6, s4, 1")
    a(f"s_add_u32 s4, s4, {WS_QF:#x}")
    a(f"s_add_u32 s5, s4, 65536")
    a(f"s_add_u32 s6, s6, {WS_KV:#x}")
    a(f"s_add_u32 s7, s6, 131072")
    a("s_waitcnt vmcnt(0)")
    for i in range(16):
        a(f"v_mul_f32 v{ACC+i}, {f32(0.25 * LOG2E)}, v{ACC+i}")
    for i in range(16):
        a(f"v_cvt_pk_bf16_f32 v{PK + i}, v{ACC + 2 * i}, v{ACC + 2 * i + 1}")
    a(f"buffer_store_dwordx4 {vr(PK+8,4)}, v{vT0}, {sr(S_WS,4)}, s6 offen sc1")
    a(f"buffer_store_dwordx4 {vr(PK+12,4)}, v{vT0}, {sr(S_WS,4)}, s7 offen sc1")
    a(f"buffer_store_dwordx4 {vr(PK,4)}, v{vL16}, {sr(S_WS,4)}, s4 offen sc1")
    a(f"buffer_store_dwordx4 {vr(PK+4,4)}, v{vL16}, {sr(S_WS,4)}, s5 offen sc1")
    a.label("A_BIAS")
    for g in range(8):
        b = ACC + 4 * g
        a(f"v_lshlrev_b32 v{b}, 16, v{BIAS+2*g}")
        a(f"v_and_b32 v{b+1}, 0xffff0000, v{BIAS+2*g}")
        a(f"v_lshlrev_b32 v{b+2}, 16, v{BIAS+2*g+1}")
        a(f"v_and_b32 v{b+3}, 0xffff0000, v{BIAS+2*g+1}")
    a("s_branch A_L1")
    loop("A_L2", True)
    stamp(a, 3)
    a(f"v_and_b32 v{vT0}, 0x2f, v{vLane}")
    a(f"v_lshlrev_b32 v{vT0}, 4, v{vT0}")
    a(f"v_bfe_u32 v{vT1}, v{vLane}, 4, 1")
    a(f"v_lshl_add_u32 v{vT0}, v{vT1}, 17, v{vT0}")
    a(f"s_lshl_b32 s4, s{sCG}, 18")
    a(f"s_lshl_b32 s5, s{sTT}, 11")
    a(f"s_add_u32 s4, s4, s5")
    a(f"s_add_u32 s4, s4, {WS_KV:#x}")
    a(f"s_lshl_b32 s5, s{sTT}, 7")
    a(f"s_add_u32 s5, s5, {WS_G:#x}")
    a(f"v_lshlrev_b32 v{vT1}, 2, v{vLane}")
    a("s_waitcnt vmcnt(0)")
    a("s_nop 1")
    for i in range(8):
        a(f"v_cvt_pk_bf16_f32 v{PK + i}, v{ACC + 2 * i}, v{ACC + 2 * i + 1}")
    a(f"v_mul_f32 v{PK+8}, {f32(-LOG2E)}, v{ACC+16}")
    a(f"v_exp_f32 v{PK+8}, v{PK+8}")
    a(f"buffer_store_dwordx4 {vr(PK,4)}, v{vT0}, {sr(S_WS,4)}, s4 offen offset:1024 sc1")
    a(f"v_add_f32 v{PK+8}, 1.0, v{PK+8}")
    a(f"v_rcp_f32 v{PK+8}, v{PK+8}")
    a(f"buffer_store_dwordx4 {vr(PK+4,4)}, v{vT0}, {sr(S_WS,4)}, s4 offen offset:1280 sc1")
    a("s_mov_b32 exec_hi, 0")
    a(f"buffer_store_dword v{PK+8}, v{vT1}, {sr(S_WS,4)}, s5 offen sc1")
    a("s_mov_b64 exec, -1")
    a("s_branch A_BIAS")
    a.label("A_MISH")
    stamp(a, 4)
    a(f"s_mul_i32 s13, s{sTT}, 112")
    a(f"s_lshl_b32 s{sT1}, s{sFT0}, 1")
    a(f"s_add_u32 s13, s13, s{sT1}")
    a(f"s_lshr_b32 s{sT1}, s{sW}, 2")
    a(f"s_lshl_b32 s{sT1}, s{sT1}, 2")
    a(f"s_add_u32 s13, s13, s{sT1}")
    a(f"s_lshl_b32 s13, s13, 10")
    a(f"s_add_u32 s13, s13, {WS_ACT:#x}")
    a("s_waitcnt lgkmcnt(0)")
    a("s_nop 3")
    mish16(a, ACC, TMP, 128)
    mish16(a, ACC + 16, TMP, 136)

    a.label("A_PH2")
    sHead, sQT, sI, sB1, sB2, sPass = 4, 5, 6, 7, 8, 9
    sMask = 10
    vAddr, vIdx, vG = 5, 6, 7
    Q = 8
    KB = [12, 16]
    VB = [20, 28]
    S = [36, 52]
    C = 68
    O = 84
    vFl = 100
    a(f"s_and_b32 s{sT0}, s2, 7")
    a(f"s_lshl_b32 s{sHead}, s{sT0}, 2")
    a(f"s_bfe_u32 s{sT0}, s2, 0x20003")
    a(f"s_add_u32 s{sHead}, s{sHead}, s{sT0}")
    a(f"s_lshr_b32 s{sQT}, s2, 5")
    a(f"s_lshl_b32 s{sQT}, s{sQT}, 3")
    a(f"s_add_u32 s{sQT}, s{sQT}, s{sW}")
    a(f"v_mov_b32 v{vIdx}, 0xdddddddd")
    a(f"s_mov_b32 s{sMask}, 0x0000ffff")
    a(f"s_mov_b32 s{sMask+1}, 0x0000ffff")
    a(f"v_and_b32 v{vT0}, 27, v{vLane}")
    a(f"v_cmp_eq_u32 vcc, 16, v{vT0}")
    a(f"v_mov_b32 v{vT1}, 0x3f803f80")
    a("s_nop 0")
    a(f"v_cndmask_b32 v{vT0}, 0, v{vT1}, vcc")
    for b in VB:
        for i in range(8):
            a(f"v_mov_b32 v{b+i}, v{vT0}")
    a(f"v_mov_b32 v{vAddr}, v{vL16}")
    a(f"s_mov_b32 s{sB1}, 1")
    a(f"s_mov_b32 s{sB2}, 3")
    a(f"s_mov_b32 s{sPass}, 0")
    a(f"s_lshl_b32 s{sT0}, s{sW}, 10")
    a(f"s_add_u32 s{sT0}, s{sT0}, {L_Q}")
    a(f"v_add_u32 v{vT1}, s{sT0}, v{vL16}")
    for i in range(16):
        a(f"v_mov_b32 v{O+i}, 0")
    a("s_setprio 2")
    stamp(a, 5)
    a("s_barrier")
    stamp(a, 6)
    a(f"ds_read_b128 {vr(Q,4)}, v{vT1}")
    a(f"ds_read_b128 {vr(KB[0],4)}, v{vAddr} offset:0")
    a(f"v_and_b32 v{vT0}, 31, v{vLane}")
    a(f"v_lshlrev_b32 v{vT0}, 2, v{vT0}")
    a(f"s_lshl_b32 s{sT0}, s{sQT}, 7")
    a(f"s_add_u32 s{sT0}, s{sT0}, {WS_G:#x}")
    a(f"buffer_load_dword v{vG}, v{vT0}, {sr(S_WS,4)}, s{sT0} offen sc1")
    a(f"buffer_store_dwordx4 {vr(128,4)}, v{vL16}, {sr(S_WS,4)}, s13 offen sc1")
    a(f"buffer_store_dwordx4 {vr(132,4)}, v{vL16}, {sr(S_WS,4)}, s13 offen offset:1024 sc1")
    a(f"buffer_store_dwordx4 {vr(136,4)}, v{vL16}, {sr(S_WS,4)}, s13 offen offset:2048 sc1")
    a(f"buffer_store_dwordx4 {vr(140,4)}, v{vL16}, {sr(S_WS,4)}, s13 offen offset:3072 sc1")
    a(f"buffer_load_dwordx2 {vr(vFl,2)}, off, {sr(S_DBG,4)}, 0 sc1")
    a("s_waitcnt lgkmcnt(0)")
    a(f"v_mfma_f32_32x32x16_bf16 {vr(S[0],16)}, {vr(KB[0],4)}, {vr(Q,4)}, 0")
    a("s_nop 7")
    a("s_nop 7")
    s0 = S[0]
    a(f"v_max3_f32 v{vT0}, v{s0}, v{s0+1}, v{s0+2}")
    for i in range(3, 15, 2):
        a(f"v_max3_f32 v{vT0}, v{vT0}, v{s0+i}, v{s0+i+1}")
    a(f"v_max_f32 v{vT0}, v{vT0}, v{s0+15}")
    a.label("A_SETMAX")
    a(f"v_mov_b32 v{vT1}, v{vT0}")
    a("s_nop 1")
    a(f"v_permlane32_swap_b32 v{vT0}, v{vT1}")
    a("s_nop 1")
    a(f"v_max_f32 v{vT0}, v{vT0}, v{vT1}")
    for i in range(16):
        a(f"v_sub_f32 v{C+i}, 0, v{vT0}")
    a(f"ds_read_b128 {vr(KB[0],4)}, v{vAddr} offset:0")
    a(f"ds_read_b128 {vr(KB[1],4)}, v{vAddr} offset:2048")
    a(f"s_mov_b64 exec, {sr(sMask,2)}")
    a(f"ds_read_b128 {vr(VB[0],4)}, v{vAddr} offset:1024")
    a(f"ds_read_b128 {vr(VB[0]+4,4)}, v{vAddr} offset:1280")
    a("s_mov_b64 exec, -1")
    a("s_waitcnt lgkmcnt(0)")
    a(f"v_mfma_f32_32x32x16_bf16 {vr(S[0],16)}, {vr(KB[0],4)}, {vr(Q,4)}, {vr(C,16)}")
    a(f"s_mov_b32 s{sI}, 0")
    for i in range(8, 16):
        a(f"v_mov_b32 v{S[1]+i}, 0")
    a("s_nop 7")
    a.raw(".p2align 6")
    a.label("A_LOOP")
    a(f"s_cmp_eq_u32 s{sI}, s{sB1}")
    a("s_cbranch_scc0 A_NB1")
    a("s_barrier")
    a("s_nop 0")
    a.label("A_NB1")
    a(f"s_cmp_eq_u32 s{sI}, s{sB2}")
    a("s_cbranch_scc0 A_NB2")
    a("s_waitcnt vmcnt(0)")
    a("s_barrier")
    a.raw(".p2align 3")
    a.label("A_NB2")
    a(f"s_cmp_eq_u32 s{sI}, 10")
    a("s_cbranch_scc0 A_NP1")
    a("s_setprio 1")
    a("s_nop 0")
    a.label("A_NP1")
    a(f"s_cmp_eq_u32 s{sI}, 14")
    a("s_cbranch_scc0 A_NP2")
    a("s_setprio 0")
    a("s_nop 0")
    a.label("A_NP2")
    for u in range(4):
        p = u & 1
        cur, nxt = S[p], S[1 - p]
        def E(lo, hi):
            for i in range(lo, hi):
                a(f"v_exp_f32 v{cur+i}, v{cur+i}")
        E(0, 2)
        a(f"v_smfmac_f32_32x32x32_bf16 {vr(O,16)}, {vr(VB[1-p]+4,4)}, {vr(nxt+8,8)}, v{vIdx}")
        E(2, 7)
        a("s_waitcnt lgkmcnt(0)")
        a(f"v_mfma_f32_32x32x16_bf16 {vr(nxt,16)}, {vr(KB[1-p],4)}, {vr(Q,4)}, {vr(C,16)}")
        a(f"ds_read_b128 {vr(KB[p],4)}, v{vAddr} offset:{(u+2)*2048}")
        E(7, 8)
        a(f"s_mov_b64 exec, {sr(sMask,2)}")
        a(f"ds_read_b128 {vr(VB[1-p],4)}, v{vAddr} offset:{(u+1)*2048+1024}")
        a(f"ds_read_b128 {vr(VB[1-p]+4,4)}, v{vAddr} offset:{(u+1)*2048+1280}")
        a("s_mov_b64 exec, -1")
        E(8, 13)
        a(f"v_smfmac_f32_32x32x32_bf16 {vr(O,16)}, {vr(VB[p],4)}, {vr(cur,8)}, v{vIdx}")
        if u == 3:
            a(f"v_add_u32 v{vAddr}, 8192, v{vAddr}")
            E(13, 16)
            a(f"s_add_u32 s{sI}, s{sI}, 1")
            a(f"s_cmp_lt_u32 s{sI}, 16")
        else:
            a(f"v_exp_f32_e64 v{cur+13}, v{cur+13}")
            E(14, 16)
    a("s_cbranch_scc1 A_LOOP")
    a("s_nop 1")
    a(f"v_smfmac_f32_32x32x32_bf16 {vr(O,16)}, {vr(VB[1]+4,4)}, {vr(S[1]+8,8)}, v{vIdx}")
    a("s_waitcnt lgkmcnt(0)")
    a("s_nop 7")
    a("s_nop 7")
    a(f"s_cmp_lg_u32 s{sPass}, 0")
    a("s_cbranch_scc1 A_FIN")
    a(f"v_max3_f32 v{vT0}, |v{O}|, |v{O+1}|, |v{O+2}|")
    a(f"v_max3_f32 v{vT0}, v{vT0}, |v{O+3}|, |v{O+4}|")
    a(f"v_max3_f32 v{vT0}, v{vT0}, |v{O+5}|, |v{O+6}|")
    a(f"v_max_f32 v{vT0}, v{vT0}, |v{O+7}|")
    a(f"v_mov_b32 v{vT1}, 0x7f800000")
    a(f"v_cmp_nlt_f32 vcc, v{vT0}, v{vT1}")
    a(f"v_mov_b32 v{vT1}, {f32(2.0**30)}")
    a(f"v_cmp_nlt_f32 {sr(sT2,2)}, v{O+8}, v{vT1}")
    a("s_nop 1")
    a(f"s_or_b64 vcc, vcc, {sr(sT2,2)}")
    a("s_cbranch_scc0 A_FIN")
    a(f"s_mov_b32 s{sPass}, 1")
    a(f"s_mov_b32 s{sB1}, 100")
    a(f"s_mov_b32 s{sB2}, 100")
    a(f"v_mov_b32 v{vAddr}, v{vL16}")
    a(f"v_mov_b32 v{vT0}, 0xff800000")
    a(f"s_mov_b32 s{sI}, 0")
    a.label("A_MAXLOOP")
    a(f"ds_read_b128 {vr(KB[0],4)}, v{vAddr} offset:0")
    a("s_waitcnt lgkmcnt(0)")
    a(f"v_mfma_f32_32x32x16_bf16 {vr(S[0],16)}, {vr(KB[0],4)}, {vr(Q,4)}, 0")
    a(f"v_add_u32 v{vAddr}, 2048, v{vAddr}")
    a("s_nop 7")
    a("s_nop 7")
    for i in range(0, 16, 2):
        a(f"v_max3_f32 v{vT0}, v{vT0}, v{s0+i}, v{s0+i+1}")
    a(f"s_add_u32 s{sI}, s{sI}, 1")
    a(f"s_cmp_lt_u32 s{sI}, 64")
    a("s_cbranch_scc1 A_MAXLOOP")
    a(f"v_mov_b32 v{vAddr}, v{vL16}")
    for i in range(16):
        a(f"v_mov_b32 v{O+i}, 0")
    a("s_branch A_SETMAX")
    a.label("A_FIN")
    stamp(a, 7)
    a(f"v_rcp_f32 v{vT0}, v{O+8}")
    a("s_waitcnt vmcnt(0)")
    a(f"v_mul_f32 v{vT0}, v{vT0}, v{vG}")
    for i in range(8):
        a(f"v_mul_f32 v{O+i}, v{O+i}, v{vT0}")
    for i in range(4):
        a(f"v_cvt_pk_bf16_f32 v{O+i}, v{O+2*i}, v{O+2*i+1}")
    a(f"s_lshl_b32 s{sT0}, s{sQT}, 15")
    a(f"s_lshl_b32 s{sT1}, s{sHead}, 10")
    a(f"s_add_u32 s{sT0}, s{sT0}, s{sT1}")
    a(f"s_add_u32 s{sT0}, s{sT0}, {WS_OF:#x}")
    a(f"buffer_store_dwordx4 {vr(O,4)}, v{vL16}, {sr(S_WS,4)}, s{sT0} offen sc1")
    a(f"s_lshr_b32 s{sT0}, s{sQT}, 1")
    a(f"s_lshl_b32 s{sT0}, s{sT0}, 9")
    a(f"s_lshl_b32 s{sT1}, s{sHead}, 4")
    a(f"s_add_u32 s{sT0}, s{sT0}, s{sT1}")
    a(f"s_and_b32 s{sT1}, s{sQT}, 1")
    a(f"s_lshl_b32 s{sT1}, s{sT1}, 3")
    a(f"s_add_u32 s{sT0}, s{sT0}, s{sT1}")
    a(f"s_add_u32 s{sT0}, s{sT0}, {WS_FO:#x}")
    a("s_waitcnt vmcnt(0)")
    a("s_mov_b64 exec, 1")
    a(f"buffer_store_dwordx2 {vr(vFl,2)}, off, {sr(S_WS,4)}, s{sT0} sc1")
    stamp(a, 9); stamp(a, 8, True)
    stamp_flush(a)
    a("s_endpgm")


def gen_G(a):
    sXoff, sLX, sWQ0, sW10, sGO = 26, 27, 80, 81, 3
    sGW = sTG
    vDX0, vDX1, vDWq, vDW1, vT2 = 5, 6, 7, 8, 9
    vWe, vWo, vW2w, vGo = 10, 11, 12, 13
    vEp = 14
    RS = 16
    NSETS = int(os.environ.get("NSETS", "9"))
    PER = int(os.environ.get("PER", "1"))
    a("s_setprio 3")
    a(f"s_lshl_b32 s{sXoff}, s{sTT}, 15")
    a(f"s_lshl_b32 s{sLX}, s{sTG}, 12")
    a(f"s_mul_i32 s{sWQ0}, s{sTG}, {16*3072}")
    a(f"s_lshl_b32 s{sT0}, s{sCG}, 6")
    a(f"s_add_u32 s{sWQ0}, s{sWQ0}, s{sT0}")
    a(f"v_lshrrev_b32 v{vT0}, 3, v{vLane}")
    a(f"v_lshrrev_b32 v{vT1}, 4, v{vLane}")
    a(f"v_and_b32 v{vT2}, 7, v{vLane}")
    a(f"v_xor_b32 v{vT2}, v{vT2}, v{vT1}")
    a(f"v_lshlrev_b32 v{vDX0}, 10, v{vT0}")
    a(f"v_lshl_add_u32 v{vDX0}, v{vT2}, 4, v{vDX0}")
    a(f"v_xor_b32 v{vDX1}, 64, v{vDX0}")
    a(f"v_add_u32 v{vDX1}, 8192, v{vDX1}")
    a(f"v_lshrrev_b32 v{vT0}, 2, v{vLane}")
    a(f"v_and_b32 v{vT2}, 3, v{vLane}")
    a(f"v_lshlrev_b32 v{vT2}, 4, v{vT2}")
    a(f"v_mul_u32_u24 v{vDWq}, 3072, v{vT0}")
    a(f"v_add_u32 v{vDWq}, v{vDWq}, v{vT2}")
    a(f"v_lshlrev_b32 v{vGo}, 1, v{vT0}")
    a(f"s_lshl_b32 s{sGO}, s{sTG}, 5")
    a("s_waitcnt lgkmcnt(0)")
    estamp(a, 2)
    srd(a, S_X, 4, 2048 * 512 * 2)
    srd(a, S_WQ, 6, 512 * 1536 * 2)
    srd(a, S_GW, 18, 1024)

    q = []
    def vm(tag):
        q.append(tag)
    def wait_tag(tag, extra=""):
        last = max(i for i, t in enumerate(q) if t == tag)
        n = len(q) - 1 - last
        assert n < 64
        a(f"s_waitcnt vmcnt({n}){extra}")

    def dma(lds_s, lds_imm, voff, srdn, s_base, imm, extra=""):
        a(f"s_add_u32 m0, s{lds_s}, {lds_imm}")
        a(f"s_add_u32 s{sT0}, s{s_base}, {imm}")
        a(f"buffer_load_dwordx4 v{voff}, {sr(srdn,4)}, s{sT0} offen{extra} lds")

    def issue(n):
        R = RS + 16 * (n % NSETS)
        if n < 8:
            a(f"s_add_u32 s{sT1}, s{sWQ0}, {n * 64 * 3072}")
            for t in range(3):
                a(f"buffer_load_dwordx4 {vr(R+4*t,4)}, v{vDWq}, {sr(S_WQ,4)}, s{sT1} offen offset:{t*1024}"); vm(n)
            for j in range(4):
                dma(sLX, L_X + n * 16384 + j * 1024, vDX0 if j % 2 == 0 else vDX1, S_X, sXoff, (j >> 1) * 16384 + n * 128); vm(n)
            a(f"buffer_load_ushort v{R+12}, v{vGo}, {sr(S_GW,4)}, s{sGO} offen offset:{n*128}"); vm(n)
        else:
            for i in range(4):
                a(f"s_add_u32 s{sT1}, s{sW10}, {((n - 8) * 64 + i * 4) * 3584}")
                a(f"buffer_load_dwordx4 {vr(R+4*i,4)}, v{vDW1}, {sr(S_W1,4)}, s{sT1} offen"); vm(n)

    def write(n):
        if "W" in X: return
        R = RS + 16 * (n % NSETS)
        so = (n & 1) * 16384
        if n < 8:
            a(f"ds_write_b128 v{vWe}, {vr(R,4)} offset:{so}")
            a(f"ds_write_b128 v{vWo}, {vr(R+4,4)} offset:{so + 4096}")
            a(f"ds_write_b128 v{vWe}, {vr(R+8,4)} offset:{so + 8192}")
            a(f"ds_write_b16 v{vWo}, v{R+12} offset:{so + 12288}")
        else:
            for i in range(4):
                a(f"ds_write_b128 v{vW2w}, {vr(R+4*i,4)} offset:{so + i * 256}")

    estamp(a, 3)
    issue(0)
    estamp(a, 4)
    issue(1)
    srd(a, S_W1, 12, 512 * 1792 * 2)
    srds_rest(a)
    a(f"s_mul_i32 s{sW10}, s{sTG}, {16*3584}")
    a(f"s_lshl_b32 s{sT0}, s{sFT0}, 6")
    a(f"s_add_u32 s{sW10}, s{sW10}, s{sT0}")
    a(f"s_lshl_b32 s{sT0}, s{sTG}, 10")
    a(f"s_add_u32 s{sT0}, s{sT0}, {L_W}")
    a(f"v_add_u32 v{vWe}, s{sT0}, v{vL16}")
    a(f"v_xor_b32 v{vWo}, 64, v{vWe}")
    a(f"v_mul_u32_u24 v{vDW1}, 3584, v{vT1}")
    a(f"v_and_b32 v{vT0}, 15, v{vLane}")
    a(f"v_lshl_add_u32 v{vDW1}, v{vT0}, 4, v{vDW1}")
    a(f"v_bfe_u32 v{vT0}, v{vLane}, 2, 1")
    a(f"v_xor_b32 v{vT0}, v{vT0}, v{vT1}")
    a(f"v_lshl_add_u32 v{vW2w}, v{vT0}, 6, v{vT2}")
    a(f"v_bfe_u32 v{vT0}, v{vLane}, 2, 2")
    a(f"v_lshl_add_u32 v{vW2w}, v{vT0}, 12, v{vW2w}")
    a(f"v_add_u32 v{vW2w}, s{sT0}, v{vW2w}")
    a(f"s_lshl_b32 s{sT0}, s2, 4")
    a(f"s_add_u32 s{sT0}, s{sT0}, s{sW}")
    a(f"s_cmp_eq_u32 s{sT0}, 8")
    a("s_cbranch_scc0 G_NOEP")
    a(f"s_memrealtime {sr(sEP,2)}")
    a("s_waitcnt lgkmcnt(0)")
    a(f"s_or_b32 s{sEP}, s{sEP}, 1")
    a(f"v_mov_b32 v{vEp}, s{sEP}")
    a(f"v_mov_b32 v{vEp+1}, s{sEP+1}")
    a("s_mov_b64 exec, 1")
    a(f"buffer_store_dwordx2 {vr(vEp,2)}, off, {sr(S_DBG,4)}, 0 sc1")
    a("s_mov_b64 exec, -1")
    a.label("G_NOEP")
    estamp(a, 5)
    wait_tag(0)
    estamp(a, 6)
    write(0)
    a("s_waitcnt lgkmcnt(0)")
    a("s_barrier")
    stamp(a, 2)
    estamp(a, 7)
    nxt_issue = [2]
    def issue_more(written, cnt):
        for _ in range(cnt):
            m = nxt_issue[0]
            if m > 15 or m - written > NSETS: return
            out = sum(1 for t in q if t == "ep" or t > written)
            if out + (8 if m < 8 else 4) > 60: return
            issue(m); nxt_issue[0] += 1
    issue_more(0, int(os.environ.get("PER0", "1")))
    for n in range(15):
        wait_tag(n + 1)
        write(n + 1)
        issue_more(n, PER)
        if n == 4:
            a(f"buffer_load_dwordx2 {vr(vEp,2)}, off, {sr(S_DBG,4)}, 0 sc1"); vm("ep")
        if n == 10:
            wait_tag("ep")
            a(f"s_mov_b32 s{sT1}, 0")
            a.label("G_EPL")
            a(f"v_readfirstlane_b32 s{sEP}, v{vEp}")
            a(f"v_readfirstlane_b32 s{sEP+1}, v{vEp+1}")
            a(f"s_cmp_lg_u32 s{sEP}, 0")
            a("s_cbranch_scc1 G_EPD")
            a("s_sleep 4")
            a(f"buffer_load_dwordx2 {vr(vEp,2)}, off, {sr(S_DBG,4)}, 0 sc1")
            a("s_waitcnt vmcnt(0)")
            a(f"s_add_u32 s{sT1}, s{sT1}, 1")
            a(f"s_cmp_lt_u32 s{sT1}, {SPIN_MAX}")
            a("s_cbranch_scc1 G_EPL")
            a.label("G_EPD")
        a("s_waitcnt lgkmcnt(0)")
        a("s_barrier")
        if "P" in X and STAMPS:
            P0 = int(os.environ.get("P0", "8"))
            if P0 <= n + 1 < P0 + 6:
                i = n + 1 - P0 + 2
                a(f"s_memtime s[{82+2*i}:{83+2*i}]")
                a("s_waitcnt lgkmcnt(0)")
        if n + 1 == 12:
            a(f"s_cmp_eq_u32 s{sGW}, 0")
            a("s_cbranch_scc0 G_NOF1")
            a(f"s_lshl_b32 s{sT0}, s{sCG}, 7")
            a(f"s_lshl_b32 s{sT1}, s{sRB}, 3")
            a(f"s_add_u32 s{sT0}, s{sT0}, s{sT1}")
            a(f"s_add_u32 s{sT0}, s{sT0}, {WS_FKV:#x}")
            a("s_mov_b64 exec, 1")
            a(f"buffer_store_dwordx2 {vr(vEp,2)}, off, {sr(S_WS,4)}, s{sT0} sc1")
            a("s_mov_b64 exec, -1")
            a.label("G_NOF1")
    sHead, sKV, sLK, sFK, sFG, sQ = 4, 5, 6, 7, 8, 9
    sA0, sA1, sW2, sOT, sON, sI, sRing, sTT64, sNB = 10, 11, 12, 13, 14, 15, 16, 17, 18
    vL8, vF16 = 5, 6
    FL = 124
    a(f"s_and_b32 s{sT0}, s2, 7")
    a(f"s_lshl_b32 s{sHead}, s{sT0}, 2")
    a(f"s_bfe_u32 s{sT0}, s2, 0x20003")
    a(f"s_add_u32 s{sHead}, s{sHead}, s{sT0}")
    a(f"s_lshl_b32 s{sLK}, s{sGW}, 10")
    a(f"s_lshl_b32 s{sKV}, s{sHead}, 17")
    a(f"s_add_u32 s{sKV}, s{sKV}, {WS_KV:#x}")
    a(f"s_add_u32 s{sKV}, s{sKV}, s{sLK}")
    a(f"s_lshr_b32 s{sT0}, s{sHead}, 1")
    a(f"s_lshl_b32 s{sFK}, s{sT0}, 7")
    a(f"s_add_u32 s{sFK}, s{sFK}, {WS_FKV:#x}")
    a(f"s_lshr_b32 s{sT1}, s2, 5")
    a(f"s_lshl_b32 s{sQ}, s{sHead}, 16")
    a(f"s_lshl_b32 s{sT0}, s{sT1}, 13")
    a(f"s_add_u32 s{sQ}, s{sQ}, s{sT0}")
    a(f"s_add_u32 s{sQ}, s{sQ}, s{sLK}")
    a(f"s_add_u32 s{sQ}, s{sQ}, {WS_QF:#x}")
    a(f"v_lshlrev_b32 v{vL8}, 3, v{vLane}")
    a(f"v_and_b32 v{vF16}, 0x78, v{vL8}")
    stamp(a, 3)
    poll(a, [(1, FL, vF16, sFK)], sT1)
    stamp(a, 4)
    def kvdma(i):
        dma(sLK, i * 4096, vL16, S_WS, sKV, i * 4096, " sc1")
    dma(sLK, L_Q, vL16, S_WS, sQ, 0, " sc1")
    dma(sLK, L_Q + 4096, vL16, S_WS, sQ, 4096, " sc1")
    for i in range(8): kvdma(i)
    for i in range(8, 20): kvdma(i)
    a("s_waitcnt vmcnt(16)")
    a("s_barrier")
    for i in range(20, 32): kvdma(i)
    a("s_waitcnt vmcnt(24)")
    a("s_barrier")
    ACC = 8
    AF = 72
    WF = 104
    vG0, vG1 = 120, 121
    vDW, vTr0, vTr1 = 7, 122, 123
    a(f"s_and_b32 s{sT0}, s2, 7")
    a(f"s_lshr_b32 s{sT1}, s2, 3")
    a(f"s_lshr_b32 s{sTT64}, s{sT0}, 1")
    a(f"s_lshl_b32 s{sTT64}, s{sTT64}, 3")
    a(f"s_and_b32 s{sT3}, s{sT1}, 7")
    a(f"s_add_u32 s{sTT64}, s{sTT64}, s{sT3}")
    a(f"s_and_b32 s{sNB}, s{sT0}, 1")
    a(f"s_lshl_b32 s{sNB}, s{sNB}, 2")
    a(f"s_lshr_b32 s{sT1}, s{sT1}, 3")
    a(f"s_add_u32 s{sNB}, s{sNB}, s{sT1}")
    a(f"s_lshr_b32 s{sT1}, s{sGW}, 1")
    a(f"s_lshl_b32 s{sOT}, s{sTT64}, 1")
    a(f"s_add_u32 s{sOT}, s{sOT}, s{sT1}")
    a(f"s_and_b32 s{sT1}, s{sGW}, 1")
    a(f"s_lshl_b32 s{sON}, s{sNB}, 1")
    a(f"s_add_u32 s{sON}, s{sON}, s{sT1}")
    a(f"s_mul_i32 s{sT3}, s{sGW}, {28*1024}")
    a(f"s_mul_i32 s{sA0}, s{sOT}, {112*1024}")
    a(f"s_add_u32 s{sA0}, s{sA0}, s{sT3}")
    a(f"s_add_u32 s{sA0}, s{sA0}, {WS_ACT:#x}")
    a(f"s_xor_b32 s{sT1}, s{sOT}, 1")
    a(f"s_mul_i32 s{sA1}, s{sT1}, {112*1024}")
    a(f"s_add_u32 s{sA1}, s{sA1}, s{sT3}")
    a(f"s_add_u32 s{sA1}, s{sA1}, {WS_ACT:#x}")
    a(f"s_mul_i32 s{sW2}, s{sGW}, {28*16384}")
    a(f"s_lshl_b32 s{sT1}, s{sNB}, 7")
    a(f"s_add_u32 s{sW2}, s{sW2}, s{sT1}")
    a(f"s_lshl_b32 s{sRing}, s{sGW}, 13")
    a(f"s_add_u32 s{sRing}, s{sRing}, {L_RING}")
    a(f"v_lshrrev_b32 v{vT0}, 3, v{vLane}")
    a(f"v_bfe_u32 v{vT1}, v{vLane}, 4, 1")
    a(f"v_lshlrev_b32 v{vT1}, 2, v{vT1}")
    a(f"v_and_b32 v{vDW}, 7, v{vLane}")
    a(f"v_xor_b32 v{vDW}, v{vDW}, v{vT1}")
    a(f"v_lshlrev_b32 v{vDW}, 4, v{vDW}")
    a(f"v_lshl_add_u32 v{vDW}, v{vT0}, 10, v{vDW}")
    a(f"v_bfe_u32 v{vT0}, v{vLane}, 2, 2")
    a(f"v_lshrrev_b32 v{vT1}, 5, v{vLane}")
    a(f"v_lshl_add_u32 v{vT0}, v{vT1}, 2, v{vT0}")
    a(f"v_lshlrev_b32 v{vTr0}, 7, v{vT0}")
    a(f"v_bfe_u32 v{vT0}, v{vLane}, 3, 1")
    a(f"v_lshl_add_u32 v{vTr0}, v{vT0}, 6, v{vTr0}")
    a(f"v_and_b32 v{vT0}, 1, v{vLane}")
    a(f"v_lshl_add_u32 v{vTr0}, v{vT0}, 5, v{vTr0}")
    a(f"v_bfe_u32 v{vT0}, v{vLane}, 4, 1")
    a(f"v_lshl_add_u32 v{vTr0}, v{vT0}, 4, v{vTr0}")
    a(f"v_bfe_u32 v{vT0}, v{vLane}, 1, 1")
    a(f"v_lshl_add_u32 v{vTr0}, v{vT0}, 3, v{vTr0}")
    a(f"s_and_b32 s{sT1}, s{sGW}, 1")
    a(f"s_lshl_b32 s{sT1}, s{sT1}, 6")
    a(f"v_xor_b32 v{vTr0}, s{sT1}, v{vTr0}")
    a(f"v_add_u32 v{vTr0}, s{sRing}, v{vTr0}")
    a(f"v_xor_b32 v{vTr1}, 64, v{vTr0}")
    a(f"s_lshl_b32 s{sFG}, s{sTT64}, 9")
    a(f"s_add_u32 s{sFG}, s{sFG}, {WS_FO:#x}")
    a(f"s_lshr_b32 s{sFK}, s{sTT64}, 1")
    a(f"s_lshl_b32 s{sFK}, s{sFK}, 7")
    a(f"s_add_u32 s{sFK}, s{sFK}, {WS_FACT:#x}")
    a("s_waitcnt vmcnt(0)")
    a("s_barrier")
    a(f"s_cmp_eq_u32 s{sGW}, 0")
    a("s_cbranch_scc0 G_NOF2")
    a(f"s_lshl_b32 s{sT0}, s{sRB}, 7")
    a(f"s_lshl_b32 s{sT1}, s{sCG}, 3")
    a(f"s_add_u32 s{sT0}, s{sT0}, s{sT1}")
    a(f"s_add_u32 s{sT0}, s{sT0}, {WS_FACT:#x}")
    a("s_mov_b64 exec, 1")
    a(f"buffer_store_dwordx2 {vr(vEp,2)}, off, {sr(S_WS,4)}, s{sT0} sc1")
    a("s_mov_b64 exec, -1")
    a.label("G_NOF2")
    a("s_setprio 0")
    stamp(a, 5)
    poll(a, [(1, FL, vF16, sFK)], sT1)
    a(f"v_and_b32 v{vT0}, 31, v{vLane}")
    a(f"v_lshlrev_b32 v{vT0}, 2, v{vT0}")
    a(f"s_lshl_b32 s{sT0}, s{sOT}, 7")
    a(f"s_add_u32 s{sT0}, s{sT0}, {WS_G:#x}")
    a(f"s_xor_b32 s{sT1}, s{sT0}, 128")
    a(f"buffer_load_dword v{vG0}, v{vT0}, {sr(S_WS,4)}, s{sT0} offen sc1")
    a(f"buffer_load_dword v{vG1}, v{vT0}, {sr(S_WS,4)}, s{sT1} offen sc1")

    def wdma(st, srdn):
        a(f"s_add_u32 m0, s{sRing}, {st * 2048}")
        a(f"s_add_u32 s{sT0}, s{sW2}, 8192")
        a(f"buffer_load_dwordx4 v{vDW}, {sr(srdn,4)}, s{sW2} offen lds")
        a(f"s_add_u32 m0, s{sRing}, {st * 2048 + 1024}")
        a(f"s_add_u32 s{sW2}, s{sW2}, 16384")
        a(f"buffer_load_dwordx4 v{vDW}, {sr(srdn,4)}, s{sT0} offen lds")

    def group(st):
        wdma(st, S_W2)
        f = AF + 8 * st
        a(f"buffer_load_dwordx4 {vr(f,4)}, v{vL16}, {sr(S_WS,4)}, s{sA0} offen offset:{st*1024} sc1")
        a(f"buffer_load_dwordx4 {vr(f+4,4)}, v{vL16}, {sr(S_WS,4)}, s{sA1} offen offset:{st*1024} sc1")
        if st == 3:
            a(f"s_add_u32 s{sA0}, s{sA0}, 4096")
            a(f"s_add_u32 s{sA1}, s{sA1}, 4096")

    def trreads(st, w):
        for jp, vt in enumerate((vTr0, vTr1)):
            a(f"ds_read_b64_tr_b16 {vr(w+4*jp,2)}, v{vt} offset:{st*2048}")
            a(f"ds_read_b64_tr_b16 {vr(w+4*jp+2,2)}, v{vt} offset:{st*2048+1024}")

    def gmfma(w, f, first):
        for ap in range(2):
            for jp in range(2):
                acc = ACC + 16 * (ap * 2 + jp)
                c = "0" if first else vr(acc, 16)
                a(f"v_mfma_f32_32x32x16_bf16 {vr(acc,16)}, {vr(w+4*jp,4)}, {vr(f+4*ap,4)}, {c}")

    def step(st, first, more, nwait=12):
        a(f"s_waitcnt vmcnt({nwait})")
        w = WF + 8 * (st & 1)
        trreads(st, w)
        a("s_waitcnt lgkmcnt(0)")
        gmfma(w, AF + 8 * st, first)
        if more:
            group(st)

    for st in range(4): group(st)
    for st in range(4): step(st, st == 0, True)
    a(f"s_mov_b32 s{sI}, 0")
    a.label("G_LOOP")
    for st in range(4): step(st, False, True)
    a(f"s_add_u32 s{sI}, s{sI}, 1")
    a(f"s_cmp_lt_u32 s{sI}, 5")
    a("s_cbranch_scc1 G_LOOP")
    for st in range(4): step(st, False, False, 12 - 4 * st)
    stamp(a, 6)
    WOR = 72
    OFR = 136
    a(f"s_lshl_b32 s{sW2}, s{sGW}, 17")
    a(f"s_lshl_b32 s{sT1}, s{sNB}, 7")
    a(f"s_add_u32 s{sW2}, s{sW2}, s{sT1}")
    for st in range(4): wdma(st, S_WO)
    a(f"v_sub_f32 v{vT0}, 1.0, v{vG0}")
    a(f"v_sub_f32 v{vT1}, 1.0, v{vG1}")
    a(f"v_mov_b32 v152, v{vTr0}")
    a(f"v_mov_b32 v153, v{vTr1}")
    vTr0, vTr1 = 152, 153
    a("s_nop 7")
    for q in range(4):
        for i in range(16):
            a(f"v_mul_f32 v{ACC+16*q+i}, v{ACC+16*q+i}, v{vT0 if q < 2 else vT1}")
    def trreads2(st, w):
        for jp, vt in enumerate((vTr0, vTr1)):
            a(f"ds_read_b64_tr_b16 {vr(w+4*jp,2)}, v{vt} offset:{st*2048}")
            a(f"ds_read_b64_tr_b16 {vr(w+4*jp+2,2)}, v{vt} offset:{st*2048+1024}")
    for ks in range(8):
        st = ks & 3
        a(f"s_waitcnt vmcnt({6 if ks < 4 else 6 - 2 * (ks - 4)})")
        trreads2(st, WOR + 8 * ks)
        if ks < 4:
            a("s_waitcnt lgkmcnt(0)")
            wdma(st, S_WO)
    FL = 156
    a(f"s_lshl_b32 s{sA0}, s{sOT}, 15")
    a(f"s_lshl_b32 s{sT3}, s{sGW}, 13")
    a(f"s_add_u32 s{sA0}, s{sA0}, s{sT3}")
    a(f"s_add_u32 s{sA0}, s{sA0}, {WS_OF:#x}")
    a(f"s_xor_b32 s{sA1}, s{sA0}, 32768")
    a(f"s_lshl_b32 s{sLK}, s{sGW}, 14")
    a(f"v_add_u32 v154, s{sLK}, v{vL16}")
    a("s_waitcnt lgkmcnt(0)")
    a("s_barrier")
    a("s_setprio 3")
    poll(a, [(1, FL, vL8, sFG)], sT1)
    stamp(a, 7)
    for ks in range(8):
        dma(sLK, ks * 2048, vL16, S_WS, sA0, ks * 1024, " sc1")
        dma(sLK, ks * 2048 + 1024, vL16, S_WS, sA1, ks * 1024, " sc1")
    for ks in range(8):
        f = OFR + 8 * (ks & 1)
        a(f"s_waitcnt vmcnt({14 - 2 * ks})")
        a(f"ds_read_b128 {vr(f,4)}, v154 offset:{ks*2048}")
        a(f"ds_read_b128 {vr(f+4,4)}, v154 offset:{ks*2048+1024}")
        a("s_waitcnt lgkmcnt(0)")
        gmfma(WOR + 8 * ks, f, False)
    a("s_nop 7")
    a("s_nop 7")
    for q in range(1, 4):
        a(f"s_xor_b32 s{sT0}, s{sGW}, {q}")
        a(f"s_mul_i32 s{sT0}, s{sT0}, 12288")
        a(f"s_add_u32 s{sT0}, s{sT0}, {L_EXCH}")
        a(f"v_add_u32 v{vT0}, s{sT0}, v{vL16}")
        for i in range(4):
            a(f"ds_write_b128 v{vT0}, {vr(ACC+16*q+4*i,4)} offset:{(q-1)*4096 + i*1024}")
    a(f"s_mul_i32 s{sT0}, s{sGW}, 12288")
    a(f"s_add_u32 s{sT0}, s{sT0}, {L_EXCH}")
    a(f"v_add_u32 v{vT0}, s{sT0}, v{vL16}")
    a("s_waitcnt lgkmcnt(0)")
    a("s_barrier")
    R = 72
    for q in range(3):
        for i in range(4):
            a(f"ds_read_b128 {vr(R+16*q+4*i,4)}, v{vT0} offset:{q*4096 + i*1024}")
    a(f"v_and_b32 v{vT0}, 31, v{vLane}")
    a(f"v_lshlrev_b32 v{vT0}, 10, v{vT0}")
    a(f"v_lshrrev_b32 v{vT1}, 5, v{vLane}")
    a(f"v_lshl_add_u32 v{vT0}, v{vT1}, 5, v{vT0}")
    a(f"s_lshl_b32 s{sT0}, s{sOT}, 15")
    a(f"s_lshl_b32 s{sT1}, s{sON}, 6")
    a(f"s_add_u32 s{sT0}, s{sT0}, s{sT1}")
    for q in range(3):
        a(f"s_waitcnt lgkmcnt({8 - 4 * q})")
        for i in range(16):
            a(f"v_add_f32 v{ACC+i}, v{ACC+i}, v{R+16*q+i}")
    cvt16(a, ACC)
    a(f"buffer_store_dwordx4 {vr(ACC,4)}, v{vT0}, {sr(S_OUT,4)}, s{sT0} offen")
    a(f"buffer_store_dwordx4 {vr(ACC+4,4)}, v{vT0}, {sr(S_OUT,4)}, s{sT0} offen offset:16")
    if STAMPS: a("s_waitcnt vmcnt(0)")
    stamp(a, 9); stamp(a, 8, True)
    stamp_flush(a)


def main():
    ref = open(f"cdna_kernels/{NAME}.s.ref").read().split("\n")
    head = [l for l in ref if l.startswith(";") and "@launch" not in l]
    a = A()
    name = gen(a)
    out = "\n".join(head) + "\n"
    if ASLIST:
        out += f"; @launch kernel={name} grid=(256,1,1) block=(768,1,1) lds={LDS_TOTAL}\n"
    else:
        out += f"; @launch grid=(256,1,1) block=(768,1,1) lds={LDS_TOTAL}\n"
    out += '.amdgcn_target "amdgcn-amd-amdhsa--gfx950"\n'
    out += a.text()
    out += f""".section .rodata,"a"
.p2align 6
.amdhsa_kernel {name}
  .amdhsa_next_free_vgpr 168
  .amdhsa_next_free_sgpr {102 if STAMPS else 84}
  .amdhsa_accum_offset 168
  .amdhsa_group_segment_fixed_size 0
  .amdhsa_kernarg_size 88
  .amdhsa_user_sgpr_count 2
  .amdhsa_user_sgpr_kernarg_segment_ptr 1
  .amdhsa_system_sgpr_workgroup_id_x 1
.end_amdhsa_kernel
"""
    path = sys.argv[1] if len(sys.argv) > 1 else f"cdna_kernels/{NAME}.s"
    open(path, "w").write(out)
    print("wrote", path, len(out), "bytes")

main()
```

```python
import struct, sys, math, os

NAME = "gated_mix__mha_block__dense_activation_mish__prompt"
STAMPS = int(os.environ.get("STAMPS", "0"))
ASLIST = int(os.environ.get("ASLIST", "0"))
X = os.environ.get("X", "")

def f32(x):
    return "0x%08x" % struct.unpack("<I", struct.pack("<f", x))[0]

LOG2E = math.log2(math.e)

WS_QF  = 0x0000000
WS_KV  = 0x0200000
WS_ACT = 0x0600000
WS_G   = 0x0F40000
WS_OF  = 0x1000000
WS_FKV = 0x1800000
WS_FACT = 0x1804000
WS_FO  = 0x1808000
WS_STAMP = 0x2000000
WS_SIZE = 0x10000000

L_GW = 144 * 1024
L_RING = 128 * 1024
L_Q = 128 * 1024
L_EXCH = 64 * 1024
LDS_TOTAL = 160 * 1024

SPIN_MAX = 200000


class A:
    def __init__(self):
        self.l = []
        self.n = 0
    def __call__(self, s):
        for line in s.strip("\n").split("\n"):
            self.l.append("    " + line.strip())
    def label(self, s):
        self.l.append(s + ":")
    def raw(self, s):
        self.l.append(s)
    def uniq(self, p):
        self.n += 1
        return f"{p}_{self.n}"
    def text(self):
        return "\n".join(self.l) + "\n"


def vr(b, n):
    return "v[%d:%d]" % (b, b + n - 1)

def sr(b, n):
    return "s[%d:%d]" % (b, b + n - 1)

def srd(a, dst, ptr, nbytes):
    a(f"s_mov_b32 s{dst}, s{ptr}")
    a(f"s_and_b32 s{dst+1}, s{ptr+1}, 0xffff")
    a(f"s_mov_b32 s{dst+2}, {nbytes:#x}")
    a(f"s_mov_b32 s{dst+3}, 0x00020000")

S_X, S_WQ, S_W1, S_WS, S_B1, S_W2, S_WO, S_GW, S_OUT, S_DBG = 28, 32, 36, 40, 44, 48, 52, 56, 60, 64
sW, sRB, sCG, sTG, sTT, sFT0 = 68, 69, 70, 71, 72, 73
sT0, sT1, sT2, sT3 = 74, 75, 76, 77
sEP = 78
vLane, vL16, vT0, vT1 = 1, 2, 3, 4

def estamp(a, i):
    if "E" in X and STAMPS:
        a(f"s_memtime s[{82+2*i}:{83+2*i}]")
        a("s_waitcnt lgkmcnt(0)")

def stamp(a, i, real=False):
    if not STAMPS: return
    if ("E" in X or "P" in X) and 2 <= i <= 7: return
    a(f"{'s_memrealtime' if real else 's_memtime'} s[{82+2*i}:{83+2*i}]")
    a("s_waitcnt lgkmcnt(0)")

def stamp_flush(a, n=10):
    if not STAMPS: return
    a("s_mov_b64 exec, 1")
    for i in range(n):
        a(f"v_mov_b32 v{i+1}, s{82+2*i}")
    a(f"s_lshl_b32 s80, s2, 4")
    a(f"s_add_u32 s80, s80, s{sW}")
    a(f"s_lshl_b32 s80, s80, 6")
    a(f"s_add_u32 s80, s80, {WS_STAMP:#x}")
    for i in range(n):
        a(f"buffer_store_dword v{i+1}, off, {sr(S_WS,4)}, s80 offset:{4*i}")
    if STAMPS == 2:
        L = a.uniq("NODBG")
        a(f"s_lshl_b32 s80, s2, 4")
        a(f"s_add_u32 s80, s80, s{sW}")
        a(f"s_cmp_eq_u32 s80, {77*16+8}")
        a(f"s_cbranch_scc0 {L}")
        a("v_sub_u32 v9, v9, v1")
        for i in (3, 4, 5, 6, 7, 8, 10):
            a(f"v_sub_u32 v{i}, v{i}, v2")
        for i in range(2, n):
            a(f"buffer_store_dword v{i+1}, off, {sr(S_DBG,4)}, 0 offset:{4*i}")
        a.label(L)


def mish16(a, acc, tmp, dst):
    for g in range(4):
        e = [acc + 4 * g + i for i in range(4)]
        t = [tmp + i for i in range(4)]
        u = [tmp + 4 + i for i in range(4)]
        for i in range(4): a(f"v_mul_f32 v{t[i]}, {f32(LOG2E)}, v{e[i]}")
        for i in range(4): a(f"v_min_f32 v{t[i]}, {f32(40.0)}, v{t[i]}")
        for i in range(4): a(f"v_exp_f32 v{t[i]}, v{t[i]}")
        for i in range(4): a(f"v_add_f32 v{u[i]}, 2.0, v{t[i]}")
        for i in range(4): a(f"v_mul_f32 v{t[i]}, v{t[i]}, v{u[i]}")
        for i in range(4): a(f"v_add_f32 v{u[i]}, 2.0, v{t[i]}")
        for i in range(4): a(f"v_rcp_f32 v{u[i]}, v{u[i]}")
        for i in range(4): a(f"v_mul_f32 v{t[i]}, v{t[i]}, v{u[i]}")
        for i in range(4): a(f"v_mul_f32 v{t[i]}, v{e[i]}, v{t[i]}")
        a(f"v_cvt_pk_bf16_f32 v{dst + 2 * g}, v{t[0]}, v{t[1]}")
        a(f"v_cvt_pk_bf16_f32 v{dst + 2 * g + 1}, v{t[2]}, v{t[3]}")

def cvt16(a, acc):
    for i in range(8):
        a(f"v_cvt_pk_bf16_f32 v{acc + i}, v{acc + 2 * i}, v{acc + 2 * i + 1}")

def flag_store(a, soff, vtmp, cnt):
    L = a.uniq("NOFLAG")
    if cnt is None:
        a(f"v_mov_b32 v{vtmp}, s{sEP}")
        a(f"v_mov_b32 v{vtmp+1}, s{sEP+1}")
        a("s_mov_b64 exec, 1")
        a(f"buffer_store_dwordx2 {vr(vtmp,2)}, off, {sr(S_WS,4)}, s{soff} sc1")
        a("s_mov_b64 exec, -1")
        return
    a("s_mov_b64 exec, 1")
    a(f"v_mov_b32 v{vtmp}, {cnt}")
    a(f"v_mov_b32 v{vtmp+1}, 1")
    a(f"ds_add_rtn_u32 v{vtmp}, v{vtmp}, v{vtmp+1}")
    a("s_waitcnt lgkmcnt(0)")
    a(f"v_readfirstlane_b32 s{sT3}, v{vtmp}")
    a(f"v_mov_b32 v{vtmp}, s{sEP}")
    a(f"v_mov_b32 v{vtmp+1}, s{sEP+1}")
    a(f"s_cmp_eq_u32 s{sT3}, 7")
    a(f"s_cbranch_scc0 {L}")
    a(f"buffer_store_dwordx2 {vr(vtmp,2)}, off, {sr(S_WS,4)}, s{soff} sc1")
    a.label(L)
    a("s_mov_b64 exec, -1")

def poll(a, loads, scnt):
    L = a.uniq("POLL"); D = a.uniq("POLLD")
    a(f"s_mov_b32 s{scnt}, 0")
    a.label(L)
    for nf, vd, vo, so in loads:
        op = "buffer_load_dwordx4" if nf == 2 else "buffer_load_dwordx2"
        a(f"{op} {vr(vd, 2*nf)}, v{vo}, {sr(S_WS,4)}, s{so} offen sc1")
    a("s_waitcnt vmcnt(0)")
    first = True
    for nf, vd, vo, so in loads:
        for k in range(nf):
            if first:
                a(f"v_cmp_ne_u64 vcc, {sr(sEP,2)}, {vr(vd+2*k,2)}")
                first = False
            else:
                a(f"v_cmp_ne_u64 {sr(sT2,2)}, {sr(sEP,2)}, {vr(vd+2*k,2)}")
                a("s_nop 1")
                a(f"s_or_b64 vcc, vcc, {sr(sT2,2)}")
    a("s_nop 1")
    a("s_cmp_eq_u64 vcc, 0")
    a(f"s_cbranch_scc1 {D}")
    a("s_sleep 4")
    a(f"s_add_u32 s{scnt}, s{scnt}, 1")
    a(f"s_cmp_lt_u32 s{scnt}, {SPIN_MAX}")
    a(f"s_cbranch_scc1 {L}")
    a.label(D)


def gen(a):
    name = NAME + "_kernel"
    a.raw(".text")
    a.raw(f".globl {name}")
    a.raw(".p2align 8")
    a.raw(f".type {name},@function")
    a.label(name)
    a("s_cmp_ge_u32 s2, 256")
    a("s_cbranch_scc1 K_END")
    stamp(a, 0, True); stamp(a, 1)
    a("s_load_dwordx16 s[4:19], s[0:1], 0")
    a("s_load_dwordx4 s[20:23], s[0:1], 64")
    a("s_load_dwordx2 s[24:25], s[0:1], 80")
    a(f"v_and_b32 v{vLane}, 63, v0")
    a(f"v_lshrrev_b32 v{vT0}, 6, v0")
    a(f"v_lshlrev_b32 v{vL16}, 4, v{vLane}")
    a(f"v_readfirstlane_b32 s{sW}, v{vT0}")
    a(f"s_and_b32 s{sT0}, s2, 7")
    a(f"s_lshr_b32 s{sT1}, s2, 3")
    a(f"s_and_b32 s{sRB}, s{sT0}, 1")
    a(f"s_lshl_b32 s{sRB}, s{sRB}, 3")
    a(f"s_and_b32 s{sT2}, s{sT1}, 7")
    a(f"s_add_u32 s{sRB}, s{sRB}, s{sT2}")
    a(f"s_lshr_b32 s{sCG}, s{sT0}, 1")
    a(f"s_lshl_b32 s{sCG}, s{sCG}, 2")
    a(f"s_lshr_b32 s{sT2}, s{sT1}, 3")
    a(f"s_add_u32 s{sCG}, s{sCG}, s{sT2}")
    a(f"s_and_b32 s{sTG}, s{sW}, 3")
    a(f"s_lshl_b32 s{sTT}, s{sRB}, 2")
    a(f"s_add_u32 s{sTT}, s{sTT}, s{sTG}")
    a(f"s_sub_u32 s{sT0}, s{sCG}, 2")
    a(f"s_cmp_ge_u32 s{sCG}, 14")
    a(f"s_cselect_b32 s{sFT0}, s{sT0}, s{sCG}")
    a(f"s_lshl_b32 s{sFT0}, s{sFT0}, 2")
    a(f"s_cmp_lt_u32 s{sW}, 8")
    a("s_cbranch_scc1 A_START")
    gen_G(a)
    a("s_endpgm")
    gen_A(a)
    a.label("K_END")
    a("s_endpgm")
    return name

def srds_rest(a):
    srd(a, S_WS, 24, WS_SIZE)
    srd(a, S_B1, 14, 1792 * 2)
    srd(a, S_W2, 16, 1792 * 512 * 2)
    srd(a, S_WO, 8, 512 * 512 * 2)
    srd(a, S_OUT, 20, 2048 * 512 * 2)
    srd(a, S_DBG, 22, 256)


def gen_A(a):
    a.label("A_START")
    vXrd, vW0, vW1, vT2 = 5, 9, 10, 11
    FA, FB = 16, 28
    ACC = 64
    BIAS = 96
    PK = 128
    TMP = 16
    sN, sD = 26, 27
    if "N" not in X:
        a(f"s_lshr_b32 s{sT1}, s2, 3")
        a(f"s_and_b32 s{sT0}, s2, 1")
        a(f"s_lshl_b32 s{sT0}, s{sT0}, 20")
        a(f"s_lshl_b32 s{sT2}, s{sT1}, 15")
        a(f"s_add_u32 s{sT0}, s{sT0}, s{sT2}")
        a(f"s_lshl_b32 s{sT2}, s{sW}, 7")
        a(f"s_add_u32 s{sT0}, s{sT0}, s{sT2}")
        a(f"v_lshrrev_b32 v{vT0}, 1, v{vLane}")
        a(f"v_lshlrev_b32 v{vT0}, 10, v{vT0}")
        a(f"v_and_b32 v{vT1}, 1, v{vLane}")
        a(f"v_lshl_add_u32 v{vT0}, v{vT1}, 6, v{vT0}")
        a(f"s_lshl_b32 s{sT2}, s{sW}, 5")
        a(f"s_add_u32 s{sT1}, s{sT1}, s{sT2}")
        a(f"s_mul_i32 s{sT1}, s{sT1}, {2*3072}")
        a(f"s_bfe_u32 s{sT3}, s2, 0x20001")
        a(f"s_lshl_b32 s{sT3}, s{sT3}, 8")
        a(f"s_add_u32 s{sT1}, s{sT1}, s{sT3}")
        a(f"v_bfe_u32 v{vT1}, v{vLane}, 4, 1")
        a(f"v_mul_u32_u24 v{vT1}, 3072, v{vT1}")
        a(f"v_bfe_u32 v12, v{vLane}, 2, 2")
        a(f"v_min_u32 v12, 2, v12")
        a(f"v_lshl_add_u32 v{vT1}, v12, 10, v{vT1}")
        a(f"v_and_b32 v12, 3, v{vLane}")
        a(f"v_lshl_add_u32 v{vT1}, v12, 6, v{vT1}")
        a("s_waitcnt lgkmcnt(0)")
        srd(a, S_X, 4, 2048 * 512 * 2)
        a(f"buffer_load_dword v12, v{vT0}, {sr(S_X,4)}, s{sT0} offen")
        srd(a, S_WQ, 6, 512 * 1536 * 2)
        a(f"buffer_load_dword v13, v{vT1}, {sr(S_WQ,4)}, s{sT1} offen")
    a(f"s_lshl_b32 s{sT0}, s{sTG}, 12")
    a(f"v_and_b32 v{vT0}, 31, v{vLane}")
    a(f"v_lshrrev_b32 v{vT1}, 5, v{vLane}")
    a(f"v_bfe_u32 v{vT2}, v{vLane}, 1, 3")
    a(f"v_xor_b32 v{vT2}, v{vT2}, v{vT1}")
    a(f"v_lshlrev_b32 v{vT0}, 7, v{vT0}")
    a(f"v_add_u32 v{vT0}, s{sT0}, v{vT0}")
    for ks in range(4):
        a(f"v_xor_b32 v{vXrd+ks}, {2*ks}, v{vT2}")
        a(f"v_lshl_add_u32 v{vXrd+ks}, v{vXrd+ks}, 4, v{vT0}")
    a(f"v_bfe_u32 v{vT0}, v{vLane}, 2, 2")
    a(f"v_lshl_add_u32 v{vT0}, v{vT1}, 3, v{vT0}")
    a(f"v_lshlrev_b32 v{vW0}, 6, v{vT0}")
    a(f"v_bfe_u32 v{vT0}, v{vLane}, 4, 1")
    a(f"v_lshl_add_u32 v{vW0}, v{vT0}, 5, v{vW0}")
    a(f"v_and_b32 v{vT0}, 3, v{vLane}")
    a(f"v_lshl_add_u32 v{vW0}, v{vT0}, 3, v{vW0}")
    a(f"s_lshr_b32 s{sT0}, s{sW}, 2")
    a(f"s_lshl_b32 s{sT0}, s{sT0}, 13")
    a(f"s_add_u32 s{sT0}, s{sT0}, 16384")
    a(f"v_add_u32 v{vW0}, s{sT0}, v{vW0}")
    a(f"v_lshlrev_b32 v{vW1}, 4, v{vT1}")
    a(f"v_add_u32 v{vW1}, {L_GW}, v{vW1}")
    a(f"v_lshlrev_b32 v{vT2}, 3, v{vT1}")
    for i in range(32):
        a(f"v_mov_b32 v{ACC+i}, 0")
    a(f"s_mov_b32 s{sN}, 0")
    a("s_waitcnt lgkmcnt(0)")
    srds_rest(a)
    estamp(a, 3)
    a("s_barrier")
    stamp(a, 2)
    estamp(a, 6)

    def reads(ks, F, par, gate=False, only1=False):
        if "R" in X: return
        if not only1:
            a(f"ds_read_b128 {vr(F,4)}, v{vXrd+ks} offset:{par*32768}")
        for t in range(2):
            if only1 and t == 0: continue
            if gate and t == 1:
                a(f"ds_read_b128 {vr(F+8,4)}, v{vW1} offset:{(par*4+ks)*32}")
                continue
            a(f"ds_read_b64_tr_b16 {vr(F+4+4*t,2)}, v{vW0} offset:{par*32768+t*4096+ks*1024}")
            a(f"ds_read_b64_tr_b16 {vr(F+4+4*t+2,2)}, v{vW0} offset:{par*32768+t*4096+ks*1024+256}")

    def mfmas(F, swap0):
        if "M" in X: return
        for t in range(2):
            acc = ACC + 16 * t
            if swap0 and t == 0:
                a(f"v_mfma_f32_32x32x16_bf16 {vr(acc,16)}, {vr(F,4)}, {vr(F+4+4*t,4)}, {vr(acc,16)}")
            else:
                a(f"v_mfma_f32_32x32x16_bf16 {vr(acc,16)}, {vr(F+4+4*t,4)}, {vr(F,4)}, {vr(acc,16)}")

    FS = [16 + 12 * i for i in range(4)]
    def loop(lab, swap0):
        nr = 4 if swap0 else 5
        a.raw(".p2align 3")
        a.label(lab)
        for par in range(2):
            for j in range(4):
                a(f"s_waitcnt lgkmcnt({2*nr})")
                if j == 1:
                    if par == 1:
                        for k in range(4):
                            a(f"v_xor_b32 v{vXrd+k}, s{sT3}, v{vXrd+k}")
                        a(f"v_xor_b32 v{vW0}, s{sT3}, v{vW0}")
                        if swap0:
                            a(f"v_add_u32 v{vW1}, s{sD}, v{vW1}")
                        else:
                            L = a.uniq("A_NOVM")
                            a(f"s_cmp_eq_u32 s{sN}, 12")
                            a(f"s_cbranch_scc0 {L}")
                            a("s_waitcnt vmcnt(0)")
                            a.label(L)
                    a("s_barrier")
                elif j == 0 and par == 0:
                    a(f"s_add_u32 s{sN}, s{sN}, 2")
                elif j == 3 and par == 1:
                    a(f"s_and_b32 s{sT0}, s{sN}, 7")
                else:
                    a("s_nop 0")
                jj = j + 3
                reads(jj & 3, FS[jj & 3], par if jj < 4 else 1 - par, swap0)
                mfmas(FS[j], swap0)
        a(f"s_cbranch_scc1 {lab}")

    a(f"s_lshr_b32 s{sT0}, s{sW}, 2")
    a(f"s_lshl_b32 s{sT0}, s{sT0}, 1")
    a(f"s_add_u32 s{sT0}, s{sT0}, s{sFT0}")
    a(f"s_lshl_b32 s{sT0}, s{sT0}, 6")
    for g in range(8):
        a(f"buffer_load_dwordx2 {vr(BIAS + 2 * g, 2)}, v{vT2}, {sr(S_B1,4)}, s{sT0} offen offset:{g*16}")
    a(f"s_mov_b32 s{sT3}, 65536")
    a(f"s_movk_i32 s{sD}, 256")
    a(f"s_cmp_ge_u32 s{sW}, 4")
    a("s_cbranch_scc1 A_L2P")
    for ks in range(3):
        reads(ks, FS[ks], 0)
    loop("A_L1", False)
    a(f"s_cmp_eq_u32 s{sN}, 16")
    a("s_cbranch_scc1 A_MISH")
    stamp(a, 3)
    a(f"v_and_b32 v{vT0}, 0x33, v{vLane}")
    a(f"v_bfe_u32 v{vT1}, v{vLane}, 2, 1")
    a(f"v_lshl_add_u32 v{vT0}, v{vT1}, 3, v{vT0}")
    a(f"v_bfe_u32 v{vT1}, v{vLane}, 3, 1")
    a(f"v_lshl_add_u32 v{vT0}, v{vT1}, 2, v{vT0}")
    a(f"v_lshlrev_b32 v{vT0}, 4, v{vT0}")
    a(f"s_lshl_b32 s4, s{sCG}, 17")
    a(f"s_lshl_b32 s5, s{sTT}, 10")
    a(f"s_add_u32 s4, s4, s5")
    a(f"s_lshl_b32 s6, s4, 1")
    a(f"s_add_u32 s4, s4, {WS_QF:#x}")
    a(f"s_add_u32 s5, s4, 65536")
    a(f"s_add_u32 s6, s6, {WS_KV:#x}")
    a(f"s_add_u32 s7, s6, 131072")
    a("s_waitcnt vmcnt(0)")
    for i in range(16):
        a(f"v_mul_f32 v{ACC+i}, {f32(0.25 * LOG2E)}, v{ACC+i}")
    for i in range(16):
        a(f"v_cvt_pk_bf16_f32 v{PK + i}, v{ACC + 2 * i}, v{ACC + 2 * i + 1}")
    a(f"buffer_store_dwordx4 {vr(PK+8,4)}, v{vT0}, {sr(S_WS,4)}, s6 offen sc1")
    a(f"buffer_store_dwordx4 {vr(PK+12,4)}, v{vT0}, {sr(S_WS,4)}, s7 offen sc1")
    a(f"buffer_store_dwordx4 {vr(PK,4)}, v{vL16}, {sr(S_WS,4)}, s4 offen sc1")
    a(f"buffer_store_dwordx4 {vr(PK+4,4)}, v{vL16}, {sr(S_WS,4)}, s5 offen sc1")
    a.label("A_BIAS")
    for g in range(8):
        b = ACC + 4 * g
        a(f"v_lshlrev_b32 v{b}, 16, v{BIAS+2*g}")
        a(f"v_and_b32 v{b+1}, 0xffff0000, v{BIAS+2*g}")
        a(f"v_lshlrev_b32 v{b+2}, 16, v{BIAS+2*g+1}")
        a(f"v_and_b32 v{b+3}, 0xffff0000, v{BIAS+2*g+1}")
    a("s_branch A_L1")
    a.label("A_L2P")
    for ks in range(3):
        reads(ks, FS[ks], 0, True)
    loop("A_L2", True)
    a("s_waitcnt lgkmcnt(0)")
    for ks in range(3):
        reads(ks, FS[ks], 0, False, True)
    stamp(a, 3)
    a(f"v_and_b32 v{vT0}, 0x2f, v{vLane}")
    a(f"v_lshlrev_b32 v{vT0}, 4, v{vT0}")
    a(f"v_bfe_u32 v{vT1}, v{vLane}, 4, 1")
    a(f"v_lshl_add_u32 v{vT0}, v{vT1}, 17, v{vT0}")
    a(f"s_lshl_b32 s4, s{sCG}, 18")
    a(f"s_lshl_b32 s5, s{sTT}, 11")
    a(f"s_add_u32 s4, s4, s5")
    a(f"s_add_u32 s4, s4, {WS_KV:#x}")
    a(f"s_lshl_b32 s5, s{sTT}, 7")
    a(f"s_add_u32 s5, s5, {WS_G:#x}")
    a(f"v_lshlrev_b32 v{vT1}, 2, v{vLane}")
    a("s_waitcnt vmcnt(0)")
    a("s_nop 1")
    for i in range(8):
        a(f"v_cvt_pk_bf16_f32 v{PK + i}, v{ACC + 2 * i}, v{ACC + 2 * i + 1}")
    a(f"v_mul_f32 v{PK+8}, {f32(-LOG2E)}, v{ACC+16}")
    a(f"v_exp_f32 v{PK+8}, v{PK+8}")
    a(f"buffer_store_dwordx4 {vr(PK,4)}, v{vT0}, {sr(S_WS,4)}, s4 offen offset:1024 sc1")
    a(f"v_add_f32 v{PK+8}, 1.0, v{PK+8}")
    a(f"v_rcp_f32 v{PK+8}, v{PK+8}")
    a(f"buffer_store_dwordx4 {vr(PK+4,4)}, v{vT0}, {sr(S_WS,4)}, s4 offen offset:1280 sc1")
    a("s_mov_b32 exec_hi, 0")
    a(f"buffer_store_dword v{PK+8}, v{vT1}, {sr(S_WS,4)}, s5 offen sc1")
    a("s_mov_b64 exec, -1")
    a("s_waitcnt lgkmcnt(0)")
    a("s_branch A_BIAS")
    a.label("A_MISH")
    stamp(a, 4)
    a(f"s_mul_i32 s13, s{sTT}, 112")
    a(f"s_lshl_b32 s{sT1}, s{sFT0}, 1")
    a(f"s_add_u32 s13, s13, s{sT1}")
    a(f"s_lshr_b32 s{sT1}, s{sW}, 2")
    a(f"s_lshl_b32 s{sT1}, s{sT1}, 2")
    a(f"s_add_u32 s13, s13, s{sT1}")
    a(f"s_lshl_b32 s13, s13, 10")
    a(f"s_add_u32 s13, s13, {WS_ACT:#x}")
    a("s_waitcnt lgkmcnt(0)")
    a("s_nop 3")
    mish16(a, ACC, TMP, 128)
    mish16(a, ACC + 16, TMP, 136)

    a.label("A_PH2")
    sHead, sQT, sI, sB1, sB2, sPass = 4, 5, 6, 7, 8, 9
    sMask = 10
    vAddr, vIdx, vG = 5, 6, 7
    Q = 8
    KB = [12, 16]
    VB = [20, 28]
    S = [36, 52]
    C = 68
    O = 84
    vFl = 100
    a(f"s_and_b32 s{sT0}, s2, 7")
    a(f"s_lshl_b32 s{sHead}, s{sT0}, 2")
    a(f"s_bfe_u32 s{sT0}, s2, 0x20003")
    a(f"s_add_u32 s{sHead}, s{sHead}, s{sT0}")
    a(f"s_lshr_b32 s{sQT}, s2, 5")
    a(f"s_lshl_b32 s{sQT}, s{sQT}, 3")
    a(f"s_add_u32 s{sQT}, s{sQT}, s{sW}")
    a(f"v_mov_b32 v{vIdx}, 0xdddddddd")
    a(f"s_mov_b32 s{sMask}, 0x0000ffff")
    a(f"s_mov_b32 s{sMask+1}, 0x0000ffff")
    a(f"v_and_b32 v{vT0}, 27, v{vLane}")
    a(f"v_cmp_eq_u32 vcc, 16, v{vT0}")
    a(f"v_mov_b32 v{vT1}, 0x3f803f80")
    a("s_nop 0")
    a(f"v_cndmask_b32 v{vT0}, 0, v{vT1}, vcc")
    for b in VB:
        for i in range(8):
            a(f"v_mov_b32 v{b+i}, v{vT0}")
    a(f"v_mov_b32 v{vAddr}, v{vL16}")
    a(f"s_mov_b32 s{sB1}, 1")
    a(f"s_mov_b32 s{sB2}, 3")
    a(f"s_mov_b32 s{sPass}, 0")
    a(f"s_lshl_b32 s{sT0}, s{sW}, 10")
    a(f"s_add_u32 s{sT0}, s{sT0}, {L_Q}")
    a(f"v_add_u32 v{vT1}, s{sT0}, v{vL16}")
    for i in range(16):
        a(f"v_mov_b32 v{O+i}, 0")
    a("s_setprio 2")
    stamp(a, 5)
    a("s_barrier")
    stamp(a, 6)
    a(f"ds_read_b128 {vr(Q,4)}, v{vT1}")
    a(f"ds_read_b128 {vr(KB[0],4)}, v{vAddr} offset:0")
    a(f"v_and_b32 v{vT0}, 31, v{vLane}")
    a(f"v_lshlrev_b32 v{vT0}, 2, v{vT0}")
    a(f"s_lshl_b32 s{sT0}, s{sQT}, 7")
    a(f"s_add_u32 s{sT0}, s{sT0}, {WS_G:#x}")
    a(f"buffer_load_dword v{vG}, v{vT0}, {sr(S_WS,4)}, s{sT0} offen sc1")
    a(f"buffer_store_dwordx4 {vr(128,4)}, v{vL16}, {sr(S_WS,4)}, s13 offen sc1")
    a(f"buffer_store_dwordx4 {vr(132,4)}, v{vL16}, {sr(S_WS,4)}, s13 offen offset:1024 sc1")
    a(f"buffer_store_dwordx4 {vr(136,4)}, v{vL16}, {sr(S_WS,4)}, s13 offen offset:2048 sc1")
    a(f"buffer_store_dwordx4 {vr(140,4)}, v{vL16}, {sr(S_WS,4)}, s13 offen offset:3072 sc1")
    a(f"buffer_load_dwordx2 {vr(vFl,2)}, off, {sr(S_DBG,4)}, 0 sc1")
    a("s_waitcnt lgkmcnt(0)")
    a(f"v_mfma_f32_32x32x16_bf16 {vr(S[0],16)}, {vr(KB[0],4)}, {vr(Q,4)}, 0")
    a("s_nop 7")
    a("s_nop 7")
    s0 = S[0]
    a(f"v_max3_f32 v{vT0}, v{s0}, v{s0+1}, v{s0+2}")
    for i in range(3, 15, 2):
        a(f"v_max3_f32 v{vT0}, v{vT0}, v{s0+i}, v{s0+i+1}")
    a(f"v_max_f32 v{vT0}, v{vT0}, v{s0+15}")
    a.label("A_SETMAX")
    a(f"v_mov_b32 v{vT1}, v{vT0}")
    a("s_nop 1")
    a(f"v_permlane32_swap_b32 v{vT0}, v{vT1}")
    a("s_nop 1")
    a(f"v_max_f32 v{vT0}, v{vT0}, v{vT1}")
    for i in range(16):
        a(f"v_sub_f32 v{C+i}, 0, v{vT0}")
    a(f"ds_read_b128 {vr(KB[0],4)}, v{vAddr} offset:0")
    a(f"ds_read_b128 {vr(KB[1],4)}, v{vAddr} offset:2048")
    a(f"s_mov_b64 exec, {sr(sMask,2)}")
    a(f"ds_read_b128 {vr(VB[0],4)}, v{vAddr} offset:1024")
    a(f"ds_read_b128 {vr(VB[0]+4,4)}, v{vAddr} offset:1280")
    a("s_mov_b64 exec, -1")
    a("s_waitcnt lgkmcnt(0)")
    a(f"v_mfma_f32_32x32x16_bf16 {vr(S[0],16)}, {vr(KB[0],4)}, {vr(Q,4)}, {vr(C,16)}")
    a(f"s_mov_b32 s{sI}, 0")
    for i in range(8, 16):
        a(f"v_mov_b32 v{S[1]+i}, 0")
    a("s_nop 7")
    a.raw(".p2align 6")
    a.label("A_LOOP")
    a(f"s_cmp_eq_u32 s{sI}, s{sB1}")
    a("s_cbranch_scc0 A_NB1")
    a("s_barrier")
    a("s_nop 0")
    a.label("A_NB1")
    a(f"s_cmp_eq_u32 s{sI}, s{sB2}")
    a("s_cbranch_scc0 A_NB2")
    a("s_waitcnt vmcnt(0)")
    a("s_barrier")
    a.raw(".p2align 3")
    a.label("A_NB2")
    a(f"s_cmp_eq_u32 s{sI}, 10")
    a("s_cbranch_scc0 A_NP1")
    a("s_setprio 1")
    a("s_nop 0")
    a.label("A_NP1")
    a(f"s_cmp_eq_u32 s{sI}, 14")
    a("s_cbranch_scc0 A_NP2")
    a("s_setprio 0")
    a("s_nop 0")
    a.label("A_NP2")
    for u in range(4):
        p = u & 1
        cur, nxt = S[p], S[1 - p]
        def E(lo, hi):
            for i in range(lo, hi):
                a(f"v_exp_f32 v{cur+i}, v{cur+i}")
        E(0, 2)
        a(f"v_smfmac_f32_32x32x32_bf16 {vr(O,16)}, {vr(VB[1-p]+4,4)}, {vr(nxt+8,8)}, v{vIdx}")
        E(2, 7)
        a("s_waitcnt lgkmcnt(0)")
        a(f"v_mfma_f32_32x32x16_bf16 {vr(nxt,16)}, {vr(KB[1-p],4)}, {vr(Q,4)}, {vr(C,16)}")
        a(f"ds_read_b128 {vr(KB[p],4)}, v{vAddr} offset:{(u+2)*2048}")
        E(7, 8)
        a(f"s_mov_b64 exec, {sr(sMask,2)}")
        a(f"ds_read_b128 {vr(VB[1-p],4)}, v{vAddr} offset:{(u+1)*2048+1024}")
        a(f"ds_read_b128 {vr(VB[1-p]+4,4)}, v{vAddr} offset:{(u+1)*2048+1280}")
        a("s_mov_b64 exec, -1")
        E(8, 13)
        a(f"v_smfmac_f32_32x32x32_bf16 {vr(O,16)}, {vr(VB[p],4)}, {vr(cur,8)}, v{vIdx}")
        if u == 3:
            a(f"v_add_u32 v{vAddr}, 8192, v{vAddr}")
            E(13, 16)
            a(f"s_add_u32 s{sI}, s{sI}, 1")
            a(f"s_cmp_lt_u32 s{sI}, 16")
        else:
            a(f"v_exp_f32_e64 v{cur+13}, v{cur+13}")
            E(14, 16)
    a("s_cbranch_scc1 A_LOOP")
    a("s_nop 1")
    a(f"v_smfmac_f32_32x32x32_bf16 {vr(O,16)}, {vr(VB[1]+4,4)}, {vr(S[1]+8,8)}, v{vIdx}")
    a("s_waitcnt lgkmcnt(0)")
    a("s_nop 7")
    a("s_nop 7")
    a(f"s_cmp_lg_u32 s{sPass}, 0")
    a("s_cbranch_scc1 A_FIN")
    a(f"v_max3_f32 v{vT0}, |v{O}|, |v{O+1}|, |v{O+2}|")
    a(f"v_max3_f32 v{vT0}, v{vT0}, |v{O+3}|, |v{O+4}|")
    a(f"v_max3_f32 v{vT0}, v{vT0}, |v{O+5}|, |v{O+6}|")
    a(f"v_max_f32 v{vT0}, v{vT0}, |v{O+7}|")
    a(f"v_mov_b32 v{vT1}, 0x7f800000")
    a(f"v_cmp_nlt_f32 vcc, v{vT0}, v{vT1}")
    a(f"v_mov_b32 v{vT1}, {f32(2.0**30)}")
    a(f"v_cmp_nlt_f32 {sr(sT2,2)}, v{O+8}, v{vT1}")
    a("s_nop 1")
    a(f"s_or_b64 vcc, vcc, {sr(sT2,2)}")
    a("s_cbranch_scc0 A_FIN")
    a(f"s_mov_b32 s{sPass}, 1")
    a(f"s_mov_b32 s{sB1}, 100")
    a(f"s_mov_b32 s{sB2}, 100")
    a(f"v_mov_b32 v{vAddr}, v{vL16}")
    a(f"v_mov_b32 v{vT0}, 0xff800000")
    a(f"s_mov_b32 s{sI}, 0")
    a.label("A_MAXLOOP")
    a(f"ds_read_b128 {vr(KB[0],4)}, v{vAddr} offset:0")
    a("s_waitcnt lgkmcnt(0)")
    a(f"v_mfma_f32_32x32x16_bf16 {vr(S[0],16)}, {vr(KB[0],4)}, {vr(Q,4)}, 0")
    a(f"v_add_u32 v{vAddr}, 2048, v{vAddr}")
    a("s_nop 7")
    a("s_nop 7")
    for i in range(0, 16, 2):
        a(f"v_max3_f32 v{vT0}, v{vT0}, v{s0+i}, v{s0+i+1}")
    a(f"s_add_u32 s{sI}, s{sI}, 1")
    a(f"s_cmp_lt_u32 s{sI}, 64")
    a("s_cbranch_scc1 A_MAXLOOP")
    a(f"v_mov_b32 v{vAddr}, v{vL16}")
    for i in range(16):
        a(f"v_mov_b32 v{O+i}, 0")
    a("s_branch A_SETMAX")
    a.label("A_FIN")
    stamp(a, 7)
    a(f"v_rcp_f32 v{vT0}, v{O+8}")
    a("s_waitcnt vmcnt(0)")
    a(f"v_mul_f32 v{vT0}, v{vT0}, v{vG}")
    for i in range(8):
        a(f"v_mul_f32 v{O+i}, v{O+i}, v{vT0}")
    for i in range(4):
        a(f"v_cvt_pk_bf16_f32 v{O+i}, v{O+2*i}, v{O+2*i+1}")
    a(f"s_lshl_b32 s{sT0}, s{sQT}, 15")
    a(f"s_lshl_b32 s{sT1}, s{sHead}, 10")
    a(f"s_add_u32 s{sT0}, s{sT0}, s{sT1}")
    a(f"s_add_u32 s{sT0}, s{sT0}, {WS_OF:#x}")
    a(f"buffer_store_dwordx4 {vr(O,4)}, v{vL16}, {sr(S_WS,4)}, s{sT0} offen sc1")
    a(f"s_lshr_b32 s{sT0}, s{sQT}, 1")
    a(f"s_lshl_b32 s{sT0}, s{sT0}, 9")
    a(f"s_lshl_b32 s{sT1}, s{sHead}, 4")
    a(f"s_add_u32 s{sT0}, s{sT0}, s{sT1}")
    a(f"s_and_b32 s{sT1}, s{sQT}, 1")
    a(f"s_lshl_b32 s{sT1}, s{sT1}, 3")
    a(f"s_add_u32 s{sT0}, s{sT0}, s{sT1}")
    a(f"s_add_u32 s{sT0}, s{sT0}, {WS_FO:#x}")
    a("s_waitcnt vmcnt(0)")
    a("s_mov_b64 exec, 1")
    a(f"buffer_store_dwordx2 {vr(vFl,2)}, off, {sr(S_WS,4)}, s{sT0} sc1")
    stamp(a, 9); stamp(a, 8, True)
    stamp_flush(a)
    a("s_endpgm")


def gen_G(a):
    sXoff, sLX, sWQ0, sW10, sGO = 26, 27, 80, 81, 3
    sGW = sTG
    vDX0, vDX1, vDWq, vDW1, vT2 = 5, 6, 7, 8, 9
    vWe, vWo, vW2w, vGo = 10, 11, 12, 13
    vEp = 14
    RS = 16
    NSETS = int(os.environ.get("NSETS", "9"))
    PER = int(os.environ.get("PER", "1"))
    a("s_setprio 3")
    a(f"s_lshl_b32 s{sXoff}, s{sTT}, 15")
    a(f"s_lshl_b32 s{sLX}, s{sTG}, 12")
    a(f"s_mul_i32 s{sWQ0}, s{sTG}, {16*3072}")
    a(f"s_lshl_b32 s{sT0}, s{sCG}, 6")
    a(f"s_add_u32 s{sWQ0}, s{sWQ0}, s{sT0}")
    a(f"v_lshrrev_b32 v{vT0}, 3, v{vLane}")
    a(f"v_lshrrev_b32 v{vT1}, 4, v{vLane}")
    a(f"v_and_b32 v{vT2}, 7, v{vLane}")
    a(f"v_xor_b32 v{vT2}, v{vT2}, v{vT1}")
    a(f"v_lshlrev_b32 v{vDX0}, 10, v{vT0}")
    a(f"v_lshl_add_u32 v{vDX0}, v{vT2}, 4, v{vDX0}")
    a(f"v_xor_b32 v{vDX1}, 64, v{vDX0}")
    a(f"v_add_u32 v{vDX1}, 8192, v{vDX1}")
    a(f"v_lshrrev_b32 v{vT0}, 2, v{vLane}")
    a(f"v_and_b32 v{vT2}, 3, v{vLane}")
    a(f"v_lshlrev_b32 v{vT2}, 4, v{vT2}")
    a(f"v_mul_u32_u24 v{vDWq}, 3072, v{vT0}")
    a(f"v_add_u32 v{vDWq}, v{vDWq}, v{vT2}")
    a(f"v_mul_u32_u24 v{vDW1}, 3584, v{vT0}")
    a(f"v_add_u32 v{vDW1}, v{vDW1}, v{vT2}")
    sLW = sGO
    a(f"s_lshl_b32 s{sLW}, s{sTG}, 10")
    a("s_waitcnt lgkmcnt(0)")
    estamp(a, 2)
    srd(a, S_X, 4, 2048 * 512 * 2)
    srd(a, S_WQ, 6, 512 * 1536 * 2)
    srd(a, S_GW, 18, 1024)

    q = []
    def vm(tag):
        q.append(tag)
    def wait_tag(tag, extra=""):
        last = max(i for i, t in enumerate(q) if t == tag)
        n = len(q) - 1 - last
        assert n < 64
        a(f"s_waitcnt vmcnt({n}){extra}")

    def dma(lds_s, lds_imm, voff, srdn, s_base, imm, extra=""):
        a(f"s_add_u32 m0, s{lds_s}, {lds_imm}")
        a(f"s_add_u32 s{sT0}, s{s_base}, {imm}")
        a(f"buffer_load_dwordx4 v{voff}, {sr(srdn,4)}, s{sT0} offen{extra} lds")

    def issue(n):
        base = (n & 3) * 32768
        st = n & 7
        for j in range(4):
            dma(sLX, base + j * 1024, vDX0 if j % 2 == 0 else vDX1, S_X, sXoff, (j >> 1) * 16384 + st * 128); vm(n)
        if n < 8:
            for t in range(3):
                dma(sLW, base + 16384 + t * 4096, vDWq, S_WQ, sWQ0, st * 64 * 3072 + t * 1024); vm(n)
        else:
            for t in range(4):
                dma(sLW, base + 16384 + t * 4096, vDW1, S_W1, sW10, st * 64 * 3584 + t * 64); vm(n)

    estamp(a, 3)
    a(f"s_mov_b32 m0, {L_GW}")
    a("s_nop 0")
    a(f"buffer_load_dwordx4 v{vL16}, {sr(S_GW,4)}, 0 offen lds"); vm(0)
    issue(0)
    estamp(a, 4)
    issue(1)
    srd(a, S_W1, 12, 512 * 1792 * 2)
    srds_rest(a)
    a(f"s_mul_i32 s{sW10}, s{sTG}, {16*3584}")
    a(f"s_lshl_b32 s{sT0}, s{sFT0}, 6")
    a(f"s_add_u32 s{sW10}, s{sW10}, s{sT0}")
    a(f"s_lshl_b32 s{sT0}, s2, 4")
    a(f"s_add_u32 s{sT0}, s{sT0}, s{sW}")
    a(f"s_cmp_eq_u32 s{sT0}, 8")
    a("s_cbranch_scc0 G_NOEP")
    a(f"s_memrealtime {sr(sEP,2)}")
    a("s_waitcnt lgkmcnt(0)")
    a(f"s_or_b32 s{sEP}, s{sEP}, 1")
    a(f"v_mov_b32 v{vEp}, s{sEP}")
    a(f"v_mov_b32 v{vEp+1}, s{sEP+1}")
    a("s_mov_b64 exec, 1")
    a(f"buffer_store_dwordx2 {vr(vEp,2)}, off, {sr(S_DBG,4)}, 0 sc1")
    a("s_mov_b64 exec, -1")
    a.label("G_NOEP")
    estamp(a, 5)
    wait_tag(0)
    estamp(a, 6)
    a("s_barrier")
    stamp(a, 2)
    estamp(a, 7)
    issue(2)
    for n in range(16):
        if n == 0:
            issue(3)
        if n == int(os.environ.get("PFW1", "2")) and "N" not in X:
            a(f"s_lshr_b32 s{sT0}, s2, 3")
            a(f"s_lshl_b32 s{sT0}, s{sT0}, 4")
            a(f"s_lshl_b32 s{sT1}, s{sGW}, 2")
            a(f"s_add_u32 s{sT0}, s{sT0}, s{sT1}")
            a(f"s_mul_i32 s{sT0}, s{sT0}, 3584")
            a(f"s_bfe_u32 s{sT1}, s2, 0x20001")
            a(f"s_lshl_b32 s{sT1}, s{sT1}, 10")
            a(f"s_add_u32 s{sT0}, s{sT0}, s{sT1}")
            a(f"v_mul_u32_u24 v16, 3584, v{vT1}")
            a(f"v_and_b32 v17, 15, v{vLane}")
            a(f"v_lshl_add_u32 v16, v17, 6, v16")
            a(f"buffer_load_dword v17, v16, {sr(S_W1,4)}, s{sT0} offen"); vm("pf")
        if n == 4:
            a(f"buffer_load_dwordx2 {vr(vEp,2)}, off, {sr(S_DBG,4)}, 0 sc1"); vm("ep")
        if n == 10:
            wait_tag("ep")
            a(f"s_mov_b32 s{sT1}, 0")
            a.label("G_EPL")
            a(f"v_readfirstlane_b32 s{sEP}, v{vEp}")
            a(f"v_readfirstlane_b32 s{sEP+1}, v{vEp+1}")
            a(f"s_cmp_lg_u32 s{sEP}, 0")
            a("s_cbranch_scc1 G_EPD")
            a("s_sleep 4")
            a(f"buffer_load_dwordx2 {vr(vEp,2)}, off, {sr(S_DBG,4)}, 0 sc1")
            a("s_waitcnt vmcnt(0)")
            a(f"s_add_u32 s{sT1}, s{sT1}, 1")
            a(f"s_cmp_lt_u32 s{sT1}, {SPIN_MAX}")
            a("s_cbranch_scc1 G_EPL")
            a.label("G_EPD")
        if n + 1 <= 15:
            wait_tag(n + 1)
        a("s_barrier")
        if 1 <= n and n + 3 <= 15:
            issue(n + 3)
        if "P" in X and STAMPS:
            P0 = int(os.environ.get("P0", "8"))
            if P0 <= n + 1 < P0 + 6:
                i = n + 1 - P0 + 2
                a(f"s_memtime s[{82+2*i}:{83+2*i}]")
                a("s_waitcnt lgkmcnt(0)")
        if n + 1 == 12:
            a(f"s_cmp_eq_u32 s{sGW}, 0")
            a("s_cbranch_scc0 G_NOF1")
            a(f"s_lshl_b32 s{sT0}, s{sCG}, 7")
            a(f"s_lshl_b32 s{sT1}, s{sRB}, 3")
            a(f"s_add_u32 s{sT0}, s{sT0}, s{sT1}")
            a(f"s_add_u32 s{sT0}, s{sT0}, {WS_FKV:#x}")
            a("s_mov_b64 exec, 1")
            a(f"buffer_store_dwordx2 {vr(vEp,2)}, off, {sr(S_WS,4)}, s{sT0} sc1")
            a("s_mov_b64 exec, -1")
            a.label("G_NOF1")
    sHead, sKV, sLK, sFK, sFG, sQ = 4, 5, 6, 7, 8, 9
    sA0, sA1, sW2, sOT, sON, sI, sRing, sTT64, sNB = 10, 11, 12, 13, 14, 15, 16, 17, 18
    vL8, vF16 = 5, 6
    FL = 124
    a(f"s_and_b32 s{sT0}, s2, 7")
    a(f"s_lshl_b32 s{sHead}, s{sT0}, 2")
    a(f"s_bfe_u32 s{sT0}, s2, 0x20003")
    a(f"s_add_u32 s{sHead}, s{sHead}, s{sT0}")
    a(f"s_lshl_b32 s{sLK}, s{sGW}, 10")
    a(f"s_lshl_b32 s{sKV}, s{sHead}, 17")
    a(f"s_add_u32 s{sKV}, s{sKV}, {WS_KV:#x}")
    a(f"s_add_u32 s{sKV}, s{sKV}, s{sLK}")
    a(f"s_lshr_b32 s{sT0}, s{sHead}, 1")
    a(f"s_lshl_b32 s{sFK}, s{sT0}, 7")
    a(f"s_add_u32 s{sFK}, s{sFK}, {WS_FKV:#x}")
    a(f"s_lshr_b32 s{sT1}, s2, 5")
    a(f"s_lshl_b32 s{sQ}, s{sHead}, 16")
    a(f"s_lshl_b32 s{sT0}, s{sT1}, 13")
    a(f"s_add_u32 s{sQ}, s{sQ}, s{sT0}")
    a(f"s_add_u32 s{sQ}, s{sQ}, s{sLK}")
    a(f"s_add_u32 s{sQ}, s{sQ}, {WS_QF:#x}")
    a(f"v_lshlrev_b32 v{vL8}, 3, v{vLane}")
    a(f"v_and_b32 v{vF16}, 0x78, v{vL8}")
    stamp(a, 3)
    poll(a, [(1, FL, vF16, sFK)], sT1)
    stamp(a, 4)
    def kvdma(i):
        dma(sLK, i * 4096, vL16, S_WS, sKV, i * 4096, " sc1")
    dma(sLK, L_Q, vL16, S_WS, sQ, 0, " sc1")
    dma(sLK, L_Q + 4096, vL16, S_WS, sQ, 4096, " sc1")
    for i in range(20): kvdma(i)
    a("s_waitcnt vmcnt(16)")
    a("s_barrier")
    for i in range(20, 32): kvdma(i)
    a("s_waitcnt vmcnt(24)")
    a("s_barrier")
    ACC = 8
    AF = 72
    WF = 104
    vG0, vG1 = 120, 121
    vDW, vTr0, vTr1 = 7, 122, 123
    a(f"s_and_b32 s{sT0}, s2, 7")
    a(f"s_lshr_b32 s{sT1}, s2, 3")
    a(f"s_lshr_b32 s{sTT64}, s{sT0}, 1")
    a(f"s_lshl_b32 s{sTT64}, s{sTT64}, 3")
    a(f"s_and_b32 s{sT3}, s{sT1}, 7")
    a(f"s_add_u32 s{sTT64}, s{sTT64}, s{sT3}")
    a(f"s_and_b32 s{sNB}, s{sT0}, 1")
    a(f"s_lshl_b32 s{sNB}, s{sNB}, 2")
    a(f"s_lshr_b32 s{sT1}, s{sT1}, 3")
    a(f"s_add_u32 s{sNB}, s{sNB}, s{sT1}")
    a(f"s_lshr_b32 s{sT1}, s{sGW}, 1")
    a(f"s_lshl_b32 s{sOT}, s{sTT64}, 1")
    a(f"s_add_u32 s{sOT}, s{sOT}, s{sT1}")
    a(f"s_and_b32 s{sT1}, s{sGW}, 1")
    a(f"s_lshl_b32 s{sON}, s{sNB}, 1")
    a(f"s_add_u32 s{sON}, s{sON}, s{sT1}")
    a(f"s_mul_i32 s{sT3}, s{sGW}, {28*1024}")
    a(f"s_mul_i32 s{sA0}, s{sOT}, {112*1024}")
    a(f"s_add_u32 s{sA0}, s{sA0}, s{sT3}")
    a(f"s_add_u32 s{sA0}, s{sA0}, {WS_ACT:#x}")
    a(f"s_xor_b32 s{sT1}, s{sOT}, 1")
    a(f"s_mul_i32 s{sA1}, s{sT1}, {112*1024}")
    a(f"s_add_u32 s{sA1}, s{sA1}, s{sT3}")
    a(f"s_add_u32 s{sA1}, s{sA1}, {WS_ACT:#x}")
    a(f"s_mul_i32 s{sW2}, s{sGW}, {28*16384}")
    a(f"s_lshl_b32 s{sT1}, s{sNB}, 7")
    a(f"s_add_u32 s{sW2}, s{sW2}, s{sT1}")
    a(f"s_lshl_b32 s{sRing}, s{sGW}, 13")
    a(f"s_add_u32 s{sRing}, s{sRing}, {L_RING}")
    a(f"v_lshrrev_b32 v{vT0}, 3, v{vLane}")
    a(f"v_bfe_u32 v{vT1}, v{vLane}, 4, 1")
    a(f"v_lshlrev_b32 v{vT1}, 2, v{vT1}")
    a(f"v_and_b32 v{vDW}, 7, v{vLane}")
    a(f"v_xor_b32 v{vDW}, v{vDW}, v{vT1}")
    a(f"v_lshlrev_b32 v{vDW}, 4, v{vDW}")
    a(f"v_lshl_add_u32 v{vDW}, v{vT0}, 10, v{vDW}")
    a(f"v_bfe_u32 v{vT0}, v{vLane}, 2, 2")
    a(f"v_lshrrev_b32 v{vT1}, 5, v{vLane}")
    a(f"v_lshl_add_u32 v{vT0}, v{vT1}, 2, v{vT0}")
    a(f"v_lshlrev_b32 v{vTr0}, 7, v{vT0}")
    a(f"v_bfe_u32 v{vT0}, v{vLane}, 3, 1")
    a(f"v_lshl_add_u32 v{vTr0}, v{vT0}, 6, v{vTr0}")
    a(f"v_and_b32 v{vT0}, 1, v{vLane}")
    a(f"v_lshl_add_u32 v{vTr0}, v{vT0}, 5, v{vTr0}")
    a(f"v_bfe_u32 v{vT0}, v{vLane}, 4, 1")
    a(f"v_lshl_add_u32 v{vTr0}, v{vT0}, 4, v{vTr0}")
    a(f"v_bfe_u32 v{vT0}, v{vLane}, 1, 1")
    a(f"v_lshl_add_u32 v{vTr0}, v{vT0}, 3, v{vTr0}")
    a(f"s_and_b32 s{sT1}, s{sGW}, 1")
    a(f"s_lshl_b32 s{sT1}, s{sT1}, 6")
    a(f"v_xor_b32 v{vTr0}, s{sT1}, v{vTr0}")
    a(f"v_add_u32 v{vTr0}, s{sRing}, v{vTr0}")
    a(f"v_xor_b32 v{vTr1}, 64, v{vTr0}")
    a(f"s_lshl_b32 s{sFG}, s{sTT64}, 9")
    a(f"s_add_u32 s{sFG}, s{sFG}, {WS_FO:#x}")
    a(f"s_lshr_b32 s{sFK}, s{sTT64}, 1")
    a(f"s_lshl_b32 s{sFK}, s{sFK}, 7")
    a(f"s_add_u32 s{sFK}, s{sFK}, {WS_FACT:#x}")
    a("s_waitcnt vmcnt(0)")
    a("s_barrier")
    a(f"s_cmp_eq_u32 s{sGW}, 0")
    a("s_cbranch_scc0 G_NOF2")
    a(f"s_lshl_b32 s{sT0}, s{sRB}, 7")
    a(f"s_lshl_b32 s{sT1}, s{sCG}, 3")
    a(f"s_add_u32 s{sT0}, s{sT0}, s{sT1}")
    a(f"s_add_u32 s{sT0}, s{sT0}, {WS_FACT:#x}")
    a("s_mov_b64 exec, 1")
    a(f"buffer_store_dwordx2 {vr(vEp,2)}, off, {sr(S_WS,4)}, s{sT0} sc1")
    a("s_mov_b64 exec, -1")
    a.label("G_NOF2")
    a("s_setprio 0")
    stamp(a, 5)
    poll(a, [(1, FL, vF16, sFK)], sT1)
    a(f"v_and_b32 v{vT0}, 31, v{vLane}")
    a(f"v_lshlrev_b32 v{vT0}, 2, v{vT0}")
    a(f"s_lshl_b32 s{sT0}, s{sOT}, 7")
    a(f"s_add_u32 s{sT0}, s{sT0}, {WS_G:#x}")
    a(f"s_xor_b32 s{sT1}, s{sT0}, 128")
    a(f"buffer_load_dword v{vG0}, v{vT0}, {sr(S_WS,4)}, s{sT0} offen sc1")
    a(f"buffer_load_dword v{vG1}, v{vT0}, {sr(S_WS,4)}, s{sT1} offen sc1")

    def wdma(st, srdn):
        a(f"s_add_u32 m0, s{sRing}, {st * 2048}")
        a(f"s_add_u32 s{sT0}, s{sW2}, 8192")
        a(f"buffer_load_dwordx4 v{vDW}, {sr(srdn,4)}, s{sW2} offen lds")
        a(f"s_add_u32 m0, s{sRing}, {st * 2048 + 1024}")
        a(f"s_add_u32 s{sW2}, s{sW2}, 16384")
        a(f"buffer_load_dwordx4 v{vDW}, {sr(srdn,4)}, s{sT0} offen lds")

    def group(st):
        wdma(st, S_W2)
        f = AF + 8 * st
        a(f"buffer_load_dwordx4 {vr(f,4)}, v{vL16}, {sr(S_WS,4)}, s{sA0} offen offset:{st*1024} sc1")
        a(f"buffer_load_dwordx4 {vr(f+4,4)}, v{vL16}, {sr(S_WS,4)}, s{sA1} offen offset:{st*1024} sc1")
        if st == 3:
            a(f"s_add_u32 s{sA0}, s{sA0}, 4096")
            a(f"s_add_u32 s{sA1}, s{sA1}, 4096")

    def trreads(st, w):
        for jp, vt in enumerate((vTr0, vTr1)):
            a(f"ds_read_b64_tr_b16 {vr(w+4*jp,2)}, v{vt} offset:{st*2048}")
            a(f"ds_read_b64_tr_b16 {vr(w+4*jp+2,2)}, v{vt} offset:{st*2048+1024}")

    def gmfma(w, f, first):
        for ap in range(2):
            for jp in range(2):
                acc = ACC + 16 * (ap * 2 + jp)
                c = "0" if first else vr(acc, 16)
                a(f"v_mfma_f32_32x32x16_bf16 {vr(acc,16)}, {vr(w+4*jp,4)}, {vr(f+4*ap,4)}, {c}")

    def step(st, first, more, nwait=12):
        a(f"s_waitcnt vmcnt({nwait})")
        w = WF + 8 * (st & 1)
        trreads(st, w)
        a("s_waitcnt lgkmcnt(0)")
        gmfma(w, AF + 8 * st, first)
        if more:
            group(st)

    for st in range(4): group(st)
    for st in range(4): step(st, st == 0, True)
    a(f"s_mov_b32 s{sI}, 0")
    a.label("G_LOOP")
    for st in range(4): step(st, False, True)
    a(f"s_add_u32 s{sI}, s{sI}, 1")
    a(f"s_cmp_lt_u32 s{sI}, 5")
    a("s_cbranch_scc1 G_LOOP")
    for st in range(4): step(st, False, False, 12 - 4 * st)
    stamp(a, 6)
    WOR = 72
    OFR = 136
    a(f"s_lshl_b32 s{sW2}, s{sGW}, 17")
    a(f"s_lshl_b32 s{sT1}, s{sNB}, 7")
    a(f"s_add_u32 s{sW2}, s{sW2}, s{sT1}")
    for st in range(4): wdma(st, S_WO)
    a(f"v_sub_f32 v{vT0}, 1.0, v{vG0}")
    a(f"v_sub_f32 v{vT1}, 1.0, v{vG1}")
    a(f"v_mov_b32 v152, v{vTr0}")
    a(f"v_mov_b32 v153, v{vTr1}")
    vTr0, vTr1 = 152, 153
    a("s_nop 7")
    for q in range(4):
        for i in range(16):
            a(f"v_mul_f32 v{ACC+16*q+i}, v{ACC+16*q+i}, v{vT0 if q < 2 else vT1}")
    def trreads2(st, w):
        for jp, vt in enumerate((vTr0, vTr1)):
            a(f"ds_read_b64_tr_b16 {vr(w+4*jp,2)}, v{vt} offset:{st*2048}")
            a(f"ds_read_b64_tr_b16 {vr(w+4*jp+2,2)}, v{vt} offset:{st*2048+1024}")
    for ks in range(8):
        st = ks & 3
        a(f"s_waitcnt vmcnt({6 if ks < 4 else 6 - 2 * (ks - 4)})")
        trreads2(st, WOR + 8 * ks)
        if ks < 4:
            a("s_waitcnt lgkmcnt(0)")
            wdma(st, S_WO)
    FL = 156
    a(f"s_lshl_b32 s{sA0}, s{sOT}, 15")
    a(f"s_lshl_b32 s{sT3}, s{sGW}, 13")
    a(f"s_add_u32 s{sA0}, s{sA0}, s{sT3}")
    a(f"s_add_u32 s{sA0}, s{sA0}, {WS_OF:#x}")
    a(f"s_xor_b32 s{sA1}, s{sA0}, 32768")
    a(f"s_lshl_b32 s{sLK}, s{sGW}, 14")
    a(f"v_add_u32 v154, s{sLK}, v{vL16}")
    a("s_waitcnt lgkmcnt(0)")
    a("s_barrier")
    a("s_setprio 3")
    poll(a, [(1, FL, vL8, sFG)], sT1)
    stamp(a, 7)
    for ks in range(8):
        dma(sLK, ks * 2048, vL16, S_WS, sA0, ks * 1024, " sc1")
        dma(sLK, ks * 2048 + 1024, vL16, S_WS, sA1, ks * 1024, " sc1")
    for ks in range(8):
        f = OFR + 8 * (ks & 1)
        a(f"s_waitcnt vmcnt({14 - 2 * ks})")
        a(f"ds_read_b128 {vr(f,4)}, v154 offset:{ks*2048}")
        a(f"ds_read_b128 {vr(f+4,4)}, v154 offset:{ks*2048+1024}")
        a("s_waitcnt lgkmcnt(0)")
        gmfma(WOR + 8 * ks, f, False)
    a("s_nop 7")
    a("s_nop 7")
    for q in range(1, 4):
        a(f"s_xor_b32 s{sT0}, s{sGW}, {q}")
        a(f"s_mul_i32 s{sT0}, s{sT0}, 12288")
        a(f"s_add_u32 s{sT0}, s{sT0}, {L_EXCH}")
        a(f"v_add_u32 v{vT0}, s{sT0}, v{vL16}")
        for i in range(4):
            a(f"ds_write_b128 v{vT0}, {vr(ACC+16*q+4*i,4)} offset:{(q-1)*4096 + i*1024}")
    a(f"s_mul_i32 s{sT0}, s{sGW}, 12288")
    a(f"s_add_u32 s{sT0}, s{sT0}, {L_EXCH}")
    a(f"v_add_u32 v{vT0}, s{sT0}, v{vL16}")
    a("s_waitcnt lgkmcnt(0)")
    a("s_barrier")
    R = 72
    for q in range(3):
        for i in range(4):
            a(f"ds_read_b128 {vr(R+16*q+4*i,4)}, v{vT0} offset:{q*4096 + i*1024}")
    a(f"v_and_b32 v{vT0}, 31, v{vLane}")
    a(f"v_lshlrev_b32 v{vT0}, 10, v{vT0}")
    a(f"v_lshrrev_b32 v{vT1}, 5, v{vLane}")
    a(f"v_lshl_add_u32 v{vT0}, v{vT1}, 5, v{vT0}")
    a(f"s_lshl_b32 s{sT0}, s{sOT}, 15")
    a(f"s_lshl_b32 s{sT1}, s{sON}, 6")
    a(f"s_add_u32 s{sT0}, s{sT0}, s{sT1}")
    for q in range(3):
        a(f"s_waitcnt lgkmcnt({8 - 4 * q})")
        for i in range(16):
            a(f"v_add_f32 v{ACC+i}, v{ACC+i}, v{R+16*q+i}")
    cvt16(a, ACC)
    a(f"buffer_store_dwordx4 {vr(ACC,4)}, v{vT0}, {sr(S_OUT,4)}, s{sT0} offen")
    a(f"buffer_store_dwordx4 {vr(ACC+4,4)}, v{vT0}, {sr(S_OUT,4)}, s{sT0} offen offset:16")
    if STAMPS: a("s_waitcnt vmcnt(0)")
    stamp(a, 9); stamp(a, 8, True)
    stamp_flush(a)


def main():
    ref = open(f"cdna_kernels/{NAME}.s.ref").read().split("\n")
    head = [l for l in ref if l.startswith(";") and "@launch" not in l]
    a = A()
    name = gen(a)
    out = "\n".join(head) + "\n"
    if ASLIST:
        out += f"; @launch kernel={name} grid=(256,1,1) block=(768,1,1) lds={LDS_TOTAL}\n"
    else:
        out += f"; @launch grid=(256,1,1) block=(768,1,1) lds={LDS_TOTAL}\n"
    out += '.amdgcn_target "amdgcn-amd-amdhsa--gfx950"\n'
    out += a.text()
    out += f""".section .rodata,"a"
.p2align 6
.amdhsa_kernel {name}
  .amdhsa_next_free_vgpr 168
  .amdhsa_next_free_sgpr {102 if STAMPS else 84}
  .amdhsa_accum_offset 168
  .amdhsa_group_segment_fixed_size 0
  .amdhsa_kernarg_size 88
  .amdhsa_user_sgpr_count 2
  .amdhsa_user_sgpr_kernarg_segment_ptr 1
  .amdhsa_system_sgpr_workgroup_id_x 1
.end_amdhsa_kernel
"""
    path = sys.argv[1] if len(sys.argv) > 1 else f"cdna_kernels/{NAME}.s"
    open(path, "w").write(out)
    print("wrote", path, len(out), "bytes")

main()
```

```python
import struct, sys, math, os

NAME = "gated_mix__mha_block__dense_activation_mish__prompt"
STAMPS = int(os.environ.get("STAMPS", "0"))
ASLIST = int(os.environ.get("ASLIST", "0"))
X = os.environ.get("X", "")
PR1 = int(os.environ.get("PR1", "10"))
PR2 = int(os.environ.get("PR2", "14"))

def f32(x):
    return "0x%08x" % struct.unpack("<I", struct.pack("<f", x))[0]

LOG2E = math.log2(math.e)

WS_QF  = 0x0000000
WS_KV  = 0x0200000
WS_ACT = 0x0600000
WS_G   = 0x0F40000
WS_OF  = 0x1000000
WS_FKV = 0x1800000
WS_FACT = 0x1804000
WS_FO  = 0x1808000
WS_STAMP = 0x2000000
WS_SIZE = 0x10000000

L_GW = 144 * 1024
L_B1 = 145 * 1024
L_RING = 128 * 1024
L_Q = 128 * 1024
L_EXCH = 64 * 1024
LDS_TOTAL = 160 * 1024

SPIN_MAX = 200000


class A:
    def __init__(self):
        self.l = []
        self.n = 0
    def __call__(self, s):
        for line in s.strip("\n").split("\n"):
            self.l.append("    " + line.strip())
    def label(self, s):
        self.l.append(s + ":")
    def raw(self, s):
        self.l.append(s)
    def uniq(self, p):
        self.n += 1
        return f"{p}_{self.n}"
    def text(self):
        return "\n".join(self.l) + "\n"


def vr(b, n):
    return "v[%d:%d]" % (b, b + n - 1)

def sr(b, n):
    return "s[%d:%d]" % (b, b + n - 1)

def srd(a, dst, ptr, nbytes):
    a(f"s_mov_b32 s{dst}, s{ptr}")
    a(f"s_and_b32 s{dst+1}, s{ptr+1}, 0xffff")
    a(f"s_mov_b32 s{dst+2}, {nbytes:#x}")
    a(f"s_mov_b32 s{dst+3}, 0x00020000")

S_X, S_WQ, S_W1, S_WS, S_B1, S_W2, S_WO, S_GW, S_OUT, S_DBG = 28, 32, 36, 40, 44, 48, 52, 56, 60, 64
sW, sRB, sCG, sTG, sTT, sFT0 = 68, 69, 70, 71, 72, 73
sT0, sT1, sT2, sT3 = 74, 75, 76, 77
sEP = 78
vLane, vL16, vT0, vT1 = 1, 2, 3, 4

def estamp(a, i):
    if "E" in X and STAMPS:
        a(f"s_memtime s[{82+2*i}:{83+2*i}]")
        a("s_waitcnt lgkmcnt(0)")

def istamp(a, i):
    if "I" in X and STAMPS:
        a(f"s_memtime s[{82+2*i}:{83+2*i}]")
        a("s_waitcnt lgkmcnt(0)")

def stamp(a, i, real=False):
    if not STAMPS: return
    if ("E" in X or "P" in X) and 2 <= i <= 7: return
    if "I" in X and 4 <= i <= 7: return
    a(f"{'s_memrealtime' if real else 's_memtime'} s[{82+2*i}:{83+2*i}]")
    a("s_waitcnt lgkmcnt(0)")

def stamp_flush(a, n=10):
    if not STAMPS: return
    a("s_mov_b64 exec, 1")
    for i in range(n):
        a(f"v_mov_b32 v{i+1}, s{82+2*i}")
    a(f"s_lshl_b32 s80, s2, 4")
    a(f"s_add_u32 s80, s80, s{sW}")
    a(f"s_lshl_b32 s80, s80, 6")
    a(f"s_add_u32 s80, s80, {WS_STAMP:#x}")
    for i in range(n):
        a(f"buffer_store_dword v{i+1}, off, {sr(S_WS,4)}, s80 offset:{4*i}")
    if STAMPS == 2:
        L = a.uniq("NODBG")
        a(f"s_lshl_b32 s80, s2, 4")
        a(f"s_add_u32 s80, s80, s{sW}")
        a(f"s_cmp_eq_u32 s80, {77*16+8}")
        a(f"s_cbranch_scc0 {L}")
        a("v_sub_u32 v9, v9, v1")
        for i in (3, 4, 5, 6, 7, 8, 10):
            a(f"v_sub_u32 v{i}, v{i}, v2")
        for i in range(2, n):
            a(f"buffer_store_dword v{i+1}, off, {sr(S_DBG,4)}, 0 offset:{4*i}")
        a.label(L)


def mish16(a, acc, tmp, dst, cst):
    cL, c2, cm2, c1 = (vr(cst + 2 * i, 2) for i in range(4))
    for g in range(4):
        e = [vr(acc + 4 * g + 2 * i, 2) for i in range(2)]
        t = [vr(tmp + 2 * i, 2) for i in range(2)]
        u = [vr(tmp + 4 + 2 * i, 2) for i in range(2)]
        for i in range(2): a(f"v_pk_mul_f32 {t[i]}, {e[i]}, {cL}")
        for i in range(4): a(f"v_exp_f32 v{tmp+i}, v{tmp+i}")
        for i in range(2): a(f"v_pk_add_f32 {u[i]}, {t[i]}, {c2}")
        for i in range(2): a(f"v_pk_fma_f32 {u[i]}, {t[i]}, {u[i]}, {c2}")
        for i in range(4): a(f"v_rcp_f32 v{tmp+4+i}, v{tmp+4+i}")
        for i in range(2): a(f"v_pk_fma_f32 {u[i]}, {u[i]}, {cm2}, {c1}")
        for i in range(2): a(f"v_pk_mul_f32 {u[i]}, {u[i]}, {e[i]}")
        a(f"v_cvt_pk_bf16_f32 v{dst + 2 * g}, v{tmp+4}, v{tmp+5}")
        a(f"v_cvt_pk_bf16_f32 v{dst + 2 * g + 1}, v{tmp+6}, v{tmp+7}")

def cvt16(a, acc):
    for i in range(8):
        a(f"v_cvt_pk_bf16_f32 v{acc + i}, v{acc + 2 * i}, v{acc + 2 * i + 1}")

def flag_store(a, soff, vtmp, cnt):
    L = a.uniq("NOFLAG")
    if cnt is None:
        a(f"v_mov_b32 v{vtmp}, s{sEP}")
        a(f"v_mov_b32 v{vtmp+1}, s{sEP+1}")
        a("s_mov_b64 exec, 1")
        a(f"buffer_store_dwordx2 {vr(vtmp,2)}, off, {sr(S_WS,4)}, s{soff} sc1")
        a("s_mov_b64 exec, -1")
        return
    a("s_mov_b64 exec, 1")
    a(f"v_mov_b32 v{vtmp}, {cnt}")
    a(f"v_mov_b32 v{vtmp+1}, 1")
    a(f"ds_add_rtn_u32 v{vtmp}, v{vtmp}, v{vtmp+1}")
    a("s_waitcnt lgkmcnt(0)")
    a(f"v_readfirstlane_b32 s{sT3}, v{vtmp}")
    a(f"v_mov_b32 v{vtmp}, s{sEP}")
    a(f"v_mov_b32 v{vtmp+1}, s{sEP+1}")
    a(f"s_cmp_eq_u32 s{sT3}, 7")
    a(f"s_cbranch_scc0 {L}")
    a(f"buffer_store_dwordx2 {vr(vtmp,2)}, off, {sr(S_WS,4)}, s{soff} sc1")
    a.label(L)
    a("s_mov_b64 exec, -1")

def poll(a, loads, scnt):
    L = a.uniq("POLL"); D = a.uniq("POLLD")
    a(f"s_mov_b32 s{scnt}, 0")
    a.label(L)
    for nf, vd, vo, so in loads:
        op = "buffer_load_dwordx4" if nf == 2 else "buffer_load_dwordx2"
        a(f"{op} {vr(vd, 2*nf)}, v{vo}, {sr(S_WS,4)}, s{so} offen sc1")
    a("s_waitcnt vmcnt(0)")
    first = True
    for nf, vd, vo, so in loads:
        for k in range(nf):
            if first:
                a(f"v_cmp_ne_u64 vcc, {sr(sEP,2)}, {vr(vd+2*k,2)}")
                first = False
            else:
                a(f"v_cmp_ne_u64 {sr(sT2,2)}, {sr(sEP,2)}, {vr(vd+2*k,2)}")
                a("s_nop 1")
                a(f"s_or_b64 vcc, vcc, {sr(sT2,2)}")
    a("s_nop 1")
    a("s_cmp_eq_u64 vcc, 0")
    a(f"s_cbranch_scc1 {D}")
    a("s_sleep 4")
    a(f"s_add_u32 s{scnt}, s{scnt}, 1")
    a(f"s_cmp_lt_u32 s{scnt}, {SPIN_MAX}")
    a(f"s_cbranch_scc1 {L}")
    a.label(D)


def gen(a):
    name = NAME + "_kernel"
    a.raw(".text")
    a.raw(f".globl {name}")
    a.raw(".p2align 8")
    a.raw(f".type {name},@function")
    a.label(name)
    a("s_cmp_ge_u32 s2, 256")
    a("s_cbranch_scc1 K_END")
    stamp(a, 0, True); stamp(a, 1)
    a("s_load_dwordx16 s[4:19], s[0:1], 0")
    a("s_load_dwordx4 s[20:23], s[0:1], 64")
    a("s_load_dwordx2 s[24:25], s[0:1], 80")
    a(f"v_and_b32 v{vLane}, 63, v0")
    a(f"v_lshrrev_b32 v{vT0}, 6, v0")
    a(f"v_lshlrev_b32 v{vL16}, 4, v{vLane}")
    a(f"v_readfirstlane_b32 s{sW}, v{vT0}")
    if "C" not in X:
        a(f"v_lshlrev_b32 v{vT0}, 6, v0")
        a(f"s_cmp_ge_u32 s{sW}, 4")
        a("s_cbranch_scc1 K_NOPC")
        a(f"s_getpc_b64 {sr(sT0,2)}")
        a.label("K_PC")
        a(f"v_min_u32 v{vT0}, K_END-K_PC, v{vT0}")
        a(f"global_load_dword v12, v{vT0}, {sr(sT0,2)}")
        a.label("K_NOPC")
    a(f"s_and_b32 s{sT0}, s2, 7")
    a(f"s_lshr_b32 s{sT1}, s2, 3")
    a(f"s_and_b32 s{sRB}, s{sT0}, 1")
    a(f"s_lshl_b32 s{sRB}, s{sRB}, 3")
    a(f"s_and_b32 s{sT2}, s{sT1}, 7")
    a(f"s_add_u32 s{sRB}, s{sRB}, s{sT2}")
    a(f"s_lshr_b32 s{sCG}, s{sT0}, 1")
    a(f"s_lshl_b32 s{sCG}, s{sCG}, 2")
    a(f"s_lshr_b32 s{sT2}, s{sT1}, 3")
    a(f"s_add_u32 s{sCG}, s{sCG}, s{sT2}")
    a(f"s_and_b32 s{sTG}, s{sW}, 3")
    a(f"s_lshl_b32 s{sTT}, s{sRB}, 2")
    a(f"s_add_u32 s{sTT}, s{sTT}, s{sTG}")
    a(f"s_sub_u32 s{sT0}, s{sCG}, 2")
    a(f"s_cmp_ge_u32 s{sCG}, 14")
    a(f"s_cselect_b32 s{sFT0}, s{sT0}, s{sCG}")
    a(f"s_lshl_b32 s{sFT0}, s{sFT0}, 2")
    a(f"s_cmp_lt_u32 s{sW}, 8")
    a("s_cbranch_scc1 A_START")
    gen_G(a)
    a("s_endpgm")
    gen_A(a)
    a.label("K_END")
    a("s_endpgm")
    return name

def srds_rest(a):
    srd(a, S_WS, 24, WS_SIZE)
    srd(a, S_B1, 14, 1792 * 2)
    srd(a, S_W2, 16, 1792 * 512 * 2)
    srd(a, S_WO, 8, 512 * 512 * 2)
    srd(a, S_OUT, 20, 2048 * 512 * 2)
    srd(a, S_DBG, 22, 256)


def gen_A(a):
    a.label("A_START")
    vXrd, vW0, vW1, vT2 = 5, 9, 10, 11
    FA, FB = 16, 28
    ACC = 64
    BIAS = 96
    PK = 128
    TMP = 16
    sN, sD = 26, 27
    if "N" not in X:
        a(f"s_cmp_ge_u32 s{sW}, 6")
        a("s_cbranch_scc1 A_PFD")
        a(f"s_cmp_ge_u32 s{sW}, 4")
        a("s_cbranch_scc1 A_PF1")
        a(f"s_bitcmp1_b32 s{sW}, 0")
        a("s_cbranch_scc1 A_PFQ")
        a(f"s_lshl_b32 s{sT0}, s2, 13")
        a(f"s_lshl_b32 s{sT1}, s{sW}, 8")
        a(f"s_add_u32 s{sT0}, s{sT0}, s{sT1}")
        a(f"v_lshrrev_b32 v{vT0}, 3, v{vLane}")
        a(f"v_lshlrev_b32 v{vT0}, 10, v{vT0}")
        a(f"v_and_b32 v{vT1}, 7, v{vLane}")
        a(f"v_lshl_add_u32 v{vT0}, v{vT1}, 6, v{vT0}")
        a("s_waitcnt lgkmcnt(0)")
        srd(a, S_X, 4, 2048 * 512 * 2)
        a(f"buffer_load_dword v12, v{vT0}, {sr(S_X,4)}, s{sT0} offen")
        a("s_branch A_PFD")
        a.label("A_PFQ")
        a(f"s_lshr_b32 s{sT1}, s{sW}, 1")
        a(f"s_lshl_b32 s{sT1}, s{sT1}, 8")
        a(f"s_add_u32 s{sT0}, s2, s{sT1}")
        a(f"s_mul_i32 s{sT0}, s{sT0}, 3072")
        a(f"v_min_u32 v{vT0}, 47, v{vLane}")
        a(f"v_lshlrev_b32 v{vT0}, 6, v{vT0}")
        a("s_waitcnt lgkmcnt(0)")
        srd(a, S_WQ, 6, 512 * 1536 * 2)
        a(f"buffer_load_dword v12, v{vT0}, {sr(S_WQ,4)}, s{sT0} offen")
        a("s_branch A_PFD")
        a.label("A_PF1")
        a(f"s_and_b32 s{sT1}, s{sW}, 1")
        a(f"s_lshl_b32 s{sT1}, s{sT1}, 8")
        a(f"s_add_u32 s{sT0}, s2, s{sT1}")
        a(f"s_mul_i32 s{sT0}, s{sT0}, 3584")
        a(f"v_min_u32 v{vT0}, 55, v{vLane}")
        a(f"v_lshlrev_b32 v{vT0}, 6, v{vT0}")
        a("s_waitcnt lgkmcnt(0)")
        srd(a, S_W1, 12, 512 * 1792 * 2)
        if os.environ.get("PFSL"): a(f"s_sleep {os.environ['PFSL']}")
        a(f"buffer_load_dword v12, v{vT0}, {sr(S_W1,4)}, s{sT0} offen")
        a.label("A_PFD")
    a(f"s_lshl_b32 s{sT0}, s{sTG}, 12")
    a(f"v_and_b32 v{vT0}, 31, v{vLane}")
    a(f"v_lshrrev_b32 v{vT1}, 5, v{vLane}")
    a(f"v_bfe_u32 v{vT2}, v{vLane}, 1, 3")
    a(f"v_xor_b32 v{vT2}, v{vT2}, v{vT1}")
    a(f"v_lshlrev_b32 v{vT0}, 7, v{vT0}")
    a(f"v_add_u32 v{vT0}, s{sT0}, v{vT0}")
    for ks in range(4):
        a(f"v_xor_b32 v{vXrd+ks}, {2*ks}, v{vT2}")
        a(f"v_lshl_add_u32 v{vXrd+ks}, v{vXrd+ks}, 4, v{vT0}")
    a(f"v_bfe_u32 v{vT0}, v{vLane}, 2, 2")
    a(f"v_lshl_add_u32 v{vT0}, v{vT1}, 3, v{vT0}")
    a(f"v_lshlrev_b32 v{vW0}, 6, v{vT0}")
    a(f"v_bfe_u32 v{vT0}, v{vLane}, 4, 1")
    a(f"v_lshl_add_u32 v{vW0}, v{vT0}, 5, v{vW0}")
    a(f"v_and_b32 v{vT0}, 3, v{vLane}")
    a(f"v_lshl_add_u32 v{vW0}, v{vT0}, 3, v{vW0}")
    a(f"s_lshr_b32 s{sT0}, s{sW}, 2")
    a(f"s_lshl_b32 s{sT0}, s{sT0}, 13")
    a(f"s_add_u32 s{sT0}, s{sT0}, 16384")
    a(f"v_add_u32 v{vW0}, s{sT0}, v{vW0}")
    a(f"v_lshlrev_b32 v{vW1}, 4, v{vT1}")
    a(f"v_add_u32 v{vW1}, {L_GW}, v{vW1}")
    a(f"v_lshlrev_b32 v{vT2}, 3, v{vT1}")
    a(f"s_lshr_b32 s{sT0}, s{sW}, 2")
    a(f"s_lshl_b32 s{sT0}, s{sT0}, 7")
    a(f"s_add_u32 s{sT0}, s{sT0}, {L_B1}")
    a(f"v_add_u32 v{vT2}, s{sT0}, v{vT2}")
    for i in range(32):
        a(f"v_mov_b32 v{ACC+i}, 0")
    a(f"s_mov_b32 s{sN}, 0")
    a("s_waitcnt lgkmcnt(0)")
    srds_rest(a)
    estamp(a, 3)
    a("s_barrier")
    stamp(a, 2)
    estamp(a, 6)

    def reads(ks, F, par, gate=False, only1=False):
        if "R" in X: return
        if not only1:
            a(f"ds_read_b128 {vr(F,4)}, v{vXrd+ks} offset:{par*32768}")
        for t in range(2):
            if only1 and t == 0: continue
            if gate and t == 1:
                a(f"ds_read_b128 {vr(F+8,4)}, v{vW1} offset:{(par*4+ks)*32}")
                continue
            a(f"ds_read_b64_tr_b16 {vr(F+4+4*t,2)}, v{vW0} offset:{par*32768+t*4096+ks*1024}")
            a(f"ds_read_b64_tr_b16 {vr(F+4+4*t+2,2)}, v{vW0} offset:{par*32768+t*4096+ks*1024+256}")

    def mfmas(F, swap0):
        if "M" in X: return
        for t in range(2):
            acc = ACC + 16 * t
            if swap0 and t == 0:
                a(f"v_mfma_f32_32x32x16_bf16 {vr(acc,16)}, {vr(F,4)}, {vr(F+4+4*t,4)}, {vr(acc,16)}")
            else:
                a(f"v_mfma_f32_32x32x16_bf16 {vr(acc,16)}, {vr(F+4+4*t,4)}, {vr(F,4)}, {vr(acc,16)}")

    FS = [16 + 12 * i for i in range(4)]
    def loop(lab, swap0):
        nr = 4 if swap0 else 5
        a.raw(".p2align 3")
        a.label(lab)
        for par in range(2):
            for j in range(4):
                a(f"s_waitcnt lgkmcnt({2*nr})")
                if j == 1:
                    if par == 1:
                        for k in range(4):
                            a(f"v_xor_b32 v{vXrd+k}, s{sT3}, v{vXrd+k}")
                        a(f"v_xor_b32 v{vW0}, s{sT3}, v{vW0}")
                        if swap0:
                            a(f"v_add_u32 v{vW1}, s{sD}, v{vW1}")
                        else:
                            L = a.uniq("A_NOVM")
                            a(f"s_cmp_eq_u32 s{sN}, 12")
                            a(f"s_cbranch_scc0 {L}")
                            a("s_waitcnt vmcnt(0)")
                            a.label(L)
                    a("s_barrier")
                elif j == 0 and par == 0:
                    a(f"s_add_u32 s{sN}, s{sN}, 2")
                elif j == 3 and par == 1:
                    a(f"s_and_b32 s{sT0}, s{sN}, 7")
                else:
                    a("s_nop 0")
                jj = j + 3
                reads(jj & 3, FS[jj & 3], par if jj < 4 else 1 - par, swap0)
                mfmas(FS[j], swap0)
        a(f"s_cbranch_scc1 {lab}")

    istamp(a, 4)
    a(f"s_mov_b32 s{sT3}, 65536")
    a(f"s_movk_i32 s{sD}, 256")
    a(f"s_cmp_ge_u32 s{sW}, 4")
    a("s_cbranch_scc1 A_L2P")
    for ks in range(3):
        reads(ks, FS[ks], 0)
    loop("A_L1", False)
    a(f"s_cmp_eq_u32 s{sN}, 16")
    a("s_cbranch_scc1 A_MISH")
    stamp(a, 3)
    a("s_waitcnt lgkmcnt(7)")
    for g in range(8):
        a(f"ds_read_b64 {vr(BIAS + 2 * g, 2)}, v{vT2} offset:{g*16}")
    a(f"v_and_b32 v{vT0}, 0x33, v{vLane}")
    a(f"v_bfe_u32 v{vT1}, v{vLane}, 2, 1")
    a(f"v_lshl_add_u32 v{vT0}, v{vT1}, 3, v{vT0}")
    a(f"v_bfe_u32 v{vT1}, v{vLane}, 3, 1")
    a(f"v_lshl_add_u32 v{vT0}, v{vT1}, 2, v{vT0}")
    a(f"v_lshlrev_b32 v{vT0}, 4, v{vT0}")
    a(f"s_lshl_b32 s4, s{sCG}, 17")
    a(f"s_lshl_b32 s5, s{sTT}, 10")
    a(f"s_add_u32 s4, s4, s5")
    a(f"s_lshl_b32 s6, s4, 1")
    a(f"s_add_u32 s4, s4, {WS_QF:#x}")
    a(f"s_add_u32 s5, s4, 65536")
    a(f"s_add_u32 s6, s6, {WS_KV:#x}")
    a(f"s_add_u32 s7, s6, 131072")
    a(f"s_mov_b32 s8, {f32(0.25 * LOG2E)}")
    a(f"s_mov_b32 s9, {f32(0.25 * LOG2E)}")
    for i in range(8):
        a(f"v_pk_mul_f32 {vr(ACC+2*i,2)}, {vr(ACC+2*i,2)}, s[8:9]")
    for i in range(16):
        a(f"v_cvt_pk_bf16_f32 v{PK + i}, v{ACC + 2 * i}, v{ACC + 2 * i + 1}")
    istamp(a, 5)
    a(f"buffer_store_dwordx4 {vr(PK+8,4)}, v{vT0}, {sr(S_WS,4)}, s6 offen sc1")
    a(f"buffer_store_dwordx4 {vr(PK+12,4)}, v{vT0}, {sr(S_WS,4)}, s7 offen sc1")
    a(f"buffer_store_dwordx4 {vr(PK,4)}, v{vL16}, {sr(S_WS,4)}, s4 offen sc1")
    a(f"buffer_store_dwordx4 {vr(PK+4,4)}, v{vL16}, {sr(S_WS,4)}, s5 offen sc1")
    a.label("A_BIAS")
    a("s_waitcnt lgkmcnt(0)")
    istamp(a, 6)
    for g in range(8):
        b = ACC + 4 * g
        a(f"v_lshlrev_b32 v{b}, 16, v{BIAS+2*g}")
        a(f"v_and_b32 v{b+1}, 0xffff0000, v{BIAS+2*g}")
        a(f"v_lshlrev_b32 v{b+2}, 16, v{BIAS+2*g+1}")
        a(f"v_and_b32 v{b+3}, 0xffff0000, v{BIAS+2*g+1}")
    istamp(a, 7)
    a("s_branch A_L1")
    a.label("A_L2P")
    for ks in range(3):
        reads(ks, FS[ks], 0, True)
    loop("A_L2", True)
    a("s_waitcnt lgkmcnt(0)")
    for ks in range(3):
        reads(ks, FS[ks], 0, False, True)
    stamp(a, 3)
    a("s_waitcnt lgkmcnt(7)")
    for g in range(8):
        a(f"ds_read_b64 {vr(BIAS + 2 * g, 2)}, v{vT2} offset:{g*16}")
    a(f"v_and_b32 v{vT0}, 0x2f, v{vLane}")
    a(f"v_lshlrev_b32 v{vT0}, 4, v{vT0}")
    a(f"v_bfe_u32 v{vT1}, v{vLane}, 4, 1")
    a(f"v_lshl_add_u32 v{vT0}, v{vT1}, 17, v{vT0}")
    a(f"s_lshl_b32 s4, s{sCG}, 18")
    a(f"s_lshl_b32 s5, s{sTT}, 11")
    a(f"s_add_u32 s4, s4, s5")
    a(f"s_add_u32 s4, s4, {WS_KV:#x}")
    a(f"s_lshl_b32 s5, s{sTT}, 7")
    a(f"s_add_u32 s5, s5, {WS_G:#x}")
    a(f"v_lshlrev_b32 v{vT1}, 2, v{vLane}")
    for i in range(8):
        a(f"v_cvt_pk_bf16_f32 v{PK + i}, v{ACC + 2 * i}, v{ACC + 2 * i + 1}")
    a(f"v_mul_f32 v{PK+8}, {f32(-LOG2E)}, v{ACC+16}")
    a(f"v_exp_f32 v{PK+8}, v{PK+8}")
    a(f"buffer_store_dwordx4 {vr(PK,4)}, v{vT0}, {sr(S_WS,4)}, s4 offen offset:1024 sc1")
    a(f"v_add_f32 v{PK+8}, 1.0, v{PK+8}")
    a(f"v_rcp_f32 v{PK+8}, v{PK+8}")
    a(f"buffer_store_dwordx4 {vr(PK+4,4)}, v{vT0}, {sr(S_WS,4)}, s4 offen offset:1280 sc1")
    a("s_mov_b32 exec_hi, 0")
    a(f"buffer_store_dword v{PK+8}, v{vT1}, {sr(S_WS,4)}, s5 offen sc1")
    a("s_mov_b64 exec, -1")
    a("s_waitcnt lgkmcnt(0)")
    a("s_branch A_BIAS")
    a.label("A_MISH")
    stamp(a, 4)
    a(f"s_mul_i32 s13, s{sTT}, 112")
    a(f"s_lshl_b32 s{sT1}, s{sFT0}, 1")
    a(f"s_add_u32 s13, s13, s{sT1}")
    a(f"s_lshr_b32 s{sT1}, s{sW}, 2")
    a(f"s_lshl_b32 s{sT1}, s{sT1}, 2")
    a(f"s_add_u32 s13, s13, s{sT1}")
    a(f"s_lshl_b32 s13, s13, 10")
    a(f"s_add_u32 s13, s13, {WS_ACT:#x}")
    for i, c in enumerate((LOG2E, 2.0, -2.0, 1.0)):
        a(f"v_mov_b32 v{144+2*i}, {f32(c)}")
        a(f"v_mov_b32 v{145+2*i}, {f32(c)}")
    a("s_waitcnt lgkmcnt(0)")
    mish16(a, ACC, TMP, 128, 144)
    a(f"buffer_store_dwordx4 {vr(128,4)}, v{vL16}, {sr(S_WS,4)}, s13 offen sc1")
    a(f"buffer_store_dwordx4 {vr(132,4)}, v{vL16}, {sr(S_WS,4)}, s13 offen offset:1024 sc1")
    mish16(a, ACC + 16, TMP, 136, 144)
    a(f"buffer_store_dwordx4 {vr(136,4)}, v{vL16}, {sr(S_WS,4)}, s13 offen offset:2048 sc1")
    a(f"buffer_store_dwordx4 {vr(140,4)}, v{vL16}, {sr(S_WS,4)}, s13 offen offset:3072 sc1")

    a.label("A_PH2")
    sHead, sQT, sI, sB1, sB2, sPass = 4, 5, 6, 7, 8, 9
    sMask = 10
    vAddr, vIdx, vG = 5, 6, 7
    Q = 8
    KB = [12, 16]
    VB = [20, 28]
    S = [36, 52]
    C = 68
    O = 84
    vFl = 100
    a(f"s_and_b32 s{sT0}, s2, 7")
    a(f"s_lshl_b32 s{sHead}, s{sT0}, 2")
    a(f"s_bfe_u32 s{sT0}, s2, 0x20003")
    a(f"s_add_u32 s{sHead}, s{sHead}, s{sT0}")
    a(f"s_lshr_b32 s{sQT}, s2, 5")
    a(f"s_lshl_b32 s{sQT}, s{sQT}, 3")
    a(f"s_add_u32 s{sQT}, s{sQT}, s{sW}")
    a(f"v_mov_b32 v{vIdx}, 0xdddddddd")
    a(f"s_mov_b32 s{sMask}, 0x0000ffff")
    a(f"s_mov_b32 s{sMask+1}, 0x0000ffff")
    a(f"v_and_b32 v{vT0}, 27, v{vLane}")
    a(f"v_cmp_eq_u32 vcc, 16, v{vT0}")
    a(f"v_mov_b32 v{vT1}, 0x3f803f80")
    a("s_nop 0")
    a(f"v_cndmask_b32 v{vT0}, 0, v{vT1}, vcc")
    for b in VB:
        for i in range(8):
            a(f"v_mov_b32 v{b+i}, v{vT0}")
    a(f"v_mov_b32 v{vAddr}, v{vL16}")
    a(f"s_mov_b32 s{sB1}, 1")
    a(f"s_mov_b32 s{sB2}, 3")
    a(f"s_mov_b32 s{sPass}, 0")
    a(f"s_lshl_b32 s{sT0}, s{sW}, 10")
    a(f"s_add_u32 s{sT0}, s{sT0}, {L_Q}")
    a(f"v_add_u32 v{vT1}, s{sT0}, v{vL16}")
    for i in range(16):
        a(f"v_mov_b32 v{O+i}, 0")
    a("s_setprio 2")
    stamp(a, 5)
    a("s_barrier")
    stamp(a, 6)
    a(f"ds_read_b128 {vr(Q,4)}, v{vT1}")
    a(f"ds_read_b128 {vr(KB[0],4)}, v{vAddr} offset:0")
    a("s_waitcnt lgkmcnt(0)")
    a(f"v_mfma_f32_32x32x16_bf16 {vr(S[0],16)}, {vr(KB[0],4)}, {vr(Q,4)}, 0")
    a("s_nop 7")
    a("s_nop 7")
    s0 = S[0]
    a(f"v_max3_f32 v{vT0}, v{s0}, v{s0+1}, v{s0+2}")
    for i in range(3, 15, 2):
        a(f"v_max3_f32 v{vT0}, v{vT0}, v{s0+i}, v{s0+i+1}")
    a(f"v_max_f32 v{vT0}, v{vT0}, v{s0+15}")
    a.label("A_SETMAX")
    a(f"v_mov_b32 v{vT1}, v{vT0}")
    a("s_nop 1")
    a(f"v_permlane32_swap_b32 v{vT0}, v{vT1}")
    a("s_nop 1")
    a(f"v_max_f32 v{vT0}, v{vT0}, v{vT1}")
    for i in range(16):
        a(f"v_sub_f32 v{C+i}, 0, v{vT0}")
    a(f"ds_read_b128 {vr(KB[0],4)}, v{vAddr} offset:0")
    a(f"ds_read_b128 {vr(KB[1],4)}, v{vAddr} offset:2048")
    a(f"s_mov_b64 exec, {sr(sMask,2)}")
    a(f"ds_read_b128 {vr(VB[0],4)}, v{vAddr} offset:1024")
    a(f"ds_read_b128 {vr(VB[0]+4,4)}, v{vAddr} offset:1280")
    a("s_mov_b64 exec, -1")
    a("s_waitcnt lgkmcnt(0)")
    a(f"v_mfma_f32_32x32x16_bf16 {vr(S[0],16)}, {vr(KB[0],4)}, {vr(Q,4)}, {vr(C,16)}")
    a(f"s_mov_b32 s{sI}, 0")
    for i in range(8, 16):
        a(f"v_mov_b32 v{S[1]+i}, 0")
    a("s_nop 7")
    a.raw(".p2align 6")
    a.label("A_LOOP")
    for u in range(4):
        p = u & 1
        cur, nxt = S[p], S[1 - p]
        def E(lo, hi):
            for i in range(lo, hi):
                a(f"v_exp_f32 v{cur+i}, v{cur+i}")
        E(0, 2)
        a(f"v_smfmac_f32_32x32x32_bf16 {vr(O,16)}, {vr(VB[1-p]+4,4)}, {vr(nxt+8,8)}, v{vIdx}")
        E(2, 7)
        a("s_waitcnt lgkmcnt(0)")
        a(f"v_mfma_f32_32x32x16_bf16 {vr(nxt,16)}, {vr(KB[1-p],4)}, {vr(Q,4)}, {vr(C,16)}")
        a(f"ds_read_b128 {vr(KB[p],4)}, v{vAddr} offset:{(u+2)*2048}")
        E(7, 8)
        a(f"s_mov_b64 exec, {sr(sMask,2)}")
        a(f"ds_read_b128 {vr(VB[1-p],4)}, v{vAddr} offset:{(u+1)*2048+1024}")
        a(f"ds_read_b128 {vr(VB[1-p]+4,4)}, v{vAddr} offset:{(u+1)*2048+1280}")
        a("s_mov_b64 exec, -1")
        E(8, 13)
        a(f"v_smfmac_f32_32x32x32_bf16 {vr(O,16)}, {vr(VB[p],4)}, {vr(cur,8)}, v{vIdx}")
        if u == 3:
            a(f"v_add_u32 v{vAddr}, 8192, v{vAddr}")
            E(13, 16)
            a(f"s_add_u32 s{sI}, s{sI}, 1")
            a(f"s_cmp_lt_u32 s{sI}, s{sB1}")
        else:
            a(f"v_exp_f32_e64 v{cur+13}, v{cur+13}")
            E(14, 16)
    a("s_cbranch_scc1 A_LOOP")
    a(f"s_cmp_eq_u32 s{sI}, 1")
    a("s_cbranch_scc0 A_SEG2")
    a(f"s_mov_b32 s{sB1}, 3")
    a("s_barrier")
    a("s_branch A_LOOP")
    a.label("A_SEG2")
    a(f"s_cmp_eq_u32 s{sI}, 3")
    a("s_cbranch_scc0 A_SEG3")
    a(f"s_mov_b32 s{sB1}, {PR1}")
    a("s_waitcnt vmcnt(0)")
    a("s_barrier")
    a("s_branch A_LOOP")
    a.label("A_SEG3")
    a(f"s_cmp_eq_u32 s{sI}, {PR1}")
    a("s_cbranch_scc0 A_SEG4")
    a(f"s_mov_b32 s{sB1}, {PR2}")
    a("s_setprio 1")
    a(f"v_and_b32 v{vT0}, 31, v{vLane}")
    a(f"v_lshlrev_b32 v{vT0}, 2, v{vT0}")
    a(f"s_lshl_b32 s{sT0}, s{sQT}, 7")
    a(f"s_add_u32 s{sT0}, s{sT0}, {WS_G:#x}")
    a(f"buffer_load_dword v{vG}, v{vT0}, {sr(S_WS,4)}, s{sT0} offen sc1")
    a(f"buffer_load_dwordx2 {vr(vFl,2)}, off, {sr(S_DBG,4)}, 0 sc1")
    a("s_branch A_LOOP")
    a.label("A_SEG4")
    a(f"s_cmp_eq_u32 s{sI}, {PR2}")
    a("s_cbranch_scc0 A_SEG5")
    a(f"s_mov_b32 s{sB1}, 16")
    a("s_setprio 0")
    a("s_branch A_LOOP")
    a.label("A_SEG5")
    a(f"v_smfmac_f32_32x32x32_bf16 {vr(O,16)}, {vr(VB[1]+4,4)}, {vr(S[1]+8,8)}, v{vIdx}")
    a("s_waitcnt lgkmcnt(0)")
    a("s_nop 7")
    a("s_nop 7")
    a(f"s_cmp_lg_u32 s{sPass}, 0")
    a("s_cbranch_scc1 A_FIN")
    a(f"v_max3_f32 v{vT0}, |v{O}|, |v{O+1}|, |v{O+2}|")
    a(f"v_max3_f32 v{vT0}, v{vT0}, |v{O+3}|, |v{O+4}|")
    a(f"v_max3_f32 v{vT0}, v{vT0}, |v{O+5}|, |v{O+6}|")
    a(f"v_max_f32 v{vT0}, v{vT0}, |v{O+7}|")
    a(f"v_mov_b32 v{vT1}, 0x7f800000")
    a(f"v_cmp_nlt_f32 vcc, v{vT0}, v{vT1}")
    a(f"v_mov_b32 v{vT1}, {f32(2.0**30)}")
    a(f"v_cmp_nlt_f32 {sr(sT2,2)}, v{O+8}, v{vT1}")
    a("s_nop 1")
    a(f"s_or_b64 vcc, vcc, {sr(sT2,2)}")
    a("s_cbranch_scc0 A_FIN")
    a(f"s_mov_b32 s{sPass}, 1")
    a(f"s_mov_b32 s{sB1}, 16")
    a(f"v_mov_b32 v{vAddr}, v{vL16}")
    a(f"v_mov_b32 v{vT0}, 0xff800000")
    a(f"s_mov_b32 s{sI}, 0")
    a.label("A_MAXLOOP")
    a(f"ds_read_b128 {vr(KB[0],4)}, v{vAddr} offset:0")
    a("s_waitcnt lgkmcnt(0)")
    a(f"v_mfma_f32_32x32x16_bf16 {vr(S[0],16)}, {vr(KB[0],4)}, {vr(Q,4)}, 0")
    a(f"v_add_u32 v{vAddr}, 2048, v{vAddr}")
    a("s_nop 7")
    a("s_nop 7")
    for i in range(0, 16, 2):
        a(f"v_max3_f32 v{vT0}, v{vT0}, v{s0+i}, v{s0+i+1}")
    a(f"s_add_u32 s{sI}, s{sI}, 1")
    a(f"s_cmp_lt_u32 s{sI}, 64")
    a("s_cbranch_scc1 A_MAXLOOP")
    a(f"v_mov_b32 v{vAddr}, v{vL16}")
    for i in range(16):
        a(f"v_mov_b32 v{O+i}, 0")
    a("s_branch A_SETMAX")
    a.label("A_FIN")
    stamp(a, 7)
    a(f"v_rcp_f32 v{vT0}, v{O+8}")
    a("s_waitcnt vmcnt(0)")
    a(f"v_mul_f32 v{vT0}, v{vT0}, v{vG}")
    for i in range(8):
        a(f"v_mul_f32 v{O+i}, v{O+i}, v{vT0}")
    for i in range(4):
        a(f"v_cvt_pk_bf16_f32 v{O+i}, v{O+2*i}, v{O+2*i+1}")
    a(f"s_lshl_b32 s{sT0}, s{sQT}, 15")
    a(f"s_lshl_b32 s{sT1}, s{sHead}, 10")
    a(f"s_add_u32 s{sT0}, s{sT0}, s{sT1}")
    a(f"s_add_u32 s{sT0}, s{sT0}, {WS_OF:#x}")
    a(f"buffer_store_dwordx4 {vr(O,4)}, v{vL16}, {sr(S_WS,4)}, s{sT0} offen sc1")
    a(f"s_lshr_b32 s{sT0}, s{sQT}, 1")
    a(f"s_lshl_b32 s{sT0}, s{sT0}, 9")
    a(f"s_lshl_b32 s{sT1}, s{sHead}, 4")
    a(f"s_add_u32 s{sT0}, s{sT0}, s{sT1}")
    a(f"s_and_b32 s{sT1}, s{sQT}, 1")
    a(f"s_lshl_b32 s{sT1}, s{sT1}, 3")
    a(f"s_add_u32 s{sT0}, s{sT0}, s{sT1}")
    a(f"s_add_u32 s{sT0}, s{sT0}, {WS_FO:#x}")
    a("s_waitcnt vmcnt(0)")
    a("s_mov_b64 exec, 1")
    a(f"buffer_store_dwordx2 {vr(vFl,2)}, off, {sr(S_WS,4)}, s{sT0} sc1")
    stamp(a, 9); stamp(a, 8, True)
    stamp_flush(a)
    a("s_endpgm")


def gen_G(a):
    sXoff, sLX, sWQ0, sW10, sGO = 26, 27, 80, 81, 3
    sGW = sTG
    vDX0, vDX1, vDWq, vDW1, vT2 = 5, 6, 7, 8, 9
    vWe, vWo, vW2w, vGo = 10, 11, 12, 13
    vEp = 14
    RS = 16
    NSETS = int(os.environ.get("NSETS", "9"))
    PER = int(os.environ.get("PER", "1"))
    a("s_setprio 3")
    a(f"s_lshl_b32 s{sXoff}, s{sTT}, 15")
    a(f"s_lshl_b32 s{sLX}, s{sTG}, 12")
    a(f"s_mul_i32 s{sWQ0}, s{sTG}, {16*3072}")
    a(f"s_lshl_b32 s{sT0}, s{sCG}, 6")
    a(f"s_add_u32 s{sWQ0}, s{sWQ0}, s{sT0}")
    a(f"v_lshrrev_b32 v{vT0}, 3, v{vLane}")
    a(f"v_lshrrev_b32 v{vT1}, 4, v{vLane}")
    a(f"v_and_b32 v{vT2}, 7, v{vLane}")
    a(f"v_xor_b32 v{vT2}, v{vT2}, v{vT1}")
    a(f"v_lshlrev_b32 v{vDX0}, 10, v{vT0}")
    a(f"v_lshl_add_u32 v{vDX0}, v{vT2}, 4, v{vDX0}")
    a(f"v_xor_b32 v{vDX1}, 64, v{vDX0}")
    a(f"v_add_u32 v{vDX1}, 8192, v{vDX1}")
    a(f"v_lshrrev_b32 v{vT0}, 2, v{vLane}")
    a(f"v_and_b32 v{vT2}, 3, v{vLane}")
    a(f"v_lshlrev_b32 v{vT2}, 4, v{vT2}")
    a(f"v_mul_u32_u24 v{vDWq}, 3072, v{vT0}")
    a(f"v_add_u32 v{vDWq}, v{vDWq}, v{vT2}")
    a(f"v_mul_u32_u24 v{vDW1}, 3584, v{vT0}")
    a(f"v_add_u32 v{vDW1}, v{vDW1}, v{vT2}")
    sLW = sGO
    a(f"s_lshl_b32 s{sLW}, s{sTG}, 10")
    a("s_waitcnt lgkmcnt(0)")
    estamp(a, 2)
    srd(a, S_X, 4, 2048 * 512 * 2)
    srd(a, S_WQ, 6, 512 * 1536 * 2)
    srd(a, S_GW, 18, 1024)

    q = []
    def vm(tag):
        q.append(tag)
    def wait_tag(tag, extra=""):
        last = max(i for i, t in enumerate(q) if t == tag)
        n = len(q) - 1 - last
        assert n < 64
        a(f"s_waitcnt vmcnt({n}){extra}")

    def dma(lds_s, lds_imm, voff, srdn, s_base, imm, extra=""):
        a(f"s_add_u32 m0, s{lds_s}, {lds_imm}")
        a(f"s_add_u32 s{sT0}, s{s_base}, {imm}")
        a(f"buffer_load_dwordx4 v{voff}, {sr(srdn,4)}, s{sT0} offen{extra} lds")

    def issue(n):
        base = (n & 3) * 32768
        st = n & 7
        for j in range(4):
            dma(sLX, base + j * 1024, vDX0 if j % 2 == 0 else vDX1, S_X, sXoff, (j >> 1) * 16384 + st * 128); vm(n)
        if n < 8:
            for t in range(3):
                dma(sLW, base + 16384 + t * 4096, vDWq, S_WQ, sWQ0, st * 64 * 3072 + t * 1024); vm(n)
        else:
            for t in range(4):
                dma(sLW, base + 16384 + t * 4096, vDW1, S_W1, sW10, st * 64 * 3584 + t * 64); vm(n)

    estamp(a, 3)
    a(f"s_mov_b32 m0, {L_GW}")
    a("s_nop 0")
    a(f"buffer_load_dwordx4 v{vL16}, {sr(S_GW,4)}, 0 offen lds"); vm(0)
    issue(0)
    estamp(a, 4)
    issue(1)
    srd(a, S_W1, 12, 512 * 1792 * 2)
    srds_rest(a)
    a(f"s_mul_i32 s{sW10}, s{sTG}, {16*3584}")
    a(f"s_lshl_b32 s{sT0}, s{sFT0}, 6")
    a(f"s_add_u32 s{sW10}, s{sW10}, s{sT0}")
    a(f"s_mov_b32 m0, {L_B1}")
    a(f"s_lshl_b32 s{sT0}, s{sFT0}, 6")
    a(f"buffer_load_dwordx4 v{vL16}, {sr(S_B1,4)}, s{sT0} offen lds"); vm(1)
    a(f"s_lshl_b32 s{sT0}, s2, 4")
    a(f"s_add_u32 s{sT0}, s{sT0}, s{sW}")
    a(f"s_cmp_eq_u32 s{sT0}, 8")
    a("s_cbranch_scc0 G_NOEP")
    a(f"s_memrealtime {sr(sEP,2)}")
    a("s_waitcnt lgkmcnt(0)")
    a(f"s_or_b32 s{sEP}, s{sEP}, 1")
    a(f"v_mov_b32 v{vEp}, s{sEP}")
    a(f"v_mov_b32 v{vEp+1}, s{sEP+1}")
    a("s_mov_b64 exec, 1")
    a(f"buffer_store_dwordx2 {vr(vEp,2)}, off, {sr(S_DBG,4)}, 0 sc1")
    a("s_mov_b64 exec, -1")
    a.label("G_NOEP")
    estamp(a, 5)
    wait_tag(0)
    estamp(a, 6)
    a("s_barrier")
    stamp(a, 2)
    estamp(a, 7)
    ORD = int(os.environ.get("ORD", "0"))
    if ORD <= 1: issue(2)
    for n in range(16):
        if n == 0 and ORD == 0:
            issue(3)
        if n == int(os.environ.get("PFW1", "99")) and "N" not in X:
            a(f"s_lshr_b32 s{sT0}, s2, 3")
            a(f"s_lshl_b32 s{sT0}, s{sT0}, 4")
            a(f"s_lshl_b32 s{sT1}, s{sGW}, 2")
            a(f"s_add_u32 s{sT0}, s{sT0}, s{sT1}")
            a(f"s_mul_i32 s{sT0}, s{sT0}, 3584")
            a(f"s_bfe_u32 s{sT1}, s2, 0x20001")
            a(f"s_lshl_b32 s{sT1}, s{sT1}, 10")
            a(f"s_add_u32 s{sT0}, s{sT0}, s{sT1}")
            a(f"v_mul_u32_u24 v16, 3584, v{vT1}")
            a(f"v_and_b32 v17, 15, v{vLane}")
            a(f"v_lshl_add_u32 v16, v17, 6, v16")
            a(f"buffer_load_dword v17, v16, {sr(S_W1,4)}, s{sT0} offen"); vm("pf")
        if n == int(os.environ.get("PFW2", "99")):
            a(f"v_lshlrev_b32 v16, 6, v{vLane}")
            a(f"s_cmp_ge_u32 s{sGW}, 2")
            a("s_cbranch_scc1 G_PFO")
            a(f"s_mul_i32 s{sT0}, s2, 7168")
            a(f"s_mul_i32 s{sT1}, s{sGW}, 3584")
            a(f"s_add_u32 s{sT0}, s{sT0}, s{sT1}")
            a(f"v_min_u32 v16, {55*64}, v16")
            a(f"buffer_load_dword v17, v16, {sr(S_W2,4)}, s{sT0} offen")
            a("s_branch G_PFD")
            a.label("G_PFO")
            a(f"s_lshl_b32 s{sT0}, s2, 11")
            a(f"v_min_u32 v16, {31*64}, v16")
            a(f"buffer_load_dword v17, v16, {sr(S_WO,4)}, s{sT0} offen")
            a.label("G_PFD")
            vm("pf2")
        if n == 4:
            a(f"buffer_load_dwordx2 {vr(vEp,2)}, off, {sr(S_DBG,4)}, 0 sc1"); vm("ep")
        if n == 10:
            wait_tag("ep")
            a(f"s_mov_b32 s{sT1}, 0")
            a.label("G_EPL")
            a(f"v_readfirstlane_b32 s{sEP}, v{vEp}")
            a(f"v_readfirstlane_b32 s{sEP+1}, v{vEp+1}")
            a(f"s_cmp_lg_u32 s{sEP}, 0")
            a("s_cbranch_scc1 G_EPD")
            a("s_sleep 4")
            a(f"buffer_load_dwordx2 {vr(vEp,2)}, off, {sr(S_DBG,4)}, 0 sc1")
            a("s_waitcnt vmcnt(0)")
            a(f"s_add_u32 s{sT1}, s{sT1}, 1")
            a(f"s_cmp_lt_u32 s{sT1}, {SPIN_MAX}")
            a("s_cbranch_scc1 G_EPL")
            a.label("G_EPD")
        if n + 1 <= 15:
            wait_tag(n + 1)
        a("s_barrier")
        if n == 0 and ORD == 2: issue(2)
        if (1 <= n or ORD >= 1) and n + 3 <= 15:
            issue(n + 3)
        if "P" in X and STAMPS:
            P0 = int(os.environ.get("P0", "8"))
            if P0 <= n + 1 < P0 + 6:
                i = n + 1 - P0 + 2
                a(f"s_memtime s[{82+2*i}:{83+2*i}]")
                a("s_waitcnt lgkmcnt(0)")
        if n + 1 == 12:
            a(f"s_cmp_eq_u32 s{sGW}, 0")
            a("s_cbranch_scc0 G_NOF1")
            a(f"s_lshl_b32 s{sT0}, s{sCG}, 7")
            a(f"s_lshl_b32 s{sT1}, s{sRB}, 3")
            a(f"s_add_u32 s{sT0}, s{sT0}, s{sT1}")
            a(f"s_add_u32 s{sT0}, s{sT0}, {WS_FKV:#x}")
            a("s_mov_b64 exec, 1")
            a(f"buffer_store_dwordx2 {vr(vEp,2)}, off, {sr(S_WS,4)}, s{sT0} sc1")
            a("s_mov_b64 exec, -1")
            a.label("G_NOF1")
    sHead, sKV, sLK, sFK, sFG, sQ = 4, 5, 6, 7, 8, 9
    sA0, sA1, sW2, sOT, sON, sI, sRing, sTT64, sNB = 10, 11, 12, 13, 14, 15, 16, 17, 18
    vL8, vF16 = 5, 6
    FL = 124
    a(f"s_and_b32 s{sT0}, s2, 7")
    a(f"s_lshl_b32 s{sHead}, s{sT0}, 2")
    a(f"s_bfe_u32 s{sT0}, s2, 0x20003")
    a(f"s_add_u32 s{sHead}, s{sHead}, s{sT0}")
    a(f"s_lshl_b32 s{sLK}, s{sGW}, 10")
    a(f"s_lshl_b32 s{sKV}, s{sHead}, 17")
    a(f"s_add_u32 s{sKV}, s{sKV}, {WS_KV:#x}")
    a(f"s_add_u32 s{sKV}, s{sKV}, s{sLK}")
    a(f"s_lshr_b32 s{sT0}, s{sHead}, 1")
    a(f"s_lshl_b32 s{sFK}, s{sT0}, 7")
    a(f"s_add_u32 s{sFK}, s{sFK}, {WS_FKV:#x}")
    a(f"s_lshr_b32 s{sT1}, s2, 5")
    a(f"s_lshl_b32 s{sQ}, s{sHead}, 16")
    a(f"s_lshl_b32 s{sT0}, s{sT1}, 13")
    a(f"s_add_u32 s{sQ}, s{sQ}, s{sT0}")
    a(f"s_add_u32 s{sQ}, s{sQ}, s{sLK}")
    a(f"s_add_u32 s{sQ}, s{sQ}, {WS_QF:#x}")
    a(f"v_lshlrev_b32 v{vL8}, 3, v{vLane}")
    a(f"v_and_b32 v{vF16}, 0x78, v{vL8}")
    stamp(a, 3)
    poll(a, [(1, FL, vF16, sFK)], sT1)
    stamp(a, 4)
    def kvdma(i):
        dma(sLK, i * 4096, vL16, S_WS, sKV, i * 4096, " sc1")
    dma(sLK, L_Q, vL16, S_WS, sQ, 0, " sc1")
    dma(sLK, L_Q + 4096, vL16, S_WS, sQ, 4096, " sc1")
    KV0 = int(os.environ.get("KV0", "8"))
    for i in range(KV0): kvdma(i)
    a(f"s_waitcnt vmcnt({KV0-4})")
    a("s_barrier")
    for i in range(KV0, 20): kvdma(i)
    a("s_waitcnt vmcnt(12)")
    a("s_barrier")
    for i in range(20, 32): kvdma(i)
    ACC = 8
    AF = 72
    WF = 104
    vG0, vG1 = 120, 121
    vDW, vTr0, vTr1 = 7, 122, 123
    a(f"s_and_b32 s{sT0}, s2, 7")
    a(f"s_lshr_b32 s{sT1}, s2, 3")
    a(f"s_lshr_b32 s{sTT64}, s{sT0}, 1")
    a(f"s_lshl_b32 s{sTT64}, s{sTT64}, 3")
    a(f"s_and_b32 s{sT3}, s{sT1}, 7")
    a(f"s_add_u32 s{sTT64}, s{sTT64}, s{sT3}")
    a(f"s_and_b32 s{sNB}, s{sT0}, 1")
    a(f"s_lshl_b32 s{sNB}, s{sNB}, 2")
    a(f"s_lshr_b32 s{sT1}, s{sT1}, 3")
    a(f"s_add_u32 s{sNB}, s{sNB}, s{sT1}")
    a(f"s_lshr_b32 s{sT1}, s{sGW}, 1")
    a(f"s_lshl_b32 s{sOT}, s{sTT64}, 1")
    a(f"s_add_u32 s{sOT}, s{sOT}, s{sT1}")
    a(f"s_and_b32 s{sT1}, s{sGW}, 1")
    a(f"s_lshl_b32 s{sON}, s{sNB}, 1")
    a(f"s_add_u32 s{sON}, s{sON}, s{sT1}")
    a(f"s_mul_i32 s{sT3}, s{sGW}, {28*1024}")
    a(f"s_mul_i32 s{sA0}, s{sOT}, {112*1024}")
    a(f"s_add_u32 s{sA0}, s{sA0}, s{sT3}")
    a(f"s_add_u32 s{sA0}, s{sA0}, {WS_ACT:#x}")
    a(f"s_xor_b32 s{sT1}, s{sOT}, 1")
    a(f"s_mul_i32 s{sA1}, s{sT1}, {112*1024}")
    a(f"s_add_u32 s{sA1}, s{sA1}, s{sT3}")
    a(f"s_add_u32 s{sA1}, s{sA1}, {WS_ACT:#x}")
    a(f"s_mul_i32 s{sW2}, s{sGW}, {28*16384}")
    a(f"s_lshl_b32 s{sT1}, s{sNB}, 7")
    a(f"s_add_u32 s{sW2}, s{sW2}, s{sT1}")
    a(f"s_lshl_b32 s{sRing}, s{sGW}, 13")
    a(f"s_add_u32 s{sRing}, s{sRing}, {L_RING}")
    a(f"v_lshrrev_b32 v{vT0}, 3, v{vLane}")
    a(f"v_bfe_u32 v{vT1}, v{vLane}, 4, 1")
    a(f"v_lshlrev_b32 v{vT1}, 2, v{vT1}")
    a(f"v_and_b32 v{vDW}, 7, v{vLane}")
    a(f"v_xor_b32 v{vDW}, v{vDW}, v{vT1}")
    a(f"v_lshlrev_b32 v{vDW}, 4, v{vDW}")
    a(f"v_lshl_add_u32 v{vDW}, v{vT0}, 10, v{vDW}")
    a(f"v_bfe_u32 v{vT0}, v{vLane}, 2, 2")
    a(f"v_lshrrev_b32 v{vT1}, 5, v{vLane}")
    a(f"v_lshl_add_u32 v{vT0}, v{vT1}, 2, v{vT0}")
    a(f"v_lshlrev_b32 v{vTr0}, 7, v{vT0}")
    a(f"v_bfe_u32 v{vT0}, v{vLane}, 3, 1")
    a(f"v_lshl_add_u32 v{vTr0}, v{vT0}, 6, v{vTr0}")
    a(f"v_and_b32 v{vT0}, 1, v{vLane}")
    a(f"v_lshl_add_u32 v{vTr0}, v{vT0}, 5, v{vTr0}")
    a(f"v_bfe_u32 v{vT0}, v{vLane}, 4, 1")
    a(f"v_lshl_add_u32 v{vTr0}, v{vT0}, 4, v{vTr0}")
    a(f"v_bfe_u32 v{vT0}, v{vLane}, 1, 1")
    a(f"v_lshl_add_u32 v{vTr0}, v{vT0}, 3, v{vTr0}")
    a(f"s_and_b32 s{sT1}, s{sGW}, 1")
    a(f"s_lshl_b32 s{sT1}, s{sT1}, 6")
    a(f"v_xor_b32 v{vTr0}, s{sT1}, v{vTr0}")
    a(f"v_add_u32 v{vTr0}, s{sRing}, v{vTr0}")
    a(f"v_xor_b32 v{vTr1}, 64, v{vTr0}")
    a(f"s_lshl_b32 s{sFG}, s{sTT64}, 9")
    a(f"s_add_u32 s{sFG}, s{sFG}, {WS_FO:#x}")
    a(f"s_lshr_b32 s{sFK}, s{sTT64}, 1")
    a(f"s_lshl_b32 s{sFK}, s{sFK}, 7")
    a(f"s_add_u32 s{sFK}, s{sFK}, {WS_FACT:#x}")
    a("s_waitcnt vmcnt(0)")
    a("s_barrier")
    a(f"s_cmp_eq_u32 s{sGW}, 0")
    a("s_cbranch_scc0 G_NOF2")
    a(f"s_lshl_b32 s{sT0}, s{sRB}, 7")
    a(f"s_lshl_b32 s{sT1}, s{sCG}, 3")
    a(f"s_add_u32 s{sT0}, s{sT0}, s{sT1}")
    a(f"s_add_u32 s{sT0}, s{sT0}, {WS_FACT:#x}")
    a("s_mov_b64 exec, 1")
    a(f"buffer_store_dwordx2 {vr(vEp,2)}, off, {sr(S_WS,4)}, s{sT0} sc1")
    a("s_mov_b64 exec, -1")
    a.label("G_NOF2")
    a(f"s_setprio {os.environ.get('GPRIO', '0')}")
    stamp(a, 5)
    poll(a, [(1, FL, vF16, sFK)], sT1)
    a(f"v_and_b32 v{vT0}, 31, v{vLane}")
    a(f"v_lshlrev_b32 v{vT0}, 2, v{vT0}")
    a(f"s_lshl_b32 s{sT0}, s{sOT}, 7")
    a(f"s_add_u32 s{sT0}, s{sT0}, {WS_G:#x}")
    a(f"s_xor_b32 s{sT1}, s{sT0}, 128")
    a(f"buffer_load_dword v{vG0}, v{vT0}, {sr(S_WS,4)}, s{sT0} offen sc1")
    a(f"buffer_load_dword v{vG1}, v{vT0}, {sr(S_WS,4)}, s{sT1} offen sc1")

    def wdma(st, srdn):
        a(f"s_add_u32 m0, s{sRing}, {st * 2048}")
        a(f"s_add_u32 s{sT0}, s{sW2}, 8192")
        a(f"buffer_load_dwordx4 v{vDW}, {sr(srdn,4)}, s{sW2} offen lds")
        a(f"s_add_u32 m0, s{sRing}, {st * 2048 + 1024}")
        a(f"s_add_u32 s{sW2}, s{sW2}, 16384")
        a(f"buffer_load_dwordx4 v{vDW}, {sr(srdn,4)}, s{sT0} offen lds")

    def group(st):
        wdma(st, S_W2)
        f = AF + 8 * st
        a(f"buffer_load_dwordx4 {vr(f,4)}, v{vL16}, {sr(S_WS,4)}, s{sA0} offen offset:{st*1024} sc1")
        a(f"buffer_load_dwordx4 {vr(f+4,4)}, v{vL16}, {sr(S_WS,4)}, s{sA1} offen offset:{st*1024} sc1")
        if st == 3:
            a(f"s_add_u32 s{sA0}, s{sA0}, 4096")
            a(f"s_add_u32 s{sA1}, s{sA1}, 4096")

    def trreads(st, w):
        for jp, vt in enumerate((vTr0, vTr1)):
            a(f"ds_read_b64_tr_b16 {vr(w+4*jp,2)}, v{vt} offset:{st*2048}")
            a(f"ds_read_b64_tr_b16 {vr(w+4*jp+2,2)}, v{vt} offset:{st*2048+1024}")

    GSP = os.environ.get("GSP", "")
    def gmfma(w, f, first, space=False):
        for ap in range(2):
            for jp in range(2):
                acc = ACC + 16 * (ap * 2 + jp)
                c = "0" if first else vr(acc, 16)
                a(f"v_mfma_f32_32x32x16_bf16 {vr(acc,16)}, {vr(w+4*jp,4)}, {vr(f+4*ap,4)}, {c}")
                if space and GSP and not (ap == 1 and jp == 1): a(GSP)

    def step(st, first, more, nwait=12):
        a(f"s_waitcnt vmcnt({nwait})")
        w = WF + 8 * (st & 1)
        trreads(st, w)
        a("s_waitcnt lgkmcnt(0)")
        gmfma(w, AF + 8 * st, first, True)
        if more:
            group(st)

    for st in range(4): group(st)
    for st in range(4): step(st, st == 0, True)
    a(f"s_mov_b32 s{sI}, 0")
    a.label("G_LOOP")
    for st in range(4): step(st, False, True)
    a(f"s_add_u32 s{sI}, s{sI}, 1")
    a(f"s_cmp_lt_u32 s{sI}, 5")
    a("s_cbranch_scc1 G_LOOP")
    for st in range(4): step(st, False, False, 12 - 4 * st)
    stamp(a, 6)
    WOR = 72
    OFR = 136
    a(f"s_lshl_b32 s{sW2}, s{sGW}, 17")
    a(f"s_lshl_b32 s{sT1}, s{sNB}, 7")
    a(f"s_add_u32 s{sW2}, s{sW2}, s{sT1}")
    for st in range(4): wdma(st, S_WO)
    a(f"v_sub_f32 v{vT0}, 1.0, v{vG0}")
    a(f"v_sub_f32 v{vT1}, 1.0, v{vG1}")
    a(f"v_mov_b32 v152, v{vTr0}")
    a(f"v_mov_b32 v153, v{vTr1}")
    vTr0, vTr1 = 152, 153
    a("s_nop 7")
    for q in range(4):
        for i in range(16):
            a(f"v_mul_f32 v{ACC+16*q+i}, v{ACC+16*q+i}, v{vT0 if q < 2 else vT1}")
    def trreads2(st, w):
        for jp, vt in enumerate((vTr0, vTr1)):
            a(f"ds_read_b64_tr_b16 {vr(w+4*jp,2)}, v{vt} offset:{st*2048}")
            a(f"ds_read_b64_tr_b16 {vr(w+4*jp+2,2)}, v{vt} offset:{st*2048+1024}")
    for ks in range(8):
        st = ks & 3
        a(f"s_waitcnt vmcnt({6 if ks < 4 else 6 - 2 * (ks - 4)})")
        trreads2(st, WOR + 8 * ks)
        if ks < 4:
            a("s_waitcnt lgkmcnt(0)")
            wdma(st, S_WO)
    FL = 156
    a(f"s_lshl_b32 s{sA0}, s{sOT}, 15")
    a(f"s_lshl_b32 s{sT3}, s{sGW}, 13")
    a(f"s_add_u32 s{sA0}, s{sA0}, s{sT3}")
    a(f"s_add_u32 s{sA0}, s{sA0}, {WS_OF:#x}")
    a(f"s_xor_b32 s{sA1}, s{sA0}, 32768")
    a(f"s_lshl_b32 s{sLK}, s{sGW}, 14")
    a(f"v_add_u32 v154, s{sLK}, v{vL16}")
    a("s_waitcnt lgkmcnt(0)")
    a("s_barrier")
    a("s_setprio 3")
    poll(a, [(1, FL, vL8, sFG)], sT1)
    stamp(a, 7)
    for ks in range(8):
        dma(sLK, ks * 2048, vL16, S_WS, sA0, ks * 1024, " sc1")
        dma(sLK, ks * 2048 + 1024, vL16, S_WS, sA1, ks * 1024, " sc1")
    def ord_(ks):
        f = OFR + 8 * (ks & 1)
        a(f"s_waitcnt vmcnt({14 - 2 * ks})")
        a(f"ds_read_b128 {vr(f,4)}, v154 offset:{ks*2048}")
        a(f"ds_read_b128 {vr(f+4,4)}, v154 offset:{ks*2048+1024}")
    ord_(0)
    for ks in range(8):
        f = OFR + 8 * (ks & 1)
        if ks < 7:
            ord_(ks + 1)
            a("s_waitcnt lgkmcnt(2)")
        else:
            a("s_waitcnt lgkmcnt(0)")
        gmfma(WOR + 8 * ks, f, False)
    a("s_nop 7")
    a("s_nop 7")
    for q in range(1, 4):
        a(f"s_xor_b32 s{sT0}, s{sGW}, {q}")
        a(f"s_mul_i32 s{sT0}, s{sT0}, 12288")
        a(f"s_add_u32 s{sT0}, s{sT0}, {L_EXCH}")
        a(f"v_add_u32 v{vT0}, s{sT0}, v{vL16}")
        for i in range(4):
            a(f"ds_write_b128 v{vT0}, {vr(ACC+16*q+4*i,4)} offset:{(q-1)*4096 + i*1024}")
    a(f"s_mul_i32 s{sT0}, s{sGW}, 12288")
    a(f"s_add_u32 s{sT0}, s{sT0}, {L_EXCH}")
    a(f"v_add_u32 v{vT0}, s{sT0}, v{vL16}")
    a("s_waitcnt lgkmcnt(0)")
    a("s_barrier")
    R = 72
    for q in range(3):
        for i in range(4):
            a(f"ds_read_b128 {vr(R+16*q+4*i,4)}, v{vT0} offset:{q*4096 + i*1024}")
    a(f"v_and_b32 v{vT0}, 31, v{vLane}")
    a(f"v_lshlrev_b32 v{vT0}, 10, v{vT0}")
    a(f"v_lshrrev_b32 v{vT1}, 5, v{vLane}")
    a(f"v_lshl_add_u32 v{vT0}, v{vT1}, 5, v{vT0}")
    a(f"s_lshl_b32 s{sT0}, s{sOT}, 15")
    a(f"s_lshl_b32 s{sT1}, s{sON}, 6")
    a(f"s_add_u32 s{sT0}, s{sT0}, s{sT1}")
    for q in range(3):
        a(f"s_waitcnt lgkmcnt({8 - 4 * q})")
        for i in range(16):
            a(f"v_add_f32 v{ACC+i}, v{ACC+i}, v{R+16*q+i}")
    cvt16(a, ACC)
    a(f"buffer_store_dwordx4 {vr(ACC,4)}, v{vT0}, {sr(S_OUT,4)}, s{sT0} offen")
    a(f"buffer_store_dwordx4 {vr(ACC+4,4)}, v{vT0}, {sr(S_OUT,4)}, s{sT0} offen offset:16")
    if STAMPS: a("s_waitcnt vmcnt(0)")
    stamp(a, 9); stamp(a, 8, True)
    stamp_flush(a)


def main():
    ref = open(f"cdna_kernels/{NAME}.s.ref").read().split("\n")
    head = [l for l in ref if l.startswith(";") and "@launch" not in l]
    a = A()
    name = gen(a)
    out = "\n".join(head) + "\n"
    if ASLIST:
        out += f"; @launch kernel={name} grid=(256,1,1) block=(768,1,1) lds={LDS_TOTAL}\n"
    else:
        out += f"; @launch grid=(256,1,1) block=(768,1,1) lds={LDS_TOTAL}\n"
    out += '.amdgcn_target "amdgcn-amd-amdhsa--gfx950"\n'
    out += a.text()
    out += f""".section .rodata,"a"
.p2align 6
.amdhsa_kernel {name}
  .amdhsa_next_free_vgpr 168
  .amdhsa_next_free_sgpr {102 if STAMPS else 84}
  .amdhsa_accum_offset 168
  .amdhsa_group_segment_fixed_size 0
  .amdhsa_kernarg_size 88
  .amdhsa_user_sgpr_count 2
  .amdhsa_user_sgpr_kernarg_segment_ptr 1
  .amdhsa_system_sgpr_workgroup_id_x 1
.end_amdhsa_kernel
"""
    path = sys.argv[1] if len(sys.argv) > 1 else f"cdna_kernels/{NAME}.s"
    open(path, "w").write(out)
    print("wrote", path, len(out), "bytes")

main()
```

```python
import struct, sys, math, os

NAME = "gated_mix__mha_block__dense_activation_mish__prompt"
STAMPS = int(os.environ.get("STAMPS", "0"))
ASLIST = int(os.environ.get("ASLIST", "0"))
X = os.environ.get("X", "")
PR1 = int(os.environ.get("PR1", "10"))
PR2 = int(os.environ.get("PR2", "14"))

def f32(x):
    return "0x%08x" % struct.unpack("<I", struct.pack("<f", x))[0]

LOG2E = math.log2(math.e)

WS_QF  = 0x0000000
WS_KV  = 0x0200000
WS_ACT = 0x0600000
WS_G   = 0x0F40000
WS_OF  = 0x1000000
WS_FKV = 0x1800000
WS_FACT = 0x1804000
WS_FO  = 0x1808000
WS_STAMP = 0x2000000
WS_SIZE = 0x10000000

L_GW = 144 * 1024
L_B1 = 145 * 1024
L_RING = 128 * 1024
L_Q = 128 * 1024
L_EXCH = 64 * 1024
LDS_TOTAL = 160 * 1024

SPIN_MAX = 200000


class A:
    def __init__(self):
        self.l = []
        self.n = 0
    def __call__(self, s):
        for line in s.strip("\n").split("\n"):
            self.l.append("    " + line.strip())
    def label(self, s):
        self.l.append(s + ":")
    def raw(self, s):
        self.l.append(s)
    def uniq(self, p):
        self.n += 1
        return f"{p}_{self.n}"
    def text(self):
        return "\n".join(self.l) + "\n"


def vr(b, n):
    return "v[%d:%d]" % (b, b + n - 1)

def sr(b, n):
    return "s[%d:%d]" % (b, b + n - 1)

def srd(a, dst, ptr, nbytes):
    a(f"s_mov_b32 s{dst}, s{ptr}")
    a(f"s_and_b32 s{dst+1}, s{ptr+1}, 0xffff")
    a(f"s_mov_b32 s{dst+2}, {nbytes:#x}")
    a(f"s_mov_b32 s{dst+3}, 0x00020000")

S_X, S_WQ, S_W1, S_WS, S_B1, S_W2, S_WO, S_GW, S_OUT, S_DBG = 28, 32, 36, 40, 44, 48, 52, 56, 60, 64
sW, sRB, sCG, sTG, sTT, sFT0 = 68, 69, 70, 71, 72, 73
sT0, sT1, sT2, sT3 = 74, 75, 76, 77
sEP = 78
vLane, vL16, vT0, vT1 = 1, 2, 3, 4

def estamp(a, i):
    if "E" in X and STAMPS:
        a(f"s_memtime s[{82+2*i}:{83+2*i}]")
        a("s_waitcnt lgkmcnt(0)")

def istamp(a, i):
    if "I" in X and STAMPS:
        a(f"s_memtime s[{82+2*i}:{83+2*i}]")
        a("s_waitcnt lgkmcnt(0)")

def stamp(a, i, real=False):
    if not STAMPS: return
    if ("E" in X or "P" in X) and 2 <= i <= 7: return
    if "I" in X and 4 <= i <= 7: return
    a(f"{'s_memrealtime' if real else 's_memtime'} s[{82+2*i}:{83+2*i}]")
    a("s_waitcnt lgkmcnt(0)")

def stamp_flush(a, n=10):
    if not STAMPS: return
    a("s_mov_b64 exec, 1")
    for i in range(n):
        a(f"v_mov_b32 v{i+1}, s{82+2*i}")
    a(f"s_lshl_b32 s80, s2, 4")
    a(f"s_add_u32 s80, s80, s{sW}")
    a(f"s_lshl_b32 s80, s80, 6")
    a(f"s_add_u32 s80, s80, {WS_STAMP:#x}")
    for i in range(n):
        a(f"buffer_store_dword v{i+1}, off, {sr(S_WS,4)}, s80 offset:{4*i}")
    if STAMPS == 2:
        L = a.uniq("NODBG")
        a(f"s_lshl_b32 s80, s2, 4")
        a(f"s_add_u32 s80, s80, s{sW}")
        a(f"s_cmp_eq_u32 s80, {77*16+8}")
        a(f"s_cbranch_scc0 {L}")
        a("v_sub_u32 v9, v9, v1")
        for i in (3, 4, 5, 6, 7, 8, 10):
            a(f"v_sub_u32 v{i}, v{i}, v2")
        for i in range(2, n):
            a(f"buffer_store_dword v{i+1}, off, {sr(S_DBG,4)}, 0 offset:{4*i}")
        a.label(L)


def mish16(a, acc, tmp, dst, cst):
    cL, c2, cm2, c1 = (vr(cst + 2 * i, 2) for i in range(4))
    for g in range(4):
        e = [vr(acc + 4 * g + 2 * i, 2) for i in range(2)]
        t = [vr(tmp + 2 * i, 2) for i in range(2)]
        u = [vr(tmp + 4 + 2 * i, 2) for i in range(2)]
        for i in range(2): a(f"v_pk_mul_f32 {t[i]}, {e[i]}, {cL}")
        for i in range(4): a(f"v_exp_f32 v{tmp+i}, v{tmp+i}")
        for i in range(2): a(f"v_pk_add_f32 {u[i]}, {t[i]}, {c2}")
        for i in range(2): a(f"v_pk_fma_f32 {u[i]}, {t[i]}, {u[i]}, {c2}")
        for i in range(4): a(f"v_rcp_f32 v{tmp+4+i}, v{tmp+4+i}")
        for i in range(2): a(f"v_pk_fma_f32 {u[i]}, {u[i]}, {cm2}, {c1}")
        for i in range(2): a(f"v_pk_mul_f32 {u[i]}, {u[i]}, {e[i]}")
        a(f"v_cvt_pk_bf16_f32 v{dst + 2 * g}, v{tmp+4}, v{tmp+5}")
        a(f"v_cvt_pk_bf16_f32 v{dst + 2 * g + 1}, v{tmp+6}, v{tmp+7}")

def cvt16(a, acc):
    for i in range(8):
        a(f"v_cvt_pk_bf16_f32 v{acc + i}, v{acc + 2 * i}, v{acc + 2 * i + 1}")

def flag_store(a, soff, vtmp, cnt):
    L = a.uniq("NOFLAG")
    if cnt is None:
        a(f"v_mov_b32 v{vtmp}, s{sEP}")
        a(f"v_mov_b32 v{vtmp+1}, s{sEP+1}")
        a("s_mov_b64 exec, 1")
        a(f"buffer_store_dwordx2 {vr(vtmp,2)}, off, {sr(S_WS,4)}, s{soff} sc1")
        a("s_mov_b64 exec, -1")
        return
    a("s_mov_b64 exec, 1")
    a(f"v_mov_b32 v{vtmp}, {cnt}")
    a(f"v_mov_b32 v{vtmp+1}, 1")
    a(f"ds_add_rtn_u32 v{vtmp}, v{vtmp}, v{vtmp+1}")
    a("s_waitcnt lgkmcnt(0)")
    a(f"v_readfirstlane_b32 s{sT3}, v{vtmp}")
    a(f"v_mov_b32 v{vtmp}, s{sEP}")
    a(f"v_mov_b32 v{vtmp+1}, s{sEP+1}")
    a(f"s_cmp_eq_u32 s{sT3}, 7")
    a(f"s_cbranch_scc0 {L}")
    a(f"buffer_store_dwordx2 {vr(vtmp,2)}, off, {sr(S_WS,4)}, s{soff} sc1")
    a.label(L)
    a("s_mov_b64 exec, -1")

def poll(a, loads, scnt):
    L = a.uniq("POLL"); D = a.uniq("POLLD")
    a(f"s_mov_b32 s{scnt}, 0")
    a.label(L)
    for nf, vd, vo, so in loads:
        op = "buffer_load_dwordx4" if nf == 2 else "buffer_load_dwordx2"
        a(f"{op} {vr(vd, 2*nf)}, v{vo}, {sr(S_WS,4)}, s{so} offen sc1")
    a("s_waitcnt vmcnt(0)")
    first = True
    for nf, vd, vo, so in loads:
        for k in range(nf):
            if first:
                a(f"v_cmp_ne_u64 vcc, {sr(sEP,2)}, {vr(vd+2*k,2)}")
                first = False
            else:
                a(f"v_cmp_ne_u64 {sr(sT2,2)}, {sr(sEP,2)}, {vr(vd+2*k,2)}")
                a("s_nop 1")
                a(f"s_or_b64 vcc, vcc, {sr(sT2,2)}")
    a("s_nop 1")
    a("s_cmp_eq_u64 vcc, 0")
    a(f"s_cbranch_scc1 {D}")
    a("s_sleep 4")
    a(f"s_add_u32 s{scnt}, s{scnt}, 1")
    a(f"s_cmp_lt_u32 s{scnt}, {SPIN_MAX}")
    a(f"s_cbranch_scc1 {L}")
    a.label(D)


def gen(a):
    name = NAME + "_kernel"
    a.raw(".text")
    a.raw(f".globl {name}")
    a.raw(".p2align 8")
    a.raw(f".type {name},@function")
    a.label(name)
    a("s_cmp_ge_u32 s2, 256")
    a("s_cbranch_scc1 K_END")
    stamp(a, 0, True); stamp(a, 1)
    a("s_load_dwordx16 s[4:19], s[0:1], 0")
    a("s_load_dwordx4 s[20:23], s[0:1], 64")
    a("s_load_dwordx2 s[24:25], s[0:1], 80")
    a(f"v_and_b32 v{vLane}, 63, v0")
    a(f"v_lshrrev_b32 v{vT0}, 6, v0")
    a(f"v_lshlrev_b32 v{vL16}, 4, v{vLane}")
    a(f"v_readfirstlane_b32 s{sW}, v{vT0}")
    if "C" not in X:
        a(f"v_lshlrev_b32 v{vT0}, 6, v0")
        a(f"s_cmp_ge_u32 s{sW}, 4")
        a("s_cbranch_scc1 K_NOPC")
        a(f"s_getpc_b64 {sr(sT0,2)}")
        a.label("K_PC")
        a(f"v_min_u32 v{vT0}, K_END-K_PC, v{vT0}")
        a(f"global_load_dword v12, v{vT0}, {sr(sT0,2)}")
        a.label("K_NOPC")
    a(f"s_and_b32 s{sT0}, s2, 7")
    a(f"s_lshr_b32 s{sT1}, s2, 3")
    a(f"s_and_b32 s{sRB}, s{sT0}, 1")
    a(f"s_lshl_b32 s{sRB}, s{sRB}, 3")
    a(f"s_and_b32 s{sT2}, s{sT1}, 7")
    a(f"s_add_u32 s{sRB}, s{sRB}, s{sT2}")
    a(f"s_lshr_b32 s{sCG}, s{sT0}, 1")
    a(f"s_lshl_b32 s{sCG}, s{sCG}, 2")
    a(f"s_lshr_b32 s{sT2}, s{sT1}, 3")
    a(f"s_add_u32 s{sCG}, s{sCG}, s{sT2}")
    a(f"s_and_b32 s{sTG}, s{sW}, 3")
    a(f"s_lshl_b32 s{sTT}, s{sRB}, 2")
    a(f"s_add_u32 s{sTT}, s{sTT}, s{sTG}")
    a(f"s_sub_u32 s{sT0}, s{sCG}, 2")
    a(f"s_cmp_ge_u32 s{sCG}, 14")
    a(f"s_cselect_b32 s{sFT0}, s{sT0}, s{sCG}")
    a(f"s_lshl_b32 s{sFT0}, s{sFT0}, 2")
    a(f"s_cmp_ge_u32 s{sW}, 8")
    a("s_cbranch_scc1 G_START")
    if "N" not in X:
        a(f"s_cmp_ge_u32 s{sW}, 6")
        a("s_cbranch_scc1 A_START")
        a(f"s_cmp_ge_u32 s{sW}, 4")
        a("s_cbranch_scc1 A_PF1")
        a(f"s_bitcmp1_b32 s{sW}, 0")
        a("s_cbranch_scc1 A_PFQ")
        a(f"s_lshl_b32 s{sT0}, s2, 13")
        a(f"s_lshl_b32 s{sT1}, s{sW}, 8")
        a(f"s_add_u32 s{sT0}, s{sT0}, s{sT1}")
        a(f"v_lshrrev_b32 v{vT0}, 3, v{vLane}")
        a(f"v_lshlrev_b32 v{vT0}, 10, v{vT0}")
        a(f"v_and_b32 v{vT1}, 7, v{vLane}")
        a(f"v_lshl_add_u32 v{vT0}, v{vT1}, 6, v{vT0}")
        a("s_waitcnt lgkmcnt(0)")
        srd(a, S_X, 4, 2048 * 512 * 2)
        a(f"buffer_load_dword v12, v{vT0}, {sr(S_X,4)}, s{sT0} offen")
        a("s_branch A_START")
        a.label("A_PFQ")
        a(f"s_lshr_b32 s{sT1}, s{sW}, 1")
        a(f"s_lshl_b32 s{sT1}, s{sT1}, 8")
        a(f"s_add_u32 s{sT0}, s2, s{sT1}")
        a(f"s_mul_i32 s{sT0}, s{sT0}, 3072")
        a(f"v_min_u32 v{vT0}, 47, v{vLane}")
        a(f"v_lshlrev_b32 v{vT0}, 6, v{vT0}")
        a("s_waitcnt lgkmcnt(0)")
        srd(a, S_WQ, 6, 512 * 1536 * 2)
        a(f"buffer_load_dword v12, v{vT0}, {sr(S_WQ,4)}, s{sT0} offen")
        a("s_branch A_START")
        a.label("A_PF1")
        a(f"s_and_b32 s{sT1}, s{sW}, 1")
        a(f"s_lshl_b32 s{sT1}, s{sT1}, 8")
        a(f"s_add_u32 s{sT0}, s2, s{sT1}")
        a(f"s_mul_i32 s{sT0}, s{sT0}, 3584")
        a(f"v_min_u32 v{vT0}, 55, v{vLane}")
        a(f"v_lshlrev_b32 v{vT0}, 6, v{vT0}")
        a("s_waitcnt lgkmcnt(0)")
        srd(a, S_W1, 12, 512 * 1792 * 2)
        if os.environ.get("PFSL"): a(f"s_sleep {os.environ['PFSL']}")
        a(f"buffer_load_dword v12, v{vT0}, {sr(S_W1,4)}, s{sT0} offen")
        a("s_branch A_START")
    if "N" in X: a("s_branch A_START")
    a.label("G_START")
    gen_G(a)
    a("s_endpgm")
    gen_A(a)
    a.label("K_END")
    a("s_endpgm")
    return name

def srds_rest(a):
    srd(a, S_WS, 24, WS_SIZE)
    srd(a, S_B1, 14, 1792 * 2)
    srd(a, S_W2, 16, 1792 * 512 * 2)
    srd(a, S_WO, 8, 512 * 512 * 2)
    srd(a, S_OUT, 20, 2048 * 512 * 2)
    srd(a, S_DBG, 22, 256)


def gen_A(a):
    a.label("A_START")
    vXrd, vW0, vW1, vT2 = 5, 9, 10, 11
    FA, FB = 16, 28
    ACC = 64
    BIAS = 96
    PK = 128
    TMP = 16
    sN, sD = 26, 27
    a(f"s_lshl_b32 s{sT0}, s{sTG}, 12")
    a(f"v_and_b32 v{vT0}, 31, v{vLane}")
    a(f"v_lshrrev_b32 v{vT1}, 5, v{vLane}")
    a(f"v_bfe_u32 v{vT2}, v{vLane}, 1, 3")
    a(f"v_xor_b32 v{vT2}, v{vT2}, v{vT1}")
    a(f"v_lshlrev_b32 v{vT0}, 7, v{vT0}")
    a(f"v_add_u32 v{vT0}, s{sT0}, v{vT0}")
    for ks in range(4):
        a(f"v_xor_b32 v{vXrd+ks}, {2*ks}, v{vT2}")
        a(f"v_lshl_add_u32 v{vXrd+ks}, v{vXrd+ks}, 4, v{vT0}")
    a(f"v_bfe_u32 v{vT0}, v{vLane}, 2, 2")
    a(f"v_lshl_add_u32 v{vT0}, v{vT1}, 3, v{vT0}")
    a(f"v_lshlrev_b32 v{vW0}, 6, v{vT0}")
    a(f"v_bfe_u32 v{vT0}, v{vLane}, 4, 1")
    a(f"v_lshl_add_u32 v{vW0}, v{vT0}, 5, v{vW0}")
    a(f"v_and_b32 v{vT0}, 3, v{vLane}")
    a(f"v_lshl_add_u32 v{vW0}, v{vT0}, 3, v{vW0}")
    a(f"s_lshr_b32 s{sT0}, s{sW}, 2")
    a(f"s_lshl_b32 s{sT0}, s{sT0}, 13")
    a(f"s_add_u32 s{sT0}, s{sT0}, 16384")
    a(f"v_add_u32 v{vW0}, s{sT0}, v{vW0}")
    a(f"v_lshlrev_b32 v{vW1}, 4, v{vT1}")
    a(f"v_add_u32 v{vW1}, {L_GW}, v{vW1}")
    a(f"v_lshlrev_b32 v{vT2}, 3, v{vT1}")
    a(f"s_lshr_b32 s{sT0}, s{sW}, 2")
    a(f"s_lshl_b32 s{sT0}, s{sT0}, 7")
    a(f"s_add_u32 s{sT0}, s{sT0}, {L_B1}")
    a(f"v_add_u32 v{vT2}, s{sT0}, v{vT2}")
    for i in range(32):
        a(f"v_mov_b32 v{ACC+i}, 0")
    a(f"s_mov_b32 s{sN}, 0")
    a("s_waitcnt lgkmcnt(0)")
    srds_rest(a)
    estamp(a, 3)
    a("s_barrier")
    stamp(a, 2)
    estamp(a, 6)

    def reads(ks, F, par, gate=False, only1=False):
        if "R" in X: return
        if not only1:
            a(f"ds_read_b128 {vr(F,4)}, v{vXrd+ks} offset:{par*32768}")
        for t in range(2):
            if only1 and t == 0: continue
            if gate and t == 1:
                a(f"ds_read_b128 {vr(F+8,4)}, v{vW1} offset:{(par*4+ks)*32}")
                continue
            a(f"ds_read_b64_tr_b16 {vr(F+4+4*t,2)}, v{vW0} offset:{par*32768+t*4096+ks*1024}")
            a(f"ds_read_b64_tr_b16 {vr(F+4+4*t+2,2)}, v{vW0} offset:{par*32768+t*4096+ks*1024+256}")

    def mfmas(F, swap0):
        if "M" in X: return
        for t in range(2):
            acc = ACC + 16 * t
            if swap0 and t == 0:
                a(f"v_mfma_f32_32x32x16_bf16 {vr(acc,16)}, {vr(F,4)}, {vr(F+4+4*t,4)}, {vr(acc,16)}")
            else:
                a(f"v_mfma_f32_32x32x16_bf16 {vr(acc,16)}, {vr(F+4+4*t,4)}, {vr(F,4)}, {vr(acc,16)}")

    FS = [16 + 12 * i for i in range(4)]
    def loop(lab, swap0):
        nr = 4 if swap0 else 5
        a.raw(".p2align 3")
        a.label(lab)
        for par in range(2):
            for j in range(4):
                a(f"s_waitcnt lgkmcnt({2*nr})")
                if j == 1:
                    if par == 1:
                        for k in range(4):
                            a(f"v_xor_b32 v{vXrd+k}, s{sT3}, v{vXrd+k}")
                        a(f"v_xor_b32 v{vW0}, s{sT3}, v{vW0}")
                        if swap0:
                            a(f"v_add_u32 v{vW1}, s{sD}, v{vW1}")
                        else:
                            L = a.uniq("A_NOVM")
                            a(f"s_cmp_eq_u32 s{sN}, 12")
                            a(f"s_cbranch_scc0 {L}")
                            a("s_waitcnt vmcnt(0)")
                            a.label(L)
                    a("s_barrier")
                elif j == 0 and par == 0:
                    a(f"s_add_u32 s{sN}, s{sN}, 2")
                elif j == 3 and par == 1:
                    a(f"s_and_b32 s{sT0}, s{sN}, 7")
                else:
                    a("s_nop 0")
                jj = j + 3
                reads(jj & 3, FS[jj & 3], par if jj < 4 else 1 - par, swap0)
                mfmas(FS[j], swap0)
        a(f"s_cbranch_scc1 {lab}")

    istamp(a, 4)
    a(f"s_mov_b32 s{sT3}, 65536")
    a(f"s_movk_i32 s{sD}, 256")
    a(f"s_cmp_ge_u32 s{sW}, 4")
    a("s_cbranch_scc1 A_L2P")
    for ks in range(3):
        reads(ks, FS[ks], 0)
    loop("A_L1", False)
    a(f"s_cmp_eq_u32 s{sN}, 16")
    a("s_cbranch_scc1 A_MISH")
    stamp(a, 3)
    a("s_waitcnt lgkmcnt(7)")
    for g in range(8):
        a(f"ds_read_b64 {vr(BIAS + 2 * g, 2)}, v{vT2} offset:{g*16}")
    a(f"v_and_b32 v{vT0}, 0x33, v{vLane}")
    a(f"v_bfe_u32 v{vT1}, v{vLane}, 2, 1")
    a(f"v_lshl_add_u32 v{vT0}, v{vT1}, 3, v{vT0}")
    a(f"v_bfe_u32 v{vT1}, v{vLane}, 3, 1")
    a(f"v_lshl_add_u32 v{vT0}, v{vT1}, 2, v{vT0}")
    a(f"v_lshlrev_b32 v{vT0}, 4, v{vT0}")
    a(f"s_lshl_b32 s4, s{sCG}, 17")
    a(f"s_lshl_b32 s5, s{sTT}, 10")
    a(f"s_add_u32 s4, s4, s5")
    a(f"s_lshl_b32 s6, s4, 1")
    a(f"s_add_u32 s4, s4, {WS_QF:#x}")
    a(f"s_add_u32 s5, s4, 65536")
    a(f"s_add_u32 s6, s6, {WS_KV:#x}")
    a(f"s_add_u32 s7, s6, 131072")
    a(f"s_mov_b32 s8, {f32(0.25 * LOG2E)}")
    a(f"s_mov_b32 s9, {f32(0.25 * LOG2E)}")
    for i in range(8):
        a(f"v_pk_mul_f32 {vr(ACC+2*i,2)}, {vr(ACC+2*i,2)}, s[8:9]")
    for i in range(16):
        a(f"v_cvt_pk_bf16_f32 v{PK + i}, v{ACC + 2 * i}, v{ACC + 2 * i + 1}")
    istamp(a, 5)
    a(f"buffer_store_dwordx4 {vr(PK+8,4)}, v{vT0}, {sr(S_WS,4)}, s6 offen sc1")
    a(f"buffer_store_dwordx4 {vr(PK+12,4)}, v{vT0}, {sr(S_WS,4)}, s7 offen sc1")
    a(f"buffer_store_dwordx4 {vr(PK,4)}, v{vL16}, {sr(S_WS,4)}, s4 offen sc1")
    a(f"buffer_store_dwordx4 {vr(PK+4,4)}, v{vL16}, {sr(S_WS,4)}, s5 offen sc1")
    a.label("A_BIAS")
    a("s_waitcnt lgkmcnt(0)")
    istamp(a, 6)
    for g in range(8):
        b = ACC + 4 * g
        a(f"v_lshlrev_b32 v{b}, 16, v{BIAS+2*g}")
        a(f"v_and_b32 v{b+1}, 0xffff0000, v{BIAS+2*g}")
        a(f"v_lshlrev_b32 v{b+2}, 16, v{BIAS+2*g+1}")
        a(f"v_and_b32 v{b+3}, 0xffff0000, v{BIAS+2*g+1}")
    istamp(a, 7)
    a("s_branch A_L1")
    a.label("A_L2P")
    for ks in range(3):
        reads(ks, FS[ks], 0, True)
    loop("A_L2", True)
    a("s_waitcnt lgkmcnt(0)")
    for ks in range(3):
        reads(ks, FS[ks], 0, False, True)
    stamp(a, 3)
    a("s_waitcnt lgkmcnt(7)")
    for g in range(8):
        a(f"ds_read_b64 {vr(BIAS + 2 * g, 2)}, v{vT2} offset:{g*16}")
    a(f"v_and_b32 v{vT0}, 0x2f, v{vLane}")
    a(f"v_lshlrev_b32 v{vT0}, 4, v{vT0}")
    a(f"v_bfe_u32 v{vT1}, v{vLane}, 4, 1")
    a(f"v_lshl_add_u32 v{vT0}, v{vT1}, 17, v{vT0}")
    a(f"s_lshl_b32 s4, s{sCG}, 18")
    a(f"s_lshl_b32 s5, s{sTT}, 11")
    a(f"s_add_u32 s4, s4, s5")
    a(f"s_add_u32 s4, s4, {WS_KV:#x}")
    a(f"s_lshl_b32 s5, s{sTT}, 7")
    a(f"s_add_u32 s5, s5, {WS_G:#x}")
    a(f"v_lshlrev_b32 v{vT1}, 2, v{vLane}")
    for i in range(8):
        a(f"v_cvt_pk_bf16_f32 v{PK + i}, v{ACC + 2 * i}, v{ACC + 2 * i + 1}")
    a(f"v_mul_f32 v{PK+8}, {f32(-LOG2E)}, v{ACC+16}")
    a(f"v_exp_f32 v{PK+8}, v{PK+8}")
    a(f"buffer_store_dwordx4 {vr(PK,4)}, v{vT0}, {sr(S_WS,4)}, s4 offen offset:1024 sc1")
    a(f"v_add_f32 v{PK+8}, 1.0, v{PK+8}")
    a(f"v_rcp_f32 v{PK+8}, v{PK+8}")
    a(f"buffer_store_dwordx4 {vr(PK+4,4)}, v{vT0}, {sr(S_WS,4)}, s4 offen offset:1280 sc1")
    a("s_mov_b32 exec_hi, 0")
    a(f"buffer_store_dword v{PK+8}, v{vT1}, {sr(S_WS,4)}, s5 offen sc1")
    a("s_mov_b64 exec, -1")
    a("s_waitcnt lgkmcnt(0)")
    a("s_branch A_BIAS")
    a.label("A_MISH")
    stamp(a, 4)
    a(f"s_mul_i32 s13, s{sTT}, 112")
    a(f"s_lshl_b32 s{sT1}, s{sFT0}, 1")
    a(f"s_add_u32 s13, s13, s{sT1}")
    a(f"s_lshr_b32 s{sT1}, s{sW}, 2")
    a(f"s_lshl_b32 s{sT1}, s{sT1}, 2")
    a(f"s_add_u32 s13, s13, s{sT1}")
    a(f"s_lshl_b32 s13, s13, 10")
    a(f"s_add_u32 s13, s13, {WS_ACT:#x}")
    for i, c in enumerate((LOG2E, 2.0, -2.0, 1.0)):
        a(f"v_mov_b32 v{144+2*i}, {f32(c)}")
        a(f"v_mov_b32 v{145+2*i}, {f32(c)}")
    a("s_waitcnt lgkmcnt(0)")
    mish16(a, ACC, TMP, 128, 144)
    a(f"buffer_store_dwordx4 {vr(128,4)}, v{vL16}, {sr(S_WS,4)}, s13 offen sc1")
    a(f"buffer_store_dwordx4 {vr(132,4)}, v{vL16}, {sr(S_WS,4)}, s13 offen offset:1024 sc1")
    mish16(a, ACC + 16, TMP, 136, 144)
    a(f"buffer_store_dwordx4 {vr(136,4)}, v{vL16}, {sr(S_WS,4)}, s13 offen offset:2048 sc1")
    a(f"buffer_store_dwordx4 {vr(140,4)}, v{vL16}, {sr(S_WS,4)}, s13 offen offset:3072 sc1")

    a.label("A_PH2")
    sHead, sQT, sI, sB1, sB2, sPass = 4, 5, 6, 7, 8, 9
    sMask = 10
    vAddr, vIdx, vG = 5, 6, 7
    Q = 8
    KB = [12, 16]
    VB = [20, 28]
    S = [36, 52]
    C = 68
    O = 84
    vFl = 100
    a(f"s_and_b32 s{sT0}, s2, 7")
    a(f"s_lshl_b32 s{sHead}, s{sT0}, 2")
    a(f"s_bfe_u32 s{sT0}, s2, 0x20003")
    a(f"s_add_u32 s{sHead}, s{sHead}, s{sT0}")
    a(f"s_lshr_b32 s{sQT}, s2, 5")
    a(f"s_lshl_b32 s{sQT}, s{sQT}, 3")
    a(f"s_add_u32 s{sQT}, s{sQT}, s{sW}")
    a(f"v_mov_b32 v{vIdx}, 0xdddddddd")
    a(f"s_mov_b32 s{sMask}, 0x0000ffff")
    a(f"s_mov_b32 s{sMask+1}, 0x0000ffff")
    a(f"v_and_b32 v{vT0}, 27, v{vLane}")
    a(f"v_cmp_eq_u32 vcc, 16, v{vT0}")
    a(f"v_mov_b32 v{vT1}, 0x3f803f80")
    a("s_nop 0")
    a(f"v_cndmask_b32 v{vT0}, 0, v{vT1}, vcc")
    for b in VB:
        for i in range(8):
            a(f"v_mov_b32 v{b+i}, v{vT0}")
    a(f"v_mov_b32 v{vAddr}, v{vL16}")
    a(f"s_mov_b32 s{sB1}, 1")
    a(f"s_mov_b32 s{sB2}, 3")
    a(f"s_mov_b32 s{sPass}, 0")
    a(f"s_lshl_b32 s{sT0}, s{sW}, 10")
    a(f"s_add_u32 s{sT0}, s{sT0}, {L_Q}")
    a(f"v_add_u32 v{vT1}, s{sT0}, v{vL16}")
    for i in range(16):
        a(f"v_mov_b32 v{O+i}, 0")
    a("s_setprio 2")
    stamp(a, 5)
    a("s_barrier")
    stamp(a, 6)
    a(f"ds_read_b128 {vr(Q,4)}, v{vT1}")
    a(f"ds_read_b128 {vr(KB[0],4)}, v{vAddr} offset:0")
    a("s_waitcnt lgkmcnt(0)")
    a(f"v_mfma_f32_32x32x16_bf16 {vr(S[0],16)}, {vr(KB[0],4)}, {vr(Q,4)}, 0")
    a("s_nop 7")
    a("s_nop 7")
    s0 = S[0]
    a(f"v_max3_f32 v{vT0}, v{s0}, v{s0+1}, v{s0+2}")
    for i in range(3, 15, 2):
        a(f"v_max3_f32 v{vT0}, v{vT0}, v{s0+i}, v{s0+i+1}")
    a(f"v_max_f32 v{vT0}, v{vT0}, v{s0+15}")
    a.label("A_SETMAX")
    a(f"v_mov_b32 v{vT1}, v{vT0}")
    a("s_nop 1")
    a(f"v_permlane32_swap_b32 v{vT0}, v{vT1}")
    a("s_nop 1")
    a(f"v_max_f32 v{vT0}, v{vT0}, v{vT1}")
    for i in range(16):
        a(f"v_sub_f32 v{C+i}, 0, v{vT0}")
    a(f"ds_read_b128 {vr(KB[0],4)}, v{vAddr} offset:0")
    a(f"ds_read_b128 {vr(KB[1],4)}, v{vAddr} offset:2048")
    a(f"s_mov_b64 exec, {sr(sMask,2)}")
    a(f"ds_read_b128 {vr(VB[0],4)}, v{vAddr} offset:1024")
    a(f"ds_read_b128 {vr(VB[0]+4,4)}, v{vAddr} offset:1280")
    a("s_mov_b64 exec, -1")
    a("s_waitcnt lgkmcnt(0)")
    a(f"v_mfma_f32_32x32x16_bf16 {vr(S[0],16)}, {vr(KB[0],4)}, {vr(Q,4)}, {vr(C,16)}")
    a(f"s_mov_b32 s{sI}, 0")
    for i in range(8, 16):
        a(f"v_mov_b32 v{S[1]+i}, 0")
    a("s_nop 7")
    a.raw(".p2align 6")
    a.label("A_LOOP")
    for u in range(4):
        p = u & 1
        cur, nxt = S[p], S[1 - p]
        def E(lo, hi):
            for i in range(lo, hi):
                a(f"v_exp_f32 v{cur+i}, v{cur+i}")
        E(0, 2)
        a(f"v_smfmac_f32_32x32x32_bf16 {vr(O,16)}, {vr(VB[1-p]+4,4)}, {vr(nxt+8,8)}, v{vIdx}")
        E(2, 7)
        a("s_waitcnt lgkmcnt(0)")
        a(f"v_mfma_f32_32x32x16_bf16 {vr(nxt,16)}, {vr(KB[1-p],4)}, {vr(Q,4)}, {vr(C,16)}")
        a(f"ds_read_b128 {vr(KB[p],4)}, v{vAddr} offset:{(u+2)*2048}")
        E(7, 8)
        a(f"s_mov_b64 exec, {sr(sMask,2)}")
        a(f"ds_read_b128 {vr(VB[1-p],4)}, v{vAddr} offset:{(u+1)*2048+1024}")
        a(f"ds_read_b128 {vr(VB[1-p]+4,4)}, v{vAddr} offset:{(u+1)*2048+1280}")
        a("s_mov_b64 exec, -1")
        E(8, 13)
        a(f"v_smfmac_f32_32x32x32_bf16 {vr(O,16)}, {vr(VB[p],4)}, {vr(cur,8)}, v{vIdx}")
        if u == 3:
            a(f"v_add_u32 v{vAddr}, 8192, v{vAddr}")
            E(13, 16)
            a(f"s_add_u32 s{sI}, s{sI}, 1")
            a(f"s_cmp_lt_u32 s{sI}, s{sB1}")
        else:
            a(f"v_exp_f32_e64 v{cur+13}, v{cur+13}")
            E(14, 16)
    a("s_cbranch_scc1 A_LOOP")
    a(f"s_cmp_eq_u32 s{sI}, 1")
    a("s_cbranch_scc0 A_SEG2")
    a(f"s_mov_b32 s{sB1}, 3")
    a("s_barrier")
    a("s_branch A_LOOP")
    a.label("A_SEG2")
    a(f"s_cmp_eq_u32 s{sI}, 3")
    a("s_cbranch_scc0 A_SEG3")
    a(f"s_mov_b32 s{sB1}, {PR1}")
    a("s_waitcnt vmcnt(0)")
    a("s_barrier")
    a("s_branch A_LOOP")
    a.label("A_SEG3")
    a(f"s_cmp_eq_u32 s{sI}, {PR1}")
    a("s_cbranch_scc0 A_SEG4")
    a(f"s_mov_b32 s{sB1}, {PR2}")
    a("s_setprio 1")
    a(f"v_and_b32 v{vT0}, 31, v{vLane}")
    a(f"v_lshlrev_b32 v{vT0}, 2, v{vT0}")
    a(f"s_lshl_b32 s{sT0}, s{sQT}, 7")
    a(f"s_add_u32 s{sT0}, s{sT0}, {WS_G:#x}")
    a(f"buffer_load_dword v{vG}, v{vT0}, {sr(S_WS,4)}, s{sT0} offen sc1")
    a(f"buffer_load_dwordx2 {vr(vFl,2)}, off, {sr(S_DBG,4)}, 0 sc1")
    a("s_branch A_LOOP")
    a.label("A_SEG4")
    a(f"s_cmp_eq_u32 s{sI}, {PR2}")
    a("s_cbranch_scc0 A_SEG5")
    a(f"s_mov_b32 s{sB1}, 16")
    a("s_setprio 0")
    a("s_branch A_LOOP")
    a.label("A_SEG5")
    a(f"v_smfmac_f32_32x32x32_bf16 {vr(O,16)}, {vr(VB[1]+4,4)}, {vr(S[1]+8,8)}, v{vIdx}")
    a("s_waitcnt lgkmcnt(0)")
    a("s_nop 7")
    a("s_nop 7")
    a(f"s_cmp_lg_u32 s{sPass}, 0")
    a("s_cbranch_scc1 A_FIN")
    a(f"v_max3_f32 v{vT0}, |v{O}|, |v{O+1}|, |v{O+2}|")
    a(f"v_max3_f32 v{vT0}, v{vT0}, |v{O+3}|, |v{O+4}|")
    a(f"v_max3_f32 v{vT0}, v{vT0}, |v{O+5}|, |v{O+6}|")
    a(f"v_max_f32 v{vT0}, v{vT0}, |v{O+7}|")
    a(f"v_mov_b32 v{vT1}, 0x7f800000")
    a(f"v_cmp_nlt_f32 vcc, v{vT0}, v{vT1}")
    a(f"v_mov_b32 v{vT1}, {f32(2.0**30)}")
    a(f"v_cmp_nlt_f32 {sr(sT2,2)}, v{O+8}, v{vT1}")
    a("s_nop 1")
    a(f"s_or_b64 vcc, vcc, {sr(sT2,2)}")
    a("s_cbranch_scc0 A_FIN")
    a(f"s_mov_b32 s{sPass}, 1")
    a(f"s_mov_b32 s{sB1}, 16")
    a(f"v_mov_b32 v{vAddr}, v{vL16}")
    a(f"v_mov_b32 v{vT0}, 0xff800000")
    a(f"s_mov_b32 s{sI}, 0")
    a.label("A_MAXLOOP")
    a(f"ds_read_b128 {vr(KB[0],4)}, v{vAddr} offset:0")
    a("s_waitcnt lgkmcnt(0)")
    a(f"v_mfma_f32_32x32x16_bf16 {vr(S[0],16)}, {vr(KB[0],4)}, {vr(Q,4)}, 0")
    a(f"v_add_u32 v{vAddr}, 2048, v{vAddr}")
    a("s_nop 7")
    a("s_nop 7")
    for i in range(0, 16, 2):
        a(f"v_max3_f32 v{vT0}, v{vT0}, v{s0+i}, v{s0+i+1}")
    a(f"s_add_u32 s{sI}, s{sI}, 1")
    a(f"s_cmp_lt_u32 s{sI}, 64")
    a("s_cbranch_scc1 A_MAXLOOP")
    a(f"v_mov_b32 v{vAddr}, v{vL16}")
    for i in range(16):
        a(f"v_mov_b32 v{O+i}, 0")
    a("s_branch A_SETMAX")
    a.label("A_FIN")
    stamp(a, 7)
    a(f"v_rcp_f32 v{vT0}, v{O+8}")
    a("s_waitcnt vmcnt(0)")
    a(f"v_mul_f32 v{vT0}, v{vT0}, v{vG}")
    for i in range(8):
        a(f"v_mul_f32 v{O+i}, v{O+i}, v{vT0}")
    for i in range(4):
        a(f"v_cvt_pk_bf16_f32 v{O+i}, v{O+2*i}, v{O+2*i+1}")
    a(f"s_lshl_b32 s{sT0}, s{sQT}, 15")
    a(f"s_lshl_b32 s{sT1}, s{sHead}, 10")
    a(f"s_add_u32 s{sT0}, s{sT0}, s{sT1}")
    a(f"s_add_u32 s{sT0}, s{sT0}, {WS_OF:#x}")
    a(f"buffer_store_dwordx4 {vr(O,4)}, v{vL16}, {sr(S_WS,4)}, s{sT0} offen sc1")
    a(f"s_lshr_b32 s{sT0}, s{sQT}, 1")
    a(f"s_lshl_b32 s{sT0}, s{sT0}, 9")
    a(f"s_lshl_b32 s{sT1}, s{sHead}, 4")
    a(f"s_add_u32 s{sT0}, s{sT0}, s{sT1}")
    a(f"s_and_b32 s{sT1}, s{sQT}, 1")
    a(f"s_lshl_b32 s{sT1}, s{sT1}, 3")
    a(f"s_add_u32 s{sT0}, s{sT0}, s{sT1}")
    a(f"s_add_u32 s{sT0}, s{sT0}, {WS_FO:#x}")
    a("s_waitcnt vmcnt(0)")
    a("s_mov_b64 exec, 1")
    a(f"buffer_store_dwordx2 {vr(vFl,2)}, off, {sr(S_WS,4)}, s{sT0} sc1")
    stamp(a, 9); stamp(a, 8, True)
    stamp_flush(a)
    a("s_endpgm")


def gen_G(a):
    sXoff, sLX, sWQ0, sW10, sGO = 26, 27, 80, 81, 3
    sGW = sTG
    vDX0, vDX1, vDWq, vDW1, vT2 = 5, 6, 7, 8, 9
    vWe, vWo, vW2w, vGo = 10, 11, 12, 13
    vEp = 14
    RS = 16
    NSETS = int(os.environ.get("NSETS", "9"))
    PER = int(os.environ.get("PER", "1"))
    a("s_setprio 3")
    a(f"s_lshl_b32 s{sXoff}, s{sTT}, 15")
    a(f"s_lshl_b32 s{sLX}, s{sTG}, 12")
    a(f"s_mul_i32 s{sWQ0}, s{sTG}, {16*3072}")
    a(f"s_lshl_b32 s{sT0}, s{sCG}, 6")
    a(f"s_add_u32 s{sWQ0}, s{sWQ0}, s{sT0}")
    a(f"v_lshrrev_b32 v{vT0}, 3, v{vLane}")
    a(f"v_lshrrev_b32 v{vT1}, 4, v{vLane}")
    a(f"v_and_b32 v{vT2}, 7, v{vLane}")
    a(f"v_xor_b32 v{vT2}, v{vT2}, v{vT1}")
    a(f"v_lshlrev_b32 v{vDX0}, 10, v{vT0}")
    a(f"v_lshl_add_u32 v{vDX0}, v{vT2}, 4, v{vDX0}")
    a(f"v_xor_b32 v{vDX1}, 64, v{vDX0}")
    a(f"v_add_u32 v{vDX1}, 8192, v{vDX1}")
    a(f"v_lshrrev_b32 v{vT0}, 2, v{vLane}")
    a(f"v_and_b32 v{vT2}, 3, v{vLane}")
    a(f"v_lshlrev_b32 v{vT2}, 4, v{vT2}")
    a(f"v_mul_u32_u24 v{vDWq}, 3072, v{vT0}")
    a(f"v_add_u32 v{vDWq}, v{vDWq}, v{vT2}")
    a(f"v_mul_u32_u24 v{vDW1}, 3584, v{vT0}")
    a(f"v_add_u32 v{vDW1}, v{vDW1}, v{vT2}")
    sLW = sGO
    a(f"s_lshl_b32 s{sLW}, s{sTG}, 10")
    a("s_waitcnt lgkmcnt(0)")
    estamp(a, 2)
    srd(a, S_X, 4, 2048 * 512 * 2)
    srd(a, S_WQ, 6, 512 * 1536 * 2)
    srd(a, S_GW, 18, 1024)

    q = []
    def vm(tag):
        q.append(tag)
    def wait_tag(tag, extra=""):
        last = max(i for i, t in enumerate(q) if t == tag)
        n = len(q) - 1 - last
        assert n < 64
        a(f"s_waitcnt vmcnt({n}){extra}")

    def dma(lds_s, lds_imm, voff, srdn, s_base, imm, extra=""):
        a(f"s_add_u32 m0, s{lds_s}, {lds_imm}")
        a(f"s_add_u32 s{sT0}, s{s_base}, {imm}")
        a(f"buffer_load_dwordx4 v{voff}, {sr(srdn,4)}, s{sT0} offen{extra} lds")

    def issue(n):
        base = (n & 3) * 32768
        st = n & 7
        for j in range(4):
            dma(sLX, base + j * 1024, vDX0 if j % 2 == 0 else vDX1, S_X, sXoff, (j >> 1) * 16384 + st * 128); vm(n)
        if n < 8:
            for t in range(3):
                dma(sLW, base + 16384 + t * 4096, vDWq, S_WQ, sWQ0, st * 64 * 3072 + t * 1024); vm(n)
        else:
            for t in range(4):
                dma(sLW, base + 16384 + t * 4096, vDW1, S_W1, sW10, st * 64 * 3584 + t * 64); vm(n)

    estamp(a, 3)
    a(f"s_mov_b32 m0, {L_GW}")
    a("s_nop 0")
    a(f"buffer_load_dwordx4 v{vL16}, {sr(S_GW,4)}, 0 offen lds"); vm(0)
    issue(0)
    estamp(a, 4)
    issue(1)
    srd(a, S_W1, 12, 512 * 1792 * 2)
    srds_rest(a)
    a(f"s_mul_i32 s{sW10}, s{sTG}, {16*3584}")
    a(f"s_lshl_b32 s{sT0}, s{sFT0}, 6")
    a(f"s_add_u32 s{sW10}, s{sW10}, s{sT0}")
    a(f"s_mov_b32 m0, {L_B1}")
    a(f"s_lshl_b32 s{sT0}, s{sFT0}, 6")
    a(f"buffer_load_dwordx4 v{vL16}, {sr(S_B1,4)}, s{sT0} offen lds"); vm(1)
    a(f"s_lshl_b32 s{sT0}, s2, 4")
    a(f"s_add_u32 s{sT0}, s{sT0}, s{sW}")
    a(f"s_cmp_eq_u32 s{sT0}, 8")
    a("s_cbranch_scc0 G_NOEP")
    a(f"s_memrealtime {sr(sEP,2)}")
    a("s_waitcnt lgkmcnt(0)")
    a(f"s_or_b32 s{sEP}, s{sEP}, 1")
    a(f"v_mov_b32 v{vEp}, s{sEP}")
    a(f"v_mov_b32 v{vEp+1}, s{sEP+1}")
    a("s_mov_b64 exec, 1")
    a(f"buffer_store_dwordx2 {vr(vEp,2)}, off, {sr(S_DBG,4)}, 0 sc1")
    a("s_mov_b64 exec, -1")
    a.label("G_NOEP")
    estamp(a, 5)
    wait_tag(0)
    estamp(a, 6)
    a("s_barrier")
    stamp(a, 2)
    estamp(a, 7)
    ORD = int(os.environ.get("ORD", "0"))
    if ORD <= 1: issue(2)
    for n in range(16):
        if n == 0 and ORD == 0:
            issue(3)
        if n == int(os.environ.get("PFW1", "99")) and "N" not in X:
            a(f"s_lshr_b32 s{sT0}, s2, 3")
            a(f"s_lshl_b32 s{sT0}, s{sT0}, 4")
            a(f"s_lshl_b32 s{sT1}, s{sGW}, 2")
            a(f"s_add_u32 s{sT0}, s{sT0}, s{sT1}")
            a(f"s_mul_i32 s{sT0}, s{sT0}, 3584")
            a(f"s_bfe_u32 s{sT1}, s2, 0x20001")
            a(f"s_lshl_b32 s{sT1}, s{sT1}, 10")
            a(f"s_add_u32 s{sT0}, s{sT0}, s{sT1}")
            a(f"v_mul_u32_u24 v16, 3584, v{vT1}")
            a(f"v_and_b32 v17, 15, v{vLane}")
            a(f"v_lshl_add_u32 v16, v17, 6, v16")
            a(f"buffer_load_dword v17, v16, {sr(S_W1,4)}, s{sT0} offen"); vm("pf")
        if n == int(os.environ.get("PFW2", "99")):
            a(f"v_lshlrev_b32 v16, 6, v{vLane}")
            a(f"s_cmp_ge_u32 s{sGW}, 2")
            a("s_cbranch_scc1 G_PFO")
            a(f"s_mul_i32 s{sT0}, s2, 7168")
            a(f"s_mul_i32 s{sT1}, s{sGW}, 3584")
            a(f"s_add_u32 s{sT0}, s{sT0}, s{sT1}")
            a(f"v_min_u32 v16, {55*64}, v16")
            a(f"buffer_load_dword v17, v16, {sr(S_W2,4)}, s{sT0} offen")
            a("s_branch G_PFD")
            a.label("G_PFO")
            a(f"s_lshl_b32 s{sT0}, s2, 11")
            a(f"v_min_u32 v16, {31*64}, v16")
            a(f"buffer_load_dword v17, v16, {sr(S_WO,4)}, s{sT0} offen")
            a.label("G_PFD")
            vm("pf2")
        if n == 4:
            a(f"buffer_load_dwordx2 {vr(vEp,2)}, off, {sr(S_DBG,4)}, 0 sc1"); vm("ep")
        if n == 10:
            wait_tag("ep")
            a(f"s_mov_b32 s{sT1}, 0")
            a.label("G_EPL")
            a(f"v_readfirstlane_b32 s{sEP}, v{vEp}")
            a(f"v_readfirstlane_b32 s{sEP+1}, v{vEp+1}")
            a(f"s_cmp_lg_u32 s{sEP}, 0")
            a("s_cbranch_scc1 G_EPD")
            a("s_sleep 4")
            a(f"buffer_load_dwordx2 {vr(vEp,2)}, off, {sr(S_DBG,4)}, 0 sc1")
            a("s_waitcnt vmcnt(0)")
            a(f"s_add_u32 s{sT1}, s{sT1}, 1")
            a(f"s_cmp_lt_u32 s{sT1}, {SPIN_MAX}")
            a("s_cbranch_scc1 G_EPL")
            a.label("G_EPD")
        if n + 1 <= 15:
            wait_tag(n + 1)
        a("s_barrier")
        if n == 0 and ORD == 2: issue(2)
        if (1 <= n or ORD >= 1) and n + 3 <= 15:
            issue(n + 3)
        if "P" in X and STAMPS:
            P0 = int(os.environ.get("P0", "8"))
            if P0 <= n + 1 < P0 + 6:
                i = n + 1 - P0 + 2
                a(f"s_memtime s[{82+2*i}:{83+2*i}]")
                a("s_waitcnt lgkmcnt(0)")
        if n + 1 == 12:
            a(f"s_cmp_eq_u32 s{sGW}, 0")
            a("s_cbranch_scc0 G_NOF1")
            a(f"s_lshl_b32 s{sT0}, s{sCG}, 7")
            a(f"s_lshl_b32 s{sT1}, s{sRB}, 3")
            a(f"s_add_u32 s{sT0}, s{sT0}, s{sT1}")
            a(f"s_add_u32 s{sT0}, s{sT0}, {WS_FKV:#x}")
            a("s_mov_b64 exec, 1")
            a(f"buffer_store_dwordx2 {vr(vEp,2)}, off, {sr(S_WS,4)}, s{sT0} sc1")
            a("s_mov_b64 exec, -1")
            a.label("G_NOF1")
    sHead, sKV, sLK, sFK, sFG, sQ = 4, 5, 6, 7, 8, 9
    sA0, sA1, sW2, sOT, sON, sI, sRing, sTT64, sNB = 10, 11, 12, 13, 14, 15, 16, 17, 18
    vL8, vF16 = 5, 6
    FL = 124
    a(f"s_and_b32 s{sT0}, s2, 7")
    a(f"s_lshl_b32 s{sHead}, s{sT0}, 2")
    a(f"s_bfe_u32 s{sT0}, s2, 0x20003")
    a(f"s_add_u32 s{sHead}, s{sHead}, s{sT0}")
    a(f"s_lshl_b32 s{sLK}, s{sGW}, 10")
    a(f"s_lshl_b32 s{sKV}, s{sHead}, 17")
    a(f"s_add_u32 s{sKV}, s{sKV}, {WS_KV:#x}")
    a(f"s_add_u32 s{sKV}, s{sKV}, s{sLK}")
    a(f"s_lshr_b32 s{sT0}, s{sHead}, 1")
    a(f"s_lshl_b32 s{sFK}, s{sT0}, 7")
    a(f"s_add_u32 s{sFK}, s{sFK}, {WS_FKV:#x}")
    a(f"s_lshr_b32 s{sT1}, s2, 5")
    a(f"s_lshl_b32 s{sQ}, s{sHead}, 16")
    a(f"s_lshl_b32 s{sT0}, s{sT1}, 13")
    a(f"s_add_u32 s{sQ}, s{sQ}, s{sT0}")
    a(f"s_add_u32 s{sQ}, s{sQ}, s{sLK}")
    a(f"s_add_u32 s{sQ}, s{sQ}, {WS_QF:#x}")
    a(f"v_lshlrev_b32 v{vL8}, 3, v{vLane}")
    a(f"v_and_b32 v{vF16}, 0x78, v{vL8}")
    stamp(a, 3)
    poll(a, [(1, FL, vF16, sFK)], sT1)
    stamp(a, 4)
    def kvdma(i):
        dma(sLK, i * 4096, vL16, S_WS, sKV, i * 4096, " sc1")
    dma(sLK, L_Q, vL16, S_WS, sQ, 0, " sc1")
    dma(sLK, L_Q + 4096, vL16, S_WS, sQ, 4096, " sc1")
    KV0 = int(os.environ.get("KV0", "8"))
    for i in range(KV0): kvdma(i)
    a(f"s_waitcnt vmcnt({KV0-4})")
    a("s_barrier")
    for i in range(KV0, 20): kvdma(i)
    a("s_waitcnt vmcnt(12)")
    a("s_barrier")
    for i in range(20, 32): kvdma(i)
    ACC = 8
    AF = 72
    WF = 104
    vG0, vG1 = 120, 121
    vDW, vTr0, vTr1 = 7, 122, 123
    a(f"s_and_b32 s{sT0}, s2, 7")
    a(f"s_lshr_b32 s{sT1}, s2, 3")
    a(f"s_lshr_b32 s{sTT64}, s{sT0}, 1")
    a(f"s_lshl_b32 s{sTT64}, s{sTT64}, 3")
    a(f"s_and_b32 s{sT3}, s{sT1}, 7")
    a(f"s_add_u32 s{sTT64}, s{sTT64}, s{sT3}")
    a(f"s_and_b32 s{sNB}, s{sT0}, 1")
    a(f"s_lshl_b32 s{sNB}, s{sNB}, 2")
    a(f"s_lshr_b32 s{sT1}, s{sT1}, 3")
    a(f"s_add_u32 s{sNB}, s{sNB}, s{sT1}")
    a(f"s_lshr_b32 s{sT1}, s{sGW}, 1")
    a(f"s_lshl_b32 s{sOT}, s{sTT64}, 1")
    a(f"s_add_u32 s{sOT}, s{sOT}, s{sT1}")
    a(f"s_and_b32 s{sT1}, s{sGW}, 1")
    a(f"s_lshl_b32 s{sON}, s{sNB}, 1")
    a(f"s_add_u32 s{sON}, s{sON}, s{sT1}")
    a(f"s_mul_i32 s{sT3}, s{sGW}, {28*1024}")
    a(f"s_mul_i32 s{sA0}, s{sOT}, {112*1024}")
    a(f"s_add_u32 s{sA0}, s{sA0}, s{sT3}")
    a(f"s_add_u32 s{sA0}, s{sA0}, {WS_ACT:#x}")
    a(f"s_xor_b32 s{sT1}, s{sOT}, 1")
    a(f"s_mul_i32 s{sA1}, s{sT1}, {112*1024}")
    a(f"s_add_u32 s{sA1}, s{sA1}, s{sT3}")
    a(f"s_add_u32 s{sA1}, s{sA1}, {WS_ACT:#x}")
    a(f"s_mul_i32 s{sW2}, s{sGW}, {28*16384}")
    a(f"s_lshl_b32 s{sT1}, s{sNB}, 7")
    a(f"s_add_u32 s{sW2}, s{sW2}, s{sT1}")
    a(f"s_lshl_b32 s{sRing}, s{sGW}, 13")
    a(f"s_add_u32 s{sRing}, s{sRing}, {L_RING}")
    a(f"v_lshrrev_b32 v{vT0}, 3, v{vLane}")
    a(f"v_bfe_u32 v{vT1}, v{vLane}, 4, 1")
    a(f"v_lshlrev_b32 v{vT1}, 2, v{vT1}")
    a(f"v_and_b32 v{vDW}, 7, v{vLane}")
    a(f"v_xor_b32 v{vDW}, v{vDW}, v{vT1}")
    a(f"v_lshlrev_b32 v{vDW}, 4, v{vDW}")
    a(f"v_lshl_add_u32 v{vDW}, v{vT0}, 10, v{vDW}")
    a(f"v_bfe_u32 v{vT0}, v{vLane}, 2, 2")
    a(f"v_lshrrev_b32 v{vT1}, 5, v{vLane}")
    a(f"v_lshl_add_u32 v{vT0}, v{vT1}, 2, v{vT0}")
    a(f"v_lshlrev_b32 v{vTr0}, 7, v{vT0}")
    a(f"v_bfe_u32 v{vT0}, v{vLane}, 3, 1")
    a(f"v_lshl_add_u32 v{vTr0}, v{vT0}, 6, v{vTr0}")
    a(f"v_and_b32 v{vT0}, 1, v{vLane}")
    a(f"v_lshl_add_u32 v{vTr0}, v{vT0}, 5, v{vTr0}")
    a(f"v_bfe_u32 v{vT0}, v{vLane}, 4, 1")
    a(f"v_lshl_add_u32 v{vTr0}, v{vT0}, 4, v{vTr0}")
    a(f"v_bfe_u32 v{vT0}, v{vLane}, 1, 1")
    a(f"v_lshl_add_u32 v{vTr0}, v{vT0}, 3, v{vTr0}")
    a(f"s_and_b32 s{sT1}, s{sGW}, 1")
    a(f"s_lshl_b32 s{sT1}, s{sT1}, 6")
    a(f"v_xor_b32 v{vTr0}, s{sT1}, v{vTr0}")
    a(f"v_add_u32 v{vTr0}, s{sRing}, v{vTr0}")
    a(f"v_xor_b32 v{vTr1}, 64, v{vTr0}")
    a(f"s_lshl_b32 s{sFG}, s{sTT64}, 9")
    a(f"s_add_u32 s{sFG}, s{sFG}, {WS_FO:#x}")
    a(f"s_lshr_b32 s{sFK}, s{sTT64}, 1")
    a(f"s_lshl_b32 s{sFK}, s{sFK}, 7")
    a(f"s_add_u32 s{sFK}, s{sFK}, {WS_FACT:#x}")
    a("s_waitcnt vmcnt(0)")
    a("s_barrier")
    a(f"s_cmp_eq_u32 s{sGW}, 0")
    a("s_cbranch_scc0 G_NOF2")
    a(f"s_lshl_b32 s{sT0}, s{sRB}, 7")
    a(f"s_lshl_b32 s{sT1}, s{sCG}, 3")
    a(f"s_add_u32 s{sT0}, s{sT0}, s{sT1}")
    a(f"s_add_u32 s{sT0}, s{sT0}, {WS_FACT:#x}")
    a("s_mov_b64 exec, 1")
    a(f"buffer_store_dwordx2 {vr(vEp,2)}, off, {sr(S_WS,4)}, s{sT0} sc1")
    a("s_mov_b64 exec, -1")
    a.label("G_NOF2")
    a(f"s_setprio {os.environ.get('GPRIO', '0')}")
    stamp(a, 5)
    poll(a, [(1, FL, vF16, sFK)], sT1)
    a(f"v_and_b32 v{vT0}, 31, v{vLane}")
    a(f"v_lshlrev_b32 v{vT0}, 2, v{vT0}")
    a(f"s_lshl_b32 s{sT0}, s{sOT}, 7")
    a(f"s_add_u32 s{sT0}, s{sT0}, {WS_G:#x}")
    a(f"s_xor_b32 s{sT1}, s{sT0}, 128")
    a(f"buffer_load_dword v{vG0}, v{vT0}, {sr(S_WS,4)}, s{sT0} offen sc1")
    a(f"buffer_load_dword v{vG1}, v{vT0}, {sr(S_WS,4)}, s{sT1} offen sc1")

    def wdma(st, srdn):
        a(f"s_add_u32 m0, s{sRing}, {st * 2048}")
        a(f"s_add_u32 s{sT0}, s{sW2}, 8192")
        a(f"buffer_load_dwordx4 v{vDW}, {sr(srdn,4)}, s{sW2} offen lds")
        a(f"s_add_u32 m0, s{sRing}, {st * 2048 + 1024}")
        a(f"s_add_u32 s{sW2}, s{sW2}, 16384")
        a(f"buffer_load_dwordx4 v{vDW}, {sr(srdn,4)}, s{sT0} offen lds")

    def group(st):
        wdma(st, S_W2)
        f = AF + 8 * st
        a(f"buffer_load_dwordx4 {vr(f,4)}, v{vL16}, {sr(S_WS,4)}, s{sA0} offen offset:{st*1024} sc1")
        a(f"buffer_load_dwordx4 {vr(f+4,4)}, v{vL16}, {sr(S_WS,4)}, s{sA1} offen offset:{st*1024} sc1")
        if st == 3:
            a(f"s_add_u32 s{sA0}, s{sA0}, 4096")
            a(f"s_add_u32 s{sA1}, s{sA1}, 4096")

    def trreads(st, w):
        for jp, vt in enumerate((vTr0, vTr1)):
            a(f"ds_read_b64_tr_b16 {vr(w+4*jp,2)}, v{vt} offset:{st*2048}")
            a(f"ds_read_b64_tr_b16 {vr(w+4*jp+2,2)}, v{vt} offset:{st*2048+1024}")

    GSP = os.environ.get("GSP", "")
    def gmfma(w, f, first, space=False):
        for ap in range(2):
            for jp in range(2):
                acc = ACC + 16 * (ap * 2 + jp)
                c = "0" if first else vr(acc, 16)
                a(f"v_mfma_f32_32x32x16_bf16 {vr(acc,16)}, {vr(w+4*jp,4)}, {vr(f+4*ap,4)}, {c}")
                if space and GSP and not (ap == 1 and jp == 1): a(GSP)

    def step(st, first, more, nwait=12):
        a(f"s_waitcnt vmcnt({nwait})")
        w = WF + 8 * (st & 1)
        trreads(st, w)
        a("s_waitcnt lgkmcnt(0)")
        gmfma(w, AF + 8 * st, first, True)
        if more:
            group(st)

    for st in range(4): group(st)
    for st in range(4): step(st, st == 0, True)
    a(f"s_mov_b32 s{sI}, 0")
    a.label("G_LOOP")
    for st in range(4): step(st, False, True)
    a(f"s_add_u32 s{sI}, s{sI}, 1")
    a(f"s_cmp_lt_u32 s{sI}, 5")
    a("s_cbranch_scc1 G_LOOP")
    for st in range(4): step(st, False, False, 12 - 4 * st)
    stamp(a, 6)
    WOR = 72
    OFR = 136
    a(f"s_lshl_b32 s{sW2}, s{sGW}, 17")
    a(f"s_lshl_b32 s{sT1}, s{sNB}, 7")
    a(f"s_add_u32 s{sW2}, s{sW2}, s{sT1}")
    for st in range(4): wdma(st, S_WO)
    a(f"v_sub_f32 v{vT0}, 1.0, v{vG0}")
    a(f"v_sub_f32 v{vT1}, 1.0, v{vG1}")
    a(f"v_mov_b32 v152, v{vTr0}")
    a(f"v_mov_b32 v153, v{vTr1}")
    vTr0, vTr1 = 152, 153
    a("s_nop 7")
    for q in range(4):
        for i in range(16):
            a(f"v_mul_f32 v{ACC+16*q+i}, v{ACC+16*q+i}, v{vT0 if q < 2 else vT1}")
    def trreads2(st, w):
        for jp, vt in enumerate((vTr0, vTr1)):
            a(f"ds_read_b64_tr_b16 {vr(w+4*jp,2)}, v{vt} offset:{st*2048}")
            a(f"ds_read_b64_tr_b16 {vr(w+4*jp+2,2)}, v{vt} offset:{st*2048+1024}")
    for ks in range(8):
        st = ks & 3
        a(f"s_waitcnt vmcnt({6 if ks < 4 else 6 - 2 * (ks - 4)})")
        trreads2(st, WOR + 8 * ks)
        if ks < 4:
            a("s_waitcnt lgkmcnt(0)")
            wdma(st, S_WO)
    FL = 156
    a(f"s_lshl_b32 s{sA0}, s{sOT}, 15")
    a(f"s_lshl_b32 s{sT3}, s{sGW}, 13")
    a(f"s_add_u32 s{sA0}, s{sA0}, s{sT3}")
    a(f"s_add_u32 s{sA0}, s{sA0}, {WS_OF:#x}")
    a(f"s_xor_b32 s{sA1}, s{sA0}, 32768")
    a(f"s_lshl_b32 s{sLK}, s{sGW}, 14")
    a(f"v_add_u32 v154, s{sLK}, v{vL16}")
    a("s_waitcnt lgkmcnt(0)")
    a("s_barrier")
    a("s_setprio 3")
    poll(a, [(1, FL, vL8, sFG)], sT1)
    stamp(a, 7)
    for ks in range(8):
        dma(sLK, ks * 2048, vL16, S_WS, sA0, ks * 1024, " sc1")
        dma(sLK, ks * 2048 + 1024, vL16, S_WS, sA1, ks * 1024, " sc1")
    def ord_(ks):
        f = OFR + 8 * (ks & 1)
        a(f"s_waitcnt vmcnt({14 - 2 * ks})")
        a(f"ds_read_b128 {vr(f,4)}, v154 offset:{ks*2048}")
        a(f"ds_read_b128 {vr(f+4,4)}, v154 offset:{ks*2048+1024}")
    ord_(0)
    for ks in range(8):
        f = OFR + 8 * (ks & 1)
        if ks < 7:
            ord_(ks + 1)
            a("s_waitcnt lgkmcnt(2)")
        else:
            a("s_waitcnt lgkmcnt(0)")
        gmfma(WOR + 8 * ks, f, False)
    a("s_nop 7")
    a("s_nop 7")
    for q in range(1, 4):
        a(f"s_xor_b32 s{sT0}, s{sGW}, {q}")
        a(f"s_mul_i32 s{sT0}, s{sT0}, 12288")
        a(f"s_add_u32 s{sT0}, s{sT0}, {L_EXCH}")
        a(f"v_add_u32 v{vT0}, s{sT0}, v{vL16}")
        for i in range(4):
            a(f"ds_write_b128 v{vT0}, {vr(ACC+16*q+4*i,4)} offset:{(q-1)*4096 + i*1024}")
    a(f"s_mul_i32 s{sT0}, s{sGW}, 12288")
    a(f"s_add_u32 s{sT0}, s{sT0}, {L_EXCH}")
    a(f"v_add_u32 v{vT0}, s{sT0}, v{vL16}")
    a("s_waitcnt lgkmcnt(0)")
    a("s_barrier")
    R = 72
    for q in range(3):
        for i in range(4):
            a(f"ds_read_b128 {vr(R+16*q+4*i,4)}, v{vT0} offset:{q*4096 + i*1024}")
    a(f"v_and_b32 v{vT0}, 31, v{vLane}")
    a(f"v_lshlrev_b32 v{vT0}, 10, v{vT0}")
    a(f"v_lshrrev_b32 v{vT1}, 5, v{vLane}")
    a(f"v_lshl_add_u32 v{vT0}, v{vT1}, 5, v{vT0}")
    a(f"s_lshl_b32 s{sT0}, s{sOT}, 15")
    a(f"s_lshl_b32 s{sT1}, s{sON}, 6")
    a(f"s_add_u32 s{sT0}, s{sT0}, s{sT1}")
    for q in range(3):
        a(f"s_waitcnt lgkmcnt({8 - 4 * q})")
        for i in range(16):
            a(f"v_add_f32 v{ACC+i}, v{ACC+i}, v{R+16*q+i}")
    cvt16(a, ACC)
    a(f"buffer_store_dwordx4 {vr(ACC,4)}, v{vT0}, {sr(S_OUT,4)}, s{sT0} offen")
    a(f"buffer_store_dwordx4 {vr(ACC+4,4)}, v{vT0}, {sr(S_OUT,4)}, s{sT0} offen offset:16")
    if STAMPS: a("s_waitcnt vmcnt(0)")
    stamp(a, 9); stamp(a, 8, True)
    stamp_flush(a)


def main():
    ref = open(f"cdna_kernels/{NAME}.s.ref").read().split("\n")
    head = [l for l in ref if l.startswith(";") and "@launch" not in l]
    a = A()
    name = gen(a)
    out = "\n".join(head) + "\n"
    if ASLIST:
        out += f"; @launch kernel={name} grid=(256,1,1) block=(768,1,1) lds={LDS_TOTAL}\n"
    else:
        out += f"; @launch grid=(256,1,1) block=(768,1,1) lds={LDS_TOTAL}\n"
    out += '.amdgcn_target "amdgcn-amd-amdhsa--gfx950"\n'
    out += a.text()
    out += f""".section .rodata,"a"
.p2align 6
.amdhsa_kernel {name}
  .amdhsa_next_free_vgpr 168
  .amdhsa_next_free_sgpr {102 if STAMPS else 84}
  .amdhsa_accum_offset 168
  .amdhsa_group_segment_fixed_size 0
  .amdhsa_kernarg_size 88
  .amdhsa_user_sgpr_count 2
  .amdhsa_user_sgpr_kernarg_segment_ptr 1
  .amdhsa_system_sgpr_workgroup_id_x 1
.end_amdhsa_kernel
"""
    path = sys.argv[1] if len(sys.argv) > 1 else f"cdna_kernels/{NAME}.s"
    open(path, "w").write(out)
    print("wrote", path, len(out), "bytes")

main()
```

```python
import struct, sys, math, os

NAME = "gated_mix__mha_block__dense_activation_mish__prompt"
STAMPS = int(os.environ.get("STAMPS", "0"))
ASLIST = int(os.environ.get("ASLIST", "0"))
X = os.environ.get("X", "")
EARLYF = int(os.environ.get("EARLYF", "1"))
PR1 = int(os.environ.get("PR1", "10"))
PR2 = int(os.environ.get("PR2", "14"))

def f32(x):
    return "0x%08x" % struct.unpack("<I", struct.pack("<f", x))[0]

LOG2E = math.log2(math.e)

WS_QF  = 0x0000000
WS_KV  = 0x0200000
WS_ACT = 0x0600000
WS_G   = 0x0F40000
WS_OF  = 0x1000000
WS_FKV = 0x1800000
WS_FACT = 0x1804000
WS_FO  = 0x1808000
WS_STAMP = 0x2000000
WS_SIZE = 0x10000000

L_GW = 144 * 1024
L_B1 = 145 * 1024
L_RING = 128 * 1024
L_Q = 128 * 1024
L_EXCH = 64 * 1024
LDS_TOTAL = 160 * 1024

SPIN_MAX = 200000


class A:
    def __init__(self):
        self.l = []
        self.n = 0
    def __call__(self, s):
        for line in s.strip("\n").split("\n"):
            self.l.append("    " + line.strip())
    def label(self, s):
        self.l.append(s + ":")
    def raw(self, s):
        self.l.append(s)
    def uniq(self, p):
        self.n += 1
        return f"{p}_{self.n}"
    def text(self):
        return "\n".join(self.l) + "\n"


def vr(b, n):
    return "v[%d:%d]" % (b, b + n - 1)

def sr(b, n):
    return "s[%d:%d]" % (b, b + n - 1)

def srd(a, dst, ptr, nbytes):
    a(f"s_mov_b32 s{dst}, s{ptr}")
    a(f"s_and_b32 s{dst+1}, s{ptr+1}, 0xffff")
    a(f"s_mov_b32 s{dst+2}, {nbytes:#x}")
    a(f"s_mov_b32 s{dst+3}, 0x00020000")

S_X, S_WQ, S_W1, S_WS, S_B1, S_W2, S_WO, S_GW, S_OUT, S_DBG = 28, 32, 36, 40, 44, 48, 52, 56, 60, 64
sW, sRB, sCG, sTG, sTT, sFT0 = 68, 69, 70, 71, 72, 73
sT0, sT1, sT2, sT3 = 74, 75, 76, 77
sEP = 78
vLane, vL16, vT0, vT1 = 1, 2, 3, 4

def estamp(a, i):
    if "E" in X and STAMPS:
        a(f"s_memtime s[{82+2*i}:{83+2*i}]")
        a("s_waitcnt lgkmcnt(0)")

def istamp(a, i):
    if "I" in X and STAMPS:
        a(f"s_memtime s[{82+2*i}:{83+2*i}]")
        a("s_waitcnt lgkmcnt(0)")

def stamp(a, i, real=False):
    if not STAMPS: return
    if ("E" in X or "P" in X) and 2 <= i <= 7: return
    if "I" in X and 4 <= i <= 7: return
    a(f"{'s_memrealtime' if real else 's_memtime'} s[{82+2*i}:{83+2*i}]")
    a("s_waitcnt lgkmcnt(0)")

def stamp_flush(a, n=10):
    if not STAMPS: return
    a("s_mov_b64 exec, 1")
    for i in range(n):
        a(f"v_mov_b32 v{i+1}, s{82+2*i}")
    a(f"s_lshl_b32 s80, s2, 4")
    a(f"s_add_u32 s80, s80, s{sW}")
    a(f"s_lshl_b32 s80, s80, 6")
    a(f"s_add_u32 s80, s80, {WS_STAMP:#x}")
    for i in range(n):
        a(f"buffer_store_dword v{i+1}, off, {sr(S_WS,4)}, s80 offset:{4*i}")
    if STAMPS == 2:
        L = a.uniq("NODBG")
        a(f"s_lshl_b32 s80, s2, 4")
        a(f"s_add_u32 s80, s80, s{sW}")
        a(f"s_cmp_eq_u32 s80, {77*16+8}")
        a(f"s_cbranch_scc0 {L}")
        a("v_sub_u32 v9, v9, v1")
        for i in (3, 4, 5, 6, 7, 8, 10):
            a(f"v_sub_u32 v{i}, v{i}, v2")
        for i in range(2, n):
            a(f"buffer_store_dword v{i+1}, off, {sr(S_DBG,4)}, 0 offset:{4*i}")
        a.label(L)


def mish16(a, acc, tmp, dst, cst):
    cL, c2, cm2, c1 = (vr(cst + 2 * i, 2) for i in range(4))
    for g in range(4):
        e = [vr(acc + 4 * g + 2 * i, 2) for i in range(2)]
        t = [vr(tmp + 2 * i, 2) for i in range(2)]
        u = [vr(tmp + 4 + 2 * i, 2) for i in range(2)]
        for i in range(2): a(f"v_pk_mul_f32 {t[i]}, {e[i]}, {cL}")
        for i in range(4): a(f"v_exp_f32 v{tmp+i}, v{tmp+i}")
        for i in range(2): a(f"v_pk_add_f32 {u[i]}, {t[i]}, {c2}")
        for i in range(2): a(f"v_pk_fma_f32 {u[i]}, {t[i]}, {u[i]}, {c2}")
        for i in range(4): a(f"v_rcp_f32 v{tmp+4+i}, v{tmp+4+i}")
        for i in range(2): a(f"v_pk_fma_f32 {u[i]}, {u[i]}, {cm2}, {c1}")
        for i in range(2): a(f"v_pk_mul_f32 {u[i]}, {u[i]}, {e[i]}")
        a(f"v_cvt_pk_bf16_f32 v{dst + 2 * g}, v{tmp+4}, v{tmp+5}")
        a(f"v_cvt_pk_bf16_f32 v{dst + 2 * g + 1}, v{tmp+6}, v{tmp+7}")

def cvt16(a, acc):
    for i in range(8):
        a(f"v_cvt_pk_bf16_f32 v{acc + i}, v{acc + 2 * i}, v{acc + 2 * i + 1}")

def flag_store(a, soff, vtmp, cnt):
    L = a.uniq("NOFLAG")
    if cnt is None:
        a(f"v_mov_b32 v{vtmp}, s{sEP}")
        a(f"v_mov_b32 v{vtmp+1}, s{sEP+1}")
        a("s_mov_b64 exec, 1")
        a(f"buffer_store_dwordx2 {vr(vtmp,2)}, off, {sr(S_WS,4)}, s{soff} sc1")
        a("s_mov_b64 exec, -1")
        return
    a("s_mov_b64 exec, 1")
    a(f"v_mov_b32 v{vtmp}, {cnt}")
    a(f"v_mov_b32 v{vtmp+1}, 1")
    a(f"ds_add_rtn_u32 v{vtmp}, v{vtmp}, v{vtmp+1}")
    a("s_waitcnt lgkmcnt(0)")
    a(f"v_readfirstlane_b32 s{sT3}, v{vtmp}")
    a(f"v_mov_b32 v{vtmp}, s{sEP}")
    a(f"v_mov_b32 v{vtmp+1}, s{sEP+1}")
    a(f"s_cmp_eq_u32 s{sT3}, 7")
    a(f"s_cbranch_scc0 {L}")
    a(f"buffer_store_dwordx2 {vr(vtmp,2)}, off, {sr(S_WS,4)}, s{soff} sc1")
    a.label(L)
    a("s_mov_b64 exec, -1")

def poll(a, loads, scnt):
    L = a.uniq("POLL"); D = a.uniq("POLLD")
    a(f"s_mov_b32 s{scnt}, 0")
    a.label(L)
    for nf, vd, vo, so in loads:
        op = "buffer_load_dwordx4" if nf == 2 else "buffer_load_dwordx2"
        a(f"{op} {vr(vd, 2*nf)}, v{vo}, {sr(S_WS,4)}, s{so} offen sc1")
    a("s_waitcnt vmcnt(0)")
    first = True
    for nf, vd, vo, so in loads:
        for k in range(nf):
            if first:
                a(f"v_cmp_ne_u64 vcc, {sr(sEP,2)}, {vr(vd+2*k,2)}")
                first = False
            else:
                a(f"v_cmp_ne_u64 {sr(sT2,2)}, {sr(sEP,2)}, {vr(vd+2*k,2)}")
                a("s_nop 1")
                a(f"s_or_b64 vcc, vcc, {sr(sT2,2)}")
    a("s_nop 1")
    a("s_cmp_eq_u64 vcc, 0")
    a(f"s_cbranch_scc1 {D}")
    a("s_sleep 4")
    a(f"s_add_u32 s{scnt}, s{scnt}, 1")
    a(f"s_cmp_lt_u32 s{scnt}, {SPIN_MAX}")
    a(f"s_cbranch_scc1 {L}")
    a.label(D)


def gen(a):
    name = NAME + "_kernel"
    a.raw(".text")
    a.raw(f".globl {name}")
    a.raw(".p2align 8")
    a.raw(f".type {name},@function")
    a.label(name)
    a("s_cmp_ge_u32 s2, 256")
    a("s_cbranch_scc1 K_END")
    stamp(a, 0, True); stamp(a, 1)
    a("s_load_dwordx16 s[4:19], s[0:1], 0")
    a("s_load_dwordx4 s[20:23], s[0:1], 64")
    a("s_load_dwordx2 s[24:25], s[0:1], 80")
    a(f"v_and_b32 v{vLane}, 63, v0")
    a(f"v_lshrrev_b32 v{vT0}, 6, v0")
    a(f"v_lshlrev_b32 v{vL16}, 4, v{vLane}")
    a(f"v_readfirstlane_b32 s{sW}, v{vT0}")
    if "C" not in X:
        a(f"v_lshlrev_b32 v{vT0}, 6, v0")
        a(f"s_cmp_ge_u32 s{sW}, 4")
        a("s_cbranch_scc1 K_NOPC")
        a(f"s_getpc_b64 {sr(sT0,2)}")
        a.label("K_PC")
        a(f"v_min_u32 v{vT0}, K_END-K_PC, v{vT0}")
        a(f"global_load_dword v12, v{vT0}, {sr(sT0,2)}")
        a.label("K_NOPC")
    a(f"s_and_b32 s{sT0}, s2, 7")
    a(f"s_lshr_b32 s{sT1}, s2, 3")
    if os.environ.get("TILE48"):
        a(f"s_and_b32 s{sRB}, s{sT0}, 3")
        a(f"s_lshl_b32 s{sRB}, s{sRB}, 2")
        a(f"s_and_b32 s{sT2}, s{sT1}, 3")
        a(f"s_add_u32 s{sRB}, s{sRB}, s{sT2}")
        a(f"s_lshr_b32 s{sCG}, s{sT0}, 2")
        a(f"s_lshl_b32 s{sCG}, s{sCG}, 3")
        a(f"s_lshr_b32 s{sT2}, s{sT1}, 2")
        a(f"s_add_u32 s{sCG}, s{sCG}, s{sT2}")
    else:
        a(f"s_and_b32 s{sRB}, s{sT0}, 1")
        a(f"s_lshl_b32 s{sRB}, s{sRB}, 3")
        a(f"s_and_b32 s{sT2}, s{sT1}, 7")
        a(f"s_add_u32 s{sRB}, s{sRB}, s{sT2}")
        a(f"s_lshr_b32 s{sCG}, s{sT0}, 1")
        a(f"s_lshl_b32 s{sCG}, s{sCG}, 2")
        a(f"s_lshr_b32 s{sT2}, s{sT1}, 3")
        a(f"s_add_u32 s{sCG}, s{sCG}, s{sT2}")
    a(f"s_and_b32 s{sTG}, s{sW}, 3")
    a(f"s_lshl_b32 s{sTT}, s{sRB}, 2")
    a(f"s_add_u32 s{sTT}, s{sTT}, s{sTG}")
    a(f"s_sub_u32 s{sT0}, s{sCG}, 2")
    a(f"s_cmp_ge_u32 s{sCG}, 14")
    a(f"s_cselect_b32 s{sFT0}, s{sT0}, s{sCG}")
    a(f"s_lshl_b32 s{sFT0}, s{sFT0}, 2")
    a(f"s_cmp_ge_u32 s{sW}, 8")
    a("s_cbranch_scc1 G_START")
    if "N" not in X:
        a(f"s_cmp_ge_u32 s{sW}, 6")
        a("s_cbranch_scc1 A_START")
        a(f"s_cmp_ge_u32 s{sW}, 4")
        a("s_cbranch_scc1 A_PF1")
        a(f"s_bitcmp1_b32 s{sW}, 0")
        a("s_cbranch_scc1 A_PFQ")
        a(f"s_lshl_b32 s{sT0}, s2, 13")
        a(f"s_lshl_b32 s{sT1}, s{sW}, 8")
        a(f"s_add_u32 s{sT0}, s{sT0}, s{sT1}")
        a(f"v_lshrrev_b32 v{vT0}, 3, v{vLane}")
        a(f"v_lshlrev_b32 v{vT0}, 10, v{vT0}")
        a(f"v_and_b32 v{vT1}, 7, v{vLane}")
        a(f"v_lshl_add_u32 v{vT0}, v{vT1}, 6, v{vT0}")
        a("s_waitcnt lgkmcnt(0)")
        srd(a, S_X, 4, 2048 * 512 * 2)
        a(f"buffer_load_dword v12, v{vT0}, {sr(S_X,4)}, s{sT0} offen")
        a("s_branch A_START")
        a.label("A_PFQ")
        a(f"s_lshr_b32 s{sT1}, s{sW}, 1")
        a(f"s_lshl_b32 s{sT1}, s{sT1}, 8")
        a(f"s_add_u32 s{sT0}, s2, s{sT1}")
        a(f"s_mul_i32 s{sT0}, s{sT0}, 3072")
        a(f"v_min_u32 v{vT0}, 47, v{vLane}")
        a(f"v_lshlrev_b32 v{vT0}, 6, v{vT0}")
        a("s_waitcnt lgkmcnt(0)")
        srd(a, S_WQ, 6, 512 * 1536 * 2)
        a(f"buffer_load_dword v12, v{vT0}, {sr(S_WQ,4)}, s{sT0} offen")
        a("s_branch A_START")
        a.label("A_PF1")
        a(f"s_and_b32 s{sT1}, s{sW}, 1")
        a(f"s_lshl_b32 s{sT1}, s{sT1}, 8")
        a(f"s_add_u32 s{sT0}, s2, s{sT1}")
        a(f"s_mul_i32 s{sT0}, s{sT0}, 3584")
        a(f"v_min_u32 v{vT0}, 55, v{vLane}")
        a(f"v_lshlrev_b32 v{vT0}, 6, v{vT0}")
        a("s_waitcnt lgkmcnt(0)")
        srd(a, S_W1, 12, 512 * 1792 * 2)
        if os.environ.get("PFSL"): a(f"s_sleep {os.environ['PFSL']}")
        a(f"buffer_load_dword v12, v{vT0}, {sr(S_W1,4)}, s{sT0} offen")
        a("s_branch A_START")
    if "N" in X: a("s_branch A_START")
    a.label("G_START")
    gen_G(a)
    a("s_endpgm")
    gen_A(a)
    a.label("K_END")
    a("s_endpgm")
    return name

def srds_rest(a):
    srd(a, S_WS, 24, WS_SIZE)
    srd(a, S_B1, 14, 1792 * 2)
    srd(a, S_W2, 16, 1792 * 512 * 2)
    srd(a, S_WO, 8, 512 * 512 * 2)
    srd(a, S_OUT, 20, 2048 * 512 * 2)
    srd(a, S_DBG, 22, 256)


def gen_A(a):
    a.label("A_START")
    vXrd, vW0, vW1, vT2 = 5, 9, 10, 11
    FA, FB = 16, 28
    ACC = 64
    BIAS = 96
    PK = 128
    TMP = 16
    sN, sD = 26, 27
    a(f"s_lshl_b32 s{sT0}, s{sTG}, 12")
    a(f"v_and_b32 v{vT0}, 31, v{vLane}")
    a(f"v_lshrrev_b32 v{vT1}, 5, v{vLane}")
    a(f"v_bfe_u32 v{vT2}, v{vLane}, 1, 3")
    a(f"v_xor_b32 v{vT2}, v{vT2}, v{vT1}")
    a(f"v_lshlrev_b32 v{vT0}, 7, v{vT0}")
    a(f"v_add_u32 v{vT0}, s{sT0}, v{vT0}")
    for ks in range(4):
        a(f"v_xor_b32 v{vXrd+ks}, {2*ks}, v{vT2}")
        a(f"v_lshl_add_u32 v{vXrd+ks}, v{vXrd+ks}, 4, v{vT0}")
    a(f"v_bfe_u32 v{vT0}, v{vLane}, 2, 2")
    a(f"v_lshl_add_u32 v{vT0}, v{vT1}, 3, v{vT0}")
    a(f"v_lshlrev_b32 v{vW0}, 6, v{vT0}")
    a(f"v_bfe_u32 v{vT0}, v{vLane}, 4, 1")
    a(f"v_lshl_add_u32 v{vW0}, v{vT0}, 5, v{vW0}")
    a(f"v_and_b32 v{vT0}, 3, v{vLane}")
    a(f"v_lshl_add_u32 v{vW0}, v{vT0}, 3, v{vW0}")
    a(f"s_lshr_b32 s{sT0}, s{sW}, 2")
    a(f"s_lshl_b32 s{sT0}, s{sT0}, 13")
    a(f"s_add_u32 s{sT0}, s{sT0}, 16384")
    a(f"v_add_u32 v{vW0}, s{sT0}, v{vW0}")
    a(f"v_lshlrev_b32 v{vW1}, 4, v{vT1}")
    a(f"v_add_u32 v{vW1}, {L_GW}, v{vW1}")
    a(f"v_lshlrev_b32 v{vT2}, 3, v{vT1}")
    a(f"s_lshr_b32 s{sT0}, s{sW}, 2")
    a(f"s_lshl_b32 s{sT0}, s{sT0}, 7")
    a(f"s_add_u32 s{sT0}, s{sT0}, {L_B1}")
    a(f"v_add_u32 v{vT2}, s{sT0}, v{vT2}")
    for i in range(32):
        a(f"v_mov_b32 v{ACC+i}, 0")
    a(f"s_mov_b32 s{sN}, 0")
    a("s_waitcnt lgkmcnt(0)")
    srds_rest(a)
    estamp(a, 3)
    a("s_barrier")
    stamp(a, 2)
    estamp(a, 6)

    def reads(ks, F, par, gate=False, only1=False):
        if "R" in X: return
        if not only1:
            a(f"ds_read_b128 {vr(F,4)}, v{vXrd+ks} offset:{par*32768}")
        for t in range(2):
            if only1 and t == 0: continue
            if gate and t == 1:
                a(f"ds_read_b128 {vr(F+8,4)}, v{vW1} offset:{(par*4+ks)*32}")
                continue
            a(f"ds_read_b64_tr_b16 {vr(F+4+4*t,2)}, v{vW0} offset:{par*32768+t*4096+ks*1024}")
            a(f"ds_read_b64_tr_b16 {vr(F+4+4*t+2,2)}, v{vW0} offset:{par*32768+t*4096+ks*1024+256}")

    def mfmas(F, swap0):
        if "M" in X: return
        for t in range(2):
            acc = ACC + 16 * t
            if swap0 and t == 0:
                a(f"v_mfma_f32_32x32x16_bf16 {vr(acc,16)}, {vr(F,4)}, {vr(F+4+4*t,4)}, {vr(acc,16)}")
            else:
                a(f"v_mfma_f32_32x32x16_bf16 {vr(acc,16)}, {vr(F+4+4*t,4)}, {vr(F,4)}, {vr(acc,16)}")

    FS = [16 + 12 * i for i in range(4)]
    def loop(lab, swap0):
        nr = 4 if swap0 else 5
        a.raw(".p2align 3")
        a.label(lab)
        for par in range(2):
            for j in range(4):
                a(f"s_waitcnt lgkmcnt({2*nr})")
                if j == 1:
                    if par == 1:
                        for k in range(4):
                            a(f"v_xor_b32 v{vXrd+k}, s{sT3}, v{vXrd+k}")
                        a(f"v_xor_b32 v{vW0}, s{sT3}, v{vW0}")
                        if swap0:
                            a(f"v_add_u32 v{vW1}, s{sD}, v{vW1}")
                        else:
                            L = a.uniq("A_NOVM")
                            a(f"s_cmp_eq_u32 s{sN}, 12")
                            a(f"s_cbranch_scc0 {L}")
                            a("s_waitcnt vmcnt(0)")
                            a.label(L)
                    a("s_barrier")
                elif j == 0 and par == 0:
                    a(f"s_add_u32 s{sN}, s{sN}, 2")
                elif j == 3 and par == 1:
                    a(f"s_and_b32 s{sT0}, s{sN}, 7")
                else:
                    a("s_nop 0")
                jj = j + 3
                reads(jj & 3, FS[jj & 3], par if jj < 4 else 1 - par, swap0)
                mfmas(FS[j], swap0)
        a(f"s_cbranch_scc1 {lab}")

    istamp(a, 4)
    a(f"s_mov_b32 s{sT3}, 65536")
    a(f"s_movk_i32 s{sD}, 256")
    a(f"s_cmp_ge_u32 s{sW}, 4")
    a("s_cbranch_scc1 A_L2P")
    for ks in range(3):
        reads(ks, FS[ks], 0)
    loop("A_L1", False)
    a(f"s_cmp_eq_u32 s{sN}, 16")
    a("s_cbranch_scc1 A_MISH")
    stamp(a, 3)
    a("s_waitcnt lgkmcnt(7)")
    for g in range(8):
        a(f"ds_read_b64 {vr(BIAS + 2 * g, 2)}, v{vT2} offset:{g*16}")
    a(f"v_and_b32 v{vT0}, 0x33, v{vLane}")
    a(f"v_bfe_u32 v{vT1}, v{vLane}, 2, 1")
    a(f"v_lshl_add_u32 v{vT0}, v{vT1}, 3, v{vT0}")
    a(f"v_bfe_u32 v{vT1}, v{vLane}, 3, 1")
    a(f"v_lshl_add_u32 v{vT0}, v{vT1}, 2, v{vT0}")
    a(f"v_lshlrev_b32 v{vT0}, 4, v{vT0}")
    a(f"s_lshl_b32 s4, s{sCG}, 17")
    a(f"s_lshl_b32 s5, s{sTT}, 10")
    a(f"s_add_u32 s4, s4, s5")
    a(f"s_lshl_b32 s6, s4, 1")
    a(f"s_add_u32 s4, s4, {WS_QF:#x}")
    a(f"s_add_u32 s5, s4, 65536")
    a(f"s_add_u32 s6, s6, {WS_KV:#x}")
    a(f"s_add_u32 s7, s6, 131072")
    a(f"s_mov_b32 s8, {f32(0.25 * LOG2E)}")
    a(f"s_mov_b32 s9, {f32(0.25 * LOG2E)}")
    for i in range(8):
        a(f"v_pk_mul_f32 {vr(ACC+2*i,2)}, {vr(ACC+2*i,2)}, s[8:9]")
    for i in range(16):
        a(f"v_cvt_pk_bf16_f32 v{PK + i}, v{ACC + 2 * i}, v{ACC + 2 * i + 1}")
    istamp(a, 5)
    a(f"buffer_store_dwordx4 {vr(PK+8,4)}, v{vT0}, {sr(S_WS,4)}, s6 offen sc1")
    a(f"buffer_store_dwordx4 {vr(PK+12,4)}, v{vT0}, {sr(S_WS,4)}, s7 offen sc1")
    a(f"buffer_store_dwordx4 {vr(PK,4)}, v{vL16}, {sr(S_WS,4)}, s4 offen sc1")
    a(f"buffer_store_dwordx4 {vr(PK+4,4)}, v{vL16}, {sr(S_WS,4)}, s5 offen sc1")
    a.label("A_BIAS")
    a("s_waitcnt lgkmcnt(0)")
    istamp(a, 6)
    for g in range(8):
        b = ACC + 4 * g
        a(f"v_lshlrev_b32 v{b}, 16, v{BIAS+2*g}")
        a(f"v_and_b32 v{b+1}, 0xffff0000, v{BIAS+2*g}")
        a(f"v_lshlrev_b32 v{b+2}, 16, v{BIAS+2*g+1}")
        a(f"v_and_b32 v{b+3}, 0xffff0000, v{BIAS+2*g+1}")
    istamp(a, 7)
    a("s_branch A_L1")
    a.label("A_L2P")
    for ks in range(3):
        reads(ks, FS[ks], 0, True)
    loop("A_L2", True)
    a("s_waitcnt lgkmcnt(0)")
    for ks in range(3):
        reads(ks, FS[ks], 0, False, True)
    stamp(a, 3)
    a("s_waitcnt lgkmcnt(7)")
    for g in range(8):
        a(f"ds_read_b64 {vr(BIAS + 2 * g, 2)}, v{vT2} offset:{g*16}")
    a(f"v_and_b32 v{vT0}, 0x2f, v{vLane}")
    a(f"v_lshlrev_b32 v{vT0}, 4, v{vT0}")
    a(f"v_bfe_u32 v{vT1}, v{vLane}, 4, 1")
    a(f"v_lshl_add_u32 v{vT0}, v{vT1}, 17, v{vT0}")
    a(f"s_lshl_b32 s4, s{sCG}, 18")
    a(f"s_lshl_b32 s5, s{sTT}, 11")
    a(f"s_add_u32 s4, s4, s5")
    a(f"s_add_u32 s4, s4, {WS_KV:#x}")
    a(f"s_lshl_b32 s5, s{sTT}, 7")
    a(f"s_add_u32 s5, s5, {WS_G:#x}")
    a(f"v_lshlrev_b32 v{vT1}, 2, v{vLane}")
    for i in range(8):
        a(f"v_cvt_pk_bf16_f32 v{PK + i}, v{ACC + 2 * i}, v{ACC + 2 * i + 1}")
    a(f"v_mul_f32 v{PK+8}, {f32(-LOG2E)}, v{ACC+16}")
    a(f"v_exp_f32 v{PK+8}, v{PK+8}")
    a(f"buffer_store_dwordx4 {vr(PK,4)}, v{vT0}, {sr(S_WS,4)}, s4 offen offset:1024 sc1")
    a(f"v_add_f32 v{PK+8}, 1.0, v{PK+8}")
    a(f"v_rcp_f32 v{PK+8}, v{PK+8}")
    a(f"buffer_store_dwordx4 {vr(PK+4,4)}, v{vT0}, {sr(S_WS,4)}, s4 offen offset:1280 sc1")
    a("s_mov_b32 exec_hi, 0")
    a(f"buffer_store_dword v{PK+8}, v{vT1}, {sr(S_WS,4)}, s5 offen sc1")
    a("s_mov_b64 exec, -1")
    a("s_waitcnt lgkmcnt(0)")
    a("s_branch A_BIAS")
    a.label("A_MISH")
    stamp(a, 4)
    a(f"s_mul_i32 s13, s{sTT}, 112")
    a(f"s_lshl_b32 s{sT1}, s{sFT0}, 1")
    a(f"s_add_u32 s13, s13, s{sT1}")
    a(f"s_lshr_b32 s{sT1}, s{sW}, 2")
    a(f"s_lshl_b32 s{sT1}, s{sT1}, 2")
    a(f"s_add_u32 s13, s13, s{sT1}")
    a(f"s_lshl_b32 s13, s13, 10")
    a(f"s_add_u32 s13, s13, {WS_ACT:#x}")
    for i, c in enumerate((LOG2E, 2.0, -2.0, 1.0)):
        a(f"v_mov_b32 v{144+2*i}, {f32(c)}")
        a(f"v_mov_b32 v{145+2*i}, {f32(c)}")
    a("s_waitcnt lgkmcnt(0)")
    mish16(a, ACC, TMP, 128, 144)
    a(f"buffer_store_dwordx4 {vr(128,4)}, v{vL16}, {sr(S_WS,4)}, s13 offen sc1")
    a(f"buffer_store_dwordx4 {vr(132,4)}, v{vL16}, {sr(S_WS,4)}, s13 offen offset:1024 sc1")
    mish16(a, ACC + 16, TMP, 136, 144)
    a(f"buffer_store_dwordx4 {vr(136,4)}, v{vL16}, {sr(S_WS,4)}, s13 offen offset:2048 sc1")
    a(f"buffer_store_dwordx4 {vr(140,4)}, v{vL16}, {sr(S_WS,4)}, s13 offen offset:3072 sc1")

    a.label("A_PH2")
    sHead, sQT, sI, sB1, sB2, sPass = 4, 5, 6, 7, 8, 9
    sMask = 10
    vAddr, vIdx, vG = 5, 6, 7
    Q = 8
    KB = [12, 16]
    VB = [20, 28]
    S = [36, 52]
    C = 68
    O = 84
    vFl = 100
    a(f"s_and_b32 s{sT0}, s2, 7")
    a(f"s_lshl_b32 s{sHead}, s{sT0}, 2")
    a(f"s_bfe_u32 s{sT0}, s2, 0x20003")
    a(f"s_add_u32 s{sHead}, s{sHead}, s{sT0}")
    a(f"s_lshr_b32 s{sQT}, s2, 5")
    a(f"s_lshl_b32 s{sQT}, s{sQT}, 3")
    a(f"s_add_u32 s{sQT}, s{sQT}, s{sW}")
    a(f"v_mov_b32 v{vIdx}, 0xdddddddd")
    a(f"s_mov_b32 s{sMask}, 0x0000ffff")
    a(f"s_mov_b32 s{sMask+1}, 0x0000ffff")
    a(f"v_and_b32 v{vT0}, 27, v{vLane}")
    a(f"v_cmp_eq_u32 vcc, 16, v{vT0}")
    a(f"v_mov_b32 v{vT1}, 0x3f803f80")
    a("s_nop 0")
    a(f"v_cndmask_b32 v{vT0}, 0, v{vT1}, vcc")
    for b in VB:
        for i in range(8):
            a(f"v_mov_b32 v{b+i}, v{vT0}")
    a(f"v_mov_b32 v{vAddr}, v{vL16}")
    a(f"s_mov_b32 s{sB1}, 1")
    a(f"s_mov_b32 s{sB2}, 3")
    a(f"s_mov_b32 s{sPass}, 0")
    a(f"s_lshl_b32 s{sT0}, s{sW}, 10")
    a(f"s_add_u32 s{sT0}, s{sT0}, {L_Q}")
    a(f"v_add_u32 v{vT1}, s{sT0}, v{vL16}")
    for i in range(16):
        a(f"v_mov_b32 v{O+i}, 0")
    a(f"s_lshl_b32 s12, s{sQT}, 15")
    a(f"s_lshl_b32 s{sT1}, s{sHead}, 10")
    a(f"s_add_u32 s12, s12, s{sT1}")
    a(f"s_add_u32 s12, s12, {WS_OF:#x}")
    for i in range(4):
        a(f"v_mov_b32 v{104+i}, -1")
    a(f"buffer_store_dwordx4 {vr(104,4)}, v{vL16}, {sr(S_WS,4)}, s12 offen sc1")
    a("s_setprio 2")
    stamp(a, 5)
    a("s_barrier")
    stamp(a, 6)
    a(f"ds_read_b128 {vr(Q,4)}, v{vT1}")
    a(f"ds_read_b128 {vr(KB[0],4)}, v{vAddr} offset:0")
    a("s_waitcnt lgkmcnt(0)")
    a(f"v_mfma_f32_32x32x16_bf16 {vr(S[0],16)}, {vr(KB[0],4)}, {vr(Q,4)}, 0")
    a("s_nop 7")
    a("s_nop 7")
    s0 = S[0]
    a(f"v_max3_f32 v{vT0}, v{s0}, v{s0+1}, v{s0+2}")
    for i in range(3, 15, 2):
        a(f"v_max3_f32 v{vT0}, v{vT0}, v{s0+i}, v{s0+i+1}")
    a(f"v_max_f32 v{vT0}, v{vT0}, v{s0+15}")
    a.label("A_SETMAX")
    a(f"v_mov_b32 v{vT1}, v{vT0}")
    a("s_nop 1")
    a(f"v_permlane32_swap_b32 v{vT0}, v{vT1}")
    a("s_nop 1")
    a(f"v_max_f32 v{vT0}, v{vT0}, v{vT1}")
    for i in range(16):
        a(f"v_sub_f32 v{C+i}, 0, v{vT0}")
    a(f"ds_read_b128 {vr(KB[0],4)}, v{vAddr} offset:0")
    a(f"ds_read_b128 {vr(KB[1],4)}, v{vAddr} offset:2048")
    a(f"s_mov_b64 exec, {sr(sMask,2)}")
    a(f"ds_read_b128 {vr(VB[0],4)}, v{vAddr} offset:1024")
    a(f"ds_read_b128 {vr(VB[0]+4,4)}, v{vAddr} offset:1280")
    a("s_mov_b64 exec, -1")
    a("s_waitcnt lgkmcnt(0)")
    a(f"v_mfma_f32_32x32x16_bf16 {vr(S[0],16)}, {vr(KB[0],4)}, {vr(Q,4)}, {vr(C,16)}")
    a(f"s_mov_b32 s{sI}, 0")
    for i in range(8, 16):
        a(f"v_mov_b32 v{S[1]+i}, 0")
    a("s_nop 7")
    a.raw(".p2align 6")
    a.label("A_LOOP")
    for u in range(4):
        p = u & 1
        cur, nxt = S[p], S[1 - p]
        def E(lo, hi):
            for i in range(lo, hi):
                a(f"v_exp_f32 v{cur+i}, v{cur+i}")
        E(0, 2)
        a(f"v_smfmac_f32_32x32x32_bf16 {vr(O,16)}, {vr(VB[1-p]+4,4)}, {vr(nxt+8,8)}, v{vIdx}")
        E(2, 7)
        a("s_waitcnt lgkmcnt(0)")
        a(f"v_mfma_f32_32x32x16_bf16 {vr(nxt,16)}, {vr(KB[1-p],4)}, {vr(Q,4)}, {vr(C,16)}")
        a(f"ds_read_b128 {vr(KB[p],4)}, v{vAddr} offset:{(u+2)*2048}")
        E(7, 8)
        a(f"s_mov_b64 exec, {sr(sMask,2)}")
        a(f"ds_read_b128 {vr(VB[1-p],4)}, v{vAddr} offset:{(u+1)*2048+1024}")
        a(f"ds_read_b128 {vr(VB[1-p]+4,4)}, v{vAddr} offset:{(u+1)*2048+1280}")
        a("s_mov_b64 exec, -1")
        E(8, 13)
        a(f"v_smfmac_f32_32x32x32_bf16 {vr(O,16)}, {vr(VB[p],4)}, {vr(cur,8)}, v{vIdx}")
        if u == 3:
            a(f"v_add_u32 v{vAddr}, 8192, v{vAddr}")
            E(13, 16)
            a(f"s_add_u32 s{sI}, s{sI}, 1")
            a(f"s_cmp_lt_u32 s{sI}, s{sB1}")
        else:
            a(f"v_exp_f32_e64 v{cur+13}, v{cur+13}")
            E(14, 16)
    a("s_cbranch_scc1 A_LOOP")
    a(f"s_cmp_eq_u32 s{sI}, 1")
    a("s_cbranch_scc0 A_SEG2")
    a(f"s_mov_b32 s{sB1}, 3")
    if EARLYF: a("s_waitcnt vmcnt(0)")
    a("s_barrier")
    a("s_branch A_LOOP")
    a.label("A_SEG2")
    a(f"s_cmp_eq_u32 s{sI}, 3")
    a("s_cbranch_scc0 A_SEG3")
    a(f"s_mov_b32 s{sB1}, {PR1}")
    a("s_waitcnt vmcnt(0)")
    a("s_barrier")
    a("s_branch A_LOOP")
    a.label("A_SEG3")
    a(f"s_cmp_eq_u32 s{sI}, {PR1}")
    a("s_cbranch_scc0 A_SEG4")
    a(f"s_mov_b32 s{sB1}, {PR2}")
    a("s_setprio 1")
    a(f"v_and_b32 v{vT0}, 31, v{vLane}")
    a(f"v_lshlrev_b32 v{vT0}, 2, v{vT0}")
    a(f"s_lshl_b32 s{sT0}, s{sQT}, 7")
    a(f"s_add_u32 s{sT0}, s{sT0}, {WS_G:#x}")
    a(f"buffer_load_dword v{vG}, v{vT0}, {sr(S_WS,4)}, s{sT0} offen sc1")
    a("s_branch A_LOOP")
    a.label("A_SEG4")
    a(f"s_cmp_eq_u32 s{sI}, {PR2}")
    a("s_cbranch_scc0 A_SEG5")
    a(f"s_mov_b32 s{sB1}, 16")
    a("s_setprio 0")
    a("s_branch A_LOOP")
    a.label("A_SEG5")
    a(f"v_smfmac_f32_32x32x32_bf16 {vr(O,16)}, {vr(VB[1]+4,4)}, {vr(S[1]+8,8)}, v{vIdx}")
    a("s_waitcnt lgkmcnt(0)")
    a("s_nop 7")
    a("s_nop 7")
    a(f"s_cmp_lg_u32 s{sPass}, 0")
    a("s_cbranch_scc1 A_FIN")
    a(f"v_max3_f32 v{vT0}, |v{O}|, |v{O+1}|, |v{O+2}|")
    a(f"v_max3_f32 v{vT0}, v{vT0}, |v{O+3}|, |v{O+4}|")
    a(f"v_max3_f32 v{vT0}, v{vT0}, |v{O+5}|, |v{O+6}|")
    a(f"v_max_f32 v{vT0}, v{vT0}, |v{O+7}|")
    a(f"v_mov_b32 v{vT1}, 0x7f800000")
    a(f"v_cmp_nlt_f32 vcc, v{vT0}, v{vT1}")
    a(f"v_mov_b32 v{vT1}, {f32(2.0**30)}")
    a(f"v_cmp_nlt_f32 {sr(sT2,2)}, v{O+8}, v{vT1}")
    a("s_nop 1")
    a(f"s_or_b64 vcc, vcc, {sr(sT2,2)}")
    a("s_cbranch_scc0 A_FIN")
    a(f"s_mov_b32 s{sPass}, 1")
    a(f"s_mov_b32 s{sB1}, 16")
    a(f"v_mov_b32 v{vAddr}, v{vL16}")
    a(f"v_mov_b32 v{vT0}, 0xff800000")
    a(f"s_mov_b32 s{sI}, 0")
    a.label("A_MAXLOOP")
    a(f"ds_read_b128 {vr(KB[0],4)}, v{vAddr} offset:0")
    a("s_waitcnt lgkmcnt(0)")
    a(f"v_mfma_f32_32x32x16_bf16 {vr(S[0],16)}, {vr(KB[0],4)}, {vr(Q,4)}, 0")
    a(f"v_add_u32 v{vAddr}, 2048, v{vAddr}")
    a("s_nop 7")
    a("s_nop 7")
    for i in range(0, 16, 2):
        a(f"v_max3_f32 v{vT0}, v{vT0}, v{s0+i}, v{s0+i+1}")
    a(f"s_add_u32 s{sI}, s{sI}, 1")
    a(f"s_cmp_lt_u32 s{sI}, 64")
    a("s_cbranch_scc1 A_MAXLOOP")
    a(f"v_mov_b32 v{vAddr}, v{vL16}")
    for i in range(16):
        a(f"v_mov_b32 v{O+i}, 0")
    a("s_branch A_SETMAX")
    a.label("A_FIN")
    stamp(a, 7)
    a(f"v_rcp_f32 v{vT0}, v{O+8}")
    a("s_waitcnt vmcnt(0)")
    a(f"v_mul_f32 v{vT0}, v{vT0}, v{vG}")
    for i in range(8):
        a(f"v_mul_f32 v{O+i}, v{O+i}, v{vT0}")
    for i in range(4):
        a(f"v_cvt_pk_bf16_f32 v{O+i}, v{O+2*i}, v{O+2*i+1}")
    for i in range(4):
        a(f"v_min_u32 v{O+i}, -2, v{O+i}")
    a(f"buffer_store_dwordx4 {vr(O,4)}, v{vL16}, {sr(S_WS,4)}, s12 offen sc1")
    stamp(a, 9); stamp(a, 8, True)
    stamp_flush(a)
    a("s_endpgm")


def gen_G(a):
    sXoff, sLX, sWQ0, sW10, sGO = 26, 27, 80, 81, 3
    sGW = sTG
    vDX0, vDX1, vDWq, vDW1, vT2 = 5, 6, 7, 8, 9
    vWe, vWo, vW2w, vGo = 10, 11, 12, 13
    vEp = 14
    RS = 16
    NSETS = int(os.environ.get("NSETS", "9"))
    PER = int(os.environ.get("PER", "1"))
    a("s_setprio 3")
    a(f"s_lshl_b32 s{sXoff}, s{sTT}, 15")
    a(f"s_lshl_b32 s{sLX}, s{sTG}, 12")
    a(f"s_mul_i32 s{sWQ0}, s{sTG}, {16*3072}")
    a(f"s_lshl_b32 s{sT0}, s{sCG}, 6")
    a(f"s_add_u32 s{sWQ0}, s{sWQ0}, s{sT0}")
    a(f"v_lshrrev_b32 v{vT0}, 3, v{vLane}")
    a(f"v_lshrrev_b32 v{vT1}, 4, v{vLane}")
    a(f"v_and_b32 v{vT2}, 7, v{vLane}")
    a(f"v_xor_b32 v{vT2}, v{vT2}, v{vT1}")
    a(f"v_lshlrev_b32 v{vDX0}, 10, v{vT0}")
    a(f"v_lshl_add_u32 v{vDX0}, v{vT2}, 4, v{vDX0}")
    a(f"v_xor_b32 v{vDX1}, 64, v{vDX0}")
    a(f"v_add_u32 v{vDX1}, 8192, v{vDX1}")
    a(f"v_lshrrev_b32 v{vT0}, 2, v{vLane}")
    a(f"v_and_b32 v{vT2}, 3, v{vLane}")
    a(f"v_lshlrev_b32 v{vT2}, 4, v{vT2}")
    a(f"v_mul_u32_u24 v{vDWq}, 3072, v{vT0}")
    a(f"v_add_u32 v{vDWq}, v{vDWq}, v{vT2}")
    a(f"v_mul_u32_u24 v{vDW1}, 3584, v{vT0}")
    a(f"v_add_u32 v{vDW1}, v{vDW1}, v{vT2}")
    sLW = sGO
    a(f"s_lshl_b32 s{sLW}, s{sTG}, 10")
    a("s_waitcnt lgkmcnt(0)")
    estamp(a, 2)
    srd(a, S_X, 4, 2048 * 512 * 2)
    srd(a, S_WQ, 6, 512 * 1536 * 2)
    srd(a, S_GW, 18, 1024)

    q = []
    def vm(tag):
        q.append(tag)
    def wait_tag(tag, extra=""):
        last = max(i for i, t in enumerate(q) if t == tag)
        n = len(q) - 1 - last
        assert n < 64
        a(f"s_waitcnt vmcnt({n}){extra}")

    def dma(lds_s, lds_imm, voff, srdn, s_base, imm, extra=""):
        a(f"s_add_u32 m0, s{lds_s}, {lds_imm}")
        a(f"s_add_u32 s{sT0}, s{s_base}, {imm}")
        a(f"buffer_load_dwordx4 v{voff}, {sr(srdn,4)}, s{sT0} offen{extra} lds")

    def issue(n):
        base = (n & 3) * 32768
        st = n & 7
        for j in range(4):
            dma(sLX, base + j * 1024, vDX0 if j % 2 == 0 else vDX1, S_X, sXoff, (j >> 1) * 16384 + st * 128); vm(n)
        if n < 8:
            for t in range(3):
                dma(sLW, base + 16384 + t * 4096, vDWq, S_WQ, sWQ0, st * 64 * 3072 + t * 1024); vm(n)
        else:
            for t in range(4):
                dma(sLW, base + 16384 + t * 4096, vDW1, S_W1, sW10, st * 64 * 3584 + t * 64); vm(n)

    estamp(a, 3)
    a(f"s_mov_b32 m0, {L_GW}")
    a("s_nop 0")
    a(f"buffer_load_dwordx4 v{vL16}, {sr(S_GW,4)}, 0 offen lds"); vm(0)
    issue(0)
    estamp(a, 4)
    issue(1)
    srd(a, S_W1, 12, 512 * 1792 * 2)
    srds_rest(a)
    a(f"s_mul_i32 s{sW10}, s{sTG}, {16*3584}")
    a(f"s_lshl_b32 s{sT0}, s{sFT0}, 6")
    a(f"s_add_u32 s{sW10}, s{sW10}, s{sT0}")
    a(f"s_mov_b32 m0, {L_B1}")
    a(f"s_lshl_b32 s{sT0}, s{sFT0}, 6")
    a(f"buffer_load_dwordx4 v{vL16}, {sr(S_B1,4)}, s{sT0} offen lds"); vm(1)
    a(f"s_lshl_b32 s{sT0}, s2, 4")
    a(f"s_add_u32 s{sT0}, s{sT0}, s{sW}")
    a(f"s_cmp_eq_u32 s{sT0}, 8")
    a("s_cbranch_scc0 G_NOEP")
    a(f"s_memrealtime {sr(sEP,2)}")
    a("s_waitcnt lgkmcnt(0)")
    a(f"s_or_b32 s{sEP}, s{sEP}, 1")
    a(f"v_mov_b32 v{vEp}, s{sEP}")
    a(f"v_mov_b32 v{vEp+1}, s{sEP+1}")
    a("s_mov_b64 exec, 1")
    a(f"buffer_store_dwordx2 {vr(vEp,2)}, off, {sr(S_DBG,4)}, 0 sc1")
    a("s_mov_b64 exec, -1")
    a.label("G_NOEP")
    estamp(a, 5)
    wait_tag(0)
    estamp(a, 6)
    a("s_barrier")
    stamp(a, 2)
    estamp(a, 7)
    ORD = int(os.environ.get("ORD", "0"))
    if ORD <= 1: issue(2)
    for n in range(16):
        if n == 0 and ORD == 0:
            issue(3)
        if n == int(os.environ.get("PFW1", "99")) and "N" not in X:
            a(f"s_lshr_b32 s{sT0}, s2, 3")
            a(f"s_lshl_b32 s{sT0}, s{sT0}, 4")
            a(f"s_lshl_b32 s{sT1}, s{sGW}, 2")
            a(f"s_add_u32 s{sT0}, s{sT0}, s{sT1}")
            a(f"s_mul_i32 s{sT0}, s{sT0}, 3584")
            a(f"s_bfe_u32 s{sT1}, s2, 0x20001")
            a(f"s_lshl_b32 s{sT1}, s{sT1}, 10")
            a(f"s_add_u32 s{sT0}, s{sT0}, s{sT1}")
            a(f"v_mul_u32_u24 v16, 3584, v{vT1}")
            a(f"v_and_b32 v17, 15, v{vLane}")
            a(f"v_lshl_add_u32 v16, v17, 6, v16")
            a(f"buffer_load_dword v17, v16, {sr(S_W1,4)}, s{sT0} offen"); vm("pf")
        if n == int(os.environ.get("PFW2", "99")):
            a(f"v_lshlrev_b32 v16, 6, v{vLane}")
            a(f"s_cmp_ge_u32 s{sGW}, 2")
            a("s_cbranch_scc1 G_PFO")
            a(f"s_mul_i32 s{sT0}, s2, 7168")
            a(f"s_mul_i32 s{sT1}, s{sGW}, 3584")
            a(f"s_add_u32 s{sT0}, s{sT0}, s{sT1}")
            a(f"v_min_u32 v16, {55*64}, v16")
            a(f"buffer_load_dword v17, v16, {sr(S_W2,4)}, s{sT0} offen")
            a("s_branch G_PFD")
            a.label("G_PFO")
            a(f"s_lshl_b32 s{sT0}, s2, 11")
            a(f"v_min_u32 v16, {31*64}, v16")
            a(f"buffer_load_dword v17, v16, {sr(S_WO,4)}, s{sT0} offen")
            a.label("G_PFD")
            vm("pf2")
        if n == 4:
            a(f"buffer_load_dwordx2 {vr(vEp,2)}, off, {sr(S_DBG,4)}, 0 sc1"); vm("ep")
        if n == 10:
            wait_tag("ep")
            a(f"s_mov_b32 s{sT1}, 0")
            a.label("G_EPL")
            a(f"v_readfirstlane_b32 s{sEP}, v{vEp}")
            a(f"v_readfirstlane_b32 s{sEP+1}, v{vEp+1}")
            a(f"s_cmp_lg_u32 s{sEP}, 0")
            a("s_cbranch_scc1 G_EPD")
            a("s_sleep 4")
            a(f"buffer_load_dwordx2 {vr(vEp,2)}, off, {sr(S_DBG,4)}, 0 sc1")
            a("s_waitcnt vmcnt(0)")
            a(f"s_add_u32 s{sT1}, s{sT1}, 1")
            a(f"s_cmp_lt_u32 s{sT1}, {SPIN_MAX}")
            a("s_cbranch_scc1 G_EPL")
            a.label("G_EPD")
        if n + 1 <= 15:
            wait_tag(n + 1)
        a("s_barrier")
        if n == 0 and ORD == 2: issue(2)
        if (1 <= n or ORD >= 1) and n + 3 <= 15:
            issue(n + 3)
        if "P" in X and STAMPS:
            P0 = int(os.environ.get("P0", "8"))
            if P0 <= n + 1 < P0 + 6:
                i = n + 1 - P0 + 2
                a(f"s_memtime s[{82+2*i}:{83+2*i}]")
                a("s_waitcnt lgkmcnt(0)")
        if n + 1 == 12:
            a(f"s_cmp_eq_u32 s{sGW}, 0")
            a("s_cbranch_scc0 G_NOF1")
            a(f"s_lshl_b32 s{sT0}, s{sCG}, 7")
            a(f"s_lshl_b32 s{sT1}, s{sRB}, 3")
            a(f"s_add_u32 s{sT0}, s{sT0}, s{sT1}")
            a(f"s_add_u32 s{sT0}, s{sT0}, {WS_FKV:#x}")
            a("s_mov_b64 exec, 1")
            a(f"buffer_store_dwordx2 {vr(vEp,2)}, off, {sr(S_WS,4)}, s{sT0} sc1")
            a("s_mov_b64 exec, -1")
            a.label("G_NOF1")
    sHead, sKV, sLK, sFK, sFG, sQ = 4, 5, 6, 7, 8, 9
    sA0, sA1, sW2, sOT, sON, sI, sRing, sTT64, sNB = 10, 11, 12, 13, 14, 15, 16, 17, 18
    vL8, vF16 = 5, 6
    FL = 124
    a(f"s_and_b32 s{sT0}, s2, 7")
    a(f"s_lshl_b32 s{sHead}, s{sT0}, 2")
    a(f"s_bfe_u32 s{sT0}, s2, 0x20003")
    a(f"s_add_u32 s{sHead}, s{sHead}, s{sT0}")
    a(f"s_lshl_b32 s{sLK}, s{sGW}, 10")
    a(f"s_lshl_b32 s{sKV}, s{sHead}, 17")
    a(f"s_add_u32 s{sKV}, s{sKV}, {WS_KV:#x}")
    a(f"s_add_u32 s{sKV}, s{sKV}, s{sLK}")
    a(f"s_lshr_b32 s{sT0}, s{sHead}, 1")
    a(f"s_lshl_b32 s{sFK}, s{sT0}, 7")
    a(f"s_add_u32 s{sFK}, s{sFK}, {WS_FKV:#x}")
    a(f"s_lshr_b32 s{sT1}, s2, 5")
    a(f"s_lshl_b32 s{sQ}, s{sHead}, 16")
    a(f"s_lshl_b32 s{sT0}, s{sT1}, 13")
    a(f"s_add_u32 s{sQ}, s{sQ}, s{sT0}")
    a(f"s_add_u32 s{sQ}, s{sQ}, s{sLK}")
    a(f"s_add_u32 s{sQ}, s{sQ}, {WS_QF:#x}")
    a(f"v_lshlrev_b32 v{vL8}, 3, v{vLane}")
    a(f"v_and_b32 v{vF16}, 0x78, v{vL8}")
    stamp(a, 3)
    poll(a, [(1, FL, vF16, sFK)], sT1)
    stamp(a, 4)
    def kvdma(i):
        dma(sLK, i * 4096, vL16, S_WS, sKV, i * 4096, " sc1")
    dma(sLK, L_Q, vL16, S_WS, sQ, 0, " sc1")
    dma(sLK, L_Q + 4096, vL16, S_WS, sQ, 4096, " sc1")
    def pubflags():
        a(f"s_cmp_eq_u32 s{sGW}, 0")
        a("s_cbranch_scc0 G_NOF2")
        a(f"s_lshl_b32 s{sT0}, s{sRB}, 7")
        a(f"s_lshl_b32 s{sT1}, s{sCG}, 3")
        a(f"s_add_u32 s{sT0}, s{sT0}, s{sT1}")
        a(f"s_add_u32 s{sT0}, s{sT0}, {WS_FACT:#x}")
        a(f"s_lshr_b32 s{sT1}, s2, 5")
        a(f"s_lshl_b32 s{sT1}, s{sT1}, 8")
        a(f"s_lshl_b32 s{sT2}, s{sHead}, 3")
        a(f"s_add_u32 s{sT1}, s{sT1}, s{sT2}")
        a(f"s_add_u32 s{sT1}, s{sT1}, {WS_FO:#x}")
        a("s_mov_b64 exec, 1")
        a(f"buffer_store_dwordx2 {vr(vEp,2)}, off, {sr(S_WS,4)}, s{sT0} sc1")
        a(f"buffer_store_dwordx2 {vr(vEp,2)}, off, {sr(S_WS,4)}, s{sT1} sc1")
        a("s_mov_b64 exec, -1")
        a.label("G_NOF2")
    KV0 = int(os.environ.get("KV0", "8"))
    for i in range(KV0): kvdma(i)
    a(f"s_waitcnt vmcnt({KV0-4})")
    a("s_barrier")
    for i in range(KV0, 20): kvdma(i)
    a("s_waitcnt vmcnt(12)")
    a("s_barrier")
    if EARLYF: pubflags()
    for i in range(20, 32): kvdma(i)
    ACC = 8
    AF = 72
    WF = 104
    vG0, vG1 = 120, 121
    vDW, vTr0, vTr1 = 7, 122, 123
    a(f"s_and_b32 s{sT0}, s2, 7")
    a(f"s_lshr_b32 s{sT1}, s2, 3")
    a(f"s_lshr_b32 s{sTT64}, s{sT0}, 1")
    a(f"s_lshl_b32 s{sTT64}, s{sTT64}, 3")
    a(f"s_and_b32 s{sT3}, s{sT1}, 7")
    a(f"s_add_u32 s{sTT64}, s{sTT64}, s{sT3}")
    a(f"s_and_b32 s{sNB}, s{sT0}, 1")
    a(f"s_lshl_b32 s{sNB}, s{sNB}, 2")
    a(f"s_lshr_b32 s{sT1}, s{sT1}, 3")
    a(f"s_add_u32 s{sNB}, s{sNB}, s{sT1}")
    a(f"s_lshr_b32 s{sT1}, s{sGW}, 1")
    a(f"s_lshl_b32 s{sOT}, s{sTT64}, 1")
    a(f"s_add_u32 s{sOT}, s{sOT}, s{sT1}")
    a(f"s_and_b32 s{sT1}, s{sGW}, 1")
    a(f"s_lshl_b32 s{sON}, s{sNB}, 1")
    a(f"s_add_u32 s{sON}, s{sON}, s{sT1}")
    a(f"s_mul_i32 s{sT3}, s{sGW}, {28*1024}")
    a(f"s_mul_i32 s{sA0}, s{sOT}, {112*1024}")
    a(f"s_add_u32 s{sA0}, s{sA0}, s{sT3}")
    a(f"s_add_u32 s{sA0}, s{sA0}, {WS_ACT:#x}")
    a(f"s_xor_b32 s{sT1}, s{sOT}, 1")
    a(f"s_mul_i32 s{sA1}, s{sT1}, {112*1024}")
    a(f"s_add_u32 s{sA1}, s{sA1}, s{sT3}")
    a(f"s_add_u32 s{sA1}, s{sA1}, {WS_ACT:#x}")
    a(f"s_mul_i32 s{sW2}, s{sGW}, {28*16384}")
    a(f"s_lshl_b32 s{sT1}, s{sNB}, 7")
    a(f"s_add_u32 s{sW2}, s{sW2}, s{sT1}")
    a(f"s_lshl_b32 s{sRing}, s{sGW}, 13")
    a(f"s_add_u32 s{sRing}, s{sRing}, {L_RING}")
    a(f"v_lshrrev_b32 v{vT0}, 3, v{vLane}")
    a(f"v_bfe_u32 v{vT1}, v{vLane}, 4, 1")
    a(f"v_lshlrev_b32 v{vT1}, 2, v{vT1}")
    a(f"v_and_b32 v{vDW}, 7, v{vLane}")
    a(f"v_xor_b32 v{vDW}, v{vDW}, v{vT1}")
    a(f"v_lshlrev_b32 v{vDW}, 4, v{vDW}")
    a(f"v_lshl_add_u32 v{vDW}, v{vT0}, 10, v{vDW}")
    a(f"v_bfe_u32 v{vT0}, v{vLane}, 2, 2")
    a(f"v_lshrrev_b32 v{vT1}, 5, v{vLane}")
    a(f"v_lshl_add_u32 v{vT0}, v{vT1}, 2, v{vT0}")
    a(f"v_lshlrev_b32 v{vTr0}, 7, v{vT0}")
    a(f"v_bfe_u32 v{vT0}, v{vLane}, 3, 1")
    a(f"v_lshl_add_u32 v{vTr0}, v{vT0}, 6, v{vTr0}")
    a(f"v_and_b32 v{vT0}, 1, v{vLane}")
    a(f"v_lshl_add_u32 v{vTr0}, v{vT0}, 5, v{vTr0}")
    a(f"v_bfe_u32 v{vT0}, v{vLane}, 4, 1")
    a(f"v_lshl_add_u32 v{vTr0}, v{vT0}, 4, v{vTr0}")
    a(f"v_bfe_u32 v{vT0}, v{vLane}, 1, 1")
    a(f"v_lshl_add_u32 v{vTr0}, v{vT0}, 3, v{vTr0}")
    a(f"s_and_b32 s{sT1}, s{sGW}, 1")
    a(f"s_lshl_b32 s{sT1}, s{sT1}, 6")
    a(f"v_xor_b32 v{vTr0}, s{sT1}, v{vTr0}")
    a(f"v_add_u32 v{vTr0}, s{sRing}, v{vTr0}")
    a(f"v_xor_b32 v{vTr1}, 64, v{vTr0}")
    a(f"s_lshr_b32 s{sFG}, s{sTT64}, 2")
    a(f"s_lshl_b32 s{sFG}, s{sFG}, 8")
    a(f"s_add_u32 s{sFG}, s{sFG}, {WS_FO:#x}")
    a(f"v_and_b32 v{vL8}, 0xf8, v{vL8}")
    a(f"s_lshr_b32 s{sFK}, s{sTT64}, 1")
    a(f"s_lshl_b32 s{sFK}, s{sFK}, 7")
    a(f"s_add_u32 s{sFK}, s{sFK}, {WS_FACT:#x}")
    a("s_waitcnt vmcnt(0)")
    a("s_barrier")
    if not EARLYF: pubflags()
    a(f"s_setprio {os.environ.get('GPRIO', '0')}")
    stamp(a, 5)
    poll(a, [(1, FL, vF16, sFK)], sT1)
    a(f"v_and_b32 v{vT0}, 31, v{vLane}")
    a(f"v_lshlrev_b32 v{vT0}, 2, v{vT0}")
    a(f"s_lshl_b32 s{sT0}, s{sOT}, 7")
    a(f"s_add_u32 s{sT0}, s{sT0}, {WS_G:#x}")
    a(f"s_xor_b32 s{sT1}, s{sT0}, 128")
    a(f"buffer_load_dword v{vG0}, v{vT0}, {sr(S_WS,4)}, s{sT0} offen sc1")
    a(f"buffer_load_dword v{vG1}, v{vT0}, {sr(S_WS,4)}, s{sT1} offen sc1")

    def wdma(st, srdn):
        a(f"s_add_u32 m0, s{sRing}, {st * 2048}")
        a(f"s_add_u32 s{sT0}, s{sW2}, 8192")
        a(f"buffer_load_dwordx4 v{vDW}, {sr(srdn,4)}, s{sW2} offen lds")
        a(f"s_add_u32 m0, s{sRing}, {st * 2048 + 1024}")
        a(f"s_add_u32 s{sW2}, s{sW2}, 16384")
        a(f"buffer_load_dwordx4 v{vDW}, {sr(srdn,4)}, s{sT0} offen lds")

    def group(st):
        wdma(st, S_W2)
        f = AF + 8 * st
        a(f"buffer_load_dwordx4 {vr(f,4)}, v{vL16}, {sr(S_WS,4)}, s{sA0} offen offset:{st*1024} sc1")
        a(f"buffer_load_dwordx4 {vr(f+4,4)}, v{vL16}, {sr(S_WS,4)}, s{sA1} offen offset:{st*1024} sc1")
        if st == 3:
            a(f"s_add_u32 s{sA0}, s{sA0}, 4096")
            a(f"s_add_u32 s{sA1}, s{sA1}, 4096")

    def trreads(st, w):
        for jp, vt in enumerate((vTr0, vTr1)):
            a(f"ds_read_b64_tr_b16 {vr(w+4*jp,2)}, v{vt} offset:{st*2048}")
            a(f"ds_read_b64_tr_b16 {vr(w+4*jp+2,2)}, v{vt} offset:{st*2048+1024}")

    GSP = os.environ.get("GSP", "")
    def gmfma(w, f, first, space=False):
        for ap in range(2):
            for jp in range(2):
                acc = ACC + 16 * (ap * 2 + jp)
                c = "0" if first else vr(acc, 16)
                a(f"v_mfma_f32_32x32x16_bf16 {vr(acc,16)}, {vr(w+4*jp,4)}, {vr(f+4*ap,4)}, {c}")
                if space and GSP and not (ap == 1 and jp == 1): a(GSP)

    def step(st, first, more, nwait=12):
        a(f"s_waitcnt vmcnt({nwait})")
        w = WF + 8 * (st & 1)
        trreads(st, w)
        a("s_waitcnt lgkmcnt(0)")
        gmfma(w, AF + 8 * st, first, True)
        if more:
            group(st)

    for st in range(4): group(st)
    for st in range(4): step(st, st == 0, True)
    a(f"s_mov_b32 s{sI}, 0")
    a.label("G_LOOP")
    for st in range(4): step(st, False, True)
    a(f"s_add_u32 s{sI}, s{sI}, 1")
    a(f"s_cmp_lt_u32 s{sI}, 5")
    a("s_cbranch_scc1 G_LOOP")
    for st in range(4): step(st, False, False, 12 - 4 * st)
    stamp(a, 6)
    WOR = 72
    OFR = 136
    a(f"s_lshl_b32 s{sW2}, s{sGW}, 17")
    a(f"s_lshl_b32 s{sT1}, s{sNB}, 7")
    a(f"s_add_u32 s{sW2}, s{sW2}, s{sT1}")
    for st in range(4): wdma(st, S_WO)
    a(f"v_sub_f32 v{vT0}, 1.0, v{vG0}")
    a(f"v_sub_f32 v{vT1}, 1.0, v{vG1}")
    a(f"v_mov_b32 v152, v{vTr0}")
    a(f"v_mov_b32 v153, v{vTr1}")
    vTr0, vTr1 = 152, 153
    a("s_nop 7")
    for q in range(4):
        for i in range(16):
            a(f"v_mul_f32 v{ACC+16*q+i}, v{ACC+16*q+i}, v{vT0 if q < 2 else vT1}")
    def trreads2(st, w):
        for jp, vt in enumerate((vTr0, vTr1)):
            a(f"ds_read_b64_tr_b16 {vr(w+4*jp,2)}, v{vt} offset:{st*2048}")
            a(f"ds_read_b64_tr_b16 {vr(w+4*jp+2,2)}, v{vt} offset:{st*2048+1024}")
    for ks in range(8):
        st = ks & 3
        a(f"s_waitcnt vmcnt({6 if ks < 4 else 6 - 2 * (ks - 4)})")
        trreads2(st, WOR + 8 * ks)
        if ks < 4:
            a("s_waitcnt lgkmcnt(0)")
            wdma(st, S_WO)
    FL = 156
    a(f"s_lshl_b32 s{sA0}, s{sOT}, 15")
    a(f"s_lshl_b32 s{sT3}, s{sGW}, 13")
    a(f"s_add_u32 s{sA0}, s{sA0}, s{sT3}")
    a(f"s_add_u32 s{sA0}, s{sA0}, {WS_OF:#x}")
    a(f"s_xor_b32 s{sA1}, s{sA0}, 32768")
    a(f"s_lshl_b32 s{sLK}, s{sGW}, 14")
    a(f"v_add_u32 v154, s{sLK}, v{vL16}")
    poll(a, [(1, FL, vL8, sFG)], sT1)
    a("s_mov_b64 s[22:23], -1")
    a("s_mov_b32 s19, 0")
    a("s_waitcnt lgkmcnt(0)")
    a("s_barrier")
    a("s_setprio 3")
    a("s_branch G_P3")
    a.label("G_RELOAD")
    for ks in range(8):
        dma(sLK, ks * 2048, vL16, S_WS, sA0, ks * 1024, " sc1")
        dma(sLK, ks * 2048 + 1024, vL16, S_WS, sA1, ks * 1024, " sc1")
    a("s_add_u32 s19, s19, 1")
    a(f"s_cmp_lt_u32 s19, {SPIN_MAX}")
    a("s_cselect_b64 s[22:23], -1, 0")
    a("s_setpc_b64 s[20:21]")
    a.label("G_P3")
    a("s_call_b64 s[20:21], G_RELOAD")
    def ord_(ks):
        f = OFR + 8 * (ks & 1)
        a(f"ds_read_b128 {vr(f,4)}, v154 offset:{ks*2048}")
        a(f"ds_read_b128 {vr(f+4,4)}, v154 offset:{ks*2048+1024}")
    def verify(ks):
        f = OFR + 8 * (ks & 1)
        a.label(f"G_V{ks}")
        a("s_waitcnt lgkmcnt(0)")
        a(f"v_max3_u32 v155, v{f}, v{f+1}, v{f+2}")
        a(f"v_max3_u32 v155, v155, v{f+3}, v{f+4}")
        a(f"v_max3_u32 v155, v155, v{f+5}, v{f+6}")
        a(f"v_max_u32 v155, v155, v{f+7}")
        a(f"v_cmp_eq_u32 vcc, -1, v155")
        a("s_nop 1")
        a("s_and_b64 vcc, vcc, s[22:23]")
        a(f"s_cbranch_scc0 G_OK{ks}")
        a("s_call_b64 s[20:21], G_RELOAD")
        a("s_waitcnt vmcnt(0)")
        ord_(ks)
        a(f"s_branch G_V{ks}")
        a.label(f"G_OK{ks}")
    a("s_waitcnt vmcnt(14)")
    ord_(0)
    verify(0)
    stamp(a, 7)
    for ks in range(8):
        f = OFR + 8 * (ks & 1)
        if ks < 7:
            a(f"s_waitcnt vmcnt({12 - 2 * ks})")
            ord_(ks + 1)
        gmfma(WOR + 8 * ks, f, False)
        if ks < 7:
            verify(ks + 1)
    a("s_nop 7")
    a("s_nop 7")
    for q in range(1, 4):
        a(f"s_xor_b32 s{sT0}, s{sGW}, {q}")
        a(f"s_mul_i32 s{sT0}, s{sT0}, 12288")
        a(f"s_add_u32 s{sT0}, s{sT0}, {L_EXCH}")
        a(f"v_add_u32 v{vT0}, s{sT0}, v{vL16}")
        for i in range(4):
            a(f"ds_write_b128 v{vT0}, {vr(ACC+16*q+4*i,4)} offset:{(q-1)*4096 + i*1024}")
    a(f"s_mul_i32 s{sT0}, s{sGW}, 12288")
    a(f"s_add_u32 s{sT0}, s{sT0}, {L_EXCH}")
    a(f"v_add_u32 v{vT0}, s{sT0}, v{vL16}")
    a("s_waitcnt lgkmcnt(0)")
    a("s_barrier")
    R = 72
    for q in range(3):
        for i in range(4):
            a(f"ds_read_b128 {vr(R+16*q+4*i,4)}, v{vT0} offset:{q*4096 + i*1024}")
    a(f"v_and_b32 v{vT0}, 31, v{vLane}")
    a(f"v_lshlrev_b32 v{vT0}, 10, v{vT0}")
    a(f"v_lshrrev_b32 v{vT1}, 5, v{vLane}")
    a(f"v_lshl_add_u32 v{vT0}, v{vT1}, 5, v{vT0}")
    a(f"s_lshl_b32 s{sT0}, s{sOT}, 15")
    a(f"s_lshl_b32 s{sT1}, s{sON}, 6")
    a(f"s_add_u32 s{sT0}, s{sT0}, s{sT1}")
    for q in range(3):
        a(f"s_waitcnt lgkmcnt({8 - 4 * q})")
        for i in range(16):
            a(f"v_add_f32 v{ACC+i}, v{ACC+i}, v{R+16*q+i}")
    cvt16(a, ACC)
    a(f"buffer_store_dwordx4 {vr(ACC,4)}, v{vT0}, {sr(S_OUT,4)}, s{sT0} offen{os.environ.get('OUTF','')}")
    a(f"buffer_store_dwordx4 {vr(ACC+4,4)}, v{vT0}, {sr(S_OUT,4)}, s{sT0} offen offset:16{os.environ.get('OUTF','')}")
    if STAMPS: a("s_waitcnt vmcnt(0)")
    stamp(a, 9); stamp(a, 8, True)
    stamp_flush(a)


def main():
    ref = open(f"cdna_kernels/{NAME}.s.ref").read().split("\n")
    head = [l for l in ref if l.startswith(";") and "@launch" not in l]
    a = A()
    name = gen(a)
    out = "\n".join(head) + "\n"
    if ASLIST:
        out += f"; @launch kernel={name} grid=(256,1,1) block=(768,1,1) lds={LDS_TOTAL}\n"
    else:
        out += f"; @launch grid=(256,1,1) block=(768,1,1) lds={LDS_TOTAL}\n"
    out += '.amdgcn_target "amdgcn-amd-amdhsa--gfx950"\n'
    out += a.text()
    out += f""".section .rodata,"a"
.p2align 6
.amdhsa_kernel {name}
  .amdhsa_next_free_vgpr 168
  .amdhsa_next_free_sgpr {102 if STAMPS else 84}
  .amdhsa_accum_offset 168
  .amdhsa_group_segment_fixed_size 0
  .amdhsa_kernarg_size 88
  .amdhsa_user_sgpr_count 2
  .amdhsa_user_sgpr_kernarg_segment_ptr 1
  .amdhsa_system_sgpr_workgroup_id_x 1
.end_amdhsa_kernel
"""
    path = sys.argv[1] if len(sys.argv) > 1 else f"cdna_kernels/{NAME}.s"
    open(path, "w").write(out)
    print("wrote", path, len(out), "bytes")

main()
```

```python
import struct, sys, math, os

NAME = "gated_mix__mha_block__dense_activation_mish__prompt"
STAMPS = int(os.environ.get("STAMPS", "0"))
ASLIST = int(os.environ.get("ASLIST", "0"))
X = os.environ.get("X", "")
EARLYF = int(os.environ.get("EARLYF", "1"))
REUSE = int(os.environ.get("REUSE", "1"))
PR1 = int(os.environ.get("PR1", "10"))
PR2 = int(os.environ.get("PR2", "14"))

def f32(x):
    return "0x%08x" % struct.unpack("<I", struct.pack("<f", x))[0]

LOG2E = math.log2(math.e)

WS_QF  = 0x0000000
WS_KV  = 0x0200000
WS_ACT = 0x0600000
WS_G   = 0x0F40000
WS_OF  = 0x1000000
WS_FKV = 0x1800000
WS_FACT = 0x1804000
WS_FO  = 0x1808000
WS_STAMP = 0x2000000
WS_SIZE = 0x10000000

L_GW = 144 * 1024
L_B1 = 145 * 1024
L_RING = 128 * 1024
L_Q = 128 * 1024
L_EXCH = 64 * 1024
LDS_TOTAL = 160 * 1024

SPIN_MAX = 200000


class A:
    def __init__(self):
        self.l = []
        self.n = 0
    def __call__(self, s):
        for line in s.strip("\n").split("\n"):
            self.l.append("    " + line.strip())
    def label(self, s):
        self.l.append(s + ":")
    def raw(self, s):
        self.l.append(s)
    def uniq(self, p):
        self.n += 1
        return f"{p}_{self.n}"
    def text(self):
        return "\n".join(self.l) + "\n"


def vr(b, n):
    return "v[%d:%d]" % (b, b + n - 1)

def sr(b, n):
    return "s[%d:%d]" % (b, b + n - 1)

def srd(a, dst, ptr, nbytes):
    a(f"s_mov_b32 s{dst}, s{ptr}")
    a(f"s_and_b32 s{dst+1}, s{ptr+1}, 0xffff")
    a(f"s_mov_b32 s{dst+2}, {nbytes:#x}")
    a(f"s_mov_b32 s{dst+3}, 0x00020000")

S_X, S_WQ, S_W1, S_WS, S_B1, S_W2, S_WO, S_GW, S_OUT, S_DBG = 28, 32, 36, 40, 44, 48, 52, 56, 60, 64
sW, sRB, sCG, sTG, sTT, sFT0 = 68, 69, 70, 71, 72, 73
sT0, sT1, sT2, sT3 = 74, 75, 76, 77
sEP = 78
vLane, vL16, vT0, vT1 = 1, 2, 3, 4

def estamp(a, i):
    if "E" in X and STAMPS:
        a(f"s_memtime s[{82+2*i}:{83+2*i}]")
        a("s_waitcnt lgkmcnt(0)")

def istamp(a, i):
    if "I" in X and STAMPS:
        a(f"s_memtime s[{82+2*i}:{83+2*i}]")
        a("s_waitcnt lgkmcnt(0)")

def stamp(a, i, real=False):
    if not STAMPS: return
    if ("E" in X or "P" in X) and 2 <= i <= 7: return
    if "I" in X and 4 <= i <= 7: return
    a(f"{'s_memrealtime' if real else 's_memtime'} s[{82+2*i}:{83+2*i}]")
    a("s_waitcnt lgkmcnt(0)")

def stamp_flush(a, n=10):
    if not STAMPS: return
    a("s_mov_b64 exec, 1")
    for i in range(n):
        a(f"v_mov_b32 v{i+1}, s{82+2*i}")
    a(f"s_lshl_b32 s80, s2, 4")
    a(f"s_add_u32 s80, s80, s{sW}")
    a(f"s_lshl_b32 s80, s80, 6")
    a(f"s_add_u32 s80, s80, {WS_STAMP:#x}")
    for i in range(n):
        a(f"buffer_store_dword v{i+1}, off, {sr(S_WS,4)}, s80 offset:{4*i}")
    if STAMPS == 2:
        L = a.uniq("NODBG")
        a(f"s_lshl_b32 s80, s2, 4")
        a(f"s_add_u32 s80, s80, s{sW}")
        a(f"s_cmp_eq_u32 s80, {77*16+8}")
        a(f"s_cbranch_scc0 {L}")
        a("v_sub_u32 v9, v9, v1")
        for i in (3, 4, 5, 6, 7, 8, 10):
            a(f"v_sub_u32 v{i}, v{i}, v2")
        for i in range(2, n):
            a(f"buffer_store_dword v{i+1}, off, {sr(S_DBG,4)}, 0 offset:{4*i}")
        a.label(L)


def mish16(a, acc, tmp, dst, cst):
    cL, c2, cm2, c1 = (vr(cst + 2 * i, 2) for i in range(4))
    for g in range(4):
        e = [vr(acc + 4 * g + 2 * i, 2) for i in range(2)]
        t = [vr(tmp + 2 * i, 2) for i in range(2)]
        u = [vr(tmp + 4 + 2 * i, 2) for i in range(2)]
        for i in range(2): a(f"v_pk_mul_f32 {t[i]}, {e[i]}, {cL}")
        for i in range(4): a(f"v_exp_f32 v{tmp+i}, v{tmp+i}")
        for i in range(2): a(f"v_pk_add_f32 {u[i]}, {t[i]}, {c2}")
        for i in range(2): a(f"v_pk_fma_f32 {u[i]}, {t[i]}, {u[i]}, {c2}")
        for i in range(4): a(f"v_rcp_f32 v{tmp+4+i}, v{tmp+4+i}")
        for i in range(2): a(f"v_pk_fma_f32 {u[i]}, {u[i]}, {cm2}, {c1}")
        for i in range(2): a(f"v_pk_mul_f32 {u[i]}, {u[i]}, {e[i]}")
        a(f"v_cvt_pk_bf16_f32 v{dst + 2 * g}, v{tmp+4}, v{tmp+5}")
        a(f"v_cvt_pk_bf16_f32 v{dst + 2 * g + 1}, v{tmp+6}, v{tmp+7}")

def cvt16(a, acc):
    for i in range(8):
        a(f"v_cvt_pk_bf16_f32 v{acc + i}, v{acc + 2 * i}, v{acc + 2 * i + 1}")

def flag_store(a, soff, vtmp, cnt):
    L = a.uniq("NOFLAG")
    if cnt is None:
        a(f"v_mov_b32 v{vtmp}, s{sEP}")
        a(f"v_mov_b32 v{vtmp+1}, s{sEP+1}")
        a("s_mov_b64 exec, 1")
        a(f"buffer_store_dwordx2 {vr(vtmp,2)}, off, {sr(S_WS,4)}, s{soff} sc1")
        a("s_mov_b64 exec, -1")
        return
    a("s_mov_b64 exec, 1")
    a(f"v_mov_b32 v{vtmp}, {cnt}")
    a(f"v_mov_b32 v{vtmp+1}, 1")
    a(f"ds_add_rtn_u32 v{vtmp}, v{vtmp}, v{vtmp+1}")
    a("s_waitcnt lgkmcnt(0)")
    a(f"v_readfirstlane_b32 s{sT3}, v{vtmp}")
    a(f"v_mov_b32 v{vtmp}, s{sEP}")
    a(f"v_mov_b32 v{vtmp+1}, s{sEP+1}")
    a(f"s_cmp_eq_u32 s{sT3}, 7")
    a(f"s_cbranch_scc0 {L}")
    a(f"buffer_store_dwordx2 {vr(vtmp,2)}, off, {sr(S_WS,4)}, s{soff} sc1")
    a.label(L)
    a("s_mov_b64 exec, -1")

def poll(a, loads, scnt):
    L = a.uniq("POLL"); D = a.uniq("POLLD")
    a(f"s_mov_b32 s{scnt}, 0")
    a.label(L)
    for nf, vd, vo, so in loads:
        op = "buffer_load_dwordx4" if nf == 2 else "buffer_load_dwordx2"
        a(f"{op} {vr(vd, 2*nf)}, v{vo}, {sr(S_WS,4)}, s{so} offen sc1")
    a("s_waitcnt vmcnt(0)")
    first = True
    for nf, vd, vo, so in loads:
        for k in range(nf):
            if first:
                a(f"v_cmp_ne_u64 vcc, {sr(sEP,2)}, {vr(vd+2*k,2)}")
                first = False
            else:
                a(f"v_cmp_ne_u64 {sr(sT2,2)}, {sr(sEP,2)}, {vr(vd+2*k,2)}")
                a("s_nop 1")
                a(f"s_or_b64 vcc, vcc, {sr(sT2,2)}")
    a("s_nop 1")
    a("s_cmp_eq_u64 vcc, 0")
    a(f"s_cbranch_scc1 {D}")
    a("s_sleep 4")
    a(f"s_add_u32 s{scnt}, s{scnt}, 1")
    a(f"s_cmp_lt_u32 s{scnt}, {SPIN_MAX}")
    a(f"s_cbranch_scc1 {L}")
    a.label(D)


def gen(a):
    name = NAME + "_kernel"
    a.raw(".text")
    a.raw(f".globl {name}")
    a.raw(".p2align 8")
    a.raw(f".type {name},@function")
    a.label(name)
    a("s_cmp_ge_u32 s2, 256")
    a("s_cbranch_scc1 K_END")
    stamp(a, 0, True); stamp(a, 1)
    a("s_load_dwordx16 s[4:19], s[0:1], 0")
    a("s_load_dwordx4 s[20:23], s[0:1], 64")
    a("s_load_dwordx2 s[24:25], s[0:1], 80")
    a(f"v_and_b32 v{vLane}, 63, v0")
    a(f"v_lshrrev_b32 v{vT0}, 6, v0")
    a(f"v_lshlrev_b32 v{vL16}, 4, v{vLane}")
    a(f"v_readfirstlane_b32 s{sW}, v{vT0}")
    if "C" not in X:
        a(f"v_lshlrev_b32 v{vT0}, 6, v0")
        a(f"s_cmp_ge_u32 s{sW}, 4")
        a("s_cbranch_scc1 K_NOPC")
        a(f"s_getpc_b64 {sr(sT0,2)}")
        a.label("K_PC")
        a(f"v_min_u32 v{vT0}, K_END-K_PC, v{vT0}")
        a(f"global_load_dword v12, v{vT0}, {sr(sT0,2)}")
        a.label("K_NOPC")
    a(f"s_and_b32 s{sT0}, s2, 7")
    a(f"s_lshr_b32 s{sT1}, s2, 3")
    if os.environ.get("TILE48"):
        a(f"s_and_b32 s{sRB}, s{sT0}, 3")
        a(f"s_lshl_b32 s{sRB}, s{sRB}, 2")
        a(f"s_and_b32 s{sT2}, s{sT1}, 3")
        a(f"s_add_u32 s{sRB}, s{sRB}, s{sT2}")
        a(f"s_lshr_b32 s{sCG}, s{sT0}, 2")
        a(f"s_lshl_b32 s{sCG}, s{sCG}, 3")
        a(f"s_lshr_b32 s{sT2}, s{sT1}, 2")
        a(f"s_add_u32 s{sCG}, s{sCG}, s{sT2}")
    else:
        a(f"s_and_b32 s{sRB}, s{sT0}, 1")
        a(f"s_lshl_b32 s{sRB}, s{sRB}, 3")
        a(f"s_and_b32 s{sT2}, s{sT1}, 7")
        a(f"s_add_u32 s{sRB}, s{sRB}, s{sT2}")
        a(f"s_lshr_b32 s{sCG}, s{sT0}, 1")
        a(f"s_lshl_b32 s{sCG}, s{sCG}, 2")
        a(f"s_lshr_b32 s{sT2}, s{sT1}, 3")
        a(f"s_add_u32 s{sCG}, s{sCG}, s{sT2}")
    a(f"s_and_b32 s{sTG}, s{sW}, 3")
    a(f"s_lshl_b32 s{sTT}, s{sRB}, 2")
    a(f"s_add_u32 s{sTT}, s{sTT}, s{sTG}")
    a(f"s_sub_u32 s{sT0}, s{sCG}, 2")
    a(f"s_cmp_ge_u32 s{sCG}, 14")
    a(f"s_cselect_b32 s{sFT0}, s{sT0}, s{sCG}")
    a(f"s_lshl_b32 s{sFT0}, s{sFT0}, 2")
    a(f"s_cmp_ge_u32 s{sW}, 8")
    a("s_cbranch_scc1 G_START")
    if "N" not in X:
        a(f"s_cmp_ge_u32 s{sW}, 6")
        a("s_cbranch_scc1 A_START")
        a(f"s_cmp_ge_u32 s{sW}, 4")
        a("s_cbranch_scc1 A_PF1")
        a(f"s_bitcmp1_b32 s{sW}, 0")
        a("s_cbranch_scc1 A_PFQ")
        a(f"s_lshl_b32 s{sT0}, s2, 13")
        a(f"s_lshl_b32 s{sT1}, s{sW}, 8")
        a(f"s_add_u32 s{sT0}, s{sT0}, s{sT1}")
        a(f"v_lshrrev_b32 v{vT0}, 3, v{vLane}")
        a(f"v_lshlrev_b32 v{vT0}, 10, v{vT0}")
        a(f"v_and_b32 v{vT1}, 7, v{vLane}")
        a(f"v_lshl_add_u32 v{vT0}, v{vT1}, 6, v{vT0}")
        a("s_waitcnt lgkmcnt(0)")
        srd(a, S_X, 4, 2048 * 512 * 2)
        a(f"buffer_load_dword v12, v{vT0}, {sr(S_X,4)}, s{sT0} offen")
        a("s_branch A_START")
        a.label("A_PFQ")
        a(f"s_lshr_b32 s{sT1}, s{sW}, 1")
        a(f"s_lshl_b32 s{sT1}, s{sT1}, 8")
        a(f"s_add_u32 s{sT0}, s2, s{sT1}")
        a(f"s_mul_i32 s{sT0}, s{sT0}, 3072")
        a(f"v_min_u32 v{vT0}, 47, v{vLane}")
        a(f"v_lshlrev_b32 v{vT0}, 6, v{vT0}")
        a("s_waitcnt lgkmcnt(0)")
        srd(a, S_WQ, 6, 512 * 1536 * 2)
        a(f"buffer_load_dword v12, v{vT0}, {sr(S_WQ,4)}, s{sT0} offen")
        a("s_branch A_START")
        a.label("A_PF1")
        a(f"s_and_b32 s{sT1}, s{sW}, 1")
        a(f"s_lshl_b32 s{sT1}, s{sT1}, 8")
        a(f"s_add_u32 s{sT0}, s2, s{sT1}")
        a(f"s_mul_i32 s{sT0}, s{sT0}, 3584")
        a(f"v_min_u32 v{vT0}, 55, v{vLane}")
        a(f"v_lshlrev_b32 v{vT0}, 6, v{vT0}")
        a("s_waitcnt lgkmcnt(0)")
        srd(a, S_W1, 12, 512 * 1792 * 2)
        if os.environ.get("PFSL"): a(f"s_sleep {os.environ['PFSL']}")
        a(f"buffer_load_dword v12, v{vT0}, {sr(S_W1,4)}, s{sT0} offen")
        a("s_branch A_START")
    if "N" in X: a("s_branch A_START")
    a.label("G_START")
    gen_G(a)
    a("s_endpgm")
    gen_A(a)
    a.label("K_END")
    a("s_endpgm")
    return name

def srds_rest(a):
    srd(a, S_WS, 24, WS_SIZE)
    srd(a, S_B1, 14, 1792 * 2)
    srd(a, S_W2, 16, 1792 * 512 * 2)
    srd(a, S_WO, 8, 512 * 512 * 2)
    srd(a, S_OUT, 20, 2048 * 512 * 2)
    srd(a, S_DBG, 22, 256)


def gen_A(a):
    a.label("A_START")
    vXrd, vW0, vW1, vT2 = 5, 9, 10, 11
    FA, FB = 16, 28
    ACC = 64
    BIAS = 96
    PK = 128
    TMP = 16
    sN, sD = 26, 27
    a(f"s_lshl_b32 s{sT0}, s{sTG}, 12")
    a(f"v_and_b32 v{vT0}, 31, v{vLane}")
    a(f"v_lshrrev_b32 v{vT1}, 5, v{vLane}")
    a(f"v_bfe_u32 v{vT2}, v{vLane}, 1, 3")
    a(f"v_xor_b32 v{vT2}, v{vT2}, v{vT1}")
    a(f"v_lshlrev_b32 v{vT0}, 7, v{vT0}")
    a(f"v_add_u32 v{vT0}, s{sT0}, v{vT0}")
    for ks in range(4):
        a(f"v_xor_b32 v{vXrd+ks}, {2*ks}, v{vT2}")
        a(f"v_lshl_add_u32 v{vXrd+ks}, v{vXrd+ks}, 4, v{vT0}")
    a(f"v_bfe_u32 v{vT0}, v{vLane}, 2, 2")
    a(f"v_lshl_add_u32 v{vT0}, v{vT1}, 3, v{vT0}")
    a(f"v_lshlrev_b32 v{vW0}, 6, v{vT0}")
    a(f"v_bfe_u32 v{vT0}, v{vLane}, 4, 1")
    a(f"v_lshl_add_u32 v{vW0}, v{vT0}, 5, v{vW0}")
    a(f"v_and_b32 v{vT0}, 3, v{vLane}")
    a(f"v_lshl_add_u32 v{vW0}, v{vT0}, 3, v{vW0}")
    a(f"s_lshr_b32 s{sT0}, s{sW}, 2")
    a(f"s_lshl_b32 s{sT0}, s{sT0}, 13")
    a(f"s_add_u32 s{sT0}, s{sT0}, 16384")
    a(f"v_add_u32 v{vW0}, s{sT0}, v{vW0}")
    a(f"v_lshlrev_b32 v{vW1}, 4, v{vT1}")
    a(f"v_add_u32 v{vW1}, {L_GW}, v{vW1}")
    a(f"v_lshlrev_b32 v{vT2}, 3, v{vT1}")
    a(f"s_lshr_b32 s{sT0}, s{sW}, 2")
    a(f"s_lshl_b32 s{sT0}, s{sT0}, 7")
    a(f"s_add_u32 s{sT0}, s{sT0}, {L_B1}")
    a(f"v_add_u32 v{vT2}, s{sT0}, v{vT2}")
    for i in range(32):
        a(f"v_mov_b32 v{ACC+i}, 0")
    a(f"s_mov_b32 s{sN}, 0")
    a("s_waitcnt lgkmcnt(0)")
    srds_rest(a)
    estamp(a, 3)
    a("s_barrier")
    stamp(a, 2)
    estamp(a, 6)

    def reads(ks, F, par, gate=False, only1=False):
        if "R" in X: return
        if not only1:
            a(f"ds_read_b128 {vr(F,4)}, v{vXrd+ks} offset:{par*32768}")
        for t in range(2):
            if only1 and t == 0: continue
            if gate and t == 1:
                a(f"ds_read_b128 {vr(F+8,4)}, v{vW1} offset:{(par*4+ks)*32}")
                continue
            a(f"ds_read_b64_tr_b16 {vr(F+4+4*t,2)}, v{vW0} offset:{par*32768+t*4096+ks*1024}")
            a(f"ds_read_b64_tr_b16 {vr(F+4+4*t+2,2)}, v{vW0} offset:{par*32768+t*4096+ks*1024+256}")

    def mfmas(F, swap0):
        if "M" in X: return
        for t in range(2):
            acc = ACC + 16 * t
            if swap0 and t == 0:
                a(f"v_mfma_f32_32x32x16_bf16 {vr(acc,16)}, {vr(F,4)}, {vr(F+4+4*t,4)}, {vr(acc,16)}")
            else:
                a(f"v_mfma_f32_32x32x16_bf16 {vr(acc,16)}, {vr(F+4+4*t,4)}, {vr(F,4)}, {vr(acc,16)}")

    FS = [16 + 12 * i for i in range(4)]
    def loop(lab, swap0):
        nr = 4 if swap0 else 5
        a.raw(".p2align 3")
        a.label(lab)
        for par in range(2):
            for j in range(4):
                a(f"s_waitcnt lgkmcnt({2*nr})")
                if j == 1:
                    if par == 1:
                        for k in range(4):
                            a(f"v_xor_b32 v{vXrd+k}, s{sT3}, v{vXrd+k}")
                        a(f"v_xor_b32 v{vW0}, s{sT3}, v{vW0}")
                        if swap0:
                            a(f"v_add_u32 v{vW1}, s{sD}, v{vW1}")
                        else:
                            L = a.uniq("A_NOVM")
                            a(f"s_cmp_eq_u32 s{sN}, 12")
                            a(f"s_cbranch_scc0 {L}")
                            a("s_waitcnt vmcnt(0)")
                            a.label(L)
                    a("s_barrier")
                elif j == 0 and par == 0:
                    a(f"s_add_u32 s{sN}, s{sN}, 2")
                elif j == 3 and par == 1:
                    a(f"s_and_b32 s{sT0}, s{sN}, 7")
                else:
                    a("s_nop 0")
                jj = j + 3
                reads(jj & 3, FS[jj & 3], par if jj < 4 else 1 - par, swap0)
                mfmas(FS[j], swap0)
        a(f"s_cbranch_scc1 {lab}")

    istamp(a, 4)
    a(f"s_mov_b32 s{sT3}, 65536")
    a(f"s_movk_i32 s{sD}, 256")
    a(f"s_cmp_ge_u32 s{sW}, 4")
    a("s_cbranch_scc1 A_L2P")
    for ks in range(3):
        reads(ks, FS[ks], 0)
    loop("A_L1", False)
    a(f"s_cmp_eq_u32 s{sN}, 16")
    a("s_cbranch_scc1 A_MISH")
    stamp(a, 3)
    a("s_waitcnt lgkmcnt(7)")
    for g in range(8):
        a(f"ds_read_b64 {vr(BIAS + 2 * g, 2)}, v{vT2} offset:{g*16}")
    a(f"v_and_b32 v{vT0}, 0x33, v{vLane}")
    a(f"v_bfe_u32 v{vT1}, v{vLane}, 2, 1")
    a(f"v_lshl_add_u32 v{vT0}, v{vT1}, 3, v{vT0}")
    a(f"v_bfe_u32 v{vT1}, v{vLane}, 3, 1")
    a(f"v_lshl_add_u32 v{vT0}, v{vT1}, 2, v{vT0}")
    a(f"v_lshlrev_b32 v{vT0}, 4, v{vT0}")
    a(f"s_lshl_b32 s4, s{sCG}, 17")
    a(f"s_lshl_b32 s5, s{sTT}, 10")
    a(f"s_add_u32 s4, s4, s5")
    a(f"s_lshl_b32 s6, s4, 1")
    a(f"s_add_u32 s4, s4, {WS_QF:#x}")
    a(f"s_add_u32 s5, s4, 65536")
    a(f"s_add_u32 s6, s6, {WS_KV:#x}")
    a(f"s_add_u32 s7, s6, 131072")
    a(f"s_mov_b32 s8, {f32(0.25 * LOG2E)}")
    a(f"s_mov_b32 s9, {f32(0.25 * LOG2E)}")
    for i in range(8):
        a(f"v_pk_mul_f32 {vr(ACC+2*i,2)}, {vr(ACC+2*i,2)}, s[8:9]")
    for i in range(16):
        a(f"v_cvt_pk_bf16_f32 v{PK + i}, v{ACC + 2 * i}, v{ACC + 2 * i + 1}")
    istamp(a, 5)
    a(f"buffer_store_dwordx4 {vr(PK+8,4)}, v{vT0}, {sr(S_WS,4)}, s6 offen sc1")
    a(f"buffer_store_dwordx4 {vr(PK+12,4)}, v{vT0}, {sr(S_WS,4)}, s7 offen sc1")
    a(f"buffer_store_dwordx4 {vr(PK,4)}, v{vL16}, {sr(S_WS,4)}, s4 offen sc1")
    a(f"buffer_store_dwordx4 {vr(PK+4,4)}, v{vL16}, {sr(S_WS,4)}, s5 offen sc1")
    a.label("A_BIAS")
    a("s_waitcnt lgkmcnt(0)")
    istamp(a, 6)
    for g in range(8):
        b = ACC + 4 * g
        a(f"v_lshlrev_b32 v{b}, 16, v{BIAS+2*g}")
        a(f"v_and_b32 v{b+1}, 0xffff0000, v{BIAS+2*g}")
        a(f"v_lshlrev_b32 v{b+2}, 16, v{BIAS+2*g+1}")
        a(f"v_and_b32 v{b+3}, 0xffff0000, v{BIAS+2*g+1}")
    istamp(a, 7)
    a("s_branch A_L1")
    a.label("A_L2P")
    for ks in range(3):
        reads(ks, FS[ks], 0, True)
    loop("A_L2", True)
    a("s_waitcnt lgkmcnt(0)")
    for ks in range(3):
        reads(ks, FS[ks], 0, False, True)
    stamp(a, 3)
    a("s_waitcnt lgkmcnt(7)")
    for g in range(8):
        a(f"ds_read_b64 {vr(BIAS + 2 * g, 2)}, v{vT2} offset:{g*16}")
    a(f"v_and_b32 v{vT0}, 0x2f, v{vLane}")
    a(f"v_lshlrev_b32 v{vT0}, 4, v{vT0}")
    a(f"v_bfe_u32 v{vT1}, v{vLane}, 4, 1")
    a(f"v_lshl_add_u32 v{vT0}, v{vT1}, 17, v{vT0}")
    a(f"s_lshl_b32 s4, s{sCG}, 18")
    a(f"s_lshl_b32 s5, s{sTT}, 11")
    a(f"s_add_u32 s4, s4, s5")
    a(f"s_add_u32 s4, s4, {WS_KV:#x}")
    a(f"s_lshl_b32 s5, s{sTT}, 7")
    a(f"s_add_u32 s5, s5, {WS_G:#x}")
    a(f"v_lshlrev_b32 v{vT1}, 2, v{vLane}")
    for i in range(8):
        a(f"v_cvt_pk_bf16_f32 v{PK + i}, v{ACC + 2 * i}, v{ACC + 2 * i + 1}")
    a(f"v_mul_f32 v{PK+8}, {f32(-LOG2E)}, v{ACC+16}")
    a(f"v_exp_f32 v{PK+8}, v{PK+8}")
    a(f"buffer_store_dwordx4 {vr(PK,4)}, v{vT0}, {sr(S_WS,4)}, s4 offen offset:1024 sc1")
    a(f"v_add_f32 v{PK+8}, 1.0, v{PK+8}")
    a(f"v_rcp_f32 v{PK+8}, v{PK+8}")
    a(f"buffer_store_dwordx4 {vr(PK+4,4)}, v{vT0}, {sr(S_WS,4)}, s4 offen offset:1280 sc1")
    a("s_mov_b32 exec_hi, 0")
    a(f"buffer_store_dword v{PK+8}, v{vT1}, {sr(S_WS,4)}, s5 offen sc1")
    a("s_mov_b64 exec, -1")
    a("s_waitcnt lgkmcnt(0)")
    a("s_branch A_BIAS")
    a.label("A_MISH")
    stamp(a, 4)
    a(f"s_mul_i32 s13, s{sTT}, 112")
    a(f"s_lshl_b32 s{sT1}, s{sFT0}, 1")
    a(f"s_add_u32 s13, s13, s{sT1}")
    a(f"s_lshr_b32 s{sT1}, s{sW}, 2")
    a(f"s_lshl_b32 s{sT1}, s{sT1}, 2")
    a(f"s_add_u32 s13, s13, s{sT1}")
    a(f"s_lshl_b32 s13, s13, 10")
    a(f"s_add_u32 s13, s13, {WS_ACT:#x}")
    for i, c in enumerate((LOG2E, 2.0, -2.0, 1.0)):
        a(f"v_mov_b32 v{144+2*i}, {f32(c)}")
        a(f"v_mov_b32 v{145+2*i}, {f32(c)}")
    a("s_waitcnt lgkmcnt(0)")
    mish16(a, ACC, TMP, 128, 144)
    a(f"buffer_store_dwordx4 {vr(128,4)}, v{vL16}, {sr(S_WS,4)}, s13 offen sc1")
    a(f"buffer_store_dwordx4 {vr(132,4)}, v{vL16}, {sr(S_WS,4)}, s13 offen offset:1024 sc1")
    mish16(a, ACC + 16, TMP, 136, 144)
    a(f"buffer_store_dwordx4 {vr(136,4)}, v{vL16}, {sr(S_WS,4)}, s13 offen offset:2048 sc1")
    a(f"buffer_store_dwordx4 {vr(140,4)}, v{vL16}, {sr(S_WS,4)}, s13 offen offset:3072 sc1")

    a.label("A_PH2")
    sHead, sQT, sI, sB1, sB2, sPass = 4, 5, 6, 7, 8, 9
    sMask = 10
    vAddr, vIdx, vG = 5, 6, 7
    Q = 8
    KB = [12, 16]
    VB = [20, 28]
    S = [36, 52]
    C = 68
    O = 84
    vFl = 100
    a(f"s_and_b32 s{sT0}, s2, 7")
    a(f"s_lshl_b32 s{sHead}, s{sT0}, 2")
    a(f"s_bfe_u32 s{sT0}, s2, 0x20003")
    a(f"s_add_u32 s{sHead}, s{sHead}, s{sT0}")
    a(f"s_lshr_b32 s{sQT}, s2, 5")
    a(f"s_lshl_b32 s{sQT}, s{sQT}, 3")
    a(f"s_add_u32 s{sQT}, s{sQT}, s{sW}")
    a(f"v_mov_b32 v{vIdx}, 0xdddddddd")
    a(f"s_mov_b32 s{sMask}, 0x0000ffff")
    a(f"s_mov_b32 s{sMask+1}, 0x0000ffff")
    a(f"v_and_b32 v{vT0}, 27, v{vLane}")
    a(f"v_cmp_eq_u32 vcc, 16, v{vT0}")
    a(f"v_mov_b32 v{vT1}, 0x3f803f80")
    a("s_nop 0")
    a(f"v_cndmask_b32 v{vT0}, 0, v{vT1}, vcc")
    for b in VB:
        for i in range(8):
            a(f"v_mov_b32 v{b+i}, v{vT0}")
    a(f"v_mov_b32 v{vAddr}, v{vL16}")
    a(f"s_mov_b32 s{sB1}, 1")
    a(f"s_mov_b32 s{sB2}, 3")
    a(f"s_mov_b32 s{sPass}, 0")
    a(f"s_lshl_b32 s{sT0}, s{sW}, 10")
    a(f"s_add_u32 s{sT0}, s{sT0}, {L_Q}")
    a(f"v_add_u32 v{vT1}, s{sT0}, v{vL16}")
    for i in range(16):
        a(f"v_mov_b32 v{O+i}, 0")
    a(f"s_lshl_b32 s12, s{sQT}, 15")
    a(f"s_lshl_b32 s{sT1}, s{sHead}, 10")
    a(f"s_add_u32 s12, s12, s{sT1}")
    a(f"s_add_u32 s12, s12, {WS_OF:#x}")
    for i in range(4):
        a(f"v_mov_b32 v{104+i}, -1")
    a(f"buffer_store_dwordx4 {vr(104,4)}, v{vL16}, {sr(S_WS,4)}, s12 offen sc1")
    a("s_setprio 2")
    stamp(a, 5)
    a("s_barrier")
    stamp(a, 6)
    a(f"ds_read_b128 {vr(Q,4)}, v{vT1}")
    a(f"ds_read_b128 {vr(KB[0],4)}, v{vAddr} offset:0")
    a("s_waitcnt lgkmcnt(0)")
    a(f"v_mfma_f32_32x32x16_bf16 {vr(S[0],16)}, {vr(KB[0],4)}, {vr(Q,4)}, 0")
    a("s_nop 7")
    a("s_nop 7")
    s0 = S[0]
    a(f"v_max3_f32 v{vT0}, v{s0}, v{s0+1}, v{s0+2}")
    for i in range(3, 15, 2):
        a(f"v_max3_f32 v{vT0}, v{vT0}, v{s0+i}, v{s0+i+1}")
    a(f"v_max_f32 v{vT0}, v{vT0}, v{s0+15}")
    a.label("A_SETMAX")
    a(f"v_mov_b32 v{vT1}, v{vT0}")
    a("s_nop 1")
    a(f"v_permlane32_swap_b32 v{vT0}, v{vT1}")
    a("s_nop 1")
    a(f"v_max_f32 v{vT0}, v{vT0}, v{vT1}")
    for i in range(16):
        a(f"v_sub_f32 v{C+i}, 0, v{vT0}")
    a(f"ds_read_b128 {vr(KB[0],4)}, v{vAddr} offset:0")
    a(f"ds_read_b128 {vr(KB[1],4)}, v{vAddr} offset:2048")
    a(f"s_mov_b64 exec, {sr(sMask,2)}")
    a(f"ds_read_b128 {vr(VB[0],4)}, v{vAddr} offset:1024")
    a(f"ds_read_b128 {vr(VB[0]+4,4)}, v{vAddr} offset:1280")
    a("s_mov_b64 exec, -1")
    a("s_waitcnt lgkmcnt(0)")
    a(f"v_mfma_f32_32x32x16_bf16 {vr(S[0],16)}, {vr(KB[0],4)}, {vr(Q,4)}, {vr(C,16)}")
    a(f"s_mov_b32 s{sI}, 0")
    for i in range(8, 16):
        a(f"v_mov_b32 v{S[1]+i}, 0")
    a("s_nop 7")
    a.raw(".p2align 6")
    a.label("A_LOOP")
    for u in range(4):
        p = u & 1
        cur, nxt = S[p], S[1 - p]
        def E(lo, hi):
            for i in range(lo, hi):
                a(f"v_exp_f32 v{cur+i}, v{cur+i}")
        E(0, 2)
        a(f"v_smfmac_f32_32x32x32_bf16 {vr(O,16)}, {vr(VB[1-p]+4,4)}, {vr(nxt+8,8)}, v{vIdx}")
        E(2, 7)
        a("s_waitcnt lgkmcnt(0)")
        a(f"v_mfma_f32_32x32x16_bf16 {vr(nxt,16)}, {vr(KB[1-p],4)}, {vr(Q,4)}, {vr(C,16)}")
        a(f"ds_read_b128 {vr(KB[p],4)}, v{vAddr} offset:{(u+2)*2048}")
        E(7, 8)
        a(f"s_mov_b64 exec, {sr(sMask,2)}")
        a(f"ds_read_b128 {vr(VB[1-p],4)}, v{vAddr} offset:{(u+1)*2048+1024}")
        a(f"ds_read_b128 {vr(VB[1-p]+4,4)}, v{vAddr} offset:{(u+1)*2048+1280}")
        a("s_mov_b64 exec, -1")
        E(8, 13)
        a(f"v_smfmac_f32_32x32x32_bf16 {vr(O,16)}, {vr(VB[p],4)}, {vr(cur,8)}, v{vIdx}")
        if u == 3:
            a(f"v_add_u32 v{vAddr}, 8192, v{vAddr}")
            E(13, 16)
            a(f"s_add_u32 s{sI}, s{sI}, 1")
            a(f"s_cmp_lt_u32 s{sI}, s{sB1}")
        else:
            a(f"v_exp_f32_e64 v{cur+13}, v{cur+13}")
            E(14, 16)
    a("s_cbranch_scc1 A_LOOP")
    a(f"s_cmp_eq_u32 s{sI}, 1")
    a("s_cbranch_scc0 A_SEG2")
    a(f"s_mov_b32 s{sB1}, 3")
    if EARLYF: a("s_waitcnt vmcnt(0)")
    a("s_barrier")
    a("s_branch A_LOOP")
    a.label("A_SEG2")
    a(f"s_cmp_eq_u32 s{sI}, 3")
    a("s_cbranch_scc0 A_SEG3")
    a(f"s_mov_b32 s{sB1}, {PR1}")
    a("s_waitcnt vmcnt(0)")
    a("s_barrier")
    a("s_branch A_LOOP")
    a.label("A_SEG3")
    a(f"s_cmp_eq_u32 s{sI}, {PR1}")
    a("s_cbranch_scc0 A_SEG4")
    a(f"s_mov_b32 s{sB1}, {PR2}")
    a("s_setprio 1")
    a(f"v_and_b32 v{vT0}, 31, v{vLane}")
    a(f"v_lshlrev_b32 v{vT0}, 2, v{vT0}")
    a(f"s_lshl_b32 s{sT0}, s{sQT}, 7")
    a(f"s_add_u32 s{sT0}, s{sT0}, {WS_G:#x}")
    a(f"buffer_load_dword v{vG}, v{vT0}, {sr(S_WS,4)}, s{sT0} offen sc1")
    a("s_branch A_LOOP")
    a.label("A_SEG4")
    a(f"s_cmp_eq_u32 s{sI}, {PR2}")
    a("s_cbranch_scc0 A_SEG5")
    a(f"s_mov_b32 s{sB1}, 16")
    a("s_setprio 0")
    a("s_branch A_LOOP")
    a.label("A_SEG5")
    a(f"v_smfmac_f32_32x32x32_bf16 {vr(O,16)}, {vr(VB[1]+4,4)}, {vr(S[1]+8,8)}, v{vIdx}")
    a("s_waitcnt lgkmcnt(0)")
    a("s_nop 7")
    a("s_nop 7")
    a(f"s_cmp_lg_u32 s{sPass}, 0")
    a("s_cbranch_scc1 A_FIN")
    a(f"v_max3_f32 v{vT0}, |v{O}|, |v{O+1}|, |v{O+2}|")
    a(f"v_max3_f32 v{vT0}, v{vT0}, |v{O+3}|, |v{O+4}|")
    a(f"v_max3_f32 v{vT0}, v{vT0}, |v{O+5}|, |v{O+6}|")
    a(f"v_max_f32 v{vT0}, v{vT0}, |v{O+7}|")
    a(f"v_mov_b32 v{vT1}, 0x7f800000")
    a(f"v_cmp_nlt_f32 vcc, v{vT0}, v{vT1}")
    a(f"v_mov_b32 v{vT1}, {f32(2.0**30)}")
    a(f"v_cmp_nlt_f32 {sr(sT2,2)}, v{O+8}, v{vT1}")
    a("s_nop 1")
    a(f"s_or_b64 vcc, vcc, {sr(sT2,2)}")
    a("s_cbranch_scc0 A_FIN")
    a(f"s_mov_b32 s{sPass}, 1")
    a(f"s_mov_b32 s{sB1}, 16")
    a(f"v_mov_b32 v{vAddr}, v{vL16}")
    a(f"v_mov_b32 v{vT0}, 0xff800000")
    a(f"s_mov_b32 s{sI}, 0")
    a.label("A_MAXLOOP")
    a(f"ds_read_b128 {vr(KB[0],4)}, v{vAddr} offset:0")
    a("s_waitcnt lgkmcnt(0)")
    a(f"v_mfma_f32_32x32x16_bf16 {vr(S[0],16)}, {vr(KB[0],4)}, {vr(Q,4)}, 0")
    a(f"v_add_u32 v{vAddr}, 2048, v{vAddr}")
    a("s_nop 7")
    a("s_nop 7")
    for i in range(0, 16, 2):
        a(f"v_max3_f32 v{vT0}, v{vT0}, v{s0+i}, v{s0+i+1}")
    a(f"s_add_u32 s{sI}, s{sI}, 1")
    a(f"s_cmp_lt_u32 s{sI}, 64")
    a("s_cbranch_scc1 A_MAXLOOP")
    a(f"v_mov_b32 v{vAddr}, v{vL16}")
    for i in range(16):
        a(f"v_mov_b32 v{O+i}, 0")
    a("s_branch A_SETMAX")
    a.label("A_FIN")
    stamp(a, 7)
    a(f"v_rcp_f32 v{vT0}, v{O+8}")
    a("s_waitcnt vmcnt(0)")
    a(f"v_mul_f32 v{vT0}, v{vT0}, v{vG}")
    for i in range(8):
        a(f"v_mul_f32 v{O+i}, v{O+i}, v{vT0}")
    for i in range(4):
        a(f"v_cvt_pk_bf16_f32 v{O+i}, v{O+2*i}, v{O+2*i+1}")
    for i in range(4):
        a(f"v_min_u32 v{O+i}, -2, v{O+i}")
    a(f"buffer_store_dwordx4 {vr(O,4)}, v{vL16}, {sr(S_WS,4)}, s12 offen sc1")
    stamp(a, 9); stamp(a, 8, True)
    stamp_flush(a)
    a("s_endpgm")


def gen_G(a):
    sXoff, sLX, sWQ0, sW10, sGO = 26, 27, 80, 81, 3
    sGW = sTG
    vDX0, vDX1, vDWq, vDW1, vT2 = 5, 6, 7, 8, 9
    vWe, vWo, vW2w, vGo = 10, 11, 12, 13
    vEp = 14
    RS = 16
    NSETS = int(os.environ.get("NSETS", "9"))
    PER = int(os.environ.get("PER", "1"))
    a("s_setprio 3")
    a(f"s_lshl_b32 s{sXoff}, s{sTT}, 15")
    a(f"s_lshl_b32 s{sLX}, s{sTG}, 12")
    a(f"s_mul_i32 s{sWQ0}, s{sTG}, {16*3072}")
    a(f"s_lshl_b32 s{sT0}, s{sCG}, 6")
    a(f"s_add_u32 s{sWQ0}, s{sWQ0}, s{sT0}")
    a(f"v_lshrrev_b32 v{vT0}, 3, v{vLane}")
    a(f"v_lshrrev_b32 v{vT1}, 4, v{vLane}")
    a(f"v_and_b32 v{vT2}, 7, v{vLane}")
    a(f"v_xor_b32 v{vT2}, v{vT2}, v{vT1}")
    a(f"v_lshlrev_b32 v{vDX0}, 10, v{vT0}")
    a(f"v_lshl_add_u32 v{vDX0}, v{vT2}, 4, v{vDX0}")
    a(f"v_xor_b32 v{vDX1}, 64, v{vDX0}")
    a(f"v_add_u32 v{vDX1}, 8192, v{vDX1}")
    a(f"v_lshrrev_b32 v{vT0}, 2, v{vLane}")
    a(f"v_and_b32 v{vT2}, 3, v{vLane}")
    a(f"v_lshlrev_b32 v{vT2}, 4, v{vT2}")
    a(f"v_mul_u32_u24 v{vDWq}, 3072, v{vT0}")
    a(f"v_add_u32 v{vDWq}, v{vDWq}, v{vT2}")
    a(f"v_mul_u32_u24 v{vDW1}, 3584, v{vT0}")
    a(f"v_add_u32 v{vDW1}, v{vDW1}, v{vT2}")
    sLW = sGO
    a(f"s_lshl_b32 s{sLW}, s{sTG}, 10")
    a("s_waitcnt lgkmcnt(0)")
    estamp(a, 2)
    srd(a, S_X, 4, 2048 * 512 * 2)
    srd(a, S_WQ, 6, 512 * 1536 * 2)
    srd(a, S_GW, 18, 1024)

    q = []
    def vm(tag):
        q.append(tag)
    def wait_tag(tag, extra=""):
        last = max(i for i, t in enumerate(q) if t == tag)
        n = len(q) - 1 - last
        assert n < 64
        a(f"s_waitcnt vmcnt({n}){extra}")

    def dma(lds_s, lds_imm, voff, srdn, s_base, imm, extra=""):
        a(f"s_add_u32 m0, s{lds_s}, {lds_imm}")
        a(f"s_add_u32 s{sT0}, s{s_base}, {imm}")
        a(f"buffer_load_dwordx4 v{voff}, {sr(srdn,4)}, s{sT0} offen{extra} lds")

    def issue(n):
        base = (n & 3) * 32768
        st = n if n < 8 else ((n - 4) & 7 if REUSE else n & 7)
        if not (REUSE and 8 <= n < 12):
            for j in range(4):
                dma(sLX, base + j * 1024, vDX0 if j % 2 == 0 else vDX1, S_X, sXoff, (j >> 1) * 16384 + st * 128); vm(n)
        if n < 8:
            for t in range(3):
                dma(sLW, base + 16384 + t * 4096, vDWq, S_WQ, sWQ0, st * 64 * 3072 + t * 1024); vm(n)
        else:
            for t in range(4):
                dma(sLW, base + 16384 + t * 4096, vDW1, S_W1, sW10, st * 64 * 3584 + t * 64); vm(n)

    estamp(a, 3)
    a(f"s_mov_b32 m0, {L_GW}")
    a("s_nop 0")
    a(f"buffer_load_dwordx4 v{vL16}, {sr(S_GW,4)}, 0 offen lds"); vm(0)
    issue(0)
    estamp(a, 4)
    issue(1)
    srd(a, S_W1, 12, 512 * 1792 * 2)
    srds_rest(a)
    a(f"s_mul_i32 s{sW10}, s{sTG}, {16*3584}")
    a(f"s_lshl_b32 s{sT0}, s{sFT0}, 6")
    a(f"s_add_u32 s{sW10}, s{sW10}, s{sT0}")
    a(f"s_mov_b32 m0, {L_B1}")
    a(f"s_lshl_b32 s{sT0}, s{sFT0}, 6")
    a(f"buffer_load_dwordx4 v{vL16}, {sr(S_B1,4)}, s{sT0} offen lds"); vm(1)
    a(f"s_lshl_b32 s{sT0}, s2, 4")
    a(f"s_add_u32 s{sT0}, s{sT0}, s{sW}")
    a(f"s_cmp_eq_u32 s{sT0}, 8")
    a("s_cbranch_scc0 G_NOEP")
    a(f"s_memrealtime {sr(sEP,2)}")
    a("s_waitcnt lgkmcnt(0)")
    a(f"s_or_b32 s{sEP}, s{sEP}, 1")
    a(f"v_mov_b32 v{vEp}, s{sEP}")
    a(f"v_mov_b32 v{vEp+1}, s{sEP+1}")
    a("s_mov_b64 exec, 1")
    a(f"buffer_store_dwordx2 {vr(vEp,2)}, off, {sr(S_DBG,4)}, 0 sc1")
    a("s_mov_b64 exec, -1")
    a.label("G_NOEP")
    estamp(a, 5)
    wait_tag(0)
    estamp(a, 6)
    a("s_barrier")
    stamp(a, 2)
    estamp(a, 7)
    ORD = int(os.environ.get("ORD", "0"))
    if ORD <= 1: issue(2)
    for n in range(16):
        if n == 0 and ORD == 0:
            issue(3)
        if n == int(os.environ.get("PFW1", "99")) and "N" not in X:
            a(f"s_lshr_b32 s{sT0}, s2, 3")
            a(f"s_lshl_b32 s{sT0}, s{sT0}, 4")
            a(f"s_lshl_b32 s{sT1}, s{sGW}, 2")
            a(f"s_add_u32 s{sT0}, s{sT0}, s{sT1}")
            a(f"s_mul_i32 s{sT0}, s{sT0}, 3584")
            a(f"s_bfe_u32 s{sT1}, s2, 0x20001")
            a(f"s_lshl_b32 s{sT1}, s{sT1}, 10")
            a(f"s_add_u32 s{sT0}, s{sT0}, s{sT1}")
            a(f"v_mul_u32_u24 v16, 3584, v{vT1}")
            a(f"v_and_b32 v17, 15, v{vLane}")
            a(f"v_lshl_add_u32 v16, v17, 6, v16")
            a(f"buffer_load_dword v17, v16, {sr(S_W1,4)}, s{sT0} offen"); vm("pf")
        if n == int(os.environ.get("PFW2", "99")):
            a(f"v_lshlrev_b32 v16, 6, v{vLane}")
            a(f"s_cmp_ge_u32 s{sGW}, 2")
            a("s_cbranch_scc1 G_PFO")
            a(f"s_mul_i32 s{sT0}, s2, 7168")
            a(f"s_mul_i32 s{sT1}, s{sGW}, 3584")
            a(f"s_add_u32 s{sT0}, s{sT0}, s{sT1}")
            a(f"v_min_u32 v16, {55*64}, v16")
            a(f"buffer_load_dword v17, v16, {sr(S_W2,4)}, s{sT0} offen")
            a("s_branch G_PFD")
            a.label("G_PFO")
            a(f"s_lshl_b32 s{sT0}, s2, 11")
            a(f"v_min_u32 v16, {31*64}, v16")
            a(f"buffer_load_dword v17, v16, {sr(S_WO,4)}, s{sT0} offen")
            a.label("G_PFD")
            vm("pf2")
        if n == 4:
            a(f"buffer_load_dwordx2 {vr(vEp,2)}, off, {sr(S_DBG,4)}, 0 sc1"); vm("ep")
        if n == 10:
            wait_tag("ep")
            a(f"s_mov_b32 s{sT1}, 0")
            a.label("G_EPL")
            a(f"v_readfirstlane_b32 s{sEP}, v{vEp}")
            a(f"v_readfirstlane_b32 s{sEP+1}, v{vEp+1}")
            a(f"s_cmp_lg_u32 s{sEP}, 0")
            a("s_cbranch_scc1 G_EPD")
            a("s_sleep 4")
            a(f"buffer_load_dwordx2 {vr(vEp,2)}, off, {sr(S_DBG,4)}, 0 sc1")
            a("s_waitcnt vmcnt(0)")
            a(f"s_add_u32 s{sT1}, s{sT1}, 1")
            a(f"s_cmp_lt_u32 s{sT1}, {SPIN_MAX}")
            a("s_cbranch_scc1 G_EPL")
            a.label("G_EPD")
        if n + 1 <= 15:
            wait_tag(n + 1)
        a("s_barrier")
        if n == 0 and ORD == 2: issue(2)
        if (1 <= n or ORD >= 1) and n + 3 <= 15:
            issue(n + 3)
        if "P" in X and STAMPS:
            P0 = int(os.environ.get("P0", "8"))
            if P0 <= n + 1 < P0 + 6:
                i = n + 1 - P0 + 2
                a(f"s_memtime s[{82+2*i}:{83+2*i}]")
                a("s_waitcnt lgkmcnt(0)")
        if n + 1 == 12:
            a(f"s_cmp_eq_u32 s{sGW}, 0")
            a("s_cbranch_scc0 G_NOF1")
            a(f"s_lshl_b32 s{sT0}, s{sCG}, 7")
            a(f"s_lshl_b32 s{sT1}, s{sRB}, 3")
            a(f"s_add_u32 s{sT0}, s{sT0}, s{sT1}")
            a(f"s_add_u32 s{sT0}, s{sT0}, {WS_FKV:#x}")
            a("s_mov_b64 exec, 1")
            a(f"buffer_store_dwordx2 {vr(vEp,2)}, off, {sr(S_WS,4)}, s{sT0} sc1")
            a("s_mov_b64 exec, -1")
            a.label("G_NOF1")
    sHead, sKV, sLK, sFK, sFG, sQ = 4, 5, 6, 7, 8, 9
    sA0, sA1, sW2, sOT, sON, sI, sRing, sTT64, sNB = 10, 11, 12, 13, 14, 15, 16, 17, 18
    vL8, vF16 = 5, 6
    FL = 124
    a(f"s_and_b32 s{sT0}, s2, 7")
    a(f"s_lshl_b32 s{sHead}, s{sT0}, 2")
    a(f"s_bfe_u32 s{sT0}, s2, 0x20003")
    a(f"s_add_u32 s{sHead}, s{sHead}, s{sT0}")
    a(f"s_lshl_b32 s{sLK}, s{sGW}, 10")
    a(f"s_lshl_b32 s{sKV}, s{sHead}, 17")
    a(f"s_add_u32 s{sKV}, s{sKV}, {WS_KV:#x}")
    a(f"s_add_u32 s{sKV}, s{sKV}, s{sLK}")
    a(f"s_lshr_b32 s{sT0}, s{sHead}, 1")
    a(f"s_lshl_b32 s{sFK}, s{sT0}, 7")
    a(f"s_add_u32 s{sFK}, s{sFK}, {WS_FKV:#x}")
    a(f"s_lshr_b32 s{sT1}, s2, 5")
    a(f"s_lshl_b32 s{sQ}, s{sHead}, 16")
    a(f"s_lshl_b32 s{sT0}, s{sT1}, 13")
    a(f"s_add_u32 s{sQ}, s{sQ}, s{sT0}")
    a(f"s_add_u32 s{sQ}, s{sQ}, s{sLK}")
    a(f"s_add_u32 s{sQ}, s{sQ}, {WS_QF:#x}")
    a(f"v_lshlrev_b32 v{vL8}, 3, v{vLane}")
    a(f"v_and_b32 v{vF16}, 0x78, v{vL8}")
    stamp(a, 3)
    poll(a, [(1, FL, vF16, sFK)], sT1)
    stamp(a, 4)
    def kvdma(i):
        dma(sLK, i * 4096, vL16, S_WS, sKV, i * 4096, " sc1")
    dma(sLK, L_Q, vL16, S_WS, sQ, 0, " sc1")
    dma(sLK, L_Q + 4096, vL16, S_WS, sQ, 4096, " sc1")
    def pubflags():
        a(f"s_cmp_eq_u32 s{sGW}, 0")
        a("s_cbranch_scc0 G_NOF2")
        a(f"s_lshl_b32 s{sT0}, s{sRB}, 7")
        a(f"s_lshl_b32 s{sT1}, s{sCG}, 3")
        a(f"s_add_u32 s{sT0}, s{sT0}, s{sT1}")
        a(f"s_add_u32 s{sT0}, s{sT0}, {WS_FACT:#x}")
        a(f"s_lshr_b32 s{sT1}, s2, 5")
        a(f"s_lshl_b32 s{sT1}, s{sT1}, 8")
        a(f"s_lshl_b32 s{sT2}, s{sHead}, 3")
        a(f"s_add_u32 s{sT1}, s{sT1}, s{sT2}")
        a(f"s_add_u32 s{sT1}, s{sT1}, {WS_FO:#x}")
        a("s_mov_b64 exec, 1")
        a(f"buffer_store_dwordx2 {vr(vEp,2)}, off, {sr(S_WS,4)}, s{sT0} sc1")
        a(f"buffer_store_dwordx2 {vr(vEp,2)}, off, {sr(S_WS,4)}, s{sT1} sc1")
        a("s_mov_b64 exec, -1")
        a.label("G_NOF2")
    KV0 = int(os.environ.get("KV0", "8"))
    for i in range(KV0): kvdma(i)
    a(f"s_waitcnt vmcnt({KV0-4})")
    a("s_barrier")
    for i in range(KV0, 20): kvdma(i)
    a("s_waitcnt vmcnt(12)")
    a("s_barrier")
    if EARLYF: pubflags()
    for i in range(20, 32): kvdma(i)
    ACC = 8
    AF = 72
    WF = 104
    vG0, vG1 = 120, 121
    vDW, vTr0, vTr1 = 7, 122, 123
    a(f"s_and_b32 s{sT0}, s2, 7")
    a(f"s_lshr_b32 s{sT1}, s2, 3")
    a(f"s_lshr_b32 s{sTT64}, s{sT0}, 1")
    a(f"s_lshl_b32 s{sTT64}, s{sTT64}, 3")
    a(f"s_and_b32 s{sT3}, s{sT1}, 7")
    a(f"s_add_u32 s{sTT64}, s{sTT64}, s{sT3}")
    a(f"s_and_b32 s{sNB}, s{sT0}, 1")
    a(f"s_lshl_b32 s{sNB}, s{sNB}, 2")
    a(f"s_lshr_b32 s{sT1}, s{sT1}, 3")
    a(f"s_add_u32 s{sNB}, s{sNB}, s{sT1}")
    a(f"s_lshr_b32 s{sT1}, s{sGW}, 1")
    a(f"s_lshl_b32 s{sOT}, s{sTT64}, 1")
    a(f"s_add_u32 s{sOT}, s{sOT}, s{sT1}")
    a(f"s_and_b32 s{sT1}, s{sGW}, 1")
    a(f"s_lshl_b32 s{sON}, s{sNB}, 1")
    a(f"s_add_u32 s{sON}, s{sON}, s{sT1}")
    a(f"s_mul_i32 s{sT3}, s{sGW}, {28*1024}")
    a(f"s_mul_i32 s{sA0}, s{sOT}, {112*1024}")
    a(f"s_add_u32 s{sA0}, s{sA0}, s{sT3}")
    a(f"s_add_u32 s{sA0}, s{sA0}, {WS_ACT:#x}")
    a(f"s_xor_b32 s{sT1}, s{sOT}, 1")
    a(f"s_mul_i32 s{sA1}, s{sT1}, {112*1024}")
    a(f"s_add_u32 s{sA1}, s{sA1}, s{sT3}")
    a(f"s_add_u32 s{sA1}, s{sA1}, {WS_ACT:#x}")
    a(f"s_mul_i32 s{sW2}, s{sGW}, {28*16384}")
    a(f"s_lshl_b32 s{sT1}, s{sNB}, 7")
    a(f"s_add_u32 s{sW2}, s{sW2}, s{sT1}")
    a(f"s_lshl_b32 s{sRing}, s{sGW}, 13")
    a(f"s_add_u32 s{sRing}, s{sRing}, {L_RING}")
    a(f"v_lshrrev_b32 v{vT0}, 3, v{vLane}")
    a(f"v_bfe_u32 v{vT1}, v{vLane}, 4, 1")
    a(f"v_lshlrev_b32 v{vT1}, 2, v{vT1}")
    a(f"v_and_b32 v{vDW}, 7, v{vLane}")
    a(f"v_xor_b32 v{vDW}, v{vDW}, v{vT1}")
    a(f"v_lshlrev_b32 v{vDW}, 4, v{vDW}")
    a(f"v_lshl_add_u32 v{vDW}, v{vT0}, 10, v{vDW}")
    a(f"v_bfe_u32 v{vT0}, v{vLane}, 2, 2")
    a(f"v_lshrrev_b32 v{vT1}, 5, v{vLane}")
    a(f"v_lshl_add_u32 v{vT0}, v{vT1}, 2, v{vT0}")
    a(f"v_lshlrev_b32 v{vTr0}, 7, v{vT0}")
    a(f"v_bfe_u32 v{vT0}, v{vLane}, 3, 1")
    a(f"v_lshl_add_u32 v{vTr0}, v{vT0}, 6, v{vTr0}")
    a(f"v_and_b32 v{vT0}, 1, v{vLane}")
    a(f"v_lshl_add_u32 v{vTr0}, v{vT0}, 5, v{vTr0}")
    a(f"v_bfe_u32 v{vT0}, v{vLane}, 4, 1")
    a(f"v_lshl_add_u32 v{vTr0}, v{vT0}, 4, v{vTr0}")
    a(f"v_bfe_u32 v{vT0}, v{vLane}, 1, 1")
    a(f"v_lshl_add_u32 v{vTr0}, v{vT0}, 3, v{vTr0}")
    a(f"s_and_b32 s{sT1}, s{sGW}, 1")
    a(f"s_lshl_b32 s{sT1}, s{sT1}, 6")
    a(f"v_xor_b32 v{vTr0}, s{sT1}, v{vTr0}")
    a(f"v_add_u32 v{vTr0}, s{sRing}, v{vTr0}")
    a(f"v_xor_b32 v{vTr1}, 64, v{vTr0}")
    a(f"s_lshr_b32 s{sFG}, s{sTT64}, 2")
    a(f"s_lshl_b32 s{sFG}, s{sFG}, 8")
    a(f"s_add_u32 s{sFG}, s{sFG}, {WS_FO:#x}")
    a(f"v_and_b32 v{vL8}, 0xf8, v{vL8}")
    a(f"s_lshr_b32 s{sFK}, s{sTT64}, 1")
    a(f"s_lshl_b32 s{sFK}, s{sFK}, 7")
    a(f"s_add_u32 s{sFK}, s{sFK}, {WS_FACT:#x}")
    a("s_waitcnt vmcnt(0)")
    a("s_barrier")
    if not EARLYF: pubflags()
    a(f"s_setprio {os.environ.get('GPRIO', '0')}")
    stamp(a, 5)
    poll(a, [(1, FL, vF16, sFK)], sT1)
    a(f"v_and_b32 v{vT0}, 31, v{vLane}")
    a(f"v_lshlrev_b32 v{vT0}, 2, v{vT0}")
    a(f"s_lshl_b32 s{sT0}, s{sOT}, 7")
    a(f"s_add_u32 s{sT0}, s{sT0}, {WS_G:#x}")
    a(f"s_xor_b32 s{sT1}, s{sT0}, 128")
    a(f"buffer_load_dword v{vG0}, v{vT0}, {sr(S_WS,4)}, s{sT0} offen sc1")
    a(f"buffer_load_dword v{vG1}, v{vT0}, {sr(S_WS,4)}, s{sT1} offen sc1")

    def wdma(st, srdn):
        a(f"s_add_u32 m0, s{sRing}, {st * 2048}")
        a(f"s_add_u32 s{sT0}, s{sW2}, 8192")
        a(f"buffer_load_dwordx4 v{vDW}, {sr(srdn,4)}, s{sW2} offen lds")
        a(f"s_add_u32 m0, s{sRing}, {st * 2048 + 1024}")
        a(f"s_add_u32 s{sW2}, s{sW2}, 16384")
        a(f"buffer_load_dwordx4 v{vDW}, {sr(srdn,4)}, s{sT0} offen lds")

    def group(st):
        wdma(st, S_W2)
        f = AF + 8 * st
        a(f"buffer_load_dwordx4 {vr(f,4)}, v{vL16}, {sr(S_WS,4)}, s{sA0} offen offset:{st*1024} sc1")
        a(f"buffer_load_dwordx4 {vr(f+4,4)}, v{vL16}, {sr(S_WS,4)}, s{sA1} offen offset:{st*1024} sc1")
        if st == 3:
            a(f"s_add_u32 s{sA0}, s{sA0}, 4096")
            a(f"s_add_u32 s{sA1}, s{sA1}, 4096")

    def trreads(st, w):
        for jp, vt in enumerate((vTr0, vTr1)):
            a(f"ds_read_b64_tr_b16 {vr(w+4*jp,2)}, v{vt} offset:{st*2048}")
            a(f"ds_read_b64_tr_b16 {vr(w+4*jp+2,2)}, v{vt} offset:{st*2048+1024}")

    GSP = os.environ.get("GSP", "")
    def gmfma(w, f, first, space=False):
        for ap in range(2):
            for jp in range(2):
                acc = ACC + 16 * (ap * 2 + jp)
                c = "0" if first else vr(acc, 16)
                a(f"v_mfma_f32_32x32x16_bf16 {vr(acc,16)}, {vr(w+4*jp,4)}, {vr(f+4*ap,4)}, {c}")
                if space and GSP and not (ap == 1 and jp == 1): a(GSP)

    def step(st, first, more, nwait=12):
        a(f"s_waitcnt vmcnt({nwait})")
        w = WF + 8 * (st & 1)
        trreads(st, w)
        a("s_waitcnt lgkmcnt(0)")
        gmfma(w, AF + 8 * st, first, True)
        if more:
            group(st)

    for st in range(4): group(st)
    for st in range(4): step(st, st == 0, True)
    a(f"s_mov_b32 s{sI}, 0")
    a.label("G_LOOP")
    for st in range(4): step(st, False, True)
    a(f"s_add_u32 s{sI}, s{sI}, 1")
    a(f"s_cmp_lt_u32 s{sI}, 5")
    a("s_cbranch_scc1 G_LOOP")
    for st in range(4): step(st, False, False, 12 - 4 * st)
    stamp(a, 6)
    WOR = 72
    OFR = 136
    a(f"s_lshl_b32 s{sW2}, s{sGW}, 17")
    a(f"s_lshl_b32 s{sT1}, s{sNB}, 7")
    a(f"s_add_u32 s{sW2}, s{sW2}, s{sT1}")
    for st in range(4): wdma(st, S_WO)
    a(f"v_sub_f32 v{vT0}, 1.0, v{vG0}")
    a(f"v_sub_f32 v{vT1}, 1.0, v{vG1}")
    a(f"v_mov_b32 v152, v{vTr0}")
    a(f"v_mov_b32 v153, v{vTr1}")
    vTr0, vTr1 = 152, 153
    a("s_nop 7")
    for q in range(4):
        for i in range(16):
            a(f"v_mul_f32 v{ACC+16*q+i}, v{ACC+16*q+i}, v{vT0 if q < 2 else vT1}")
    def trreads2(st, w):
        for jp, vt in enumerate((vTr0, vTr1)):
            a(f"ds_read_b64_tr_b16 {vr(w+4*jp,2)}, v{vt} offset:{st*2048}")
            a(f"ds_read_b64_tr_b16 {vr(w+4*jp+2,2)}, v{vt} offset:{st*2048+1024}")
    for ks in range(8):
        st = ks & 3
        a(f"s_waitcnt vmcnt({6 if ks < 4 else 6 - 2 * (ks - 4)})")
        trreads2(st, WOR + 8 * ks)
        if ks < 4:
            a("s_waitcnt lgkmcnt(0)")
            wdma(st, S_WO)
    FL = 156
    a(f"s_lshl_b32 s{sA0}, s{sOT}, 15")
    a(f"s_lshl_b32 s{sT3}, s{sGW}, 13")
    a(f"s_add_u32 s{sA0}, s{sA0}, s{sT3}")
    a(f"s_add_u32 s{sA0}, s{sA0}, {WS_OF:#x}")
    a(f"s_xor_b32 s{sA1}, s{sA0}, 32768")
    a(f"s_lshl_b32 s{sLK}, s{sGW}, 14")
    a(f"v_add_u32 v154, s{sLK}, v{vL16}")
    poll(a, [(1, FL, vL8, sFG)], sT1)
    a("s_mov_b64 s[22:23], -1")
    a("s_mov_b32 s19, 0")
    a("s_waitcnt lgkmcnt(0)")
    a("s_barrier")
    a("s_setprio 3")
    a("s_branch G_P3")
    a.label("G_RELOAD")
    for ks in range(8):
        dma(sLK, ks * 2048, vL16, S_WS, sA0, ks * 1024, " sc1")
        dma(sLK, ks * 2048 + 1024, vL16, S_WS, sA1, ks * 1024, " sc1")
    a("s_add_u32 s19, s19, 1")
    a(f"s_cmp_lt_u32 s19, {SPIN_MAX}")
    a("s_cselect_b64 s[22:23], -1, 0")
    a("s_setpc_b64 s[20:21]")
    a.label("G_P3")
    a("s_call_b64 s[20:21], G_RELOAD")
    def ord_(ks):
        f = OFR + 8 * (ks & 1)
        a(f"ds_read_b128 {vr(f,4)}, v154 offset:{ks*2048}")
        a(f"ds_read_b128 {vr(f+4,4)}, v154 offset:{ks*2048+1024}")
    def verify(ks):
        f = OFR + 8 * (ks & 1)
        a.label(f"G_V{ks}")
        a("s_waitcnt lgkmcnt(0)")
        a(f"v_max3_u32 v155, v{f}, v{f+1}, v{f+2}")
        a(f"v_max3_u32 v155, v155, v{f+3}, v{f+4}")
        a(f"v_max3_u32 v155, v155, v{f+5}, v{f+6}")
        a(f"v_max_u32 v155, v155, v{f+7}")
        a(f"v_cmp_eq_u32 vcc, -1, v155")
        a("s_nop 1")
        a("s_and_b64 vcc, vcc, s[22:23]")
        a(f"s_cbranch_scc0 G_OK{ks}")
        a("s_call_b64 s[20:21], G_RELOAD")
        a("s_waitcnt vmcnt(0)")
        ord_(ks)
        a(f"s_branch G_V{ks}")
        a.label(f"G_OK{ks}")
    a("s_waitcnt vmcnt(14)")
    ord_(0)
    verify(0)
    stamp(a, 7)
    for ks in range(8):
        f = OFR + 8 * (ks & 1)
        if ks < 7:
            a(f"s_waitcnt vmcnt({12 - 2 * ks})")
            ord_(ks + 1)
        gmfma(WOR + 8 * ks, f, False)
        if ks < 7:
            verify(ks + 1)
    a("s_nop 7")
    a("s_nop 7")
    for q in range(1, 4):
        a(f"s_xor_b32 s{sT0}, s{sGW}, {q}")
        a(f"s_mul_i32 s{sT0}, s{sT0}, 12288")
        a(f"s_add_u32 s{sT0}, s{sT0}, {L_EXCH}")
        a(f"v_add_u32 v{vT0}, s{sT0}, v{vL16}")
        for i in range(4):
            a(f"ds_write_b128 v{vT0}, {vr(ACC+16*q+4*i,4)} offset:{(q-1)*4096 + i*1024}")
    a(f"s_mul_i32 s{sT0}, s{sGW}, 12288")
    a(f"s_add_u32 s{sT0}, s{sT0}, {L_EXCH}")
    a(f"v_add_u32 v{vT0}, s{sT0}, v{vL16}")
    a("s_waitcnt lgkmcnt(0)")
    a("s_barrier")
    R = 72
    for q in range(3):
        for i in range(4):
            a(f"ds_read_b128 {vr(R+16*q+4*i,4)}, v{vT0} offset:{q*4096 + i*1024}")
    a(f"v_and_b32 v{vT0}, 31, v{vLane}")
    a(f"v_lshlrev_b32 v{vT0}, 10, v{vT0}")
    a(f"v_lshrrev_b32 v{vT1}, 5, v{vLane}")
    a(f"v_lshl_add_u32 v{vT0}, v{vT1}, 5, v{vT0}")
    a(f"s_lshl_b32 s{sT0}, s{sOT}, 15")
    a(f"s_lshl_b32 s{sT1}, s{sON}, 6")
    a(f"s_add_u32 s{sT0}, s{sT0}, s{sT1}")
    for q in range(3):
        a(f"s_waitcnt lgkmcnt({8 - 4 * q})")
        for i in range(16):
            a(f"v_add_f32 v{ACC+i}, v{ACC+i}, v{R+16*q+i}")
    cvt16(a, ACC)
    a(f"buffer_store_dwordx4 {vr(ACC,4)}, v{vT0}, {sr(S_OUT,4)}, s{sT0} offen{os.environ.get('OUTF','')}")
    a(f"buffer_store_dwordx4 {vr(ACC+4,4)}, v{vT0}, {sr(S_OUT,4)}, s{sT0} offen offset:16{os.environ.get('OUTF','')}")
    if STAMPS: a("s_waitcnt vmcnt(0)")
    stamp(a, 9); stamp(a, 8, True)
    stamp_flush(a)


def main():
    ref = open(f"cdna_kernels/{NAME}.s.ref").read().split("\n")
    head = [l for l in ref if l.startswith(";") and "@launch" not in l]
    a = A()
    name = gen(a)
    out = "\n".join(head) + "\n"
    if ASLIST:
        out += f"; @launch kernel={name} grid=(256,1,1) block=(768,1,1) lds={LDS_TOTAL}\n"
    else:
        out += f"; @launch grid=(256,1,1) block=(768,1,1) lds={LDS_TOTAL}\n"
    out += '.amdgcn_target "amdgcn-amd-amdhsa--gfx950"\n'
    out += a.text()
    out += f""".section .rodata,"a"
.p2align 6
.amdhsa_kernel {name}
  .amdhsa_next_free_vgpr 168
  .amdhsa_next_free_sgpr {102 if STAMPS else 84}
  .amdhsa_accum_offset 168
  .amdhsa_group_segment_fixed_size 0
  .amdhsa_kernarg_size 88
  .amdhsa_user_sgpr_count 2
  .amdhsa_user_sgpr_kernarg_segment_ptr 1
  .amdhsa_system_sgpr_workgroup_id_x 1
.end_amdhsa_kernel
"""
    path = sys.argv[1] if len(sys.argv) > 1 else f"cdna_kernels/{NAME}.s"
    open(path, "w").write(out)
    print("wrote", path, len(out), "bytes")

main()
```

```python
import struct, sys, math, os

NAME = "gated_mix__mha_block__dense_activation_mish__prompt"
STAMPS = int(os.environ.get("STAMPS", "0"))
ASLIST = int(os.environ.get("ASLIST", "0"))
X = os.environ.get("X", "")
EARLYF = int(os.environ.get("EARLYF", "1"))
REUSE = int(os.environ.get("REUSE", "1"))
PR1 = int(os.environ.get("PR1", "9"))
PR2 = int(os.environ.get("PR2", "13"))

def f32(x):
    return "0x%08x" % struct.unpack("<I", struct.pack("<f", x))[0]

LOG2E = math.log2(math.e)

WS_QF  = 0x0000000
WS_KV  = 0x0200000
WS_ACT = 0x0600000
WS_G   = 0x0F40000
WS_OF  = 0x1000000
WS_FKV = 0x1800000
WS_FACT = 0x1804000
WS_FO  = 0x1808000
WS_STAMP = 0x2000000
WS_SIZE = 0x10000000

L_GW = 144 * 1024
L_B1 = 145 * 1024
L_RING = 128 * 1024
L_Q = 128 * 1024
L_EXCH = 64 * 1024
LDS_TOTAL = 160 * 1024

SPIN_MAX = 200000


class A:
    def __init__(self):
        self.l = []
        self.n = 0
    def __call__(self, s):
        for line in s.strip("\n").split("\n"):
            self.l.append("    " + line.strip())
    def label(self, s):
        self.l.append(s + ":")
    def raw(self, s):
        self.l.append(s)
    def uniq(self, p):
        self.n += 1
        return f"{p}_{self.n}"
    def text(self):
        return "\n".join(self.l) + "\n"


def vr(b, n):
    return "v[%d:%d]" % (b, b + n - 1)

def sr(b, n):
    return "s[%d:%d]" % (b, b + n - 1)

def srd(a, dst, ptr, nbytes):
    a(f"s_mov_b32 s{dst}, s{ptr}")
    a(f"s_and_b32 s{dst+1}, s{ptr+1}, 0xffff")
    a(f"s_mov_b32 s{dst+2}, {nbytes:#x}")
    a(f"s_mov_b32 s{dst+3}, 0x00020000")

S_X, S_WQ, S_W1, S_WS, S_B1, S_W2, S_WO, S_GW, S_OUT, S_DBG = 28, 32, 36, 40, 44, 48, 52, 56, 60, 64
sW, sRB, sCG, sTG, sTT, sFT0 = 68, 69, 70, 71, 72, 73
sT0, sT1, sT2, sT3 = 74, 75, 76, 77
sEP = 78
vLane, vL16, vT0, vT1 = 1, 2, 3, 4

def estamp(a, i):
    if "E" in X and STAMPS:
        a(f"s_memtime s[{82+2*i}:{83+2*i}]")
        a("s_waitcnt lgkmcnt(0)")

def istamp(a, i):
    if "I" in X and STAMPS:
        a(f"s_memtime s[{82+2*i}:{83+2*i}]")
        a("s_waitcnt lgkmcnt(0)")

def stamp(a, i, real=False):
    if not STAMPS: return
    if ("E" in X or "P" in X) and 2 <= i <= 7: return
    if "I" in X and 4 <= i <= 7: return
    a(f"{'s_memrealtime' if real else 's_memtime'} s[{82+2*i}:{83+2*i}]")
    a("s_waitcnt lgkmcnt(0)")

def stamp_flush(a, n=10):
    if not STAMPS: return
    a("s_mov_b64 exec, 1")
    for i in range(n):
        a(f"v_mov_b32 v{i+1}, s{82+2*i}")
    a(f"s_lshl_b32 s80, s2, 4")
    a(f"s_add_u32 s80, s80, s{sW}")
    a(f"s_lshl_b32 s80, s80, 6")
    a(f"s_add_u32 s80, s80, {WS_STAMP:#x}")
    for i in range(n):
        a(f"buffer_store_dword v{i+1}, off, {sr(S_WS,4)}, s80 offset:{4*i}")
    if STAMPS == 2:
        L = a.uniq("NODBG")
        a(f"s_lshl_b32 s80, s2, 4")
        a(f"s_add_u32 s80, s80, s{sW}")
        a(f"s_cmp_eq_u32 s80, {77*16+8}")
        a(f"s_cbranch_scc0 {L}")
        a("v_sub_u32 v9, v9, v1")
        for i in (3, 4, 5, 6, 7, 8, 10):
            a(f"v_sub_u32 v{i}, v{i}, v2")
        for i in range(2, n):
            a(f"buffer_store_dword v{i+1}, off, {sr(S_DBG,4)}, 0 offset:{4*i}")
        a.label(L)


def mish16(a, acc, tmp, dst, cst):
    cL, c2, cm2, c1 = (vr(cst + 2 * i, 2) for i in range(4))
    for g in range(4):
        e = [vr(acc + 4 * g + 2 * i, 2) for i in range(2)]
        t = [vr(tmp + 2 * i, 2) for i in range(2)]
        u = [vr(tmp + 4 + 2 * i, 2) for i in range(2)]
        for i in range(2): a(f"v_pk_mul_f32 {t[i]}, {e[i]}, {cL}")
        for i in range(4): a(f"v_exp_f32 v{tmp+i}, v{tmp+i}")
        for i in range(2): a(f"v_pk_add_f32 {u[i]}, {t[i]}, {c2}")
        for i in range(2): a(f"v_pk_fma_f32 {u[i]}, {t[i]}, {u[i]}, {c2}")
        for i in range(4): a(f"v_rcp_f32 v{tmp+4+i}, v{tmp+4+i}")
        for i in range(2): a(f"v_pk_fma_f32 {u[i]}, {u[i]}, {cm2}, {c1}")
        for i in range(2): a(f"v_pk_mul_f32 {u[i]}, {u[i]}, {e[i]}")
        a(f"v_cvt_pk_bf16_f32 v{dst + 2 * g}, v{tmp+4}, v{tmp+5}")
        a(f"v_cvt_pk_bf16_f32 v{dst + 2 * g + 1}, v{tmp+6}, v{tmp+7}")

def cvt16(a, acc):
    for i in range(8):
        a(f"v_cvt_pk_bf16_f32 v{acc + i}, v{acc + 2 * i}, v{acc + 2 * i + 1}")

def flag_store(a, soff, vtmp, cnt):
    L = a.uniq("NOFLAG")
    if cnt is None:
        a(f"v_mov_b32 v{vtmp}, s{sEP}")
        a(f"v_mov_b32 v{vtmp+1}, s{sEP+1}")
        a("s_mov_b64 exec, 1")
        a(f"buffer_store_dwordx2 {vr(vtmp,2)}, off, {sr(S_WS,4)}, s{soff} sc1")
        a("s_mov_b64 exec, -1")
        return
    a("s_mov_b64 exec, 1")
    a(f"v_mov_b32 v{vtmp}, {cnt}")
    a(f"v_mov_b32 v{vtmp+1}, 1")
    a(f"ds_add_rtn_u32 v{vtmp}, v{vtmp}, v{vtmp+1}")
    a("s_waitcnt lgkmcnt(0)")
    a(f"v_readfirstlane_b32 s{sT3}, v{vtmp}")
    a(f"v_mov_b32 v{vtmp}, s{sEP}")
    a(f"v_mov_b32 v{vtmp+1}, s{sEP+1}")
    a(f"s_cmp_eq_u32 s{sT3}, 7")
    a(f"s_cbranch_scc0 {L}")
    a(f"buffer_store_dwordx2 {vr(vtmp,2)}, off, {sr(S_WS,4)}, s{soff} sc1")
    a.label(L)
    a("s_mov_b64 exec, -1")

def poll(a, loads, scnt):
    L = a.uniq("POLL"); D = a.uniq("POLLD")
    a(f"s_mov_b32 s{scnt}, 0")
    a.label(L)
    for nf, vd, vo, so in loads:
        op = "buffer_load_dwordx4" if nf == 2 else "buffer_load_dwordx2"
        a(f"{op} {vr(vd, 2*nf)}, v{vo}, {sr(S_WS,4)}, s{so} offen sc1")
    a("s_waitcnt vmcnt(0)")
    first = True
    for nf, vd, vo, so in loads:
        for k in range(nf):
            if first:
                a(f"v_cmp_ne_u64 vcc, {sr(sEP,2)}, {vr(vd+2*k,2)}")
                first = False
            else:
                a(f"v_cmp_ne_u64 {sr(sT2,2)}, {sr(sEP,2)}, {vr(vd+2*k,2)}")
                a("s_nop 1")
                a(f"s_or_b64 vcc, vcc, {sr(sT2,2)}")
    a("s_nop 1")
    a("s_cmp_eq_u64 vcc, 0")
    a(f"s_cbranch_scc1 {D}")
    a("s_sleep 4")
    a(f"s_add_u32 s{scnt}, s{scnt}, 1")
    a(f"s_cmp_lt_u32 s{scnt}, {SPIN_MAX}")
    a(f"s_cbranch_scc1 {L}")
    a.label(D)


def gen(a):
    name = NAME + "_kernel"
    a.raw(".text")
    a.raw(f".globl {name}")
    a.raw(".p2align 8")
    a.raw(f".type {name},@function")
    a.label(name)
    a("s_cmp_ge_u32 s2, 256")
    a("s_cbranch_scc1 K_END")
    stamp(a, 0, True); stamp(a, 1)
    a("s_load_dwordx16 s[4:19], s[0:1], 0")
    a("s_load_dwordx4 s[20:23], s[0:1], 64")
    a("s_load_dwordx2 s[24:25], s[0:1], 80")
    a(f"v_and_b32 v{vLane}, 63, v0")
    a(f"v_lshrrev_b32 v{vT0}, 6, v0")
    a(f"v_lshlrev_b32 v{vL16}, 4, v{vLane}")
    a(f"v_readfirstlane_b32 s{sW}, v{vT0}")
    if "C" not in X:
        a(f"v_lshlrev_b32 v{vT0}, 6, v0")
        a(f"s_cmp_ge_u32 s{sW}, 4")
        a("s_cbranch_scc1 K_NOPC")
        a(f"s_getpc_b64 {sr(sT0,2)}")
        a.label("K_PC")
        a(f"v_min_u32 v{vT0}, K_END-K_PC, v{vT0}")
        a(f"global_load_dword v12, v{vT0}, {sr(sT0,2)}")
        a.label("K_NOPC")
    a(f"s_and_b32 s{sT0}, s2, 7")
    a(f"s_lshr_b32 s{sT1}, s2, 3")
    if os.environ.get("TILE48"):
        a(f"s_and_b32 s{sRB}, s{sT0}, 3")
        a(f"s_lshl_b32 s{sRB}, s{sRB}, 2")
        a(f"s_and_b32 s{sT2}, s{sT1}, 3")
        a(f"s_add_u32 s{sRB}, s{sRB}, s{sT2}")
        a(f"s_lshr_b32 s{sCG}, s{sT0}, 2")
        a(f"s_lshl_b32 s{sCG}, s{sCG}, 3")
        a(f"s_lshr_b32 s{sT2}, s{sT1}, 2")
        a(f"s_add_u32 s{sCG}, s{sCG}, s{sT2}")
    else:
        a(f"s_and_b32 s{sRB}, s{sT0}, 1")
        a(f"s_lshl_b32 s{sRB}, s{sRB}, 3")
        a(f"s_and_b32 s{sT2}, s{sT1}, 7")
        a(f"s_add_u32 s{sRB}, s{sRB}, s{sT2}")
        a(f"s_lshr_b32 s{sCG}, s{sT0}, 1")
        a(f"s_lshl_b32 s{sCG}, s{sCG}, 2")
        a(f"s_lshr_b32 s{sT2}, s{sT1}, 3")
        a(f"s_add_u32 s{sCG}, s{sCG}, s{sT2}")
    a(f"s_and_b32 s{sTG}, s{sW}, 3")
    a(f"s_lshl_b32 s{sTT}, s{sRB}, 2")
    a(f"s_add_u32 s{sTT}, s{sTT}, s{sTG}")
    a(f"s_sub_u32 s{sT0}, s{sCG}, 2")
    a(f"s_cmp_ge_u32 s{sCG}, 14")
    a(f"s_cselect_b32 s{sFT0}, s{sT0}, s{sCG}")
    a(f"s_lshl_b32 s{sFT0}, s{sFT0}, 2")
    a(f"s_cmp_ge_u32 s{sW}, 8")
    a("s_cbranch_scc1 G_START")
    if "N" not in X:
        a(f"s_cmp_ge_u32 s{sW}, 6")
        a("s_cbranch_scc1 A_START")
        a(f"s_cmp_ge_u32 s{sW}, 4")
        a("s_cbranch_scc1 A_PF1")
        a(f"s_bitcmp1_b32 s{sW}, 0")
        a("s_cbranch_scc1 A_PFQ")
        a(f"s_lshl_b32 s{sT0}, s2, 13")
        a(f"s_lshl_b32 s{sT1}, s{sW}, 8")
        a(f"s_add_u32 s{sT0}, s{sT0}, s{sT1}")
        a(f"v_lshrrev_b32 v{vT0}, 3, v{vLane}")
        a(f"v_lshlrev_b32 v{vT0}, 10, v{vT0}")
        a(f"v_and_b32 v{vT1}, 7, v{vLane}")
        a(f"v_lshl_add_u32 v{vT0}, v{vT1}, 6, v{vT0}")
        a("s_waitcnt lgkmcnt(0)")
        srd(a, S_X, 4, 2048 * 512 * 2)
        a(f"buffer_load_dword v12, v{vT0}, {sr(S_X,4)}, s{sT0} offen")
        a("s_branch A_START")
        a.label("A_PFQ")
        a(f"s_lshr_b32 s{sT1}, s{sW}, 1")
        a(f"s_lshl_b32 s{sT1}, s{sT1}, 8")
        a(f"s_add_u32 s{sT0}, s2, s{sT1}")
        a(f"s_mul_i32 s{sT0}, s{sT0}, 3072")
        a(f"v_min_u32 v{vT0}, 47, v{vLane}")
        a(f"v_lshlrev_b32 v{vT0}, 6, v{vT0}")
        a("s_waitcnt lgkmcnt(0)")
        srd(a, S_WQ, 6, 512 * 1536 * 2)
        a(f"buffer_load_dword v12, v{vT0}, {sr(S_WQ,4)}, s{sT0} offen")
        a("s_branch A_START")
        a.label("A_PF1")
        a(f"s_and_b32 s{sT1}, s{sW}, 1")
        a(f"s_lshl_b32 s{sT1}, s{sT1}, 8")
        a(f"s_add_u32 s{sT0}, s2, s{sT1}")
        a(f"s_mul_i32 s{sT0}, s{sT0}, 3584")
        a(f"v_min_u32 v{vT0}, 55, v{vLane}")
        a(f"v_lshlrev_b32 v{vT0}, 6, v{vT0}")
        a("s_waitcnt lgkmcnt(0)")
        srd(a, S_W1, 12, 512 * 1792 * 2)
        if os.environ.get("PFSL"): a(f"s_sleep {os.environ['PFSL']}")
        a(f"buffer_load_dword v12, v{vT0}, {sr(S_W1,4)}, s{sT0} offen")
        a("s_branch A_START")
    if "N" in X: a("s_branch A_START")
    a.label("G_START")
    gen_G(a)
    a("s_endpgm")
    gen_A(a)
    a.label("K_END")
    a("s_endpgm")
    return name

def srds_rest(a):
    srd(a, S_WS, 24, WS_SIZE)
    srd(a, S_B1, 14, 1792 * 2)
    srd(a, S_W2, 16, 1792 * 512 * 2)
    srd(a, S_WO, 8, 512 * 512 * 2)
    srd(a, S_OUT, 20, 2048 * 512 * 2)
    srd(a, S_DBG, 22, 256)


def gen_A(a):
    a.label("A_START")
    vXrd, vW0, vW1, vT2 = 5, 9, 10, 11
    FA, FB = 16, 28
    ACC = 64
    BIAS = 96
    PK = 128
    TMP = 16
    sN, sD = 26, 27
    a(f"s_lshl_b32 s{sT0}, s{sTG}, 12")
    a(f"v_and_b32 v{vT0}, 31, v{vLane}")
    a(f"v_lshrrev_b32 v{vT1}, 5, v{vLane}")
    a(f"v_bfe_u32 v{vT2}, v{vLane}, 1, 3")
    a(f"v_xor_b32 v{vT2}, v{vT2}, v{vT1}")
    a(f"v_lshlrev_b32 v{vT0}, 7, v{vT0}")
    a(f"v_add_u32 v{vT0}, s{sT0}, v{vT0}")
    for ks in range(4):
        a(f"v_xor_b32 v{vXrd+ks}, {2*ks}, v{vT2}")
        a(f"v_lshl_add_u32 v{vXrd+ks}, v{vXrd+ks}, 4, v{vT0}")
    a(f"v_bfe_u32 v{vT0}, v{vLane}, 2, 2")
    a(f"v_lshl_add_u32 v{vT0}, v{vT1}, 3, v{vT0}")
    a(f"v_lshlrev_b32 v{vW0}, 6, v{vT0}")
    a(f"v_bfe_u32 v{vT0}, v{vLane}, 4, 1")
    a(f"v_lshl_add_u32 v{vW0}, v{vT0}, 5, v{vW0}")
    a(f"v_and_b32 v{vT0}, 3, v{vLane}")
    a(f"v_lshl_add_u32 v{vW0}, v{vT0}, 3, v{vW0}")
    a(f"s_lshr_b32 s{sT0}, s{sW}, 2")
    a(f"s_lshl_b32 s{sT0}, s{sT0}, 13")
    a(f"s_add_u32 s{sT0}, s{sT0}, 16384")
    a(f"v_add_u32 v{vW0}, s{sT0}, v{vW0}")
    a(f"v_lshlrev_b32 v{vW1}, 4, v{vT1}")
    a(f"v_add_u32 v{vW1}, {L_GW}, v{vW1}")
    a(f"v_lshlrev_b32 v{vT2}, 3, v{vT1}")
    a(f"s_lshr_b32 s{sT0}, s{sW}, 2")
    a(f"s_lshl_b32 s{sT0}, s{sT0}, 7")
    a(f"s_add_u32 s{sT0}, s{sT0}, {L_B1}")
    a(f"v_add_u32 v{vT2}, s{sT0}, v{vT2}")
    for i in range(32):
        a(f"v_mov_b32 v{ACC+i}, 0")
    a(f"v_and_b32 v13, 27, v{vLane}")
    a(f"v_cmp_eq_u32 vcc, 16, v13")
    a(f"v_mov_b32 v14, 0x3f803f80")
    a("s_nop 0")
    a(f"v_cndmask_b32 v13, 0, v14, vcc")
    for i in range(16):
        a(f"v_mov_b32 v{112+i}, v13")
    for i in range(16):
        a(f"v_mov_b32 v{152+i}, 0")
    for i, c in enumerate((LOG2E, 2.0, -2.0, 1.0)):
        a(f"v_mov_b32 v{144+2*i}, {f32(c)}")
        a(f"v_mov_b32 v{145+2*i}, {f32(c)}")
    a(f"s_mov_b32 s{sN}, 0")
    a("s_waitcnt lgkmcnt(0)")
    srds_rest(a)
    estamp(a, 3)
    a("s_barrier")
    stamp(a, 2)
    estamp(a, 6)

    def reads(ks, F, par, gate=False, only1=False):
        if "R" in X: return
        if not only1:
            a(f"ds_read_b128 {vr(F,4)}, v{vXrd+ks} offset:{par*32768}")
        for t in range(2):
            if only1 and t == 0: continue
            if gate and t == 1:
                a(f"ds_read_b128 {vr(F+8,4)}, v{vW1} offset:{(par*4+ks)*32}")
                continue
            a(f"ds_read_b64_tr_b16 {vr(F+4+4*t,2)}, v{vW0} offset:{par*32768+t*4096+ks*1024}")
            a(f"ds_read_b64_tr_b16 {vr(F+4+4*t+2,2)}, v{vW0} offset:{par*32768+t*4096+ks*1024+256}")

    def mfmas(F, swap0):
        if "M" in X: return
        for t in range(2):
            acc = ACC + 16 * t
            if swap0 and t == 0:
                a(f"v_mfma_f32_32x32x16_bf16 {vr(acc,16)}, {vr(F,4)}, {vr(F+4+4*t,4)}, {vr(acc,16)}")
            else:
                a(f"v_mfma_f32_32x32x16_bf16 {vr(acc,16)}, {vr(F+4+4*t,4)}, {vr(F,4)}, {vr(acc,16)}")

    FS = [16 + 12 * i for i in range(4)]
    def loop(lab, swap0):
        nr = 4 if swap0 else 5
        a.raw(".p2align 3")
        a.label(lab)
        for par in range(2):
            for j in range(4):
                a(f"s_waitcnt lgkmcnt({2*nr})")
                if j == 1:
                    if par == 1:
                        for k in range(4):
                            a(f"v_xor_b32 v{vXrd+k}, s{sT3}, v{vXrd+k}")
                        a(f"v_xor_b32 v{vW0}, s{sT3}, v{vW0}")
                        if swap0:
                            a(f"v_add_u32 v{vW1}, s{sD}, v{vW1}")
                        else:
                            L = a.uniq("A_NOVM")
                            a(f"s_cmp_eq_u32 s{sN}, 12")
                            a(f"s_cbranch_scc0 {L}")
                            a("s_waitcnt vmcnt(0)")
                            a.label(L)
                    a("s_barrier")
                elif j == 0 and par == 0:
                    a(f"s_add_u32 s{sN}, s{sN}, 2")
                elif j == 3 and par == 1:
                    a(f"s_and_b32 s{sT0}, s{sN}, 7")
                else:
                    a("s_nop 0")
                jj = j + 3
                reads(jj & 3, FS[jj & 3], par if jj < 4 else 1 - par, swap0)
                mfmas(FS[j], swap0)
        a(f"s_cbranch_scc1 {lab}")

    istamp(a, 4)
    a(f"s_mov_b32 s{sT3}, 65536")
    a(f"s_movk_i32 s{sD}, 256")
    a(f"s_cmp_ge_u32 s{sW}, 4")
    a("s_cbranch_scc1 A_L2P")
    for ks in range(3):
        reads(ks, FS[ks], 0)
    loop("A_L1", False)
    a(f"s_cmp_eq_u32 s{sN}, 16")
    a("s_cbranch_scc1 A_MISH")
    stamp(a, 3)
    a("s_waitcnt lgkmcnt(7)")
    for g in range(8):
        a(f"ds_read_b64 {vr(BIAS + 2 * g, 2)}, v{vT2} offset:{g*16}")
    a(f"v_and_b32 v{vT0}, 0x33, v{vLane}")
    a(f"v_bfe_u32 v{vT1}, v{vLane}, 2, 1")
    a(f"v_lshl_add_u32 v{vT0}, v{vT1}, 3, v{vT0}")
    a(f"v_bfe_u32 v{vT1}, v{vLane}, 3, 1")
    a(f"v_lshl_add_u32 v{vT0}, v{vT1}, 2, v{vT0}")
    a(f"v_lshlrev_b32 v{vT0}, 4, v{vT0}")
    a(f"s_lshl_b32 s4, s{sCG}, 17")
    a(f"s_lshl_b32 s5, s{sTT}, 10")
    a(f"s_add_u32 s4, s4, s5")
    a(f"s_lshl_b32 s6, s4, 1")
    a(f"s_add_u32 s4, s4, {WS_QF:#x}")
    a(f"s_add_u32 s5, s4, 65536")
    a(f"s_add_u32 s6, s6, {WS_KV:#x}")
    a(f"s_add_u32 s7, s6, 131072")
    a(f"s_mov_b32 s8, {f32(0.25 * LOG2E)}")
    a(f"s_mov_b32 s9, {f32(0.25 * LOG2E)}")
    for i in range(8):
        a(f"v_pk_mul_f32 {vr(ACC+2*i,2)}, {vr(ACC+2*i,2)}, s[8:9]")
    for i in range(16):
        a(f"v_cvt_pk_bf16_f32 v{PK + i}, v{ACC + 2 * i}, v{ACC + 2 * i + 1}")
    istamp(a, 5)
    a(f"buffer_store_dwordx4 {vr(PK+8,4)}, v{vT0}, {sr(S_WS,4)}, s6 offen sc1")
    a(f"buffer_store_dwordx4 {vr(PK+12,4)}, v{vT0}, {sr(S_WS,4)}, s7 offen sc1")
    a(f"buffer_store_dwordx4 {vr(PK,4)}, v{vL16}, {sr(S_WS,4)}, s4 offen sc1")
    a(f"buffer_store_dwordx4 {vr(PK+4,4)}, v{vL16}, {sr(S_WS,4)}, s5 offen sc1")
    a.label("A_BIAS")
    a("s_waitcnt lgkmcnt(0)")
    istamp(a, 6)
    for g in range(8):
        b = ACC + 4 * g
        a(f"v_lshlrev_b32 v{b}, 16, v{BIAS+2*g}")
        a(f"v_and_b32 v{b+1}, 0xffff0000, v{BIAS+2*g}")
        a(f"v_lshlrev_b32 v{b+2}, 16, v{BIAS+2*g+1}")
        a(f"v_and_b32 v{b+3}, 0xffff0000, v{BIAS+2*g+1}")
    istamp(a, 7)
    a("s_branch A_L1")
    a.label("A_L2P")
    for ks in range(3):
        reads(ks, FS[ks], 0, True)
    loop("A_L2", True)
    a("s_waitcnt lgkmcnt(0)")
    for ks in range(3):
        reads(ks, FS[ks], 0, False, True)
    stamp(a, 3)
    a("s_waitcnt lgkmcnt(7)")
    for g in range(8):
        a(f"ds_read_b64 {vr(BIAS + 2 * g, 2)}, v{vT2} offset:{g*16}")
    a(f"v_and_b32 v{vT0}, 0x2f, v{vLane}")
    a(f"v_lshlrev_b32 v{vT0}, 4, v{vT0}")
    a(f"v_bfe_u32 v{vT1}, v{vLane}, 4, 1")
    a(f"v_lshl_add_u32 v{vT0}, v{vT1}, 17, v{vT0}")
    a(f"s_lshl_b32 s4, s{sCG}, 18")
    a(f"s_lshl_b32 s5, s{sTT}, 11")
    a(f"s_add_u32 s4, s4, s5")
    a(f"s_add_u32 s4, s4, {WS_KV:#x}")
    a(f"s_lshl_b32 s5, s{sTT}, 7")
    a(f"s_add_u32 s5, s5, {WS_G:#x}")
    a(f"v_lshlrev_b32 v{vT1}, 2, v{vLane}")
    for i in range(8):
        a(f"v_cvt_pk_bf16_f32 v{PK + i}, v{ACC + 2 * i}, v{ACC + 2 * i + 1}")
    a(f"v_mul_f32 v{PK+8}, {f32(-LOG2E)}, v{ACC+16}")
    a(f"v_exp_f32 v{PK+8}, v{PK+8}")
    a(f"buffer_store_dwordx4 {vr(PK,4)}, v{vT0}, {sr(S_WS,4)}, s4 offen offset:1024 sc1")
    a(f"v_add_f32 v{PK+8}, 1.0, v{PK+8}")
    a(f"v_rcp_f32 v{PK+8}, v{PK+8}")
    a(f"buffer_store_dwordx4 {vr(PK+4,4)}, v{vT0}, {sr(S_WS,4)}, s4 offen offset:1280 sc1")
    a("s_mov_b32 exec_hi, 0")
    a(f"buffer_store_dword v{PK+8}, v{vT1}, {sr(S_WS,4)}, s5 offen sc1")
    a("s_mov_b64 exec, -1")
    a("s_waitcnt lgkmcnt(0)")
    a("s_branch A_BIAS")
    a.label("A_MISH")
    stamp(a, 4)
    a(f"s_mul_i32 s13, s{sTT}, 112")
    a(f"s_lshl_b32 s{sT1}, s{sFT0}, 1")
    a(f"s_add_u32 s13, s13, s{sT1}")
    a(f"s_lshr_b32 s{sT1}, s{sW}, 2")
    a(f"s_lshl_b32 s{sT1}, s{sT1}, 2")
    a(f"s_add_u32 s13, s13, s{sT1}")
    a(f"s_lshl_b32 s13, s13, 10")
    a(f"s_add_u32 s13, s13, {WS_ACT:#x}")
    a("s_waitcnt lgkmcnt(0)")
    a("s_nop 3")
    mish16(a, ACC, TMP, 128, 144)
    a(f"buffer_store_dwordx4 {vr(128,4)}, v{vL16}, {sr(S_WS,4)}, s13 offen sc1")
    a(f"buffer_store_dwordx4 {vr(132,4)}, v{vL16}, {sr(S_WS,4)}, s13 offen offset:1024 sc1")
    mish16(a, ACC + 16, TMP, 136, 144)
    a(f"buffer_store_dwordx4 {vr(136,4)}, v{vL16}, {sr(S_WS,4)}, s13 offen offset:2048 sc1")
    a(f"buffer_store_dwordx4 {vr(140,4)}, v{vL16}, {sr(S_WS,4)}, s13 offen offset:3072 sc1")

    a.label("A_PH2")
    sHead, sQT, sI, sB1, sB2, sPass = 4, 5, 6, 7, 8, 9
    sMask = 10
    vAddr, vIdx, vG = 5, 6, 7
    Q = 8
    KB = [12, 16]
    VB = [112, 120]
    S = [36, 52]
    C = 68
    O = 152
    vFl = 100
    a(f"s_and_b32 s{sT0}, s2, 7")
    a(f"s_lshl_b32 s{sHead}, s{sT0}, 2")
    a(f"s_bfe_u32 s{sT0}, s2, 0x20003")
    a(f"s_add_u32 s{sHead}, s{sHead}, s{sT0}")
    a(f"s_lshr_b32 s{sQT}, s2, 5")
    a(f"s_lshl_b32 s{sQT}, s{sQT}, 3")
    a(f"s_add_u32 s{sQT}, s{sQT}, s{sW}")
    a(f"v_mov_b32 v{vIdx}, 0xdddddddd")
    a(f"s_mov_b32 s{sMask}, 0x0000ffff")
    a(f"s_mov_b32 s{sMask+1}, 0x0000ffff")
    a(f"v_mov_b32 v{vAddr}, v{vL16}")
    a(f"s_mov_b32 s{sB1}, 1")
    a(f"s_mov_b32 s{sB2}, 3")
    a(f"s_mov_b32 s{sPass}, 0")
    a(f"s_lshl_b32 s{sT0}, s{sW}, 10")
    a(f"s_add_u32 s{sT0}, s{sT0}, {L_Q}")
    a(f"v_add_u32 v{vT1}, s{sT0}, v{vL16}")
    a(f"s_lshl_b32 s12, s{sQT}, 15")
    a(f"s_lshl_b32 s{sT1}, s{sHead}, 10")
    a(f"s_add_u32 s12, s12, s{sT1}")
    a(f"s_add_u32 s12, s12, {WS_OF:#x}")
    for i in range(4):
        a(f"v_mov_b32 v{104+i}, -1")
    a(f"buffer_store_dwordx4 {vr(104,4)}, v{vL16}, {sr(S_WS,4)}, s12 offen sc1")
    a("s_setprio 2")
    stamp(a, 5)
    a("s_barrier")
    stamp(a, 6)
    a(f"ds_read_b128 {vr(Q,4)}, v{vT1}")
    a(f"ds_read_b128 {vr(KB[0],4)}, v{vAddr} offset:0")
    a("s_waitcnt lgkmcnt(0)")
    a(f"v_mfma_f32_32x32x16_bf16 {vr(S[0],16)}, {vr(KB[0],4)}, {vr(Q,4)}, 0")
    a("s_nop 7")
    a("s_nop 7")
    s0 = S[0]
    a(f"v_max3_f32 v{vT0}, v{s0}, v{s0+1}, v{s0+2}")
    for i in range(3, 15, 2):
        a(f"v_max3_f32 v{vT0}, v{vT0}, v{s0+i}, v{s0+i+1}")
    a(f"v_max_f32 v{vT0}, v{vT0}, v{s0+15}")
    a.label("A_SETMAX")
    a(f"v_mov_b32 v{vT1}, v{vT0}")
    a("s_nop 1")
    a(f"v_permlane32_swap_b32 v{vT0}, v{vT1}")
    a("s_nop 1")
    a(f"v_max_f32 v{vT0}, v{vT0}, v{vT1}")
    for i in range(16):
        a(f"v_sub_f32 v{C+i}, 0, v{vT0}")
    a(f"ds_read_b128 {vr(KB[0],4)}, v{vAddr} offset:0")
    a(f"ds_read_b128 {vr(KB[1],4)}, v{vAddr} offset:2048")
    a(f"s_mov_b64 exec, {sr(sMask,2)}")
    a(f"ds_read_b128 {vr(VB[0],4)}, v{vAddr} offset:1024")
    a(f"ds_read_b128 {vr(VB[0]+4,4)}, v{vAddr} offset:1280")
    a("s_mov_b64 exec, -1")
    a("s_waitcnt lgkmcnt(0)")
    a(f"v_mfma_f32_32x32x16_bf16 {vr(S[0],16)}, {vr(KB[0],4)}, {vr(Q,4)}, {'0' if 'Z' in X else vr(C,16)}")
    a(f"s_mov_b32 s{sI}, 0")
    for i in range(8, 16):
        a(f"v_mov_b32 v{S[1]+i}, 0")
    a("s_nop 7")
    a.raw(".p2align 6")
    a.label("A_LOOP")
    for u in range(4):
        p = u & 1
        cur, nxt = S[p], S[1 - p]
        def E(lo, hi):
            for i in range(lo, hi):
                a(f"v_exp_f32 v{cur+i}, v{cur+i}")
        E(0, 2)
        a(f"v_smfmac_f32_32x32x32_bf16 {vr(O,16)}, {vr(VB[1-p]+4,4)}, {vr(nxt+8,8)}, v{vIdx}")
        E(2, 7)
        a("s_waitcnt lgkmcnt(0)")
        a(f"v_mfma_f32_32x32x16_bf16 {vr(nxt,16)}, {vr(KB[1-p],4)}, {vr(Q,4)}, {'0' if 'Z' in X else vr(C,16)}")
        a(f"ds_read_b128 {vr(KB[p],4)}, v{vAddr} offset:{(u+2)*2048}")
        E(7, 8)
        a(f"s_mov_b64 exec, {sr(sMask,2)}")
        a(f"ds_read_b128 {vr(VB[1-p],4)}, v{vAddr} offset:{(u+1)*2048+1024}")
        a(f"ds_read_b128 {vr(VB[1-p]+4,4)}, v{vAddr} offset:{(u+1)*2048+1280}")
        a("s_mov_b64 exec, -1")
        E(8, 13)
        a(f"v_smfmac_f32_32x32x32_bf16 {vr(O,16)}, {vr(VB[p],4)}, {vr(cur,8)}, v{vIdx}")
        if u == 3:
            a(f"v_add_u32 v{vAddr}, 8192, v{vAddr}")
            E(13, 16)
            a(f"s_add_u32 s{sI}, s{sI}, 1")
            a(f"s_cmp_lt_u32 s{sI}, s{sB1}")
        else:
            a(f"v_exp_f32_e64 v{cur+13}, v{cur+13}")
            E(14, 16)
    a("s_cbranch_scc1 A_LOOP")
    a(f"s_cmp_eq_u32 s{sI}, 1")
    a("s_cbranch_scc0 A_SEG2")
    a(f"s_mov_b32 s{sB1}, 3")
    if EARLYF: a("s_waitcnt vmcnt(0)")
    a("s_barrier")
    a("s_branch A_LOOP")
    a.label("A_SEG2")
    a(f"s_cmp_eq_u32 s{sI}, 3")
    a("s_cbranch_scc0 A_SEG3")
    a(f"s_mov_b32 s{sB1}, {PR1}")
    a("s_waitcnt vmcnt(0)")
    a("s_barrier")
    a("s_branch A_LOOP")
    a.label("A_SEG3")
    a(f"s_cmp_eq_u32 s{sI}, {PR1}")
    a("s_cbranch_scc0 A_SEG4")
    a(f"s_mov_b32 s{sB1}, {PR2}")
    a("s_setprio 1")
    a(f"v_and_b32 v{vT0}, 31, v{vLane}")
    a(f"v_lshlrev_b32 v{vT0}, 2, v{vT0}")
    a(f"s_lshl_b32 s{sT0}, s{sQT}, 7")
    a(f"s_add_u32 s{sT0}, s{sT0}, {WS_G:#x}")
    a(f"buffer_load_dword v{vG}, v{vT0}, {sr(S_WS,4)}, s{sT0} offen sc1")
    a("s_branch A_LOOP")
    a.label("A_SEG4")
    a(f"s_cmp_eq_u32 s{sI}, {PR2}")
    a("s_cbranch_scc0 A_SEG5")
    a(f"s_mov_b32 s{sB1}, 16")
    a("s_setprio 0")
    a("s_branch A_LOOP")
    a.label("A_SEG5")
    a(f"v_smfmac_f32_32x32x32_bf16 {vr(O,16)}, {vr(VB[1]+4,4)}, {vr(S[1]+8,8)}, v{vIdx}")
    a("s_waitcnt lgkmcnt(0)")
    a("s_nop 7")
    a("s_nop 7")
    a(f"s_cmp_lg_u32 s{sPass}, 0")
    a("s_cbranch_scc1 A_FIN")
    a(f"v_max3_f32 v{vT0}, |v{O}|, |v{O+1}|, |v{O+2}|")
    a(f"v_max3_f32 v{vT0}, v{vT0}, |v{O+3}|, |v{O+4}|")
    a(f"v_max3_f32 v{vT0}, v{vT0}, |v{O+5}|, |v{O+6}|")
    a(f"v_max_f32 v{vT0}, v{vT0}, |v{O+7}|")
    a(f"v_mov_b32 v{vT1}, 0x7f800000")
    a(f"v_cmp_nlt_f32 vcc, v{vT0}, v{vT1}")
    a(f"v_mov_b32 v{vT1}, {f32(2.0**30)}")
    a(f"v_cmp_nlt_f32 {sr(sT2,2)}, v{O+8}, v{vT1}")
    a("s_nop 1")
    a(f"s_or_b64 vcc, vcc, {sr(sT2,2)}")
    a("s_cbranch_scc0 A_FIN")
    a(f"s_mov_b32 s{sPass}, 1")
    a(f"s_mov_b32 s{sB1}, 16")
    a(f"v_mov_b32 v{vAddr}, v{vL16}")
    a(f"v_mov_b32 v{vT0}, 0xff800000")
    a(f"s_mov_b32 s{sI}, 0")
    a.label("A_MAXLOOP")
    a(f"ds_read_b128 {vr(KB[0],4)}, v{vAddr} offset:0")
    a("s_waitcnt lgkmcnt(0)")
    a(f"v_mfma_f32_32x32x16_bf16 {vr(S[0],16)}, {vr(KB[0],4)}, {vr(Q,4)}, 0")
    a(f"v_add_u32 v{vAddr}, 2048, v{vAddr}")
    a("s_nop 7")
    a("s_nop 7")
    for i in range(0, 16, 2):
        a(f"v_max3_f32 v{vT0}, v{vT0}, v{s0+i}, v{s0+i+1}")
    a(f"s_add_u32 s{sI}, s{sI}, 1")
    a(f"s_cmp_lt_u32 s{sI}, 64")
    a("s_cbranch_scc1 A_MAXLOOP")
    a(f"v_mov_b32 v{vAddr}, v{vL16}")
    for i in range(16):
        a(f"v_mov_b32 v{O+i}, 0")
    a("s_branch A_SETMAX")
    a.label("A_FIN")
    stamp(a, 7)
    a(f"v_rcp_f32 v{vT0}, v{O+8}")
    a("s_waitcnt vmcnt(0)")
    a(f"v_mul_f32 v{vT0}, v{vT0}, v{vG}")
    for i in range(8):
        a(f"v_mul_f32 v{O+i}, v{O+i}, v{vT0}")
    for i in range(4):
        a(f"v_cvt_pk_bf16_f32 v{O+i}, v{O+2*i}, v{O+2*i+1}")
    for i in range(4):
        a(f"v_min_u32 v{O+i}, -2, v{O+i}")
    a(f"buffer_store_dwordx4 {vr(O,4)}, v{vL16}, {sr(S_WS,4)}, s12 offen sc1")
    stamp(a, 9); stamp(a, 8, True)
    stamp_flush(a)
    a("s_endpgm")


def gen_G(a):
    sXoff, sLX, sWQ0, sW10, sGO = 26, 27, 80, 81, 3
    sGW = sTG
    vDX0, vDX1, vDWq, vDW1, vT2 = 5, 6, 7, 8, 9
    vWe, vWo, vW2w, vGo = 10, 11, 12, 13
    vEp = 14
    RS = 16
    NSETS = int(os.environ.get("NSETS", "9"))
    PER = int(os.environ.get("PER", "1"))
    a("s_setprio 3")
    a(f"s_lshl_b32 s{sXoff}, s{sTT}, 15")
    a(f"s_lshl_b32 s{sLX}, s{sTG}, 12")
    a(f"s_mul_i32 s{sWQ0}, s{sTG}, {16*3072}")
    a(f"s_lshl_b32 s{sT0}, s{sCG}, 6")
    a(f"s_add_u32 s{sWQ0}, s{sWQ0}, s{sT0}")
    a(f"v_lshrrev_b32 v{vT0}, 3, v{vLane}")
    a(f"v_lshrrev_b32 v{vT1}, 4, v{vLane}")
    a(f"v_and_b32 v{vT2}, 7, v{vLane}")
    a(f"v_xor_b32 v{vT2}, v{vT2}, v{vT1}")
    a(f"v_lshlrev_b32 v{vDX0}, 10, v{vT0}")
    a(f"v_lshl_add_u32 v{vDX0}, v{vT2}, 4, v{vDX0}")
    a(f"v_xor_b32 v{vDX1}, 64, v{vDX0}")
    a(f"v_add_u32 v{vDX1}, 8192, v{vDX1}")
    a(f"v_lshrrev_b32 v{vT0}, 2, v{vLane}")
    a(f"v_and_b32 v{vT2}, 3, v{vLane}")
    a(f"v_lshlrev_b32 v{vT2}, 4, v{vT2}")
    a(f"v_mul_u32_u24 v{vDWq}, 3072, v{vT0}")
    a(f"v_add_u32 v{vDWq}, v{vDWq}, v{vT2}")
    a(f"v_mul_u32_u24 v{vDW1}, 3584, v{vT0}")
    a(f"v_add_u32 v{vDW1}, v{vDW1}, v{vT2}")
    sLW = sGO
    a(f"s_lshl_b32 s{sLW}, s{sTG}, 10")
    a("s_waitcnt lgkmcnt(0)")
    estamp(a, 2)
    srd(a, S_X, 4, 2048 * 512 * 2)
    srd(a, S_WQ, 6, 512 * 1536 * 2)
    srd(a, S_GW, 18, 1024)

    q = []
    def vm(tag):
        q.append(tag)
    def wait_tag(tag, extra=""):
        last = max(i for i, t in enumerate(q) if t == tag)
        n = len(q) - 1 - last
        assert n < 64
        a(f"s_waitcnt vmcnt({n}){extra}")

    def dma(lds_s, lds_imm, voff, srdn, s_base, imm, extra=""):
        a(f"s_add_u32 m0, s{lds_s}, {lds_imm}")
        a(f"s_add_u32 s{sT0}, s{s_base}, {imm}")
        a(f"buffer_load_dwordx4 v{voff}, {sr(srdn,4)}, s{sT0} offen{extra} lds")

    ROT = int(os.environ.get("ROT", "0"))
    sRot, sXo, sWo = 82, 83, 78
    sWo = 25
    def issue(n):
        base = (n & 3) * 32768
        st = n if n < 8 else ((n - 4) & 7 if REUSE else n & 7)
        xb, wb, sti = sXoff, (sWQ0 if n < 8 else sW10), st
        if ROT:
            a(f"s_add_u32 s{sT1}, s{sRot}, {st}")
            a(f"s_and_b32 s{sT1}, s{sT1}, 7")
            a(f"s_lshl_b32 s{sXo}, s{sT1}, 7")
            a(f"s_add_u32 s{sXo}, s{sXo}, s{sXoff}")
            a(f"s_mul_i32 s{sT2}, s{sT1}, {64 * (3072 if n < 8 else 3584)}")
            a(f"s_add_u32 s{sT2}, s{sT2}, s{wb}")
            xb, wb, sti = sXo, sT2, 0
        if not (REUSE and 8 <= n < 12):
            for j in range(4):
                dma(sLX, base + j * 1024, vDX0 if j % 2 == 0 else vDX1, S_X, xb, (j >> 1) * 16384 + sti * 128); vm(n)
        if n < 8:
            for t in range(3):
                dma(sLW, base + 16384 + t * 4096, vDWq, S_WQ, wb, sti * 64 * 3072 + t * 1024); vm(n)
        else:
            for t in range(4):
                dma(sLW, base + 16384 + t * 4096, vDW1, S_W1, wb, sti * 64 * 3584 + t * 64); vm(n)

    if ROT:
        a(f"s_lshr_b32 s{sRot}, s2, 3")
        a(f"s_lshr_b32 s{sT1}, s2, 6")
        a(f"s_lshl_b32 s{sT1}, s{sT1}, 1")
        a(f"s_add_u32 s{sRot}, s{sRot}, s{sT1}")
        if ROT == 2: a(f"s_and_b32 s{sRot}, s{sRot}, 3")
        a(f"s_and_b32 s{sRot}, s{sRot}, 7")
        a(f"s_lshl_b32 s{sT1}, s{sRot}, 7")
        a(f"v_add_u32 v10, s{sT1}, v{vL16}")
        a(f"v_and_b32 v10, 0x3ff, v10")
    estamp(a, 3)
    a(f"s_mov_b32 m0, {L_GW}")
    a("s_nop 0")
    a(f"buffer_load_dwordx4 v{10 if ROT else vL16}, {sr(S_GW,4)}, 0 offen lds"); vm(0)
    issue(0)
    estamp(a, 4)
    issue(1)
    srd(a, S_W1, 12, 512 * 1792 * 2)
    srds_rest(a)
    a(f"s_mul_i32 s{sW10}, s{sTG}, {16*3584}")
    a(f"s_lshl_b32 s{sT0}, s{sFT0}, 6")
    a(f"s_add_u32 s{sW10}, s{sW10}, s{sT0}")
    a(f"s_mov_b32 m0, {L_B1}")
    a(f"s_lshl_b32 s{sT0}, s{sFT0}, 6")
    a(f"buffer_load_dwordx4 v{vL16}, {sr(S_B1,4)}, s{sT0} offen lds"); vm(1)
    a(f"s_lshl_b32 s{sT0}, s2, 4")
    a(f"s_add_u32 s{sT0}, s{sT0}, s{sW}")
    a(f"s_cmp_eq_u32 s{sT0}, 8")
    a("s_cbranch_scc0 G_NOEP")
    a(f"s_memrealtime {sr(sEP,2)}")
    a("s_waitcnt lgkmcnt(0)")
    a(f"s_or_b32 s{sEP}, s{sEP}, 1")
    a(f"v_mov_b32 v{vEp}, s{sEP}")
    a(f"v_mov_b32 v{vEp+1}, s{sEP+1}")
    a("s_mov_b64 exec, 1")
    a(f"buffer_store_dwordx2 {vr(vEp,2)}, off, {sr(S_DBG,4)}, 0 sc1")
    a("s_mov_b64 exec, -1")
    a.label("G_NOEP")
    estamp(a, 5)
    wait_tag(0)
    estamp(a, 6)
    a("s_barrier")
    stamp(a, 2)
    estamp(a, 7)
    ORD = int(os.environ.get("ORD", "0"))
    if ORD <= 1: issue(2)
    for n in range(16):
        if n == 0 and ORD == 0:
            issue(3)
        if n == int(os.environ.get("PFW1", "99")) and "N" not in X:
            a(f"s_lshr_b32 s{sT0}, s2, 3")
            a(f"s_lshl_b32 s{sT0}, s{sT0}, 4")
            a(f"s_lshl_b32 s{sT1}, s{sGW}, 2")
            a(f"s_add_u32 s{sT0}, s{sT0}, s{sT1}")
            a(f"s_mul_i32 s{sT0}, s{sT0}, 3584")
            a(f"s_bfe_u32 s{sT1}, s2, 0x20001")
            a(f"s_lshl_b32 s{sT1}, s{sT1}, 10")
            a(f"s_add_u32 s{sT0}, s{sT0}, s{sT1}")
            a(f"v_mul_u32_u24 v16, 3584, v{vT1}")
            a(f"v_and_b32 v17, 15, v{vLane}")
            a(f"v_lshl_add_u32 v16, v17, 6, v16")
            a(f"buffer_load_dword v17, v16, {sr(S_W1,4)}, s{sT0} offen"); vm("pf")
        if n == int(os.environ.get("PFW2", "99")):
            a(f"v_lshlrev_b32 v16, 6, v{vLane}")
            a(f"s_cmp_ge_u32 s{sGW}, 2")
            a("s_cbranch_scc1 G_PFO")
            a(f"s_mul_i32 s{sT0}, s2, 7168")
            a(f"s_mul_i32 s{sT1}, s{sGW}, 3584")
            a(f"s_add_u32 s{sT0}, s{sT0}, s{sT1}")
            a(f"v_min_u32 v16, {55*64}, v16")
            a(f"buffer_load_dword v17, v16, {sr(S_W2,4)}, s{sT0} offen")
            a("s_branch G_PFD")
            a.label("G_PFO")
            a(f"s_lshl_b32 s{sT0}, s2, 11")
            a(f"v_min_u32 v16, {31*64}, v16")
            a(f"buffer_load_dword v17, v16, {sr(S_WO,4)}, s{sT0} offen")
            a.label("G_PFD")
            vm("pf2")
        if n == 4:
            a(f"buffer_load_dwordx2 {vr(vEp,2)}, off, {sr(S_DBG,4)}, 0 sc1"); vm("ep")
        if n == 10:
            wait_tag("ep")
            a(f"s_mov_b32 s{sT1}, 0")
            a.label("G_EPL")
            a(f"v_readfirstlane_b32 s{sEP}, v{vEp}")
            a(f"v_readfirstlane_b32 s{sEP+1}, v{vEp+1}")
            a(f"s_cmp_lg_u32 s{sEP}, 0")
            a("s_cbranch_scc1 G_EPD")
            a("s_sleep 4")
            a(f"buffer_load_dwordx2 {vr(vEp,2)}, off, {sr(S_DBG,4)}, 0 sc1")
            a("s_waitcnt vmcnt(0)")
            a(f"s_add_u32 s{sT1}, s{sT1}, 1")
            a(f"s_cmp_lt_u32 s{sT1}, {SPIN_MAX}")
            a("s_cbranch_scc1 G_EPL")
            a.label("G_EPD")
        if n + 1 <= 15:
            wait_tag(n + 1)
        a("s_barrier")
        if n == 0 and ORD == 2: issue(2)
        if (1 <= n or ORD >= 1) and n + 3 <= 15:
            issue(n + 3)
        if "P" in X and STAMPS:
            P0 = int(os.environ.get("P0", "8"))
            if P0 <= n + 1 < P0 + 6:
                i = n + 1 - P0 + 2
                a(f"s_memtime s[{82+2*i}:{83+2*i}]")
                a("s_waitcnt lgkmcnt(0)")
        if n + 1 == 12:
            a(f"s_cmp_eq_u32 s{sGW}, 0")
            a("s_cbranch_scc0 G_NOF1")
            a(f"s_lshl_b32 s{sT0}, s{sCG}, 7")
            a(f"s_lshl_b32 s{sT1}, s{sRB}, 3")
            a(f"s_add_u32 s{sT0}, s{sT0}, s{sT1}")
            a(f"s_add_u32 s{sT0}, s{sT0}, {WS_FKV:#x}")
            a("s_mov_b64 exec, 1")
            a(f"buffer_store_dwordx2 {vr(vEp,2)}, off, {sr(S_WS,4)}, s{sT0} sc1")
            a("s_mov_b64 exec, -1")
            a.label("G_NOF1")
    sHead, sKV, sLK, sFK, sFG, sQ = 4, 5, 6, 7, 8, 9
    sA0, sA1, sW2, sOT, sON, sI, sRing, sTT64, sNB = 10, 11, 12, 13, 14, 15, 16, 17, 18
    vL8, vF16 = 5, 6
    FL = 124
    a(f"s_and_b32 s{sT0}, s2, 7")
    a(f"s_lshl_b32 s{sHead}, s{sT0}, 2")
    a(f"s_bfe_u32 s{sT0}, s2, 0x20003")
    a(f"s_add_u32 s{sHead}, s{sHead}, s{sT0}")
    a(f"s_lshl_b32 s{sLK}, s{sGW}, 10")
    a(f"s_lshl_b32 s{sKV}, s{sHead}, 17")
    a(f"s_add_u32 s{sKV}, s{sKV}, {WS_KV:#x}")
    a(f"s_add_u32 s{sKV}, s{sKV}, s{sLK}")
    a(f"s_lshr_b32 s{sT0}, s{sHead}, 1")
    a(f"s_lshl_b32 s{sFK}, s{sT0}, 7")
    a(f"s_add_u32 s{sFK}, s{sFK}, {WS_FKV:#x}")
    a(f"s_lshr_b32 s{sT1}, s2, 5")
    a(f"s_lshl_b32 s{sQ}, s{sHead}, 16")
    a(f"s_lshl_b32 s{sT0}, s{sT1}, 13")
    a(f"s_add_u32 s{sQ}, s{sQ}, s{sT0}")
    a(f"s_add_u32 s{sQ}, s{sQ}, s{sLK}")
    a(f"s_add_u32 s{sQ}, s{sQ}, {WS_QF:#x}")
    a(f"v_lshlrev_b32 v{vL8}, 3, v{vLane}")
    a(f"v_and_b32 v{vF16}, 0x78, v{vL8}")
    stamp(a, 3)
    poll(a, [(1, FL, vF16, sFK)], sT1)
    stamp(a, 4)
    def kvdma(i):
        dma(sLK, i * 4096, vL16, S_WS, sKV, i * 4096, " sc1")
    dma(sLK, L_Q, vL16, S_WS, sQ, 0, " sc1")
    dma(sLK, L_Q + 4096, vL16, S_WS, sQ, 4096, " sc1")
    def pubflags():
        a(f"s_cmp_eq_u32 s{sGW}, 0")
        a("s_cbranch_scc0 G_NOF2")
        a(f"s_lshl_b32 s{sT0}, s{sRB}, 7")
        a(f"s_lshl_b32 s{sT1}, s{sCG}, 3")
        a(f"s_add_u32 s{sT0}, s{sT0}, s{sT1}")
        a(f"s_add_u32 s{sT0}, s{sT0}, {WS_FACT:#x}")
        a(f"s_lshr_b32 s{sT1}, s2, 5")
        a(f"s_lshl_b32 s{sT1}, s{sT1}, 8")
        a(f"s_lshl_b32 s{sT2}, s{sHead}, 3")
        a(f"s_add_u32 s{sT1}, s{sT1}, s{sT2}")
        a(f"s_add_u32 s{sT1}, s{sT1}, {WS_FO:#x}")
        a("s_mov_b64 exec, 1")
        a(f"buffer_store_dwordx2 {vr(vEp,2)}, off, {sr(S_WS,4)}, s{sT0} sc1")
        a(f"buffer_store_dwordx2 {vr(vEp,2)}, off, {sr(S_WS,4)}, s{sT1} sc1")
        a("s_mov_b64 exec, -1")
        a.label("G_NOF2")
    KV0 = int(os.environ.get("KV0", "8"))
    for i in range(KV0): kvdma(i)
    a(f"s_waitcnt vmcnt({KV0-4})")
    a("s_barrier")
    for i in range(KV0, 20): kvdma(i)
    a("s_waitcnt vmcnt(12)")
    a("s_barrier")
    if EARLYF: pubflags()
    for i in range(20, 32): kvdma(i)
    ACC = 8
    AF = 72
    WF = 104
    vG0, vG1 = 120, 121
    vDW, vTr0, vTr1 = 7, 122, 123
    a(f"s_and_b32 s{sT0}, s2, 7")
    a(f"s_lshr_b32 s{sT1}, s2, 3")
    a(f"s_lshr_b32 s{sTT64}, s{sT0}, 1")
    a(f"s_lshl_b32 s{sTT64}, s{sTT64}, 3")
    a(f"s_and_b32 s{sT3}, s{sT1}, 7")
    a(f"s_add_u32 s{sTT64}, s{sTT64}, s{sT3}")
    a(f"s_and_b32 s{sNB}, s{sT0}, 1")
    a(f"s_lshl_b32 s{sNB}, s{sNB}, 2")
    a(f"s_lshr_b32 s{sT1}, s{sT1}, 3")
    a(f"s_add_u32 s{sNB}, s{sNB}, s{sT1}")
    a(f"s_lshr_b32 s{sT1}, s{sGW}, 1")
    a(f"s_lshl_b32 s{sOT}, s{sTT64}, 1")
    a(f"s_add_u32 s{sOT}, s{sOT}, s{sT1}")
    a(f"s_and_b32 s{sT1}, s{sGW}, 1")
    a(f"s_lshl_b32 s{sON}, s{sNB}, 1")
    a(f"s_add_u32 s{sON}, s{sON}, s{sT1}")
    a(f"s_mul_i32 s{sT3}, s{sGW}, {28*1024}")
    a(f"s_mul_i32 s{sA0}, s{sOT}, {112*1024}")
    a(f"s_add_u32 s{sA0}, s{sA0}, s{sT3}")
    a(f"s_add_u32 s{sA0}, s{sA0}, {WS_ACT:#x}")
    a(f"s_xor_b32 s{sT1}, s{sOT}, 1")
    a(f"s_mul_i32 s{sA1}, s{sT1}, {112*1024}")
    a(f"s_add_u32 s{sA1}, s{sA1}, s{sT3}")
    a(f"s_add_u32 s{sA1}, s{sA1}, {WS_ACT:#x}")
    a(f"s_mul_i32 s{sW2}, s{sGW}, {28*16384}")
    a(f"s_lshl_b32 s{sT1}, s{sNB}, 7")
    a(f"s_add_u32 s{sW2}, s{sW2}, s{sT1}")
    a(f"s_lshl_b32 s{sRing}, s{sGW}, 13")
    a(f"s_add_u32 s{sRing}, s{sRing}, {L_RING}")
    a(f"v_lshrrev_b32 v{vT0}, 3, v{vLane}")
    a(f"v_bfe_u32 v{vT1}, v{vLane}, 4, 1")
    a(f"v_lshlrev_b32 v{vT1}, 2, v{vT1}")
    a(f"v_and_b32 v{vDW}, 7, v{vLane}")
    a(f"v_xor_b32 v{vDW}, v{vDW}, v{vT1}")
    a(f"v_lshlrev_b32 v{vDW}, 4, v{vDW}")
    a(f"v_lshl_add_u32 v{vDW}, v{vT0}, 10, v{vDW}")
    a(f"v_bfe_u32 v{vT0}, v{vLane}, 2, 2")
    a(f"v_lshrrev_b32 v{vT1}, 5, v{vLane}")
    a(f"v_lshl_add_u32 v{vT0}, v{vT1}, 2, v{vT0}")
    a(f"v_lshlrev_b32 v{vTr0}, 7, v{vT0}")
    a(f"v_bfe_u32 v{vT0}, v{vLane}, 3, 1")
    a(f"v_lshl_add_u32 v{vTr0}, v{vT0}, 6, v{vTr0}")
    a(f"v_and_b32 v{vT0}, 1, v{vLane}")
    a(f"v_lshl_add_u32 v{vTr0}, v{vT0}, 5, v{vTr0}")
    a(f"v_bfe_u32 v{vT0}, v{vLane}, 4, 1")
    a(f"v_lshl_add_u32 v{vTr0}, v{vT0}, 4, v{vTr0}")
    a(f"v_bfe_u32 v{vT0}, v{vLane}, 1, 1")
    a(f"v_lshl_add_u32 v{vTr0}, v{vT0}, 3, v{vTr0}")
    a(f"s_and_b32 s{sT1}, s{sGW}, 1")
    a(f"s_lshl_b32 s{sT1}, s{sT1}, 6")
    a(f"v_xor_b32 v{vTr0}, s{sT1}, v{vTr0}")
    a(f"v_add_u32 v{vTr0}, s{sRing}, v{vTr0}")
    a(f"v_xor_b32 v{vTr1}, 64, v{vTr0}")
    a(f"s_lshr_b32 s{sFG}, s{sTT64}, 2")
    a(f"s_lshl_b32 s{sFG}, s{sFG}, 8")
    a(f"s_add_u32 s{sFG}, s{sFG}, {WS_FO:#x}")
    a(f"v_and_b32 v{vL8}, 0xf8, v{vL8}")
    a(f"s_lshr_b32 s{sFK}, s{sTT64}, 1")
    a(f"s_lshl_b32 s{sFK}, s{sFK}, 7")
    a(f"s_add_u32 s{sFK}, s{sFK}, {WS_FACT:#x}")
    a("s_waitcnt vmcnt(0)")
    a("s_barrier")
    if not EARLYF: pubflags()
    a(f"s_setprio {os.environ.get('GPRIO', '0')}")
    stamp(a, 5)
    poll(a, [(1, FL, vF16, sFK)], sT1)
    a(f"v_and_b32 v{vT0}, 31, v{vLane}")
    a(f"v_lshlrev_b32 v{vT0}, 2, v{vT0}")
    a(f"s_lshl_b32 s{sT0}, s{sOT}, 7")
    a(f"s_add_u32 s{sT0}, s{sT0}, {WS_G:#x}")
    a(f"s_xor_b32 s{sT1}, s{sT0}, 128")
    a(f"buffer_load_dword v{vG0}, v{vT0}, {sr(S_WS,4)}, s{sT0} offen sc1")
    a(f"buffer_load_dword v{vG1}, v{vT0}, {sr(S_WS,4)}, s{sT1} offen sc1")

    def wdma(st, srdn):
        a(f"s_add_u32 m0, s{sRing}, {st * 2048}")
        a(f"s_add_u32 s{sT0}, s{sW2}, 8192")
        a(f"buffer_load_dwordx4 v{vDW}, {sr(srdn,4)}, s{sW2} offen lds")
        a(f"s_add_u32 m0, s{sRing}, {st * 2048 + 1024}")
        a(f"s_add_u32 s{sW2}, s{sW2}, 16384")
        a(f"buffer_load_dwordx4 v{vDW}, {sr(srdn,4)}, s{sT0} offen lds")

    def group(st):
        wdma(st, S_W2)
        f = AF + 8 * st
        a(f"buffer_load_dwordx4 {vr(f,4)}, v{vL16}, {sr(S_WS,4)}, s{sA0} offen offset:{st*1024} sc1")
        a(f"buffer_load_dwordx4 {vr(f+4,4)}, v{vL16}, {sr(S_WS,4)}, s{sA1} offen offset:{st*1024} sc1")
        if st == 3:
            a(f"s_add_u32 s{sA0}, s{sA0}, 4096")
            a(f"s_add_u32 s{sA1}, s{sA1}, 4096")

    def trreads(st, w):
        for jp, vt in enumerate((vTr0, vTr1)):
            a(f"ds_read_b64_tr_b16 {vr(w+4*jp,2)}, v{vt} offset:{st*2048}")
            a(f"ds_read_b64_tr_b16 {vr(w+4*jp+2,2)}, v{vt} offset:{st*2048+1024}")

    GSP = os.environ.get("GSP", "")
    def gmfma(w, f, first, space=False):
        for ap in range(2):
            for jp in range(2):
                acc = ACC + 16 * (ap * 2 + jp)
                c = "0" if first else vr(acc, 16)
                a(f"v_mfma_f32_32x32x16_bf16 {vr(acc,16)}, {vr(w+4*jp,4)}, {vr(f+4*ap,4)}, {c}")
                if space and GSP and not (ap == 1 and jp == 1): a(GSP)

    def step(st, first, more, nwait=12):
        a(f"s_waitcnt vmcnt({nwait})")
        w = WF + 8 * (st & 1)
        trreads(st, w)
        a("s_waitcnt lgkmcnt(0)")
        gmfma(w, AF + 8 * st, first, True)
        if more:
            group(st)

    for st in range(4): group(st)
    for st in range(4): step(st, st == 0, True)
    a(f"s_mov_b32 s{sI}, 0")
    a.label("G_LOOP")
    for st in range(4): step(st, False, True)
    a(f"s_add_u32 s{sI}, s{sI}, 1")
    a(f"s_cmp_lt_u32 s{sI}, 5")
    a("s_cbranch_scc1 G_LOOP")
    for st in range(4): step(st, False, False, 12 - 4 * st)
    stamp(a, 6)
    WOR = 72
    OFR = 136
    a(f"s_lshl_b32 s{sW2}, s{sGW}, 17")
    a(f"s_lshl_b32 s{sT1}, s{sNB}, 7")
    a(f"s_add_u32 s{sW2}, s{sW2}, s{sT1}")
    for st in range(4): wdma(st, S_WO)
    a(f"v_sub_f32 v{vT0}, 1.0, v{vG0}")
    a(f"v_sub_f32 v{vT1}, 1.0, v{vG1}")
    a(f"v_mov_b32 v152, v{vTr0}")
    a(f"v_mov_b32 v153, v{vTr1}")
    vTr0, vTr1 = 152, 153
    a("s_nop 7")
    for q in range(4):
        for i in range(16):
            a(f"v_mul_f32 v{ACC+16*q+i}, v{ACC+16*q+i}, v{vT0 if q < 2 else vT1}")
    def trreads2(st, w):
        for jp, vt in enumerate((vTr0, vTr1)):
            a(f"ds_read_b64_tr_b16 {vr(w+4*jp,2)}, v{vt} offset:{st*2048}")
            a(f"ds_read_b64_tr_b16 {vr(w+4*jp+2,2)}, v{vt} offset:{st*2048+1024}")
    for ks in range(8):
        st = ks & 3
        a(f"s_waitcnt vmcnt({6 if ks < 4 else 6 - 2 * (ks - 4)})")
        trreads2(st, WOR + 8 * ks)
        if ks < 4:
            a("s_waitcnt lgkmcnt(0)")
            wdma(st, S_WO)
    FL = 156
    a(f"s_lshl_b32 s{sA0}, s{sOT}, 15")
    a(f"s_lshl_b32 s{sT3}, s{sGW}, 13")
    a(f"s_add_u32 s{sA0}, s{sA0}, s{sT3}")
    a(f"s_add_u32 s{sA0}, s{sA0}, {WS_OF:#x}")
    a(f"s_xor_b32 s{sA1}, s{sA0}, 32768")
    a(f"s_lshl_b32 s{sLK}, s{sGW}, 14")
    a(f"v_add_u32 v154, s{sLK}, v{vL16}")
    poll(a, [(1, FL, vL8, sFG)], sT1)
    a("s_mov_b64 s[22:23], -1")
    a("s_mov_b32 s19, 0")
    a("s_waitcnt lgkmcnt(0)")
    a("s_barrier")
    a("s_setprio 3")
    a("s_branch G_P3")
    a.label("G_RELOAD")
    for ks in range(8):
        dma(sLK, ks * 2048, vL16, S_WS, sA0, ks * 1024, " sc1")
        dma(sLK, ks * 2048 + 1024, vL16, S_WS, sA1, ks * 1024, " sc1")
    a("s_add_u32 s19, s19, 1")
    a(f"s_cmp_lt_u32 s19, {SPIN_MAX}")
    a("s_cselect_b64 s[22:23], -1, 0")
    a("s_setpc_b64 s[20:21]")
    a.label("G_P3")
    a("s_call_b64 s[20:21], G_RELOAD")
    def ord_(ks):
        f = OFR + 8 * (ks & 1)
        a(f"ds_read_b128 {vr(f,4)}, v154 offset:{ks*2048}")
        a(f"ds_read_b128 {vr(f+4,4)}, v154 offset:{ks*2048+1024}")
    def verify(ks):
        f = OFR + 8 * (ks & 1)
        a.label(f"G_V{ks}")
        a("s_waitcnt lgkmcnt(0)")
        a(f"v_max3_u32 v155, v{f}, v{f+1}, v{f+2}")
        a(f"v_max3_u32 v155, v155, v{f+3}, v{f+4}")
        a(f"v_max3_u32 v155, v155, v{f+5}, v{f+6}")
        a(f"v_max_u32 v155, v155, v{f+7}")
        a(f"v_cmp_eq_u32 vcc, -1, v155")
        a("s_nop 1")
        a("s_and_b64 vcc, vcc, s[22:23]")
        a(f"s_cbranch_scc0 G_OK{ks}")
        a("s_call_b64 s[20:21], G_RELOAD")
        a("s_waitcnt vmcnt(0)")
        ord_(ks)
        a(f"s_branch G_V{ks}")
        a.label(f"G_OK{ks}")
    a("s_waitcnt vmcnt(14)")
    ord_(0)
    verify(0)
    stamp(a, 7)
    for ks in range(8):
        f = OFR + 8 * (ks & 1)
        if ks < 7:
            a(f"s_waitcnt vmcnt({12 - 2 * ks})")
            ord_(ks + 1)
        gmfma(WOR + 8 * ks, f, False)
        if ks < 7:
            verify(ks + 1)
    a("s_nop 7")
    a("s_nop 7")
    for q in range(1, 4):
        a(f"s_xor_b32 s{sT0}, s{sGW}, {q}")
        a(f"s_mul_i32 s{sT0}, s{sT0}, 12288")
        a(f"s_add_u32 s{sT0}, s{sT0}, {L_EXCH}")
        a(f"v_add_u32 v{vT0}, s{sT0}, v{vL16}")
        for i in range(4):
            a(f"ds_write_b128 v{vT0}, {vr(ACC+16*q+4*i,4)} offset:{(q-1)*4096 + i*1024}")
    a(f"s_mul_i32 s{sT0}, s{sGW}, 12288")
    a(f"s_add_u32 s{sT0}, s{sT0}, {L_EXCH}")
    a(f"v_add_u32 v{vT0}, s{sT0}, v{vL16}")
    a("s_waitcnt lgkmcnt(0)")
    a("s_barrier")
    R = 72
    for q in range(3):
        for i in range(4):
            a(f"ds_read_b128 {vr(R+16*q+4*i,4)}, v{vT0} offset:{q*4096 + i*1024}")
    a(f"v_and_b32 v{vT0}, 31, v{vLane}")
    a(f"v_lshlrev_b32 v{vT0}, 10, v{vT0}")
    a(f"v_lshrrev_b32 v{vT1}, 5, v{vLane}")
    a(f"v_lshl_add_u32 v{vT0}, v{vT1}, 5, v{vT0}")
    a(f"s_lshl_b32 s{sT0}, s{sOT}, 15")
    a(f"s_lshl_b32 s{sT1}, s{sON}, 6")
    a(f"s_add_u32 s{sT0}, s{sT0}, s{sT1}")
    for q in range(3):
        a(f"s_waitcnt lgkmcnt({8 - 4 * q})")
        for i in range(16):
            a(f"v_add_f32 v{ACC+i}, v{ACC+i}, v{R+16*q+i}")
    cvt16(a, ACC)
    a(f"buffer_store_dwordx4 {vr(ACC,4)}, v{vT0}, {sr(S_OUT,4)}, s{sT0} offen{os.environ.get('OUTF','')}")
    a(f"buffer_store_dwordx4 {vr(ACC+4,4)}, v{vT0}, {sr(S_OUT,4)}, s{sT0} offen offset:16{os.environ.get('OUTF','')}")
    if STAMPS: a("s_waitcnt vmcnt(0)")
    stamp(a, 9); stamp(a, 8, True)
    stamp_flush(a)


def main():
    ref = open(f"cdna_kernels/{NAME}.s.ref").read().split("\n")
    head = [l for l in ref if l.startswith(";") and "@launch" not in l]
    a = A()
    name = gen(a)
    out = "\n".join(head) + "\n"
    if ASLIST:
        out += f"; @launch kernel={name} grid=(256,1,1) block=(768,1,1) lds={LDS_TOTAL}\n"
    else:
        out += f"; @launch grid=(256,1,1) block=(768,1,1) lds={LDS_TOTAL}\n"
    out += '.amdgcn_target "amdgcn-amd-amdhsa--gfx950"\n'
    out += a.text()
    out += f""".section .rodata,"a"
.p2align 6
.amdhsa_kernel {name}
  .amdhsa_next_free_vgpr 168
  .amdhsa_next_free_sgpr {102 if STAMPS else 84}
  .amdhsa_accum_offset 168
  .amdhsa_group_segment_fixed_size 0
  .amdhsa_kernarg_size 88
  .amdhsa_user_sgpr_count 2
  .amdhsa_user_sgpr_kernarg_segment_ptr 1
  .amdhsa_system_sgpr_workgroup_id_x 1
.end_amdhsa_kernel
"""
    path = sys.argv[1] if len(sys.argv) > 1 else f"cdna_kernels/{NAME}.s"
    open(path, "w").write(out)
    print("wrote", path, len(out), "bytes")

main()
```

```python
import struct, sys, math, os

NAME = "gated_mix__mha_block__dense_activation_mish__prompt"
STAMPS = int(os.environ.get("STAMPS", "0"))
ASLIST = int(os.environ.get("ASLIST", "0"))
X = os.environ.get("X", "")
EARLYF = int(os.environ.get("EARLYF", "1"))
REUSE = int(os.environ.get("REUSE", "1"))
DOT = int(os.environ.get("DOT", "1"))
PR1 = int(os.environ.get("PR1", "9"))
PR2 = int(os.environ.get("PR2", "13"))

def f32(x):
    return "0x%08x" % struct.unpack("<I", struct.pack("<f", x))[0]

LOG2E = math.log2(math.e)

WS_QF  = 0x0000000
WS_KV  = 0x0200000
WS_ACT = 0x0600000
WS_G   = 0x0F40000
WS_OF  = 0x1000000
WS_FKV = 0x1800000
WS_FACT = 0x1804000
WS_FO  = 0x1808000
WS_STAMP = 0x2000000
WS_SIZE = 0x10000000

L_GW = 144 * 1024
L_B1 = 145 * 1024
L_RING = 128 * 1024
L_Q = 128 * 1024
L_EXCH = 64 * 1024
LDS_TOTAL = 160 * 1024

SPIN_MAX = 200000


class A:
    def __init__(self):
        self.l = []
        self.n = 0
    def __call__(self, s):
        for line in s.strip("\n").split("\n"):
            self.l.append("    " + line.strip())
    def label(self, s):
        self.l.append(s + ":")
    def raw(self, s):
        self.l.append(s)
    def uniq(self, p):
        self.n += 1
        return f"{p}_{self.n}"
    def text(self):
        return "\n".join(self.l) + "\n"


def vr(b, n):
    return "v[%d:%d]" % (b, b + n - 1)

def sr(b, n):
    return "s[%d:%d]" % (b, b + n - 1)

def srd(a, dst, ptr, nbytes):
    a(f"s_mov_b32 s{dst}, s{ptr}")
    a(f"s_and_b32 s{dst+1}, s{ptr+1}, 0xffff")
    a(f"s_mov_b32 s{dst+2}, {nbytes:#x}")
    a(f"s_mov_b32 s{dst+3}, 0x00020000")

S_X, S_WQ, S_W1, S_WS, S_B1, S_W2, S_WO, S_GW, S_OUT, S_DBG = 28, 32, 36, 40, 44, 48, 52, 56, 60, 64
sW, sRB, sCG, sTG, sTT, sFT0 = 68, 69, 70, 71, 72, 73
sT0, sT1, sT2, sT3 = 74, 75, 76, 77
sEP = 78
vLane, vL16, vT0, vT1 = 1, 2, 3, 4

def estamp(a, i):
    if "E" in X and STAMPS:
        a(f"s_memtime s[{82+2*i}:{83+2*i}]")
        a("s_waitcnt lgkmcnt(0)")

def istamp(a, i):
    if "I" in X and STAMPS:
        a(f"s_memtime s[{82+2*i}:{83+2*i}]")
        a("s_waitcnt lgkmcnt(0)")

def stamp(a, i, real=False):
    if not STAMPS: return
    if ("E" in X or "P" in X) and 2 <= i <= 7: return
    if "I" in X and 4 <= i <= 7: return
    a(f"{'s_memrealtime' if real else 's_memtime'} s[{82+2*i}:{83+2*i}]")
    a("s_waitcnt lgkmcnt(0)")

def stamp_flush(a, n=10):
    if not STAMPS: return
    a("s_mov_b64 exec, 1")
    for i in range(n):
        a(f"v_mov_b32 v{i+1}, s{82+2*i}")
    a(f"s_lshl_b32 s80, s2, 4")
    a(f"s_add_u32 s80, s80, s{sW}")
    a(f"s_lshl_b32 s80, s80, 6")
    a(f"s_add_u32 s80, s80, {WS_STAMP:#x}")
    for i in range(n):
        a(f"buffer_store_dword v{i+1}, off, {sr(S_WS,4)}, s80 offset:{4*i}")
    if STAMPS == 2:
        L = a.uniq("NODBG")
        a(f"s_lshl_b32 s80, s2, 4")
        a(f"s_add_u32 s80, s80, s{sW}")
        a(f"s_cmp_eq_u32 s80, {77*16+8}")
        a(f"s_cbranch_scc0 {L}")
        a("v_sub_u32 v9, v9, v1")
        for i in (3, 4, 5, 6, 7, 8, 10):
            a(f"v_sub_u32 v{i}, v{i}, v2")
        for i in range(2, n):
            a(f"buffer_store_dword v{i+1}, off, {sr(S_DBG,4)}, 0 offset:{4*i}")
        a.label(L)


def mish16(a, acc, tmp, dst, cst):
    cL, c2, cm2, c1 = (vr(cst + 2 * i, 2) for i in range(4))
    for g in range(4):
        e = [vr(acc + 4 * g + 2 * i, 2) for i in range(2)]
        t = [vr(tmp + 2 * i, 2) for i in range(2)]
        u = [vr(tmp + 4 + 2 * i, 2) for i in range(2)]
        for i in range(2): a(f"v_pk_mul_f32 {t[i]}, {e[i]}, {cL}")
        for i in range(4): a(f"v_exp_f32 v{tmp+i}, v{tmp+i}")
        for i in range(2): a(f"v_pk_add_f32 {u[i]}, {t[i]}, {c2}")
        for i in range(2): a(f"v_pk_fma_f32 {u[i]}, {t[i]}, {u[i]}, {c2}")
        for i in range(4): a(f"v_rcp_f32 v{tmp+4+i}, v{tmp+4+i}")
        for i in range(2): a(f"v_pk_fma_f32 {u[i]}, {u[i]}, {cm2}, {c1}")
        for i in range(2): a(f"v_pk_mul_f32 {u[i]}, {u[i]}, {e[i]}")
        a(f"v_cvt_pk_bf16_f32 v{dst + 2 * g}, v{tmp+4}, v{tmp+5}")
        a(f"v_cvt_pk_bf16_f32 v{dst + 2 * g + 1}, v{tmp+6}, v{tmp+7}")

def cvt16(a, acc):
    for i in range(8):
        a(f"v_cvt_pk_bf16_f32 v{acc + i}, v{acc + 2 * i}, v{acc + 2 * i + 1}")

def flag_store(a, soff, vtmp, cnt):
    L = a.uniq("NOFLAG")
    if cnt is None:
        a(f"v_mov_b32 v{vtmp}, s{sEP}")
        a(f"v_mov_b32 v{vtmp+1}, s{sEP+1}")
        a("s_mov_b64 exec, 1")
        a(f"buffer_store_dwordx2 {vr(vtmp,2)}, off, {sr(S_WS,4)}, s{soff} sc1")
        a("s_mov_b64 exec, -1")
        return
    a("s_mov_b64 exec, 1")
    a(f"v_mov_b32 v{vtmp}, {cnt}")
    a(f"v_mov_b32 v{vtmp+1}, 1")
    a(f"ds_add_rtn_u32 v{vtmp}, v{vtmp}, v{vtmp+1}")
    a("s_waitcnt lgkmcnt(0)")
    a(f"v_readfirstlane_b32 s{sT3}, v{vtmp}")
    a(f"v_mov_b32 v{vtmp}, s{sEP}")
    a(f"v_mov_b32 v{vtmp+1}, s{sEP+1}")
    a(f"s_cmp_eq_u32 s{sT3}, 7")
    a(f"s_cbranch_scc0 {L}")
    a(f"buffer_store_dwordx2 {vr(vtmp,2)}, off, {sr(S_WS,4)}, s{soff} sc1")
    a.label(L)
    a("s_mov_b64 exec, -1")

def poll(a, loads, scnt):
    L = a.uniq("POLL"); D = a.uniq("POLLD")
    a(f"s_mov_b32 s{scnt}, 0")
    a.label(L)
    for nf, vd, vo, so in loads:
        op = "buffer_load_dwordx4" if nf == 2 else "buffer_load_dwordx2"
        a(f"{op} {vr(vd, 2*nf)}, v{vo}, {sr(S_WS,4)}, s{so} offen sc1")
    a("s_waitcnt vmcnt(0)")
    first = True
    for nf, vd, vo, so in loads:
        for k in range(nf):
            if first:
                a(f"v_cmp_ne_u64 vcc, {sr(sEP,2)}, {vr(vd+2*k,2)}")
                first = False
            else:
                a(f"v_cmp_ne_u64 {sr(sT2,2)}, {sr(sEP,2)}, {vr(vd+2*k,2)}")
                a("s_nop 1")
                a(f"s_or_b64 vcc, vcc, {sr(sT2,2)}")
    a("s_nop 1")
    a("s_cmp_eq_u64 vcc, 0")
    a(f"s_cbranch_scc1 {D}")
    a("s_sleep 4")
    a(f"s_add_u32 s{scnt}, s{scnt}, 1")
    a(f"s_cmp_lt_u32 s{scnt}, {SPIN_MAX}")
    a(f"s_cbranch_scc1 {L}")
    a.label(D)


def gen(a):
    name = NAME + "_kernel"
    a.raw(".text")
    a.raw(f".globl {name}")
    a.raw(".p2align 8")
    a.raw(f".type {name},@function")
    a.label(name)
    a("s_cmp_ge_u32 s2, 256")
    a("s_cbranch_scc1 K_END")
    stamp(a, 0, True); stamp(a, 1)
    a("s_load_dwordx16 s[4:19], s[0:1], 0")
    a("s_load_dwordx4 s[20:23], s[0:1], 64")
    a("s_load_dwordx2 s[24:25], s[0:1], 80")
    a(f"v_and_b32 v{vLane}, 63, v0")
    a(f"v_lshrrev_b32 v{vT0}, 6, v0")
    a(f"v_lshlrev_b32 v{vL16}, 4, v{vLane}")
    a(f"v_readfirstlane_b32 s{sW}, v{vT0}")
    if "C" not in X:
        a(f"v_lshlrev_b32 v{vT0}, 6, v0")
        a(f"s_cmp_ge_u32 s{sW}, 4")
        a("s_cbranch_scc1 K_NOPC")
        a(f"s_getpc_b64 {sr(sT0,2)}")
        a.label("K_PC")
        a(f"v_min_u32 v{vT0}, K_END-K_PC, v{vT0}")
        a(f"global_load_dword v12, v{vT0}, {sr(sT0,2)}")
        a.label("K_NOPC")
    a(f"s_and_b32 s{sT0}, s2, 7")
    a(f"s_lshr_b32 s{sT1}, s2, 3")
    if os.environ.get("TILE48"):
        a(f"s_and_b32 s{sRB}, s{sT0}, 3")
        a(f"s_lshl_b32 s{sRB}, s{sRB}, 2")
        a(f"s_and_b32 s{sT2}, s{sT1}, 3")
        a(f"s_add_u32 s{sRB}, s{sRB}, s{sT2}")
        a(f"s_lshr_b32 s{sCG}, s{sT0}, 2")
        a(f"s_lshl_b32 s{sCG}, s{sCG}, 3")
        a(f"s_lshr_b32 s{sT2}, s{sT1}, 2")
        a(f"s_add_u32 s{sCG}, s{sCG}, s{sT2}")
    else:
        a(f"s_and_b32 s{sRB}, s{sT0}, 1")
        a(f"s_lshl_b32 s{sRB}, s{sRB}, 3")
        a(f"s_and_b32 s{sT2}, s{sT1}, 7")
        a(f"s_add_u32 s{sRB}, s{sRB}, s{sT2}")
        a(f"s_lshr_b32 s{sCG}, s{sT0}, 1")
        a(f"s_lshl_b32 s{sCG}, s{sCG}, 2")
        a(f"s_lshr_b32 s{sT2}, s{sT1}, 3")
        a(f"s_add_u32 s{sCG}, s{sCG}, s{sT2}")
    a(f"s_and_b32 s{sTG}, s{sW}, 3")
    a(f"s_lshl_b32 s{sTT}, s{sRB}, 2")
    a(f"s_add_u32 s{sTT}, s{sTT}, s{sTG}")
    a(f"s_sub_u32 s{sT0}, s{sCG}, 2")
    a(f"s_cmp_ge_u32 s{sCG}, 14")
    a(f"s_cselect_b32 s{sFT0}, s{sT0}, s{sCG}")
    a(f"s_lshl_b32 s{sFT0}, s{sFT0}, 2")
    a(f"s_cmp_ge_u32 s{sW}, 8")
    a("s_cbranch_scc1 G_START")
    if "N" not in X:
        a(f"s_cmp_ge_u32 s{sW}, 6")
        a("s_cbranch_scc1 A_START")
        a(f"s_cmp_ge_u32 s{sW}, 4")
        a("s_cbranch_scc1 A_PF1")
        a(f"s_bitcmp1_b32 s{sW}, 0")
        a("s_cbranch_scc1 A_PFQ")
        a(f"s_lshl_b32 s{sT0}, s2, 13")
        a(f"s_lshl_b32 s{sT1}, s{sW}, 8")
        a(f"s_add_u32 s{sT0}, s{sT0}, s{sT1}")
        a(f"v_lshrrev_b32 v{vT0}, 3, v{vLane}")
        a(f"v_lshlrev_b32 v{vT0}, 10, v{vT0}")
        a(f"v_and_b32 v{vT1}, 7, v{vLane}")
        a(f"v_lshl_add_u32 v{vT0}, v{vT1}, 6, v{vT0}")
        a("s_waitcnt lgkmcnt(0)")
        srd(a, S_X, 4, 2048 * 512 * 2)
        a(f"buffer_load_dword v12, v{vT0}, {sr(S_X,4)}, s{sT0} offen")
        a("s_branch A_START")
        a.label("A_PFQ")
        a(f"s_lshr_b32 s{sT1}, s{sW}, 1")
        a(f"s_lshl_b32 s{sT1}, s{sT1}, 8")
        a(f"s_add_u32 s{sT0}, s2, s{sT1}")
        a(f"s_mul_i32 s{sT0}, s{sT0}, 3072")
        a(f"v_min_u32 v{vT0}, 47, v{vLane}")
        a(f"v_lshlrev_b32 v{vT0}, 6, v{vT0}")
        a("s_waitcnt lgkmcnt(0)")
        srd(a, S_WQ, 6, 512 * 1536 * 2)
        a(f"buffer_load_dword v12, v{vT0}, {sr(S_WQ,4)}, s{sT0} offen")
        a("s_branch A_START")
        a.label("A_PF1")
        a(f"s_and_b32 s{sT1}, s{sW}, 1")
        a(f"s_lshl_b32 s{sT1}, s{sT1}, 8")
        a(f"s_add_u32 s{sT0}, s2, s{sT1}")
        a(f"s_mul_i32 s{sT0}, s{sT0}, 3584")
        a(f"v_min_u32 v{vT0}, 55, v{vLane}")
        a(f"v_lshlrev_b32 v{vT0}, 6, v{vT0}")
        a("s_waitcnt lgkmcnt(0)")
        srd(a, S_W1, 12, 512 * 1792 * 2)
        if os.environ.get("PFSL"): a(f"s_sleep {os.environ['PFSL']}")
        a(f"buffer_load_dword v12, v{vT0}, {sr(S_W1,4)}, s{sT0} offen")
        a("s_branch A_START")
    if "N" in X: a("s_branch A_START")
    a.label("G_START")
    gen_G(a)
    a("s_endpgm")
    gen_A(a)
    a.label("K_END")
    a("s_endpgm")
    return name

def srds_rest(a):
    srd(a, S_WS, 24, WS_SIZE)
    srd(a, S_B1, 14, 1792 * 2)
    srd(a, S_W2, 16, 1792 * 512 * 2)
    srd(a, S_WO, 8, 512 * 512 * 2)
    srd(a, S_OUT, 20, 2048 * 512 * 2)
    srd(a, S_DBG, 22, 256)


def gen_A(a):
    a.label("A_START")
    vXrd, vW0, vW1, vT2 = 5, 9, 10, 11
    FA, FB = 16, 28
    ACC = 64
    BIAS = 96
    PK = 128
    TMP = 16
    sN, sD = 26, 27
    a(f"s_lshl_b32 s{sT0}, s{sTG}, 12")
    a(f"v_and_b32 v{vT0}, 31, v{vLane}")
    a(f"v_lshrrev_b32 v{vT1}, 5, v{vLane}")
    a(f"v_bfe_u32 v{vT2}, v{vLane}, 1, 3")
    a(f"v_xor_b32 v{vT2}, v{vT2}, v{vT1}")
    a(f"v_lshlrev_b32 v{vT0}, 7, v{vT0}")
    a(f"v_add_u32 v{vT0}, s{sT0}, v{vT0}")
    for ks in range(4):
        a(f"v_xor_b32 v{vXrd+ks}, {2*ks}, v{vT2}")
        a(f"v_lshl_add_u32 v{vXrd+ks}, v{vXrd+ks}, 4, v{vT0}")
    a(f"v_bfe_u32 v{vT0}, v{vLane}, 2, 2")
    a(f"v_lshl_add_u32 v{vT0}, v{vT1}, 3, v{vT0}")
    a(f"v_lshlrev_b32 v{vW0}, 6, v{vT0}")
    a(f"v_bfe_u32 v{vT0}, v{vLane}, 4, 1")
    a(f"v_lshl_add_u32 v{vW0}, v{vT0}, 5, v{vW0}")
    a(f"v_and_b32 v{vT0}, 3, v{vLane}")
    a(f"v_lshl_add_u32 v{vW0}, v{vT0}, 3, v{vW0}")
    a(f"s_lshr_b32 s{sT0}, s{sW}, 2")
    a(f"s_lshl_b32 s{sT0}, s{sT0}, 13")
    a(f"s_add_u32 s{sT0}, s{sT0}, 16384")
    a(f"v_add_u32 v{vW0}, s{sT0}, v{vW0}")
    a(f"v_lshlrev_b32 v{vW1}, 4, v{vT1}")
    a(f"v_add_u32 v{vW1}, {L_GW}, v{vW1}")
    a(f"v_lshlrev_b32 v{vT2}, 3, v{vT1}")
    a(f"s_lshr_b32 s{sT0}, s{sW}, 2")
    a(f"s_lshl_b32 s{sT0}, s{sT0}, 7")
    a(f"s_add_u32 s{sT0}, s{sT0}, {L_B1}")
    a(f"v_add_u32 v{vT2}, s{sT0}, v{vT2}")
    for i in range(32):
        a(f"v_mov_b32 v{ACC+i}, 0")
    a(f"v_and_b32 v13, 27, v{vLane}")
    a(f"v_cmp_eq_u32 vcc, 16, v13")
    a(f"v_mov_b32 v14, 0x3f803f80")
    a("s_nop 0")
    a(f"v_cndmask_b32 v13, 0, v14, vcc")
    for i in range(16):
        a(f"v_mov_b32 v{112+i}, v13")
    for i in range(16):
        a(f"v_mov_b32 v{152+i}, 0")
    for i, c in enumerate((LOG2E, 2.0, -2.0, 1.0)):
        a(f"v_mov_b32 v{144+2*i}, {f32(c)}")
        a(f"v_mov_b32 v{145+2*i}, {f32(c)}")
    a(f"s_mov_b32 s{sN}, 0")
    a("s_waitcnt lgkmcnt(0)")
    srds_rest(a)
    estamp(a, 3)
    a("s_barrier")
    stamp(a, 2)
    estamp(a, 6)

    def reads(ks, F, par, gate=False, only1=False):
        if "R" in X: return
        if not only1:
            a(f"ds_read_b128 {vr(F,4)}, v{vXrd+ks} offset:{par*32768}")
        for t in range(2):
            if only1 and t == 0: continue
            if gate and t == 1:
                a(f"ds_read_b128 {vr(F+8,4)}, v{vW1} offset:{(par*4+ks)*32}")
                continue
            a(f"ds_read_b64_tr_b16 {vr(F+4+4*t,2)}, v{vW0} offset:{par*32768+t*4096+ks*1024}")
            a(f"ds_read_b64_tr_b16 {vr(F+4+4*t+2,2)}, v{vW0} offset:{par*32768+t*4096+ks*1024+256}")

    def mfmas(F, swap0):
        if "M" in X: return
        for t in range(2):
            acc = ACC + 16 * t
            if swap0 and t == 0:
                a(f"v_mfma_f32_32x32x16_bf16 {vr(acc,16)}, {vr(F,4)}, {vr(F+4+4*t,4)}, {vr(acc,16)}")
            elif swap0 and DOT:
                for i in range(4):
                    a(f"v_dot2_f32_bf16 v{acc}, v{F+i}, v{F+8+i}, v{acc}")
            else:
                a(f"v_mfma_f32_32x32x16_bf16 {vr(acc,16)}, {vr(F+4+4*t,4)}, {vr(F,4)}, {vr(acc,16)}")

    FS = [16 + 12 * i for i in range(4)]
    def loop(lab, swap0):
        nr = 4 if swap0 else 5
        a.raw(".p2align 3")
        a.label(lab)
        for par in range(2):
            for j in range(4):
                a(f"s_waitcnt lgkmcnt({2*nr})")
                if j == 1:
                    if par == 1:
                        for k in range(4):
                            a(f"v_xor_b32 v{vXrd+k}, s{sT3}, v{vXrd+k}")
                        a(f"v_xor_b32 v{vW0}, s{sT3}, v{vW0}")
                        if swap0:
                            a(f"v_add_u32 v{vW1}, s{sD}, v{vW1}")
                        else:
                            L = a.uniq("A_NOVM")
                            a(f"s_cmp_eq_u32 s{sN}, 12")
                            a(f"s_cbranch_scc0 {L}")
                            a("s_waitcnt vmcnt(0)")
                            a.label(L)
                    a("s_barrier")
                elif j == 0 and par == 0:
                    a(f"s_add_u32 s{sN}, s{sN}, 2")
                elif j == 3 and par == 1:
                    a(f"s_and_b32 s{sT0}, s{sN}, 7")
                else:
                    a("s_nop 0")
                jj = j + 3
                reads(jj & 3, FS[jj & 3], par if jj < 4 else 1 - par, swap0)
                mfmas(FS[j], swap0)
        a(f"s_cbranch_scc1 {lab}")

    istamp(a, 4)
    a(f"s_mov_b32 s{sT3}, 65536")
    a(f"s_movk_i32 s{sD}, 256")
    a(f"s_cmp_ge_u32 s{sW}, 4")
    a("s_cbranch_scc1 A_L2P")
    for ks in range(3):
        reads(ks, FS[ks], 0)
    loop("A_L1", False)
    a(f"s_cmp_eq_u32 s{sN}, 16")
    a("s_cbranch_scc1 A_MISH")
    stamp(a, 3)
    a("s_waitcnt lgkmcnt(7)")
    for g in range(8):
        a(f"ds_read_b64 {vr(BIAS + 2 * g, 2)}, v{vT2} offset:{g*16}")
    a(f"v_and_b32 v{vT0}, 0x33, v{vLane}")
    a(f"v_bfe_u32 v{vT1}, v{vLane}, 2, 1")
    a(f"v_lshl_add_u32 v{vT0}, v{vT1}, 3, v{vT0}")
    a(f"v_bfe_u32 v{vT1}, v{vLane}, 3, 1")
    a(f"v_lshl_add_u32 v{vT0}, v{vT1}, 2, v{vT0}")
    a(f"v_lshlrev_b32 v{vT0}, 4, v{vT0}")
    a(f"s_lshl_b32 s4, s{sCG}, 17")
    a(f"s_lshl_b32 s5, s{sTT}, 10")
    a(f"s_add_u32 s4, s4, s5")
    a(f"s_lshl_b32 s6, s4, 1")
    a(f"s_add_u32 s4, s4, {WS_QF:#x}")
    a(f"s_add_u32 s5, s4, 65536")
    a(f"s_add_u32 s6, s6, {WS_KV:#x}")
    a(f"s_add_u32 s7, s6, 131072")
    a(f"s_mov_b32 s8, {f32(0.25 * LOG2E)}")
    a(f"s_mov_b32 s9, {f32(0.25 * LOG2E)}")
    for i in range(8):
        a(f"v_pk_mul_f32 {vr(ACC+2*i,2)}, {vr(ACC+2*i,2)}, s[8:9]")
    for i in range(16):
        a(f"v_cvt_pk_bf16_f32 v{PK + i}, v{ACC + 2 * i}, v{ACC + 2 * i + 1}")
    istamp(a, 5)
    a(f"buffer_store_dwordx4 {vr(PK+8,4)}, v{vT0}, {sr(S_WS,4)}, s6 offen sc1")
    a(f"buffer_store_dwordx4 {vr(PK+12,4)}, v{vT0}, {sr(S_WS,4)}, s7 offen sc1")
    a(f"buffer_store_dwordx4 {vr(PK,4)}, v{vL16}, {sr(S_WS,4)}, s4 offen sc1")
    a(f"buffer_store_dwordx4 {vr(PK+4,4)}, v{vL16}, {sr(S_WS,4)}, s5 offen sc1")
    a.label("A_BIAS")
    a("s_waitcnt lgkmcnt(0)")
    istamp(a, 6)
    for g in range(8):
        b = ACC + 4 * g
        a(f"v_lshlrev_b32 v{b}, 16, v{BIAS+2*g}")
        a(f"v_and_b32 v{b+1}, 0xffff0000, v{BIAS+2*g}")
        a(f"v_lshlrev_b32 v{b+2}, 16, v{BIAS+2*g+1}")
        a(f"v_and_b32 v{b+3}, 0xffff0000, v{BIAS+2*g+1}")
    istamp(a, 7)
    a("s_branch A_L1")
    a.label("A_L2P")
    for ks in range(3):
        reads(ks, FS[ks], 0, True)
    loop("A_L2", True)
    a("s_waitcnt lgkmcnt(0)")
    for ks in range(3):
        reads(ks, FS[ks], 0, False, True)
    stamp(a, 3)
    a("s_waitcnt lgkmcnt(7)")
    for g in range(8):
        a(f"ds_read_b64 {vr(BIAS + 2 * g, 2)}, v{vT2} offset:{g*16}")
    a(f"v_and_b32 v{vT0}, 0x2f, v{vLane}")
    a(f"v_lshlrev_b32 v{vT0}, 4, v{vT0}")
    a(f"v_bfe_u32 v{vT1}, v{vLane}, 4, 1")
    a(f"v_lshl_add_u32 v{vT0}, v{vT1}, 17, v{vT0}")
    a(f"s_lshl_b32 s4, s{sCG}, 18")
    a(f"s_lshl_b32 s5, s{sTT}, 11")
    a(f"s_add_u32 s4, s4, s5")
    a(f"s_add_u32 s4, s4, {WS_KV:#x}")
    a(f"s_lshl_b32 s5, s{sTT}, 7")
    a(f"s_add_u32 s5, s5, {WS_G:#x}")
    a(f"v_lshlrev_b32 v{vT1}, 2, v{vLane}")
    if DOT: a(f"v_mov_b32 v{ACC+17}, v{ACC+16}")
    for i in range(8):
        a(f"v_cvt_pk_bf16_f32 v{PK + i}, v{ACC + 2 * i}, v{ACC + 2 * i + 1}")
    if DOT:
        a(f"v_permlane32_swap_b32 v{ACC+16}, v{ACC+17}")
        a("s_nop 1")
        a(f"v_add_f32 v{ACC+16}, v{ACC+16}, v{ACC+17}")
    a(f"v_mul_f32 v{PK+8}, {f32(-LOG2E)}, v{ACC+16}")
    a(f"v_exp_f32 v{PK+8}, v{PK+8}")
    a(f"buffer_store_dwordx4 {vr(PK,4)}, v{vT0}, {sr(S_WS,4)}, s4 offen offset:1024 sc1")
    a(f"v_add_f32 v{PK+8}, 1.0, v{PK+8}")
    a(f"v_rcp_f32 v{PK+8}, v{PK+8}")
    a(f"buffer_store_dwordx4 {vr(PK+4,4)}, v{vT0}, {sr(S_WS,4)}, s4 offen offset:1280 sc1")
    a("s_mov_b32 exec_hi, 0")
    a(f"buffer_store_dword v{PK+8}, v{vT1}, {sr(S_WS,4)}, s5 offen sc1")
    a("s_mov_b64 exec, -1")
    a("s_waitcnt lgkmcnt(0)")
    a("s_branch A_BIAS")
    a.label("A_MISH")
    stamp(a, 4)
    a(f"s_mul_i32 s13, s{sTT}, 112")
    a(f"s_lshl_b32 s{sT1}, s{sFT0}, 1")
    a(f"s_add_u32 s13, s13, s{sT1}")
    a(f"s_lshr_b32 s{sT1}, s{sW}, 2")
    a(f"s_lshl_b32 s{sT1}, s{sT1}, 2")
    a(f"s_add_u32 s13, s13, s{sT1}")
    a(f"s_lshl_b32 s13, s13, 10")
    a(f"s_add_u32 s13, s13, {WS_ACT:#x}")
    a("s_waitcnt lgkmcnt(0)")
    a("s_nop 3")
    mish16(a, ACC, TMP, 128, 144)
    a(f"buffer_store_dwordx4 {vr(128,4)}, v{vL16}, {sr(S_WS,4)}, s13 offen sc1")
    a(f"buffer_store_dwordx4 {vr(132,4)}, v{vL16}, {sr(S_WS,4)}, s13 offen offset:1024 sc1")
    mish16(a, ACC + 16, TMP, 136, 144)
    a(f"buffer_store_dwordx4 {vr(136,4)}, v{vL16}, {sr(S_WS,4)}, s13 offen offset:2048 sc1")
    a(f"buffer_store_dwordx4 {vr(140,4)}, v{vL16}, {sr(S_WS,4)}, s13 offen offset:3072 sc1")

    a.label("A_PH2")
    sHead, sQT, sI, sB1, sB2, sPass = 4, 5, 6, 7, 8, 9
    sMask = 10
    vAddr, vIdx, vG = 5, 6, 7
    Q = 8
    KB = [12, 16]
    VB = [112, 120]
    S = [36, 52]
    C = 68
    O = 152
    vFl = 100
    a(f"s_and_b32 s{sT0}, s2, 7")
    a(f"s_lshl_b32 s{sHead}, s{sT0}, 2")
    a(f"s_bfe_u32 s{sT0}, s2, 0x20003")
    a(f"s_add_u32 s{sHead}, s{sHead}, s{sT0}")
    a(f"s_lshr_b32 s{sQT}, s2, 5")
    a(f"s_lshl_b32 s{sQT}, s{sQT}, 3")
    a(f"s_add_u32 s{sQT}, s{sQT}, s{sW}")
    a(f"v_mov_b32 v{vIdx}, 0xdddddddd")
    a(f"s_mov_b32 s{sMask}, 0x0000ffff")
    a(f"s_mov_b32 s{sMask+1}, 0x0000ffff")
    a(f"v_mov_b32 v{vAddr}, v{vL16}")
    a(f"s_mov_b32 s{sB1}, 1")
    a(f"s_mov_b32 s{sB2}, 3")
    a(f"s_mov_b32 s{sPass}, 0")
    a(f"s_lshl_b32 s{sT0}, s{sW}, 10")
    a(f"s_add_u32 s{sT0}, s{sT0}, {L_Q}")
    a(f"v_add_u32 v{vT1}, s{sT0}, v{vL16}")
    a(f"s_lshl_b32 s12, s{sQT}, 15")
    a(f"s_lshl_b32 s{sT1}, s{sHead}, 10")
    a(f"s_add_u32 s12, s12, s{sT1}")
    a(f"s_add_u32 s12, s12, {WS_OF:#x}")
    for i in range(4):
        a(f"v_mov_b32 v{104+i}, -1")
    a(f"buffer_store_dwordx4 {vr(104,4)}, v{vL16}, {sr(S_WS,4)}, s12 offen sc1")
    a("s_setprio 2")
    stamp(a, 5)
    a("s_barrier")
    stamp(a, 6)
    a(f"ds_read_b128 {vr(Q,4)}, v{vT1}")
    a(f"ds_read_b128 {vr(KB[0],4)}, v{vAddr} offset:0")
    a("s_waitcnt lgkmcnt(0)")
    a(f"v_mfma_f32_32x32x16_bf16 {vr(S[0],16)}, {vr(KB[0],4)}, {vr(Q,4)}, 0")
    a("s_nop 7")
    a("s_nop 7")
    s0 = S[0]
    a(f"v_max3_f32 v{vT0}, v{s0}, v{s0+1}, v{s0+2}")
    for i in range(3, 15, 2):
        a(f"v_max3_f32 v{vT0}, v{vT0}, v{s0+i}, v{s0+i+1}")
    a(f"v_max_f32 v{vT0}, v{vT0}, v{s0+15}")
    a.label("A_SETMAX")
    a(f"v_mov_b32 v{vT1}, v{vT0}")
    a("s_nop 1")
    a(f"v_permlane32_swap_b32 v{vT0}, v{vT1}")
    a("s_nop 1")
    a(f"v_max_f32 v{vT0}, v{vT0}, v{vT1}")
    for i in range(16):
        a(f"v_sub_f32 v{C+i}, 0, v{vT0}")
    a(f"ds_read_b128 {vr(KB[0],4)}, v{vAddr} offset:0")
    a(f"ds_read_b128 {vr(KB[1],4)}, v{vAddr} offset:2048")
    a(f"s_mov_b64 exec, {sr(sMask,2)}")
    a(f"ds_read_b128 {vr(VB[0],4)}, v{vAddr} offset:1024")
    a(f"ds_read_b128 {vr(VB[0]+4,4)}, v{vAddr} offset:1280")
    a("s_mov_b64 exec, -1")
    a("s_waitcnt lgkmcnt(0)")
    a(f"v_mfma_f32_32x32x16_bf16 {vr(S[0],16)}, {vr(KB[0],4)}, {vr(Q,4)}, {'0' if 'Z' in X else vr(C,16)}")
    a(f"s_mov_b32 s{sI}, 0")
    for i in range(8, 16):
        a(f"v_mov_b32 v{S[1]+i}, 0")
    a("s_nop 7")
    a.raw(".p2align 6")
    a.label("A_LOOP")
    for u in range(4):
        p = u & 1
        cur, nxt = S[p], S[1 - p]
        def E(lo, hi):
            for i in range(lo, hi):
                a(f"v_exp_f32 v{cur+i}, v{cur+i}")
        E(0, 2)
        a(f"v_smfmac_f32_32x32x32_bf16 {vr(O,16)}, {vr(VB[1-p]+4,4)}, {vr(nxt+8,8)}, v{vIdx}")
        E(2, 7)
        a("s_waitcnt lgkmcnt(0)")
        a(f"v_mfma_f32_32x32x16_bf16 {vr(nxt,16)}, {vr(KB[1-p],4)}, {vr(Q,4)}, {'0' if 'Z' in X else vr(C,16)}")
        a(f"ds_read_b128 {vr(KB[p],4)}, v{vAddr} offset:{(u+2)*2048}")
        E(7, 8)
        a(f"s_mov_b64 exec, {sr(sMask,2)}")
        a(f"ds_read_b128 {vr(VB[1-p],4)}, v{vAddr} offset:{(u+1)*2048+1024}")
        a(f"ds_read_b128 {vr(VB[1-p]+4,4)}, v{vAddr} offset:{(u+1)*2048+1280}")
        a("s_mov_b64 exec, -1")
        E(8, 13)
        a(f"v_smfmac_f32_32x32x32_bf16 {vr(O,16)}, {vr(VB[p],4)}, {vr(cur,8)}, v{vIdx}")
        if u == 3:
            a(f"v_add_u32 v{vAddr}, 8192, v{vAddr}")
            E(13, 16)
            a(f"s_add_u32 s{sI}, s{sI}, 1")
            a(f"s_cmp_lt_u32 s{sI}, s{sB1}")
        else:
            a(f"v_exp_f32_e64 v{cur+13}, v{cur+13}")
            E(14, 16)
    a("s_cbranch_scc1 A_LOOP")
    a(f"s_cmp_eq_u32 s{sI}, 1")
    a("s_cbranch_scc0 A_SEG2")
    a(f"s_mov_b32 s{sB1}, 3")
    if EARLYF: a("s_waitcnt vmcnt(0)")
    a("s_barrier")
    a("s_branch A_LOOP")
    a.label("A_SEG2")
    a(f"s_cmp_eq_u32 s{sI}, 3")
    a("s_cbranch_scc0 A_SEG3")
    a(f"s_mov_b32 s{sB1}, {PR1}")
    a("s_waitcnt vmcnt(0)")
    a("s_barrier")
    a("s_branch A_LOOP")
    a.label("A_SEG3")
    a(f"s_cmp_eq_u32 s{sI}, {PR1}")
    a("s_cbranch_scc0 A_SEG4")
    a(f"s_mov_b32 s{sB1}, {PR2}")
    a("s_setprio 1")
    a(f"v_and_b32 v{vT0}, 31, v{vLane}")
    a(f"v_lshlrev_b32 v{vT0}, 2, v{vT0}")
    a(f"s_lshl_b32 s{sT0}, s{sQT}, 7")
    a(f"s_add_u32 s{sT0}, s{sT0}, {WS_G:#x}")
    a(f"buffer_load_dword v{vG}, v{vT0}, {sr(S_WS,4)}, s{sT0} offen sc1")
    a("s_branch A_LOOP")
    a.label("A_SEG4")
    a(f"s_cmp_eq_u32 s{sI}, {PR2}")
    a("s_cbranch_scc0 A_SEG5")
    a(f"s_mov_b32 s{sB1}, 16")
    a("s_setprio 0")
    a("s_branch A_LOOP")
    a.label("A_SEG5")
    a(f"v_smfmac_f32_32x32x32_bf16 {vr(O,16)}, {vr(VB[1]+4,4)}, {vr(S[1]+8,8)}, v{vIdx}")
    a("s_waitcnt lgkmcnt(0)")
    a("s_nop 7")
    a("s_nop 7")
    a(f"s_cmp_lg_u32 s{sPass}, 0")
    a("s_cbranch_scc1 A_FIN")
    a(f"v_max3_f32 v{vT0}, |v{O}|, |v{O+1}|, |v{O+2}|")
    a(f"v_max3_f32 v{vT0}, v{vT0}, |v{O+3}|, |v{O+4}|")
    a(f"v_max3_f32 v{vT0}, v{vT0}, |v{O+5}|, |v{O+6}|")
    a(f"v_max_f32 v{vT0}, v{vT0}, |v{O+7}|")
    a(f"v_mov_b32 v{vT1}, 0x7f800000")
    a(f"v_cmp_nlt_f32 vcc, v{vT0}, v{vT1}")
    a(f"v_mov_b32 v{vT1}, {f32(2.0**30)}")
    a(f"v_cmp_nlt_f32 {sr(sT2,2)}, v{O+8}, v{vT1}")
    a("s_nop 1")
    a(f"s_or_b64 vcc, vcc, {sr(sT2,2)}")
    a("s_cbranch_scc0 A_FIN")
    a(f"s_mov_b32 s{sPass}, 1")
    a(f"s_mov_b32 s{sB1}, 16")
    a(f"v_mov_b32 v{vAddr}, v{vL16}")
    a(f"v_mov_b32 v{vT0}, 0xff800000")
    a(f"s_mov_b32 s{sI}, 0")
    a.label("A_MAXLOOP")
    a(f"ds_read_b128 {vr(KB[0],4)}, v{vAddr} offset:0")
    a("s_waitcnt lgkmcnt(0)")
    a(f"v_mfma_f32_32x32x16_bf16 {vr(S[0],16)}, {vr(KB[0],4)}, {vr(Q,4)}, 0")
    a(f"v_add_u32 v{vAddr}, 2048, v{vAddr}")
    a("s_nop 7")
    a("s_nop 7")
    for i in range(0, 16, 2):
        a(f"v_max3_f32 v{vT0}, v{vT0}, v{s0+i}, v{s0+i+1}")
    a(f"s_add_u32 s{sI}, s{sI}, 1")
    a(f"s_cmp_lt_u32 s{sI}, 64")
    a("s_cbranch_scc1 A_MAXLOOP")
    a(f"v_mov_b32 v{vAddr}, v{vL16}")
    for i in range(16):
        a(f"v_mov_b32 v{O+i}, 0")
    a("s_branch A_SETMAX")
    a.label("A_FIN")
    stamp(a, 7)
    a(f"v_rcp_f32 v{vT0}, v{O+8}")
    a("s_waitcnt vmcnt(0)")
    a(f"v_mul_f32 v{vT0}, v{vT0}, v{vG}")
    for i in range(8):
        a(f"v_mul_f32 v{O+i}, v{O+i}, v{vT0}")
    for i in range(4):
        a(f"v_cvt_pk_bf16_f32 v{O+i}, v{O+2*i}, v{O+2*i+1}")
    for i in range(4):
        a(f"v_min_u32 v{O+i}, -2, v{O+i}")
    a(f"buffer_store_dwordx4 {vr(O,4)}, v{vL16}, {sr(S_WS,4)}, s12 offen sc1")
    stamp(a, 9); stamp(a, 8, True)
    stamp_flush(a)
    a("s_endpgm")


def gen_G(a):
    sXoff, sLX, sWQ0, sW10, sGO = 26, 27, 80, 81, 3
    sGW = sTG
    vDX0, vDX1, vDWq, vDW1, vT2 = 5, 6, 7, 8, 9
    vWe, vWo, vW2w, vGo = 10, 11, 12, 13
    vEp = 14
    RS = 16
    NSETS = int(os.environ.get("NSETS", "9"))
    PER = int(os.environ.get("PER", "1"))
    a("s_setprio 3")
    a(f"s_lshl_b32 s{sXoff}, s{sTT}, 15")
    a(f"s_lshl_b32 s{sLX}, s{sTG}, 12")
    a(f"s_mul_i32 s{sWQ0}, s{sTG}, {16*3072}")
    a(f"s_lshl_b32 s{sT0}, s{sCG}, 6")
    a(f"s_add_u32 s{sWQ0}, s{sWQ0}, s{sT0}")
    a(f"v_lshrrev_b32 v{vT0}, 3, v{vLane}")
    a(f"v_lshrrev_b32 v{vT1}, 4, v{vLane}")
    a(f"v_and_b32 v{vT2}, 7, v{vLane}")
    a(f"v_xor_b32 v{vT2}, v{vT2}, v{vT1}")
    a(f"v_lshlrev_b32 v{vDX0}, 10, v{vT0}")
    a(f"v_lshl_add_u32 v{vDX0}, v{vT2}, 4, v{vDX0}")
    a(f"v_xor_b32 v{vDX1}, 64, v{vDX0}")
    a(f"v_add_u32 v{vDX1}, 8192, v{vDX1}")
    a(f"v_lshrrev_b32 v{vT0}, 2, v{vLane}")
    a(f"v_and_b32 v{vT2}, 3, v{vLane}")
    a(f"v_lshlrev_b32 v{vT2}, 4, v{vT2}")
    a(f"v_mul_u32_u24 v{vDWq}, 3072, v{vT0}")
    a(f"v_add_u32 v{vDWq}, v{vDWq}, v{vT2}")
    a(f"v_mul_u32_u24 v{vDW1}, 3584, v{vT0}")
    a(f"v_add_u32 v{vDW1}, v{vDW1}, v{vT2}")
    sLW = sGO
    a(f"s_lshl_b32 s{sLW}, s{sTG}, 10")
    a("s_waitcnt lgkmcnt(0)")
    estamp(a, 2)
    srd(a, S_X, 4, 2048 * 512 * 2)
    srd(a, S_WQ, 6, 512 * 1536 * 2)
    srd(a, S_GW, 18, 1024)

    q = []
    def vm(tag):
        q.append(tag)
    def wait_tag(tag, extra=""):
        last = max(i for i, t in enumerate(q) if t == tag)
        n = len(q) - 1 - last
        assert n < 64
        a(f"s_waitcnt vmcnt({n}){extra}")

    def dma(lds_s, lds_imm, voff, srdn, s_base, imm, extra=""):
        a(f"s_add_u32 m0, s{lds_s}, {lds_imm}")
        a(f"s_add_u32 s{sT0}, s{s_base}, {imm}")
        a(f"buffer_load_dwordx4 v{voff}, {sr(srdn,4)}, s{sT0} offen{extra} lds")

    ROT = int(os.environ.get("ROT", "0"))
    sRot, sXo, sWo = 82, 83, 78
    sWo = 25
    def issue(n):
        base = (n & 3) * 32768
        st = n if n < 8 else ((n - 4) & 7 if REUSE else n & 7)
        xb, wb, sti = sXoff, (sWQ0 if n < 8 else sW10), st
        if ROT:
            a(f"s_add_u32 s{sT1}, s{sRot}, {st}")
            a(f"s_and_b32 s{sT1}, s{sT1}, 7")
            a(f"s_lshl_b32 s{sXo}, s{sT1}, 7")
            a(f"s_add_u32 s{sXo}, s{sXo}, s{sXoff}")
            a(f"s_mul_i32 s{sT2}, s{sT1}, {64 * (3072 if n < 8 else 3584)}")
            a(f"s_add_u32 s{sT2}, s{sT2}, s{wb}")
            xb, wb, sti = sXo, sT2, 0
        if not (REUSE and 8 <= n < 12):
            for j in range(4):
                dma(sLX, base + j * 1024, vDX0 if j % 2 == 0 else vDX1, S_X, xb, (j >> 1) * 16384 + sti * 128); vm(n)
        if n < 8:
            for t in range(3):
                dma(sLW, base + 16384 + t * 4096, vDWq, S_WQ, wb, sti * 64 * 3072 + t * 1024); vm(n)
        else:
            for t in range(4):
                dma(sLW, base + 16384 + t * 4096, vDW1, S_W1, wb, sti * 64 * 3584 + t * 64); vm(n)

    if ROT:
        a(f"s_lshr_b32 s{sRot}, s2, 3")
        a(f"s_lshr_b32 s{sT1}, s2, 6")
        a(f"s_lshl_b32 s{sT1}, s{sT1}, 1")
        a(f"s_add_u32 s{sRot}, s{sRot}, s{sT1}")
        if ROT == 2: a(f"s_and_b32 s{sRot}, s{sRot}, 3")
        a(f"s_and_b32 s{sRot}, s{sRot}, 7")
        a(f"s_lshl_b32 s{sT1}, s{sRot}, 7")
        a(f"v_add_u32 v10, s{sT1}, v{vL16}")
        a(f"v_and_b32 v10, 0x3ff, v10")
    estamp(a, 3)
    a(f"s_mov_b32 m0, {L_GW}")
    a("s_nop 0")
    a(f"buffer_load_dwordx4 v{10 if ROT else vL16}, {sr(S_GW,4)}, 0 offen lds"); vm(0)
    issue(0)
    estamp(a, 4)
    issue(1)
    srd(a, S_W1, 12, 512 * 1792 * 2)
    srds_rest(a)
    a(f"s_mul_i32 s{sW10}, s{sTG}, {16*3584}")
    a(f"s_lshl_b32 s{sT0}, s{sFT0}, 6")
    a(f"s_add_u32 s{sW10}, s{sW10}, s{sT0}")
    a(f"s_mov_b32 m0, {L_B1}")
    a(f"s_lshl_b32 s{sT0}, s{sFT0}, 6")
    a(f"buffer_load_dwordx4 v{vL16}, {sr(S_B1,4)}, s{sT0} offen lds"); vm(1)
    a(f"s_lshl_b32 s{sT0}, s2, 4")
    a(f"s_add_u32 s{sT0}, s{sT0}, s{sW}")
    a(f"s_cmp_eq_u32 s{sT0}, 8")
    a("s_cbranch_scc0 G_NOEP")
    a(f"s_memrealtime {sr(sEP,2)}")
    a("s_waitcnt lgkmcnt(0)")
    a(f"s_or_b32 s{sEP}, s{sEP}, 1")
    a(f"v_mov_b32 v{vEp}, s{sEP}")
    a(f"v_mov_b32 v{vEp+1}, s{sEP+1}")
    a("s_mov_b64 exec, 1")
    a(f"buffer_store_dwordx2 {vr(vEp,2)}, off, {sr(S_DBG,4)}, 0 sc1")
    a("s_mov_b64 exec, -1")
    a.label("G_NOEP")
    estamp(a, 5)
    wait_tag(0)
    estamp(a, 6)
    a("s_barrier")
    stamp(a, 2)
    estamp(a, 7)
    ORD = int(os.environ.get("ORD", "0"))
    if ORD <= 1: issue(2)
    for n in range(16):
        if n == 0 and ORD == 0:
            issue(3)
        if n == int(os.environ.get("PFW1", "99")) and "N" not in X:
            a(f"s_lshr_b32 s{sT0}, s2, 3")
            a(f"s_lshl_b32 s{sT0}, s{sT0}, 4")
            a(f"s_lshl_b32 s{sT1}, s{sGW}, 2")
            a(f"s_add_u32 s{sT0}, s{sT0}, s{sT1}")
            a(f"s_mul_i32 s{sT0}, s{sT0}, 3584")
            a(f"s_bfe_u32 s{sT1}, s2, 0x20001")
            a(f"s_lshl_b32 s{sT1}, s{sT1}, 10")
            a(f"s_add_u32 s{sT0}, s{sT0}, s{sT1}")
            a(f"v_mul_u32_u24 v16, 3584, v{vT1}")
            a(f"v_and_b32 v17, 15, v{vLane}")
            a(f"v_lshl_add_u32 v16, v17, 6, v16")
            a(f"buffer_load_dword v17, v16, {sr(S_W1,4)}, s{sT0} offen"); vm("pf")
        if n == int(os.environ.get("PFW2", "99")):
            a(f"v_lshlrev_b32 v16, 6, v{vLane}")
            a(f"s_cmp_ge_u32 s{sGW}, 2")
            a("s_cbranch_scc1 G_PFO")
            a(f"s_mul_i32 s{sT0}, s2, 7168")
            a(f"s_mul_i32 s{sT1}, s{sGW}, 3584")
            a(f"s_add_u32 s{sT0}, s{sT0}, s{sT1}")
            a(f"v_min_u32 v16, {55*64}, v16")
            a(f"buffer_load_dword v17, v16, {sr(S_W2,4)}, s{sT0} offen")
            a("s_branch G_PFD")
            a.label("G_PFO")
            a(f"s_lshl_b32 s{sT0}, s2, 11")
            a(f"v_min_u32 v16, {31*64}, v16")
            a(f"buffer_load_dword v17, v16, {sr(S_WO,4)}, s{sT0} offen")
            a.label("G_PFD")
            vm("pf2")
        if n == 4:
            a(f"buffer_load_dwordx2 {vr(vEp,2)}, off, {sr(S_DBG,4)}, 0 sc1"); vm("ep")
        if n == 10:
            wait_tag("ep")
            a(f"s_mov_b32 s{sT1}, 0")
            a.label("G_EPL")
            a(f"v_readfirstlane_b32 s{sEP}, v{vEp}")
            a(f"v_readfirstlane_b32 s{sEP+1}, v{vEp+1}")
            a(f"s_cmp_lg_u32 s{sEP}, 0")
            a("s_cbranch_scc1 G_EPD")
            a("s_sleep 4")
            a(f"buffer_load_dwordx2 {vr(vEp,2)}, off, {sr(S_DBG,4)}, 0 sc1")
            a("s_waitcnt vmcnt(0)")
            a(f"s_add_u32 s{sT1}, s{sT1}, 1")
            a(f"s_cmp_lt_u32 s{sT1}, {SPIN_MAX}")
            a("s_cbranch_scc1 G_EPL")
            a.label("G_EPD")
        if n + 1 <= 15:
            wait_tag(n + 1)
        a("s_barrier")
        if n == 0 and ORD == 2: issue(2)
        if (1 <= n or ORD >= 1) and n + 3 <= 15:
            issue(n + 3)
        if "P" in X and STAMPS:
            P0 = int(os.environ.get("P0", "8"))
            if P0 <= n + 1 < P0 + 6:
                i = n + 1 - P0 + 2
                a(f"s_memtime s[{82+2*i}:{83+2*i}]")
                a("s_waitcnt lgkmcnt(0)")
        if n + 1 == 12:
            a(f"s_cmp_eq_u32 s{sGW}, 0")
            a("s_cbranch_scc0 G_NOF1")
            a(f"s_lshl_b32 s{sT0}, s{sCG}, 7")
            a(f"s_lshl_b32 s{sT1}, s{sRB}, 3")
            a(f"s_add_u32 s{sT0}, s{sT0}, s{sT1}")
            a(f"s_add_u32 s{sT0}, s{sT0}, {WS_FKV:#x}")
            a("s_mov_b64 exec, 1")
            a(f"buffer_store_dwordx2 {vr(vEp,2)}, off, {sr(S_WS,4)}, s{sT0} sc1")
            a("s_mov_b64 exec, -1")
            a.label("G_NOF1")
    sHead, sKV, sLK, sFK, sFG, sQ = 4, 5, 6, 7, 8, 9
    sA0, sA1, sW2, sOT, sON, sI, sRing, sTT64, sNB = 10, 11, 12, 13, 14, 15, 16, 17, 18
    vL8, vF16 = 5, 6
    FL = 124
    a(f"s_and_b32 s{sT0}, s2, 7")
    a(f"s_lshl_b32 s{sHead}, s{sT0}, 2")
    a(f"s_bfe_u32 s{sT0}, s2, 0x20003")
    a(f"s_add_u32 s{sHead}, s{sHead}, s{sT0}")
    a(f"s_lshl_b32 s{sLK}, s{sGW}, 10")
    a(f"s_lshl_b32 s{sKV}, s{sHead}, 17")
    a(f"s_add_u32 s{sKV}, s{sKV}, {WS_KV:#x}")
    a(f"s_add_u32 s{sKV}, s{sKV}, s{sLK}")
    a(f"s_lshr_b32 s{sT0}, s{sHead}, 1")
    a(f"s_lshl_b32 s{sFK}, s{sT0}, 7")
    a(f"s_add_u32 s{sFK}, s{sFK}, {WS_FKV:#x}")
    a(f"s_lshr_b32 s{sT1}, s2, 5")
    a(f"s_lshl_b32 s{sQ}, s{sHead}, 16")
    a(f"s_lshl_b32 s{sT0}, s{sT1}, 13")
    a(f"s_add_u32 s{sQ}, s{sQ}, s{sT0}")
    a(f"s_add_u32 s{sQ}, s{sQ}, s{sLK}")
    a(f"s_add_u32 s{sQ}, s{sQ}, {WS_QF:#x}")
    a(f"v_lshlrev_b32 v{vL8}, 3, v{vLane}")
    a(f"v_and_b32 v{vF16}, 0x78, v{vL8}")
    stamp(a, 3)
    poll(a, [(1, FL, vF16, sFK)], sT1)
    stamp(a, 4)
    def kvdma(i):
        dma(sLK, i * 4096, vL16, S_WS, sKV, i * 4096, " sc1")
    dma(sLK, L_Q, vL16, S_WS, sQ, 0, " sc1")
    dma(sLK, L_Q + 4096, vL16, S_WS, sQ, 4096, " sc1")
    def pubflags():
        a(f"s_cmp_eq_u32 s{sGW}, 0")
        a("s_cbranch_scc0 G_NOF2")
        a(f"s_lshl_b32 s{sT0}, s{sRB}, 7")
        a(f"s_lshl_b32 s{sT1}, s{sCG}, 3")
        a(f"s_add_u32 s{sT0}, s{sT0}, s{sT1}")
        a(f"s_add_u32 s{sT0}, s{sT0}, {WS_FACT:#x}")
        a(f"s_lshr_b32 s{sT1}, s2, 5")
        a(f"s_lshl_b32 s{sT1}, s{sT1}, 8")
        a(f"s_lshl_b32 s{sT2}, s{sHead}, 3")
        a(f"s_add_u32 s{sT1}, s{sT1}, s{sT2}")
        a(f"s_add_u32 s{sT1}, s{sT1}, {WS_FO:#x}")
        a("s_mov_b64 exec, 1")
        a(f"buffer_store_dwordx2 {vr(vEp,2)}, off, {sr(S_WS,4)}, s{sT0} sc1")
        a(f"buffer_store_dwordx2 {vr(vEp,2)}, off, {sr(S_WS,4)}, s{sT1} sc1")
        a("s_mov_b64 exec, -1")
        a.label("G_NOF2")
    KV0 = int(os.environ.get("KV0", "8"))
    for i in range(KV0): kvdma(i)
    a(f"s_waitcnt vmcnt({KV0-4})")
    a("s_barrier")
    for i in range(KV0, 20): kvdma(i)
    a("s_waitcnt vmcnt(12)")
    a("s_barrier")
    if EARLYF: pubflags()
    for i in range(20, 32): kvdma(i)
    ACC = 8
    AF = 72
    WF = 104
    vG0, vG1 = 120, 121
    vDW, vTr0, vTr1 = 7, 122, 123
    a(f"s_and_b32 s{sT0}, s2, 7")
    a(f"s_lshr_b32 s{sT1}, s2, 3")
    a(f"s_lshr_b32 s{sTT64}, s{sT0}, 1")
    a(f"s_lshl_b32 s{sTT64}, s{sTT64}, 3")
    a(f"s_and_b32 s{sT3}, s{sT1}, 7")
    a(f"s_add_u32 s{sTT64}, s{sTT64}, s{sT3}")
    a(f"s_and_b32 s{sNB}, s{sT0}, 1")
    a(f"s_lshl_b32 s{sNB}, s{sNB}, 2")
    a(f"s_lshr_b32 s{sT1}, s{sT1}, 3")
    a(f"s_add_u32 s{sNB}, s{sNB}, s{sT1}")
    a(f"s_lshr_b32 s{sT1}, s{sGW}, 1")
    a(f"s_lshl_b32 s{sOT}, s{sTT64}, 1")
    a(f"s_add_u32 s{sOT}, s{sOT}, s{sT1}")
    a(f"s_and_b32 s{sT1}, s{sGW}, 1")
    a(f"s_lshl_b32 s{sON}, s{sNB}, 1")
    a(f"s_add_u32 s{sON}, s{sON}, s{sT1}")
    a(f"s_mul_i32 s{sT3}, s{sGW}, {28*1024}")
    a(f"s_mul_i32 s{sA0}, s{sOT}, {112*1024}")
    a(f"s_add_u32 s{sA0}, s{sA0}, s{sT3}")
    a(f"s_add_u32 s{sA0}, s{sA0}, {WS_ACT:#x}")
    a(f"s_xor_b32 s{sT1}, s{sOT}, 1")
    a(f"s_mul_i32 s{sA1}, s{sT1}, {112*1024}")
    a(f"s_add_u32 s{sA1}, s{sA1}, s{sT3}")
    a(f"s_add_u32 s{sA1}, s{sA1}, {WS_ACT:#x}")
    a(f"s_mul_i32 s{sW2}, s{sGW}, {28*16384}")
    a(f"s_lshl_b32 s{sT1}, s{sNB}, 7")
    a(f"s_add_u32 s{sW2}, s{sW2}, s{sT1}")
    a(f"s_lshl_b32 s{sRing}, s{sGW}, 13")
    a(f"s_add_u32 s{sRing}, s{sRing}, {L_RING}")
    a(f"v_lshrrev_b32 v{vT0}, 3, v{vLane}")
    a(f"v_bfe_u32 v{vT1}, v{vLane}, 4, 1")
    a(f"v_lshlrev_b32 v{vT1}, 2, v{vT1}")
    a(f"v_and_b32 v{vDW}, 7, v{vLane}")
    a(f"v_xor_b32 v{vDW}, v{vDW}, v{vT1}")
    a(f"v_lshlrev_b32 v{vDW}, 4, v{vDW}")
    a(f"v_lshl_add_u32 v{vDW}, v{vT0}, 10, v{vDW}")
    a(f"v_bfe_u32 v{vT0}, v{vLane}, 2, 2")
    a(f"v_lshrrev_b32 v{vT1}, 5, v{vLane}")
    a(f"v_lshl_add_u32 v{vT0}, v{vT1}, 2, v{vT0}")
    a(f"v_lshlrev_b32 v{vTr0}, 7, v{vT0}")
    a(f"v_bfe_u32 v{vT0}, v{vLane}, 3, 1")
    a(f"v_lshl_add_u32 v{vTr0}, v{vT0}, 6, v{vTr0}")
    a(f"v_and_b32 v{vT0}, 1, v{vLane}")
    a(f"v_lshl_add_u32 v{vTr0}, v{vT0}, 5, v{vTr0}")
    a(f"v_bfe_u32 v{vT0}, v{vLane}, 4, 1")
    a(f"v_lshl_add_u32 v{vTr0}, v{vT0}, 4, v{vTr0}")
    a(f"v_bfe_u32 v{vT0}, v{vLane}, 1, 1")
    a(f"v_lshl_add_u32 v{vTr0}, v{vT0}, 3, v{vTr0}")
    a(f"s_and_b32 s{sT1}, s{sGW}, 1")
    a(f"s_lshl_b32 s{sT1}, s{sT1}, 6")
    a(f"v_xor_b32 v{vTr0}, s{sT1}, v{vTr0}")
    a(f"v_add_u32 v{vTr0}, s{sRing}, v{vTr0}")
    a(f"v_xor_b32 v{vTr1}, 64, v{vTr0}")
    a(f"s_lshr_b32 s{sFG}, s{sTT64}, 2")
    a(f"s_lshl_b32 s{sFG}, s{sFG}, 8")
    a(f"s_add_u32 s{sFG}, s{sFG}, {WS_FO:#x}")
    a(f"v_and_b32 v{vL8}, 0xf8, v{vL8}")
    a(f"s_lshr_b32 s{sFK}, s{sTT64}, 1")
    a(f"s_lshl_b32 s{sFK}, s{sFK}, 7")
    a(f"s_add_u32 s{sFK}, s{sFK}, {WS_FACT:#x}")
    a("s_waitcnt vmcnt(0)")
    a("s_barrier")
    if not EARLYF: pubflags()
    a(f"s_setprio {os.environ.get('GPRIO', '0')}")
    stamp(a, 5)
    poll(a, [(1, FL, vF16, sFK)], sT1)
    a(f"v_and_b32 v{vT0}, 31, v{vLane}")
    a(f"v_lshlrev_b32 v{vT0}, 2, v{vT0}")
    a(f"s_lshl_b32 s{sT0}, s{sOT}, 7")
    a(f"s_add_u32 s{sT0}, s{sT0}, {WS_G:#x}")
    a(f"s_xor_b32 s{sT1}, s{sT0}, 128")
    a(f"buffer_load_dword v{vG0}, v{vT0}, {sr(S_WS,4)}, s{sT0} offen sc1")
    a(f"buffer_load_dword v{vG1}, v{vT0}, {sr(S_WS,4)}, s{sT1} offen sc1")

    def wdma(st, srdn):
        a(f"s_add_u32 m0, s{sRing}, {st * 2048}")
        a(f"s_add_u32 s{sT0}, s{sW2}, 8192")
        a(f"buffer_load_dwordx4 v{vDW}, {sr(srdn,4)}, s{sW2} offen lds")
        a(f"s_add_u32 m0, s{sRing}, {st * 2048 + 1024}")
        a(f"s_add_u32 s{sW2}, s{sW2}, 16384")
        a(f"buffer_load_dwordx4 v{vDW}, {sr(srdn,4)}, s{sT0} offen lds")

    def group(st):
        wdma(st, S_W2)
        f = AF + 8 * st
        a(f"buffer_load_dwordx4 {vr(f,4)}, v{vL16}, {sr(S_WS,4)}, s{sA0} offen offset:{st*1024} sc1")
        a(f"buffer_load_dwordx4 {vr(f+4,4)}, v{vL16}, {sr(S_WS,4)}, s{sA1} offen offset:{st*1024} sc1")
        if st == 3:
            a(f"s_add_u32 s{sA0}, s{sA0}, 4096")
            a(f"s_add_u32 s{sA1}, s{sA1}, 4096")

    def trreads(st, w):
        for jp, vt in enumerate((vTr0, vTr1)):
            a(f"ds_read_b64_tr_b16 {vr(w+4*jp,2)}, v{vt} offset:{st*2048}")
            a(f"ds_read_b64_tr_b16 {vr(w+4*jp+2,2)}, v{vt} offset:{st*2048+1024}")

    GSP = os.environ.get("GSP", "")
    def gmfma(w, f, first, space=False):
        for ap in range(2):
            for jp in range(2):
                acc = ACC + 16 * (ap * 2 + jp)
                c = "0" if first else vr(acc, 16)
                a(f"v_mfma_f32_32x32x16_bf16 {vr(acc,16)}, {vr(w+4*jp,4)}, {vr(f+4*ap,4)}, {c}")
                if space and GSP and not (ap == 1 and jp == 1): a(GSP)

    def step(st, first, more, nwait=12):
        a(f"s_waitcnt vmcnt({nwait})")
        w = WF + 8 * (st & 1)
        trreads(st, w)
        a("s_waitcnt lgkmcnt(0)")
        gmfma(w, AF + 8 * st, first, True)
        if more:
            group(st)

    for st in range(4): group(st)
    for st in range(4): step(st, st == 0, True)
    a(f"s_mov_b32 s{sI}, 0")
    a.label("G_LOOP")
    for st in range(4): step(st, False, True)
    a(f"s_add_u32 s{sI}, s{sI}, 1")
    a(f"s_cmp_lt_u32 s{sI}, {1 if 'F' in X else 5}")
    a("s_cbranch_scc1 G_LOOP")
    for st in range(4): step(st, False, False, 12 - 4 * st)
    stamp(a, 6)
    WOR = 72
    OFR = 136
    a(f"s_lshl_b32 s{sW2}, s{sGW}, 17")
    a(f"s_lshl_b32 s{sT1}, s{sNB}, 7")
    a(f"s_add_u32 s{sW2}, s{sW2}, s{sT1}")
    for st in range(4): wdma(st, S_WO)
    a(f"v_sub_f32 v{vT0}, 1.0, v{vG0}")
    a(f"v_sub_f32 v{vT1}, 1.0, v{vG1}")
    a(f"v_mov_b32 v152, v{vTr0}")
    a(f"v_mov_b32 v153, v{vTr1}")
    vTr0, vTr1 = 152, 153
    a("s_nop 7")
    for q in range(4):
        for i in range(16):
            a(f"v_mul_f32 v{ACC+16*q+i}, v{ACC+16*q+i}, v{vT0 if q < 2 else vT1}")
    def trreads2(st, w):
        for jp, vt in enumerate((vTr0, vTr1)):
            a(f"ds_read_b64_tr_b16 {vr(w+4*jp,2)}, v{vt} offset:{st*2048}")
            a(f"ds_read_b64_tr_b16 {vr(w+4*jp+2,2)}, v{vt} offset:{st*2048+1024}")
    for ks in range(8):
        st = ks & 3
        a(f"s_waitcnt vmcnt({6 if ks < 4 else 6 - 2 * (ks - 4)})")
        trreads2(st, WOR + 8 * ks)
        if ks < 4:
            a("s_waitcnt lgkmcnt(0)")
            wdma(st, S_WO)
    FL = 156
    a(f"s_lshl_b32 s{sA0}, s{sOT}, 15")
    a(f"s_lshl_b32 s{sT3}, s{sGW}, 13")
    a(f"s_add_u32 s{sA0}, s{sA0}, s{sT3}")
    a(f"s_add_u32 s{sA0}, s{sA0}, {WS_OF:#x}")
    a(f"s_xor_b32 s{sA1}, s{sA0}, 32768")
    a(f"s_lshl_b32 s{sLK}, s{sGW}, 14")
    a(f"v_add_u32 v154, s{sLK}, v{vL16}")
    poll(a, [(1, FL, vL8, sFG)], sT1)
    a("s_mov_b64 s[22:23], -1")
    a("s_mov_b32 s19, 0")
    a("s_waitcnt lgkmcnt(0)")
    a("s_barrier")
    a("s_setprio 3")
    a("s_branch G_P3")
    a.label("G_RELOAD")
    for ks in range(8):
        dma(sLK, ks * 2048, vL16, S_WS, sA0, ks * 1024, " sc1")
        dma(sLK, ks * 2048 + 1024, vL16, S_WS, sA1, ks * 1024, " sc1")
    a("s_add_u32 s19, s19, 1")
    a(f"s_cmp_lt_u32 s19, {SPIN_MAX}")
    a("s_cselect_b64 s[22:23], -1, 0")
    a("s_setpc_b64 s[20:21]")
    a.label("G_P3")
    a("s_call_b64 s[20:21], G_RELOAD")
    def ord_(ks):
        f = OFR + 8 * (ks & 1)
        a(f"ds_read_b128 {vr(f,4)}, v154 offset:{ks*2048}")
        a(f"ds_read_b128 {vr(f+4,4)}, v154 offset:{ks*2048+1024}")
    def verify(ks):
        f = OFR + 8 * (ks & 1)
        a.label(f"G_V{ks}")
        a("s_waitcnt lgkmcnt(0)")
        a(f"v_max3_u32 v155, v{f}, v{f+1}, v{f+2}")
        a(f"v_max3_u32 v155, v155, v{f+3}, v{f+4}")
        a(f"v_max3_u32 v155, v155, v{f+5}, v{f+6}")
        a(f"v_max_u32 v155, v155, v{f+7}")
        a(f"v_cmp_eq_u32 vcc, -1, v155")
        a("s_nop 1")
        a("s_and_b64 vcc, vcc, s[22:23]")
        a(f"s_cbranch_scc0 G_OK{ks}")
        a("s_call_b64 s[20:21], G_RELOAD")
        a("s_waitcnt vmcnt(0)")
        ord_(ks)
        a(f"s_branch G_V{ks}")
        a.label(f"G_OK{ks}")
    a("s_waitcnt vmcnt(14)")
    ord_(0)
    verify(0)
    stamp(a, 7)
    for ks in range(8):
        f = OFR + 8 * (ks & 1)
        if ks < 7:
            a(f"s_waitcnt vmcnt({12 - 2 * ks})")
            ord_(ks + 1)
        gmfma(WOR + 8 * ks, f, False)
        if ks < 7:
            verify(ks + 1)
    a("s_nop 7")
    a("s_nop 7")
    for q in range(1, 4):
        a(f"s_xor_b32 s{sT0}, s{sGW}, {q}")
        a(f"s_mul_i32 s{sT0}, s{sT0}, 12288")
        a(f"s_add_u32 s{sT0}, s{sT0}, {L_EXCH}")
        a(f"v_add_u32 v{vT0}, s{sT0}, v{vL16}")
        for i in range(4):
            a(f"ds_write_b128 v{vT0}, {vr(ACC+16*q+4*i,4)} offset:{(q-1)*4096 + i*1024}")
    a(f"s_mul_i32 s{sT0}, s{sGW}, 12288")
    a(f"s_add_u32 s{sT0}, s{sT0}, {L_EXCH}")
    a(f"v_add_u32 v{vT0}, s{sT0}, v{vL16}")
    a("s_waitcnt lgkmcnt(0)")
    a("s_barrier")
    R = 72
    for q in range(3):
        for i in range(4):
            a(f"ds_read_b128 {vr(R+16*q+4*i,4)}, v{vT0} offset:{q*4096 + i*1024}")
    a(f"v_and_b32 v{vT0}, 31, v{vLane}")
    a(f"v_lshlrev_b32 v{vT0}, 10, v{vT0}")
    a(f"v_lshrrev_b32 v{vT1}, 5, v{vLane}")
    a(f"v_lshl_add_u32 v{vT0}, v{vT1}, 5, v{vT0}")
    a(f"s_lshl_b32 s{sT0}, s{sOT}, 15")
    a(f"s_lshl_b32 s{sT1}, s{sON}, 6")
    a(f"s_add_u32 s{sT0}, s{sT0}, s{sT1}")
    for q in range(3):
        a(f"s_waitcnt lgkmcnt({8 - 4 * q})")
        for i in range(16):
            a(f"v_add_f32 v{ACC+i}, v{ACC+i}, v{R+16*q+i}")
    cvt16(a, ACC)
    a(f"buffer_store_dwordx4 {vr(ACC,4)}, v{vT0}, {sr(S_OUT,4)}, s{sT0} offen{os.environ.get('OUTF','')}")
    a(f"buffer_store_dwordx4 {vr(ACC+4,4)}, v{vT0}, {sr(S_OUT,4)}, s{sT0} offen offset:16{os.environ.get('OUTF','')}")
    if STAMPS: a("s_waitcnt vmcnt(0)")
    stamp(a, 9); stamp(a, 8, True)
    stamp_flush(a)


def main():
    ref = open(f"cdna_kernels/{NAME}.s.ref").read().split("\n")
    head = [l for l in ref if l.startswith(";") and "@launch" not in l]
    a = A()
    name = gen(a)
    out = "\n".join(head) + "\n"
    if ASLIST:
        out += f"; @launch kernel={name} grid=(256,1,1) block=(768,1,1) lds={LDS_TOTAL}\n"
    else:
        out += f"; @launch grid=(256,1,1) block=(768,1,1) lds={LDS_TOTAL}\n"
    out += '.amdgcn_target "amdgcn-amd-amdhsa--gfx950"\n'
    out += a.text()
    out += f""".section .rodata,"a"
.p2align 6
.amdhsa_kernel {name}
  .amdhsa_next_free_vgpr 168
  .amdhsa_next_free_sgpr {102 if STAMPS else 84}
  .amdhsa_accum_offset 168
  .amdhsa_group_segment_fixed_size 0
  .amdhsa_kernarg_size 88
  .amdhsa_user_sgpr_count 2
  .amdhsa_user_sgpr_kernarg_segment_ptr 1
  .amdhsa_system_sgpr_workgroup_id_x 1
.end_amdhsa_kernel
"""
    path = sys.argv[1] if len(sys.argv) > 1 else f"cdna_kernels/{NAME}.s"
    open(path, "w").write(out)
    print("wrote", path, len(out), "bytes")

main()
```

```python
import struct, sys, math, os

NAME = "gated_mix__mha_block__dense_activation_mish__prompt"
STAMPS = int(os.environ.get("STAMPS", "0"))
ASLIST = int(os.environ.get("ASLIST", "0"))
X = os.environ.get("X", "")
EARLYF = int(os.environ.get("EARLYF", "1"))
REUSE = int(os.environ.get("REUSE", "1"))
DOT = int(os.environ.get("DOT", "1"))
NOB2 = int(os.environ.get("NOB2", "0"))
B3AT = int(os.environ.get("B3AT", "3"))
NTW = os.environ.get("NTW", "")
NTX = os.environ.get("NTX", "")
NTP = os.environ.get("NTP", "")
SENT0 = int(os.environ.get("SENT0", "0"))
PR1 = int(os.environ.get("PR1", "9"))
PR2 = int(os.environ.get("PR2", "13"))

def f32(x):
    return "0x%08x" % struct.unpack("<I", struct.pack("<f", x))[0]

LOG2E = math.log2(math.e)

WS_QF  = 0x0000000
WS_KV  = 0x0200000
WS_ACT = 0x0600000
WS_G   = 0x0F40000
WS_OF  = 0x1000000
WS_FKV = 0x1800000
WS_FACT = 0x1804000
WS_FO  = 0x1808000
WS_STAMP = 0x2000000
WS_SIZE = 0x10000000

L_GW = 144 * 1024
L_B1 = 145 * 1024
L_RING = 128 * 1024
L_Q = 128 * 1024
L_EXCH = 64 * 1024
LDS_TOTAL = 160 * 1024

SPIN_MAX = 200000


class A:
    def __init__(self):
        self.l = []
        self.n = 0
    def __call__(self, s):
        for line in s.strip("\n").split("\n"):
            self.l.append("    " + line.strip())
    def label(self, s):
        self.l.append(s + ":")
    def raw(self, s):
        self.l.append(s)
    def uniq(self, p):
        self.n += 1
        return f"{p}_{self.n}"
    def text(self):
        return "\n".join(self.l) + "\n"


def vr(b, n):
    return "v[%d:%d]" % (b, b + n - 1)

def sr(b, n):
    return "s[%d:%d]" % (b, b + n - 1)

def srd(a, dst, ptr, nbytes):
    a(f"s_mov_b32 s{dst}, s{ptr}")
    a(f"s_and_b32 s{dst+1}, s{ptr+1}, 0xffff")
    a(f"s_mov_b32 s{dst+2}, {nbytes:#x}")
    a(f"s_mov_b32 s{dst+3}, 0x00020000")

S_X, S_WQ, S_W1, S_WS, S_B1, S_W2, S_WO, S_GW, S_OUT, S_DBG = 28, 32, 36, 40, 44, 48, 52, 56, 60, 64
sW, sRB, sCG, sTG, sTT, sFT0 = 68, 69, 70, 71, 72, 73
sT0, sT1, sT2, sT3 = 74, 75, 76, 77
sEP = 78
vLane, vL16, vT0, vT1 = 1, 2, 3, 4

def estamp(a, i):
    if "E" in X and STAMPS:
        a(f"s_memtime s[{82+2*i}:{83+2*i}]")
        a("s_waitcnt lgkmcnt(0)")

def istamp(a, i):
    if "I" in X and STAMPS:
        a(f"s_memtime s[{82+2*i}:{83+2*i}]")
        a("s_waitcnt lgkmcnt(0)")

def stamp(a, i, real=False):
    if not STAMPS: return
    if ("E" in X or "P" in X) and 2 <= i <= 7: return
    if "I" in X and 4 <= i <= 7: return
    a(f"{'s_memrealtime' if real else 's_memtime'} s[{82+2*i}:{83+2*i}]")
    a("s_waitcnt lgkmcnt(0)")

def stamp_flush(a, n=10):
    if not STAMPS: return
    a("s_mov_b64 exec, 1")
    for i in range(n):
        a(f"v_mov_b32 v{i+1}, s{82+2*i}")
    a(f"s_lshl_b32 s80, s2, 4")
    a(f"s_add_u32 s80, s80, s{sW}")
    a(f"s_lshl_b32 s80, s80, 6")
    a(f"s_add_u32 s80, s80, {WS_STAMP:#x}")
    for i in range(n):
        a(f"buffer_store_dword v{i+1}, off, {sr(S_WS,4)}, s80 offset:{4*i}")
    if STAMPS == 2:
        L = a.uniq("NODBG")
        a(f"s_lshl_b32 s80, s2, 4")
        a(f"s_add_u32 s80, s80, s{sW}")
        a(f"s_cmp_eq_u32 s80, {77*16+8}")
        a(f"s_cbranch_scc0 {L}")
        a("v_sub_u32 v9, v9, v1")
        for i in (3, 4, 5, 6, 7, 8, 10):
            a(f"v_sub_u32 v{i}, v{i}, v2")
        for i in range(2, n):
            a(f"buffer_store_dword v{i+1}, off, {sr(S_DBG,4)}, 0 offset:{4*i}")
        a.label(L)


def mish16(a, acc, tmp, dst, cst):
    cL, c2, cm2, c1 = (vr(cst + 2 * i, 2) for i in range(4))
    for g in range(4):
        e = [vr(acc + 4 * g + 2 * i, 2) for i in range(2)]
        t = [vr(tmp + 2 * i, 2) for i in range(2)]
        u = [vr(tmp + 4 + 2 * i, 2) for i in range(2)]
        for i in range(2): a(f"v_pk_mul_f32 {t[i]}, {e[i]}, {cL}")
        for i in range(4): a(f"v_exp_f32 v{tmp+i}, v{tmp+i}")
        for i in range(2): a(f"v_pk_add_f32 {u[i]}, {t[i]}, {c2}")
        for i in range(2): a(f"v_pk_fma_f32 {u[i]}, {t[i]}, {u[i]}, {c2}")
        for i in range(4): a(f"v_rcp_f32 v{tmp+4+i}, v{tmp+4+i}")
        for i in range(2): a(f"v_pk_fma_f32 {u[i]}, {u[i]}, {cm2}, {c1}")
        for i in range(2): a(f"v_pk_mul_f32 {u[i]}, {u[i]}, {e[i]}")
        a(f"v_cvt_pk_bf16_f32 v{dst + 2 * g}, v{tmp+4}, v{tmp+5}")
        a(f"v_cvt_pk_bf16_f32 v{dst + 2 * g + 1}, v{tmp+6}, v{tmp+7}")

def cvt16(a, acc):
    for i in range(8):
        a(f"v_cvt_pk_bf16_f32 v{acc + i}, v{acc + 2 * i}, v{acc + 2 * i + 1}")

def flag_store(a, soff, vtmp, cnt):
    L = a.uniq("NOFLAG")
    if cnt is None:
        a(f"v_mov_b32 v{vtmp}, s{sEP}")
        a(f"v_mov_b32 v{vtmp+1}, s{sEP+1}")
        a("s_mov_b64 exec, 1")
        a(f"buffer_store_dwordx2 {vr(vtmp,2)}, off, {sr(S_WS,4)}, s{soff} sc1")
        a("s_mov_b64 exec, -1")
        return
    a("s_mov_b64 exec, 1")
    a(f"v_mov_b32 v{vtmp}, {cnt}")
    a(f"v_mov_b32 v{vtmp+1}, 1")
    a(f"ds_add_rtn_u32 v{vtmp}, v{vtmp}, v{vtmp+1}")
    a("s_waitcnt lgkmcnt(0)")
    a(f"v_readfirstlane_b32 s{sT3}, v{vtmp}")
    a(f"v_mov_b32 v{vtmp}, s{sEP}")
    a(f"v_mov_b32 v{vtmp+1}, s{sEP+1}")
    a(f"s_cmp_eq_u32 s{sT3}, 7")
    a(f"s_cbranch_scc0 {L}")
    a(f"buffer_store_dwordx2 {vr(vtmp,2)}, off, {sr(S_WS,4)}, s{soff} sc1")
    a.label(L)
    a("s_mov_b64 exec, -1")

def poll(a, loads, scnt):
    L = a.uniq("POLL"); D = a.uniq("POLLD")
    a(f"s_mov_b32 s{scnt}, 0")
    a.label(L)
    for nf, vd, vo, so in loads:
        op = "buffer_load_dwordx4" if nf == 2 else "buffer_load_dwordx2"
        a(f"{op} {vr(vd, 2*nf)}, v{vo}, {sr(S_WS,4)}, s{so} offen sc1")
    a("s_waitcnt vmcnt(0)")
    first = True
    for nf, vd, vo, so in loads:
        for k in range(nf):
            if first:
                a(f"v_cmp_ne_u64 vcc, {sr(sEP,2)}, {vr(vd+2*k,2)}")
                first = False
            else:
                a(f"v_cmp_ne_u64 {sr(sT2,2)}, {sr(sEP,2)}, {vr(vd+2*k,2)}")
                a("s_nop 1")
                a(f"s_or_b64 vcc, vcc, {sr(sT2,2)}")
    a("s_nop 1")
    a("s_cmp_eq_u64 vcc, 0")
    a(f"s_cbranch_scc1 {D}")
    a("s_sleep 4")
    a(f"s_add_u32 s{scnt}, s{scnt}, 1")
    a(f"s_cmp_lt_u32 s{scnt}, {SPIN_MAX}")
    a(f"s_cbranch_scc1 {L}")
    a.label(D)


def gen(a):
    name = NAME + "_kernel"
    a.raw(".text")
    a.raw(f".globl {name}")
    a.raw(".p2align 8")
    a.raw(f".type {name},@function")
    a.label(name)
    a("s_cmp_ge_u32 s2, 256")
    a("s_cbranch_scc1 K_END")
    stamp(a, 0, True); stamp(a, 1)
    a("s_load_dwordx16 s[4:19], s[0:1], 0")
    a("s_load_dwordx4 s[20:23], s[0:1], 64")
    a("s_load_dwordx2 s[24:25], s[0:1], 80")
    a(f"v_and_b32 v{vLane}, 63, v0")
    a(f"v_lshrrev_b32 v{vT0}, 6, v0")
    a(f"v_lshlrev_b32 v{vL16}, 4, v{vLane}")
    a(f"v_readfirstlane_b32 s{sW}, v{vT0}")
    if "C" not in X:
        a(f"v_lshlrev_b32 v{vT0}, 6, v0")
        a(f"s_cmp_ge_u32 s{sW}, 4")
        a("s_cbranch_scc1 K_NOPC")
        a(f"s_getpc_b64 {sr(sT0,2)}")
        a.label("K_PC")
        a(f"v_min_u32 v{vT0}, K_END-K_PC, v{vT0}")
        a(f"global_load_dword v12, v{vT0}, {sr(sT0,2)}")
        a.label("K_NOPC")
    a(f"s_and_b32 s{sT0}, s2, 7")
    a(f"s_lshr_b32 s{sT1}, s2, 3")
    if os.environ.get("TILE48"):
        a(f"s_and_b32 s{sRB}, s{sT0}, 3")
        a(f"s_lshl_b32 s{sRB}, s{sRB}, 2")
        a(f"s_and_b32 s{sT2}, s{sT1}, 3")
        a(f"s_add_u32 s{sRB}, s{sRB}, s{sT2}")
        a(f"s_lshr_b32 s{sCG}, s{sT0}, 2")
        a(f"s_lshl_b32 s{sCG}, s{sCG}, 3")
        a(f"s_lshr_b32 s{sT2}, s{sT1}, 2")
        a(f"s_add_u32 s{sCG}, s{sCG}, s{sT2}")
    else:
        a(f"s_and_b32 s{sRB}, s{sT0}, 1")
        a(f"s_lshl_b32 s{sRB}, s{sRB}, 3")
        a(f"s_and_b32 s{sT2}, s{sT1}, 7")
        a(f"s_add_u32 s{sRB}, s{sRB}, s{sT2}")
        a(f"s_lshr_b32 s{sCG}, s{sT0}, 1")
        a(f"s_lshl_b32 s{sCG}, s{sCG}, 2")
        a(f"s_lshr_b32 s{sT2}, s{sT1}, 3")
        a(f"s_add_u32 s{sCG}, s{sCG}, s{sT2}")
    a(f"s_and_b32 s{sTG}, s{sW}, 3")
    a(f"s_lshl_b32 s{sTT}, s{sRB}, 2")
    a(f"s_add_u32 s{sTT}, s{sTT}, s{sTG}")
    a(f"s_sub_u32 s{sT0}, s{sCG}, 2")
    a(f"s_cmp_ge_u32 s{sCG}, 14")
    a(f"s_cselect_b32 s{sFT0}, s{sT0}, s{sCG}")
    a(f"s_lshl_b32 s{sFT0}, s{sFT0}, 2")
    a(f"s_cmp_ge_u32 s{sW}, 8")
    a("s_cbranch_scc1 G_START")
    if "N" not in X:
        a(f"s_cmp_ge_u32 s{sW}, 6")
        a("s_cbranch_scc1 A_START")
        a(f"s_cmp_ge_u32 s{sW}, 4")
        a("s_cbranch_scc1 A_PF1")
        a(f"s_bitcmp1_b32 s{sW}, 0")
        a("s_cbranch_scc1 A_PFQ")
        a(f"s_lshl_b32 s{sT0}, s2, 13")
        a(f"s_lshl_b32 s{sT1}, s{sW}, 8")
        a(f"s_add_u32 s{sT0}, s{sT0}, s{sT1}")
        a(f"v_lshrrev_b32 v{vT0}, 3, v{vLane}")
        a(f"v_lshlrev_b32 v{vT0}, 10, v{vT0}")
        a(f"v_and_b32 v{vT1}, 7, v{vLane}")
        a(f"v_lshl_add_u32 v{vT0}, v{vT1}, 6, v{vT0}")
        a("s_waitcnt lgkmcnt(0)")
        srd(a, S_X, 4, 2048 * 512 * 2)
        a(f"buffer_load_dword v12, v{vT0}, {sr(S_X,4)}, s{sT0} offen{NTP}")
        a("s_branch A_START")
        a.label("A_PFQ")
        a(f"s_lshr_b32 s{sT1}, s{sW}, 1")
        a(f"s_lshl_b32 s{sT1}, s{sT1}, 8")
        a(f"s_add_u32 s{sT0}, s2, s{sT1}")
        a(f"s_mul_i32 s{sT0}, s{sT0}, 3072")
        a(f"v_min_u32 v{vT0}, 47, v{vLane}")
        a(f"v_lshlrev_b32 v{vT0}, 6, v{vT0}")
        a("s_waitcnt lgkmcnt(0)")
        srd(a, S_WQ, 6, 512 * 1536 * 2)
        a(f"buffer_load_dword v12, v{vT0}, {sr(S_WQ,4)}, s{sT0} offen{NTP}")
        a("s_branch A_START")
        a.label("A_PF1")
        a(f"s_and_b32 s{sT1}, s{sW}, 1")
        a(f"s_lshl_b32 s{sT1}, s{sT1}, 8")
        a(f"s_add_u32 s{sT0}, s2, s{sT1}")
        a(f"s_mul_i32 s{sT0}, s{sT0}, 3584")
        a(f"v_min_u32 v{vT0}, 55, v{vLane}")
        a(f"v_lshlrev_b32 v{vT0}, 6, v{vT0}")
        a("s_waitcnt lgkmcnt(0)")
        srd(a, S_W1, 12, 512 * 1792 * 2)
        if os.environ.get("PFSL"): a(f"s_sleep {os.environ['PFSL']}")
        a(f"buffer_load_dword v12, v{vT0}, {sr(S_W1,4)}, s{sT0} offen{NTP}")
        a("s_branch A_START")
    if "N" in X: a("s_branch A_START")
    a.label("G_START")
    gen_G(a)
    a("s_endpgm")
    gen_A(a)
    a.label("K_END")
    a("s_endpgm")
    return name

def srds_rest(a):
    srd(a, S_WS, 24, WS_SIZE)
    srd(a, S_B1, 14, 1792 * 2)
    srd(a, S_W2, 16, 1792 * 512 * 2)
    srd(a, S_WO, 8, 512 * 512 * 2)
    srd(a, S_OUT, 20, 2048 * 512 * 2)
    srd(a, S_DBG, 22, 256)


def gen_A(a):
    a.label("A_START")
    vXrd, vW0, vW1, vT2 = 5, 9, 10, 11
    FA, FB = 16, 28
    ACC = 64
    BIAS = 96
    PK = 128
    TMP = 16
    sN, sD = 26, 27
    a(f"s_lshl_b32 s{sT0}, s{sTG}, 12")
    a(f"v_and_b32 v{vT0}, 31, v{vLane}")
    a(f"v_lshrrev_b32 v{vT1}, 5, v{vLane}")
    a(f"v_bfe_u32 v{vT2}, v{vLane}, 1, 3")
    a(f"v_xor_b32 v{vT2}, v{vT2}, v{vT1}")
    a(f"v_lshlrev_b32 v{vT0}, 7, v{vT0}")
    a(f"v_add_u32 v{vT0}, s{sT0}, v{vT0}")
    for ks in range(4):
        a(f"v_xor_b32 v{vXrd+ks}, {2*ks}, v{vT2}")
        a(f"v_lshl_add_u32 v{vXrd+ks}, v{vXrd+ks}, 4, v{vT0}")
    a(f"v_bfe_u32 v{vT0}, v{vLane}, 2, 2")
    a(f"v_lshl_add_u32 v{vT0}, v{vT1}, 3, v{vT0}")
    a(f"v_lshlrev_b32 v{vW0}, 6, v{vT0}")
    a(f"v_bfe_u32 v{vT0}, v{vLane}, 4, 1")
    a(f"v_lshl_add_u32 v{vW0}, v{vT0}, 5, v{vW0}")
    a(f"v_and_b32 v{vT0}, 3, v{vLane}")
    a(f"v_lshl_add_u32 v{vW0}, v{vT0}, 3, v{vW0}")
    a(f"s_lshr_b32 s{sT0}, s{sW}, 2")
    a(f"s_lshl_b32 s{sT0}, s{sT0}, 13")
    a(f"s_add_u32 s{sT0}, s{sT0}, 16384")
    a(f"v_add_u32 v{vW0}, s{sT0}, v{vW0}")
    a(f"v_lshlrev_b32 v{vW1}, 4, v{vT1}")
    a(f"v_add_u32 v{vW1}, {L_GW}, v{vW1}")
    a(f"v_lshlrev_b32 v{vT2}, 3, v{vT1}")
    a(f"s_lshr_b32 s{sT0}, s{sW}, 2")
    a(f"s_lshl_b32 s{sT0}, s{sT0}, 7")
    a(f"s_add_u32 s{sT0}, s{sT0}, {L_B1}")
    a(f"v_add_u32 v{vT2}, s{sT0}, v{vT2}")
    for i in range(32):
        a(f"v_mov_b32 v{ACC+i}, 0")
    a(f"v_and_b32 v13, 27, v{vLane}")
    a(f"v_cmp_eq_u32 vcc, 16, v13")
    a(f"v_mov_b32 v14, 0x3f803f80")
    a("s_nop 0")
    a(f"v_cndmask_b32 v13, 0, v14, vcc")
    for i in range(16):
        a(f"v_mov_b32 v{112+i}, v13")
    for i in range(16):
        a(f"v_mov_b32 v{152+i}, 0")
    for i, c in enumerate((LOG2E, 2.0, -2.0, 1.0)):
        a(f"v_mov_b32 v{144+2*i}, {f32(c)}")
        a(f"v_mov_b32 v{145+2*i}, {f32(c)}")
    a(f"s_mov_b32 s{sN}, 0")
    a("s_waitcnt lgkmcnt(0)")
    srds_rest(a)
    if SENT0:
        a(f"s_and_b32 s{sT0}, s2, 7")
        a(f"s_lshl_b32 s{sT1}, s{sT0}, 2")
        a(f"s_bfe_u32 s{sT0}, s2, 0x20003")
        a(f"s_add_u32 s{sT1}, s{sT1}, s{sT0}")
        a(f"s_lshr_b32 s{sT0}, s2, 5")
        a(f"s_lshl_b32 s{sT0}, s{sT0}, 3")
        a(f"s_add_u32 s{sT0}, s{sT0}, s{sW}")
        a(f"s_lshl_b32 s{sT0}, s{sT0}, 15")
        a(f"s_lshl_b32 s{sT1}, s{sT1}, 10")
        a(f"s_add_u32 s{sT0}, s{sT0}, s{sT1}")
        a(f"s_add_u32 s{sT0}, s{sT0}, {WS_OF:#x}")
        for i in range(4):
            a(f"v_mov_b32 v{104+i}, -1")
        a(f"buffer_store_dwordx4 {vr(104,4)}, v{vL16}, {sr(S_WS,4)}, s{sT0} offen sc1")
    estamp(a, 3)
    a("s_barrier")
    stamp(a, 2)
    estamp(a, 6)

    def reads(ks, F, par, gate=False, only1=False):
        if "R" in X: return
        if not only1:
            a(f"ds_read_b128 {vr(F,4)}, v{vXrd+ks} offset:{par*32768}")
        for t in range(2):
            if only1 and t == 0: continue
            if gate and t == 1:
                a(f"ds_read_b128 {vr(F+8,4)}, v{vW1} offset:{(par*4+ks)*32}")
                continue
            a(f"ds_read_b64_tr_b16 {vr(F+4+4*t,2)}, v{vW0} offset:{par*32768+t*4096+ks*1024}")
            a(f"ds_read_b64_tr_b16 {vr(F+4+4*t+2,2)}, v{vW0} offset:{par*32768+t*4096+ks*1024+256}")

    def mfmas(F, swap0):
        if "M" in X: return
        for t in range(2):
            acc = ACC + 16 * t
            if swap0 and t == 0:
                a(f"v_mfma_f32_32x32x16_bf16 {vr(acc,16)}, {vr(F,4)}, {vr(F+4+4*t,4)}, {vr(acc,16)}")
            elif swap0 and DOT:
                for i in range(4):
                    a(f"v_dot2_f32_bf16 v{acc}, v{F+i}, v{F+8+i}, v{acc}")
            else:
                a(f"v_mfma_f32_32x32x16_bf16 {vr(acc,16)}, {vr(F+4+4*t,4)}, {vr(F,4)}, {vr(acc,16)}")

    FS = [16 + 12 * i for i in range(4)]
    def loop(lab, swap0):
        nr = 4 if swap0 else 5
        a.raw(".p2align 3")
        a.label(lab)
        for par in range(2):
            for j in range(4):
                a(f"s_waitcnt lgkmcnt({2*nr})")
                if j == 1:
                    if par == 1:
                        for k in range(4):
                            a(f"v_xor_b32 v{vXrd+k}, s{sT3}, v{vXrd+k}")
                        a(f"v_xor_b32 v{vW0}, s{sT3}, v{vW0}")
                        if swap0:
                            a(f"v_add_u32 v{vW1}, s{sD}, v{vW1}")
                        else:
                            L = a.uniq("A_NOVM")
                            a(f"s_cmp_eq_u32 s{sN}, 12")
                            a(f"s_cbranch_scc0 {L}")
                            a("s_waitcnt vmcnt(0)")
                            a.label(L)
                    a("s_barrier")
                elif j == 0 and par == 0:
                    a(f"s_add_u32 s{sN}, s{sN}, 2")
                elif j == 3 and par == 1:
                    a(f"s_and_b32 s{sT0}, s{sN}, 7")
                else:
                    a("s_nop 0")
                jj = j + 3
                reads(jj & 3, FS[jj & 3], par if jj < 4 else 1 - par, swap0)
                mfmas(FS[j], swap0)
        a(f"s_cbranch_scc1 {lab}")

    istamp(a, 4)
    a(f"s_mov_b32 s{sT3}, 65536")
    a(f"s_movk_i32 s{sD}, 256")
    a(f"s_cmp_ge_u32 s{sW}, 4")
    a("s_cbranch_scc1 A_L2P")
    for ks in range(3):
        reads(ks, FS[ks], 0)
    loop("A_L1", False)
    a(f"s_cmp_eq_u32 s{sN}, 16")
    a("s_cbranch_scc1 A_MISH")
    stamp(a, 3)
    a("s_waitcnt lgkmcnt(7)")
    for g in range(8):
        a(f"ds_read_b64 {vr(BIAS + 2 * g, 2)}, v{vT2} offset:{g*16}")
    a(f"v_and_b32 v{vT0}, 0x33, v{vLane}")
    a(f"v_bfe_u32 v{vT1}, v{vLane}, 2, 1")
    a(f"v_lshl_add_u32 v{vT0}, v{vT1}, 3, v{vT0}")
    a(f"v_bfe_u32 v{vT1}, v{vLane}, 3, 1")
    a(f"v_lshl_add_u32 v{vT0}, v{vT1}, 2, v{vT0}")
    a(f"v_lshlrev_b32 v{vT0}, 4, v{vT0}")
    a(f"s_lshl_b32 s4, s{sCG}, 17")
    a(f"s_lshl_b32 s5, s{sTT}, 10")
    a(f"s_add_u32 s4, s4, s5")
    a(f"s_lshl_b32 s6, s4, 1")
    a(f"s_add_u32 s4, s4, {WS_QF:#x}")
    a(f"s_add_u32 s5, s4, 65536")
    a(f"s_add_u32 s6, s6, {WS_KV:#x}")
    a(f"s_add_u32 s7, s6, 131072")
    a(f"s_mov_b32 s8, {f32(0.25 * LOG2E)}")
    a(f"s_mov_b32 s9, {f32(0.25 * LOG2E)}")
    for i in range(8):
        a(f"v_pk_mul_f32 {vr(ACC+2*i,2)}, {vr(ACC+2*i,2)}, s[8:9]")
    for i in range(16):
        a(f"v_cvt_pk_bf16_f32 v{PK + i}, v{ACC + 2 * i}, v{ACC + 2 * i + 1}")
    istamp(a, 5)
    a(f"buffer_store_dwordx4 {vr(PK+8,4)}, v{vT0}, {sr(S_WS,4)}, s6 offen sc1")
    a(f"buffer_store_dwordx4 {vr(PK+12,4)}, v{vT0}, {sr(S_WS,4)}, s7 offen sc1")
    a(f"buffer_store_dwordx4 {vr(PK,4)}, v{vL16}, {sr(S_WS,4)}, s4 offen sc1")
    a(f"buffer_store_dwordx4 {vr(PK+4,4)}, v{vL16}, {sr(S_WS,4)}, s5 offen sc1")
    a.label("A_BIAS")
    a("s_waitcnt lgkmcnt(0)")
    istamp(a, 6)
    for g in range(8):
        b = ACC + 4 * g
        a(f"v_lshlrev_b32 v{b}, 16, v{BIAS+2*g}")
        a(f"v_and_b32 v{b+1}, 0xffff0000, v{BIAS+2*g}")
        a(f"v_lshlrev_b32 v{b+2}, 16, v{BIAS+2*g+1}")
        a(f"v_and_b32 v{b+3}, 0xffff0000, v{BIAS+2*g+1}")
    istamp(a, 7)
    a("s_branch A_L1")
    a.label("A_L2P")
    for ks in range(3):
        reads(ks, FS[ks], 0, True)
    loop("A_L2", True)
    a("s_waitcnt lgkmcnt(0)")
    for ks in range(3):
        reads(ks, FS[ks], 0, False, True)
    stamp(a, 3)
    a("s_waitcnt lgkmcnt(7)")
    for g in range(8):
        a(f"ds_read_b64 {vr(BIAS + 2 * g, 2)}, v{vT2} offset:{g*16}")
    a(f"v_and_b32 v{vT0}, 0x2f, v{vLane}")
    a(f"v_lshlrev_b32 v{vT0}, 4, v{vT0}")
    a(f"v_bfe_u32 v{vT1}, v{vLane}, 4, 1")
    a(f"v_lshl_add_u32 v{vT0}, v{vT1}, 17, v{vT0}")
    a(f"s_lshl_b32 s4, s{sCG}, 18")
    a(f"s_lshl_b32 s5, s{sTT}, 11")
    a(f"s_add_u32 s4, s4, s5")
    a(f"s_add_u32 s4, s4, {WS_KV:#x}")
    a(f"s_lshl_b32 s5, s{sTT}, 7")
    a(f"s_add_u32 s5, s5, {WS_G:#x}")
    a(f"v_lshlrev_b32 v{vT1}, 2, v{vLane}")
    if DOT: a(f"v_mov_b32 v{ACC+17}, v{ACC+16}")
    for i in range(8):
        a(f"v_cvt_pk_bf16_f32 v{PK + i}, v{ACC + 2 * i}, v{ACC + 2 * i + 1}")
    if DOT:
        a(f"v_permlane32_swap_b32 v{ACC+16}, v{ACC+17}")
        a("s_nop 1")
        a(f"v_add_f32 v{ACC+16}, v{ACC+16}, v{ACC+17}")
    a(f"v_mul_f32 v{PK+8}, {f32(-LOG2E)}, v{ACC+16}")
    a(f"v_exp_f32 v{PK+8}, v{PK+8}")
    a(f"buffer_store_dwordx4 {vr(PK,4)}, v{vT0}, {sr(S_WS,4)}, s4 offen offset:1024 sc1")
    a(f"v_add_f32 v{PK+8}, 1.0, v{PK+8}")
    a(f"v_rcp_f32 v{PK+8}, v{PK+8}")
    a(f"buffer_store_dwordx4 {vr(PK+4,4)}, v{vT0}, {sr(S_WS,4)}, s4 offen offset:1280 sc1")
    a("s_mov_b32 exec_hi, 0")
    a(f"buffer_store_dword v{PK+8}, v{vT1}, {sr(S_WS,4)}, s5 offen sc1")
    a("s_mov_b64 exec, -1")
    a("s_waitcnt lgkmcnt(0)")
    a("s_branch A_BIAS")
    a.label("A_MISH")
    stamp(a, 4)
    a(f"s_mul_i32 s13, s{sTT}, 112")
    a(f"s_lshl_b32 s{sT1}, s{sFT0}, 1")
    a(f"s_add_u32 s13, s13, s{sT1}")
    a(f"s_lshr_b32 s{sT1}, s{sW}, 2")
    a(f"s_lshl_b32 s{sT1}, s{sT1}, 2")
    a(f"s_add_u32 s13, s13, s{sT1}")
    a(f"s_lshl_b32 s13, s13, 10")
    a(f"s_add_u32 s13, s13, {WS_ACT:#x}")
    a("s_waitcnt lgkmcnt(0)")
    a("s_nop 3")
    mish16(a, ACC, TMP, 128, 144)
    a(f"buffer_store_dwordx4 {vr(128,4)}, v{vL16}, {sr(S_WS,4)}, s13 offen sc1")
    a(f"buffer_store_dwordx4 {vr(132,4)}, v{vL16}, {sr(S_WS,4)}, s13 offen offset:1024 sc1")
    mish16(a, ACC + 16, TMP, 136, 144)
    a(f"buffer_store_dwordx4 {vr(136,4)}, v{vL16}, {sr(S_WS,4)}, s13 offen offset:2048 sc1")
    a(f"buffer_store_dwordx4 {vr(140,4)}, v{vL16}, {sr(S_WS,4)}, s13 offen offset:3072 sc1")

    a.label("A_PH2")
    sHead, sQT, sI, sB1, sB2, sPass = 4, 5, 6, 7, 8, 9
    sMask = 10
    vAddr, vIdx, vG = 5, 6, 7
    Q = 8
    KB = [12, 16]
    VB = [112, 120]
    S = [36, 52]
    C = 68
    O = 152
    vFl = 100
    a(f"s_and_b32 s{sT0}, s2, 7")
    a(f"s_lshl_b32 s{sHead}, s{sT0}, 2")
    a(f"s_bfe_u32 s{sT0}, s2, 0x20003")
    a(f"s_add_u32 s{sHead}, s{sHead}, s{sT0}")
    a(f"s_lshr_b32 s{sQT}, s2, 5")
    a(f"s_lshl_b32 s{sQT}, s{sQT}, 3")
    a(f"s_add_u32 s{sQT}, s{sQT}, s{sW}")
    a(f"v_mov_b32 v{vIdx}, 0xdddddddd")
    a(f"s_mov_b32 s{sMask}, 0x0000ffff")
    a(f"s_mov_b32 s{sMask+1}, 0x0000ffff")
    a(f"v_mov_b32 v{vAddr}, v{vL16}")
    a(f"s_mov_b32 s{sB1}, {B3AT if NOB2 else 1}")
    a(f"s_mov_b32 s{sPass}, 0")
    a(f"s_lshl_b32 s{sT0}, s{sW}, 10")
    a(f"s_add_u32 s{sT0}, s{sT0}, {L_Q}")
    a(f"v_add_u32 v{vT1}, s{sT0}, v{vL16}")
    a(f"s_lshl_b32 s12, s{sQT}, 15")
    a(f"s_lshl_b32 s{sT1}, s{sHead}, 10")
    a(f"s_add_u32 s12, s12, s{sT1}")
    a(f"s_add_u32 s12, s12, {WS_OF:#x}")
    if not SENT0:
        for i in range(4):
            a(f"v_mov_b32 v{104+i}, -1")
        a(f"buffer_store_dwordx4 {vr(104,4)}, v{vL16}, {sr(S_WS,4)}, s12 offen sc1")
    a("s_setprio 2")
    stamp(a, 5)
    a("s_barrier")
    stamp(a, 6)
    a(f"ds_read_b128 {vr(Q,4)}, v{vT1}")
    a(f"ds_read_b128 {vr(KB[0],4)}, v{vAddr} offset:0")
    a("s_waitcnt lgkmcnt(0)")
    a(f"v_mfma_f32_32x32x16_bf16 {vr(S[0],16)}, {vr(KB[0],4)}, {vr(Q,4)}, 0")
    a("s_nop 7")
    a("s_nop 7")
    s0 = S[0]
    a(f"v_max3_f32 v{vT0}, v{s0}, v{s0+1}, v{s0+2}")
    for i in range(3, 15, 2):
        a(f"v_max3_f32 v{vT0}, v{vT0}, v{s0+i}, v{s0+i+1}")
    a(f"v_max_f32 v{vT0}, v{vT0}, v{s0+15}")
    a.label("A_SETMAX")
    a(f"v_mov_b32 v{vT1}, v{vT0}")
    a("s_nop 1")
    a(f"v_permlane32_swap_b32 v{vT0}, v{vT1}")
    a("s_nop 1")
    a(f"v_max_f32 v{vT0}, v{vT0}, v{vT1}")
    for i in range(16):
        a(f"v_sub_f32 v{C+i}, 0, v{vT0}")
    a(f"ds_read_b128 {vr(KB[0],4)}, v{vAddr} offset:0")
    a(f"ds_read_b128 {vr(KB[1],4)}, v{vAddr} offset:2048")
    a(f"s_mov_b64 exec, {sr(sMask,2)}")
    a(f"ds_read_b128 {vr(VB[0],4)}, v{vAddr} offset:1024")
    a(f"ds_read_b128 {vr(VB[0]+4,4)}, v{vAddr} offset:1280")
    a("s_mov_b64 exec, -1")
    a("s_waitcnt lgkmcnt(0)")
    a(f"v_mfma_f32_32x32x16_bf16 {vr(S[0],16)}, {vr(KB[0],4)}, {vr(Q,4)}, {'0' if 'Z' in X else vr(C,16)}")
    a(f"s_mov_b32 s{sI}, 0")
    for i in range(8, 16):
        a(f"v_mov_b32 v{S[1]+i}, 0")
    a("s_nop 7")
    a.raw(".p2align 6")
    a.label("A_LOOP")
    for u in range(4):
        p = u & 1
        cur, nxt = S[p], S[1 - p]
        def E(lo, hi):
            for i in range(lo, hi):
                a(f"v_exp_f32 v{cur+i}, v{cur+i}")
        E(0, 2)
        a(f"v_smfmac_f32_32x32x32_bf16 {vr(O,16)}, {vr(VB[1-p]+4,4)}, {vr(nxt+8,8)}, v{vIdx}")
        E(2, 7)
        a("s_waitcnt lgkmcnt(0)")
        a(f"v_mfma_f32_32x32x16_bf16 {vr(nxt,16)}, {vr(KB[1-p],4)}, {vr(Q,4)}, {'0' if 'Z' in X else vr(C,16)}")
        a(f"ds_read_b128 {vr(KB[p],4)}, v{vAddr} offset:{(u+2)*2048}")
        E(7, 8)
        a(f"s_mov_b64 exec, {sr(sMask,2)}")
        a(f"ds_read_b128 {vr(VB[1-p],4)}, v{vAddr} offset:{(u+1)*2048+1024}")
        a(f"ds_read_b128 {vr(VB[1-p]+4,4)}, v{vAddr} offset:{(u+1)*2048+1280}")
        a("s_mov_b64 exec, -1")
        E(8, 13)
        a(f"v_smfmac_f32_32x32x32_bf16 {vr(O,16)}, {vr(VB[p],4)}, {vr(cur,8)}, v{vIdx}")
        if u == 3:
            a(f"v_add_u32 v{vAddr}, 8192, v{vAddr}")
            E(13, 16)
            a(f"s_add_u32 s{sI}, s{sI}, 1")
            a(f"s_cmp_lt_u32 s{sI}, s{sB1}")
        else:
            a(f"v_exp_f32_e64 v{cur+13}, v{cur+13}")
            E(14, 16)
    a("s_cbranch_scc1 A_LOOP")
    a(f"s_cmp_eq_u32 s{sI}, 1")
    a("s_cbranch_scc0 A_SEG2")
    a(f"s_mov_b32 s{sB1}, 3")
    if EARLYF: a("s_waitcnt vmcnt(0)")
    a("s_barrier")
    a("s_branch A_LOOP")
    a.label("A_SEG2")
    a(f"s_cmp_eq_u32 s{sI}, {B3AT if NOB2 else 3}")
    a("s_cbranch_scc0 A_SEG3")
    a(f"s_mov_b32 s{sB1}, {PR1}")
    a("s_waitcnt vmcnt(0)")
    a("s_barrier")
    a("s_branch A_LOOP")
    a.label("A_SEG3")
    a(f"s_cmp_eq_u32 s{sI}, {PR1}")
    a("s_cbranch_scc0 A_SEG4")
    a(f"s_mov_b32 s{sB1}, {PR2}")
    a("s_setprio 1")
    a(f"v_and_b32 v{vT0}, 31, v{vLane}")
    a(f"v_lshlrev_b32 v{vT0}, 2, v{vT0}")
    a(f"s_lshl_b32 s{sT0}, s{sQT}, 7")
    a(f"s_add_u32 s{sT0}, s{sT0}, {WS_G:#x}")
    a(f"buffer_load_dword v{vG}, v{vT0}, {sr(S_WS,4)}, s{sT0} offen sc1")
    a("s_branch A_LOOP")
    a.label("A_SEG4")
    a(f"s_cmp_eq_u32 s{sI}, {PR2}")
    a("s_cbranch_scc0 A_SEG5")
    a(f"s_mov_b32 s{sB1}, 16")
    a("s_setprio 0")
    a("s_branch A_LOOP")
    a.label("A_SEG5")
    a(f"v_smfmac_f32_32x32x32_bf16 {vr(O,16)}, {vr(VB[1]+4,4)}, {vr(S[1]+8,8)}, v{vIdx}")
    a("s_waitcnt lgkmcnt(0)")
    a("s_nop 7")
    a("s_nop 7")
    a(f"s_cmp_lg_u32 s{sPass}, 0")
    a("s_cbranch_scc1 A_FIN")
    a(f"v_max3_f32 v{vT0}, |v{O}|, |v{O+1}|, |v{O+2}|")
    a(f"v_max3_f32 v{vT0}, v{vT0}, |v{O+3}|, |v{O+4}|")
    a(f"v_max3_f32 v{vT0}, v{vT0}, |v{O+5}|, |v{O+6}|")
    a(f"v_max_f32 v{vT0}, v{vT0}, |v{O+7}|")
    a(f"v_mov_b32 v{vT1}, 0x7f800000")
    a(f"v_cmp_nlt_f32 vcc, v{vT0}, v{vT1}")
    a(f"v_mov_b32 v{vT1}, {f32(2.0**30)}")
    a(f"v_cmp_nlt_f32 {sr(sT2,2)}, v{O+8}, v{vT1}")
    a("s_nop 1")
    a(f"s_or_b64 vcc, vcc, {sr(sT2,2)}")
    a("s_cbranch_scc0 A_FIN")
    a(f"s_mov_b32 s{sPass}, 1")
    a(f"s_mov_b32 s{sB1}, 16")
    a(f"v_mov_b32 v{vAddr}, v{vL16}")
    a(f"v_mov_b32 v{vT0}, 0xff800000")
    a(f"s_mov_b32 s{sI}, 0")
    a.label("A_MAXLOOP")
    a(f"ds_read_b128 {vr(KB[0],4)}, v{vAddr} offset:0")
    a("s_waitcnt lgkmcnt(0)")
    a(f"v_mfma_f32_32x32x16_bf16 {vr(S[0],16)}, {vr(KB[0],4)}, {vr(Q,4)}, 0")
    a(f"v_add_u32 v{vAddr}, 2048, v{vAddr}")
    a("s_nop 7")
    a("s_nop 7")
    for i in range(0, 16, 2):
        a(f"v_max3_f32 v{vT0}, v{vT0}, v{s0+i}, v{s0+i+1}")
    a(f"s_add_u32 s{sI}, s{sI}, 1")
    a(f"s_cmp_lt_u32 s{sI}, 64")
    a("s_cbranch_scc1 A_MAXLOOP")
    a(f"v_mov_b32 v{vAddr}, v{vL16}")
    for i in range(16):
        a(f"v_mov_b32 v{O+i}, 0")
    a("s_branch A_SETMAX")
    a.label("A_FIN")
    stamp(a, 7)
    a(f"v_rcp_f32 v{vT0}, v{O+8}")
    a("s_waitcnt vmcnt(0)")
    a(f"v_mul_f32 v{vT0}, v{vT0}, v{vG}")
    for i in range(8):
        a(f"v_mul_f32 v{O+i}, v{O+i}, v{vT0}")
    for i in range(4):
        a(f"v_cvt_pk_bf16_f32 v{O+i}, v{O+2*i}, v{O+2*i+1}")
    for i in range(4):
        a(f"v_min_u32 v{O+i}, -2, v{O+i}")
    a(f"buffer_store_dwordx4 {vr(O,4)}, v{vL16}, {sr(S_WS,4)}, s12 offen sc1")
    stamp(a, 9); stamp(a, 8, True)
    stamp_flush(a)
    a("s_endpgm")


def gen_G(a):
    sXoff, sLX, sWQ0, sW10, sGO = 26, 27, 80, 81, 3
    sGW = sTG
    vDX0, vDX1, vDWq, vDW1, vT2 = 5, 6, 7, 8, 9
    vWe, vWo, vW2w, vGo = 10, 11, 12, 13
    vEp = 14
    RS = 16
    NSETS = int(os.environ.get("NSETS", "9"))
    PER = int(os.environ.get("PER", "1"))
    a("s_setprio 3")
    a(f"s_lshl_b32 s{sXoff}, s{sTT}, 15")
    a(f"s_lshl_b32 s{sLX}, s{sTG}, 12")
    a(f"s_mul_i32 s{sWQ0}, s{sTG}, {16*3072}")
    a(f"s_lshl_b32 s{sT0}, s{sCG}, 6")
    a(f"s_add_u32 s{sWQ0}, s{sWQ0}, s{sT0}")
    a(f"v_lshrrev_b32 v{vT0}, 3, v{vLane}")
    a(f"v_lshrrev_b32 v{vT1}, 4, v{vLane}")
    a(f"v_and_b32 v{vT2}, 7, v{vLane}")
    a(f"v_xor_b32 v{vT2}, v{vT2}, v{vT1}")
    a(f"v_lshlrev_b32 v{vDX0}, 10, v{vT0}")
    a(f"v_lshl_add_u32 v{vDX0}, v{vT2}, 4, v{vDX0}")
    a(f"v_xor_b32 v{vDX1}, 64, v{vDX0}")
    a(f"v_add_u32 v{vDX1}, 8192, v{vDX1}")
    a(f"v_lshrrev_b32 v{vT0}, 2, v{vLane}")
    a(f"v_and_b32 v{vT2}, 3, v{vLane}")
    a(f"v_lshlrev_b32 v{vT2}, 4, v{vT2}")
    a(f"v_mul_u32_u24 v{vDWq}, 3072, v{vT0}")
    a(f"v_add_u32 v{vDWq}, v{vDWq}, v{vT2}")
    a(f"v_mul_u32_u24 v{vDW1}, 3584, v{vT0}")
    a(f"v_add_u32 v{vDW1}, v{vDW1}, v{vT2}")
    sLW = sGO
    a(f"s_lshl_b32 s{sLW}, s{sTG}, 10")
    a("s_waitcnt lgkmcnt(0)")
    estamp(a, 2)
    srd(a, S_X, 4, 2048 * 512 * 2)
    srd(a, S_WQ, 6, 512 * 1536 * 2)
    srd(a, S_GW, 18, 1024)

    q = []
    def vm(tag):
        q.append(tag)
    def wait_tag(tag, extra=""):
        last = max(i for i, t in enumerate(q) if t == tag)
        n = len(q) - 1 - last
        assert n < 64
        a(f"s_waitcnt vmcnt({n}){extra}")

    def dma(lds_s, lds_imm, voff, srdn, s_base, imm, extra=""):
        a(f"s_add_u32 m0, s{lds_s}, {lds_imm}")
        a(f"s_add_u32 s{sT0}, s{s_base}, {imm}")
        a(f"buffer_load_dwordx4 v{voff}, {sr(srdn,4)}, s{sT0} offen{extra} lds")

    ROT = int(os.environ.get("ROT", "0"))
    sRot, sXo, sWo = 82, 83, 78
    sWo = 25
    def issue(n):
        base = (n & 3) * 32768
        st = n if n < 8 else ((n - 4) & 7 if REUSE else n & 7)
        xb, wb, sti = sXoff, (sWQ0 if n < 8 else sW10), st
        if ROT:
            a(f"s_add_u32 s{sT1}, s{sRot}, {st}")
            a(f"s_and_b32 s{sT1}, s{sT1}, 7")
            a(f"s_lshl_b32 s{sXo}, s{sT1}, 7")
            a(f"s_add_u32 s{sXo}, s{sXo}, s{sXoff}")
            a(f"s_mul_i32 s{sT2}, s{sT1}, {64 * (3072 if n < 8 else 3584)}")
            a(f"s_add_u32 s{sT2}, s{sT2}, s{wb}")
            xb, wb, sti = sXo, sT2, 0
        if not (REUSE and 8 <= n < 12):
            for j in range(4):
                dma(sLX, base + j * 1024, vDX0 if j % 2 == 0 else vDX1, S_X, xb, (j >> 1) * 16384 + sti * 128, NTX); vm(n)
        if n < 8:
            for t in range(3):
                dma(sLW, base + 16384 + t * 4096, vDWq, S_WQ, wb, sti * 64 * 3072 + t * 1024, NTW); vm(n)
        else:
            for t in range(4):
                dma(sLW, base + 16384 + t * 4096, vDW1, S_W1, wb, sti * 64 * 3584 + t * 64, NTW); vm(n)

    if ROT:
        a(f"s_lshr_b32 s{sRot}, s2, 3")
        a(f"s_lshr_b32 s{sT1}, s2, 6")
        a(f"s_lshl_b32 s{sT1}, s{sT1}, 1")
        a(f"s_add_u32 s{sRot}, s{sRot}, s{sT1}")
        if ROT == 2: a(f"s_and_b32 s{sRot}, s{sRot}, 3")
        a(f"s_and_b32 s{sRot}, s{sRot}, 7")
        a(f"s_lshl_b32 s{sT1}, s{sRot}, 7")
        a(f"v_add_u32 v10, s{sT1}, v{vL16}")
        a(f"v_and_b32 v10, 0x3ff, v10")
    estamp(a, 3)
    a(f"s_mov_b32 m0, {L_GW}")
    a("s_nop 0")
    a(f"buffer_load_dwordx4 v{10 if ROT else vL16}, {sr(S_GW,4)}, 0 offen lds"); vm(0)
    issue(0)
    estamp(a, 4)
    issue(1)
    srd(a, S_W1, 12, 512 * 1792 * 2)
    srds_rest(a)
    a(f"s_mul_i32 s{sW10}, s{sTG}, {16*3584}")
    a(f"s_lshl_b32 s{sT0}, s{sFT0}, 6")
    a(f"s_add_u32 s{sW10}, s{sW10}, s{sT0}")
    a(f"s_mov_b32 m0, {L_B1}")
    a(f"s_lshl_b32 s{sT0}, s{sFT0}, 6")
    a(f"buffer_load_dwordx4 v{vL16}, {sr(S_B1,4)}, s{sT0} offen lds"); vm(1)
    a(f"s_lshl_b32 s{sT0}, s2, 4")
    a(f"s_add_u32 s{sT0}, s{sT0}, s{sW}")
    a(f"s_cmp_eq_u32 s{sT0}, 8")
    a("s_cbranch_scc0 G_NOEP")
    a(f"s_memrealtime {sr(sEP,2)}")
    a("s_waitcnt lgkmcnt(0)")
    a(f"s_or_b32 s{sEP}, s{sEP}, 1")
    a(f"v_mov_b32 v{vEp}, s{sEP}")
    a(f"v_mov_b32 v{vEp+1}, s{sEP+1}")
    a("s_mov_b64 exec, 1")
    a(f"buffer_store_dwordx2 {vr(vEp,2)}, off, {sr(S_DBG,4)}, 0 sc1")
    a("s_mov_b64 exec, -1")
    a.label("G_NOEP")
    estamp(a, 5)
    wait_tag(0)
    estamp(a, 6)
    a("s_barrier")
    stamp(a, 2)
    estamp(a, 7)
    ORD = int(os.environ.get("ORD", "0"))
    if ORD <= 1: issue(2)
    for n in range(16):
        if n == 0 and ORD == 0:
            issue(3)
        if n == int(os.environ.get("PFW1", "99")) and "N" not in X:
            a(f"s_lshr_b32 s{sT0}, s2, 3")
            a(f"s_lshl_b32 s{sT0}, s{sT0}, 4")
            a(f"s_lshl_b32 s{sT1}, s{sGW}, 2")
            a(f"s_add_u32 s{sT0}, s{sT0}, s{sT1}")
            a(f"s_mul_i32 s{sT0}, s{sT0}, 3584")
            a(f"s_bfe_u32 s{sT1}, s2, 0x20001")
            a(f"s_lshl_b32 s{sT1}, s{sT1}, 10")
            a(f"s_add_u32 s{sT0}, s{sT0}, s{sT1}")
            a(f"v_mul_u32_u24 v16, 3584, v{vT1}")
            a(f"v_and_b32 v17, 15, v{vLane}")
            a(f"v_lshl_add_u32 v16, v17, 6, v16")
            a(f"buffer_load_dword v17, v16, {sr(S_W1,4)}, s{sT0} offen"); vm("pf")
        if n == int(os.environ.get("PFW2", "99")):
            a(f"v_lshlrev_b32 v16, 6, v{vLane}")
            a(f"s_cmp_ge_u32 s{sGW}, 2")
            a("s_cbranch_scc1 G_PFO")
            a(f"s_mul_i32 s{sT0}, s2, 7168")
            a(f"s_mul_i32 s{sT1}, s{sGW}, 3584")
            a(f"s_add_u32 s{sT0}, s{sT0}, s{sT1}")
            a(f"v_min_u32 v16, {55*64}, v16")
            a(f"buffer_load_dword v17, v16, {sr(S_W2,4)}, s{sT0} offen")
            a("s_branch G_PFD")
            a.label("G_PFO")
            a(f"s_lshl_b32 s{sT0}, s2, 11")
            a(f"v_min_u32 v16, {31*64}, v16")
            a(f"buffer_load_dword v17, v16, {sr(S_WO,4)}, s{sT0} offen")
            a.label("G_PFD")
            vm("pf2")
        if n == 4:
            a(f"buffer_load_dwordx2 {vr(vEp,2)}, off, {sr(S_DBG,4)}, 0 sc1"); vm("ep")
        if n == 10:
            wait_tag("ep")
            a(f"s_mov_b32 s{sT1}, 0")
            a.label("G_EPL")
            a(f"v_readfirstlane_b32 s{sEP}, v{vEp}")
            a(f"v_readfirstlane_b32 s{sEP+1}, v{vEp+1}")
            a(f"s_cmp_lg_u32 s{sEP}, 0")
            a("s_cbranch_scc1 G_EPD")
            a("s_sleep 4")
            a(f"buffer_load_dwordx2 {vr(vEp,2)}, off, {sr(S_DBG,4)}, 0 sc1")
            a("s_waitcnt vmcnt(0)")
            a(f"s_add_u32 s{sT1}, s{sT1}, 1")
            a(f"s_cmp_lt_u32 s{sT1}, {SPIN_MAX}")
            a("s_cbranch_scc1 G_EPL")
            a.label("G_EPD")
        if n + 1 <= 15:
            wait_tag(n + 1)
        a("s_barrier")
        if n == 0 and ORD == 2: issue(2)
        if (1 <= n or ORD >= 1) and n + 3 <= 15:
            issue(n + 3)
        if "P" in X and STAMPS:
            P0 = int(os.environ.get("P0", "8"))
            if P0 <= n + 1 < P0 + 6:
                i = n + 1 - P0 + 2
                a(f"s_memtime s[{82+2*i}:{83+2*i}]")
                a("s_waitcnt lgkmcnt(0)")
        if n + 1 == 12:
            a(f"s_cmp_eq_u32 s{sGW}, 0")
            a("s_cbranch_scc0 G_NOF1")
            a(f"s_lshl_b32 s{sT0}, s{sCG}, 7")
            a(f"s_lshl_b32 s{sT1}, s{sRB}, 3")
            a(f"s_add_u32 s{sT0}, s{sT0}, s{sT1}")
            a(f"s_add_u32 s{sT0}, s{sT0}, {WS_FKV:#x}")
            a("s_mov_b64 exec, 1")
            a(f"buffer_store_dwordx2 {vr(vEp,2)}, off, {sr(S_WS,4)}, s{sT0} sc1")
            a("s_mov_b64 exec, -1")
            a.label("G_NOF1")
    sHead, sKV, sLK, sFK, sFG, sQ = 4, 5, 6, 7, 8, 9
    sA0, sA1, sW2, sOT, sON, sI, sRing, sTT64, sNB = 10, 11, 12, 13, 14, 15, 16, 17, 18
    vL8, vF16 = 5, 6
    FL = 124
    a(f"s_and_b32 s{sT0}, s2, 7")
    a(f"s_lshl_b32 s{sHead}, s{sT0}, 2")
    a(f"s_bfe_u32 s{sT0}, s2, 0x20003")
    a(f"s_add_u32 s{sHead}, s{sHead}, s{sT0}")
    a(f"s_lshl_b32 s{sLK}, s{sGW}, 10")
    a(f"s_lshl_b32 s{sKV}, s{sHead}, 17")
    a(f"s_add_u32 s{sKV}, s{sKV}, {WS_KV:#x}")
    a(f"s_add_u32 s{sKV}, s{sKV}, s{sLK}")
    a(f"s_lshr_b32 s{sT0}, s{sHead}, 1")
    a(f"s_lshl_b32 s{sFK}, s{sT0}, 7")
    a(f"s_add_u32 s{sFK}, s{sFK}, {WS_FKV:#x}")
    a(f"s_lshr_b32 s{sT1}, s2, 5")
    a(f"s_lshl_b32 s{sQ}, s{sHead}, 16")
    a(f"s_lshl_b32 s{sT0}, s{sT1}, 13")
    a(f"s_add_u32 s{sQ}, s{sQ}, s{sT0}")
    a(f"s_add_u32 s{sQ}, s{sQ}, s{sLK}")
    a(f"s_add_u32 s{sQ}, s{sQ}, {WS_QF:#x}")
    a(f"v_lshlrev_b32 v{vL8}, 3, v{vLane}")
    a(f"v_and_b32 v{vF16}, 0x78, v{vL8}")
    stamp(a, 3)
    poll(a, [(1, FL, vF16, sFK)], sT1)
    stamp(a, 4)
    def kvdma(i):
        dma(sLK, i * 4096, vL16, S_WS, sKV, i * 4096, " sc1")
    dma(sLK, L_Q, vL16, S_WS, sQ, 0, " sc1")
    dma(sLK, L_Q + 4096, vL16, S_WS, sQ, 4096, " sc1")
    def pubflags():
        a(f"s_cmp_eq_u32 s{sGW}, 0")
        a("s_cbranch_scc0 G_NOF2")
        a(f"s_lshl_b32 s{sT0}, s{sRB}, 7")
        a(f"s_lshl_b32 s{sT1}, s{sCG}, 3")
        a(f"s_add_u32 s{sT0}, s{sT0}, s{sT1}")
        a(f"s_add_u32 s{sT0}, s{sT0}, {WS_FACT:#x}")
        a(f"s_lshr_b32 s{sT1}, s2, 5")
        a(f"s_lshl_b32 s{sT1}, s{sT1}, 8")
        a(f"s_lshl_b32 s{sT2}, s{sHead}, 3")
        a(f"s_add_u32 s{sT1}, s{sT1}, s{sT2}")
        a(f"s_add_u32 s{sT1}, s{sT1}, {WS_FO:#x}")
        a("s_mov_b64 exec, 1")
        a(f"buffer_store_dwordx2 {vr(vEp,2)}, off, {sr(S_WS,4)}, s{sT0} sc1")
        a(f"buffer_store_dwordx2 {vr(vEp,2)}, off, {sr(S_WS,4)}, s{sT1} sc1")
        a("s_mov_b64 exec, -1")
        a.label("G_NOF2")
    KV0 = int(os.environ.get("KV0", "8"))
    for i in range(KV0): kvdma(i)
    a(f"s_waitcnt vmcnt({KV0-8 if NOB2 else KV0-4})")
    a("s_barrier")
    for i in range(KV0, 20): kvdma(i)
    if not NOB2:
        a("s_waitcnt vmcnt(12)")
        a("s_barrier")
    if EARLYF and not NOB2: pubflags()
    for i in range(20, 32): kvdma(i)
    ACC = 8
    AF = 72
    WF = 104
    vG0, vG1 = 120, 121
    vDW, vTr0, vTr1 = 7, 122, 123
    a(f"s_and_b32 s{sT0}, s2, 7")
    a(f"s_lshr_b32 s{sT1}, s2, 3")
    a(f"s_lshr_b32 s{sTT64}, s{sT0}, 1")
    a(f"s_lshl_b32 s{sTT64}, s{sTT64}, 3")
    a(f"s_and_b32 s{sT3}, s{sT1}, 7")
    a(f"s_add_u32 s{sTT64}, s{sTT64}, s{sT3}")
    a(f"s_and_b32 s{sNB}, s{sT0}, 1")
    a(f"s_lshl_b32 s{sNB}, s{sNB}, 2")
    a(f"s_lshr_b32 s{sT1}, s{sT1}, 3")
    a(f"s_add_u32 s{sNB}, s{sNB}, s{sT1}")
    a(f"s_lshr_b32 s{sT1}, s{sGW}, 1")
    a(f"s_lshl_b32 s{sOT}, s{sTT64}, 1")
    a(f"s_add_u32 s{sOT}, s{sOT}, s{sT1}")
    a(f"s_and_b32 s{sT1}, s{sGW}, 1")
    a(f"s_lshl_b32 s{sON}, s{sNB}, 1")
    a(f"s_add_u32 s{sON}, s{sON}, s{sT1}")
    a(f"s_mul_i32 s{sT3}, s{sGW}, {28*1024}")
    a(f"s_mul_i32 s{sA0}, s{sOT}, {112*1024}")
    a(f"s_add_u32 s{sA0}, s{sA0}, s{sT3}")
    a(f"s_add_u32 s{sA0}, s{sA0}, {WS_ACT:#x}")
    a(f"s_xor_b32 s{sT1}, s{sOT}, 1")
    a(f"s_mul_i32 s{sA1}, s{sT1}, {112*1024}")
    a(f"s_add_u32 s{sA1}, s{sA1}, s{sT3}")
    a(f"s_add_u32 s{sA1}, s{sA1}, {WS_ACT:#x}")
    a(f"s_mul_i32 s{sW2}, s{sGW}, {28*16384}")
    a(f"s_lshl_b32 s{sT1}, s{sNB}, 7")
    a(f"s_add_u32 s{sW2}, s{sW2}, s{sT1}")
    a(f"s_lshl_b32 s{sRing}, s{sGW}, 13")
    a(f"s_add_u32 s{sRing}, s{sRing}, {L_RING}")
    a(f"v_lshrrev_b32 v{vT0}, 3, v{vLane}")
    a(f"v_bfe_u32 v{vT1}, v{vLane}, 4, 1")
    a(f"v_lshlrev_b32 v{vT1}, 2, v{vT1}")
    a(f"v_and_b32 v{vDW}, 7, v{vLane}")
    a(f"v_xor_b32 v{vDW}, v{vDW}, v{vT1}")
    a(f"v_lshlrev_b32 v{vDW}, 4, v{vDW}")
    a(f"v_lshl_add_u32 v{vDW}, v{vT0}, 10, v{vDW}")
    a(f"v_bfe_u32 v{vT0}, v{vLane}, 2, 2")
    a(f"v_lshrrev_b32 v{vT1}, 5, v{vLane}")
    a(f"v_lshl_add_u32 v{vT0}, v{vT1}, 2, v{vT0}")
    a(f"v_lshlrev_b32 v{vTr0}, 7, v{vT0}")
    a(f"v_bfe_u32 v{vT0}, v{vLane}, 3, 1")
    a(f"v_lshl_add_u32 v{vTr0}, v{vT0}, 6, v{vTr0}")
    a(f"v_and_b32 v{vT0}, 1, v{vLane}")
    a(f"v_lshl_add_u32 v{vTr0}, v{vT0}, 5, v{vTr0}")
    a(f"v_bfe_u32 v{vT0}, v{vLane}, 4, 1")
    a(f"v_lshl_add_u32 v{vTr0}, v{vT0}, 4, v{vTr0}")
    a(f"v_bfe_u32 v{vT0}, v{vLane}, 1, 1")
    a(f"v_lshl_add_u32 v{vTr0}, v{vT0}, 3, v{vTr0}")
    a(f"s_and_b32 s{sT1}, s{sGW}, 1")
    a(f"s_lshl_b32 s{sT1}, s{sT1}, 6")
    a(f"v_xor_b32 v{vTr0}, s{sT1}, v{vTr0}")
    a(f"v_add_u32 v{vTr0}, s{sRing}, v{vTr0}")
    a(f"v_xor_b32 v{vTr1}, 64, v{vTr0}")
    a(f"s_lshr_b32 s{sFG}, s{sTT64}, 2")
    a(f"s_lshl_b32 s{sFG}, s{sFG}, 8")
    a(f"s_add_u32 s{sFG}, s{sFG}, {WS_FO:#x}")
    a(f"v_and_b32 v{vL8}, 0xf8, v{vL8}")
    a(f"s_lshr_b32 s{sFK}, s{sTT64}, 1")
    a(f"s_lshl_b32 s{sFK}, s{sFK}, 7")
    a(f"s_add_u32 s{sFK}, s{sFK}, {WS_FACT:#x}")
    a("s_waitcnt vmcnt(0)")
    a("s_barrier")
    if NOB2 or not EARLYF: pubflags()
    a(f"s_setprio {os.environ.get('GPRIO', '0')}")
    stamp(a, 5)
    poll(a, [(1, FL, vF16, sFK)], sT1)
    a(f"v_and_b32 v{vT0}, 31, v{vLane}")
    a(f"v_lshlrev_b32 v{vT0}, 2, v{vT0}")
    a(f"s_lshl_b32 s{sT0}, s{sOT}, 7")
    a(f"s_add_u32 s{sT0}, s{sT0}, {WS_G:#x}")
    a(f"s_xor_b32 s{sT1}, s{sT0}, 128")
    a(f"buffer_load_dword v{vG0}, v{vT0}, {sr(S_WS,4)}, s{sT0} offen sc1")
    a(f"buffer_load_dword v{vG1}, v{vT0}, {sr(S_WS,4)}, s{sT1} offen sc1")

    def wdma(st, srdn):
        a(f"s_add_u32 m0, s{sRing}, {st * 2048}")
        a(f"s_add_u32 s{sT0}, s{sW2}, 8192")
        a(f"buffer_load_dwordx4 v{vDW}, {sr(srdn,4)}, s{sW2} offen lds")
        a(f"s_add_u32 m0, s{sRing}, {st * 2048 + 1024}")
        a(f"s_add_u32 s{sW2}, s{sW2}, 16384")
        a(f"buffer_load_dwordx4 v{vDW}, {sr(srdn,4)}, s{sT0} offen lds")

    def group(st):
        wdma(st, S_W2)
        f = AF + 8 * st
        a(f"buffer_load_dwordx4 {vr(f,4)}, v{vL16}, {sr(S_WS,4)}, s{sA0} offen offset:{st*1024} sc1")
        a(f"buffer_load_dwordx4 {vr(f+4,4)}, v{vL16}, {sr(S_WS,4)}, s{sA1} offen offset:{st*1024} sc1")
        if st == 3:
            a(f"s_add_u32 s{sA0}, s{sA0}, 4096")
            a(f"s_add_u32 s{sA1}, s{sA1}, 4096")

    def trreads(st, w):
        for jp, vt in enumerate((vTr0, vTr1)):
            a(f"ds_read_b64_tr_b16 {vr(w+4*jp,2)}, v{vt} offset:{st*2048}")
            a(f"ds_read_b64_tr_b16 {vr(w+4*jp+2,2)}, v{vt} offset:{st*2048+1024}")

    GSP = os.environ.get("GSP", "")
    def gmfma(w, f, first, space=False):
        for ap in range(2):
            for jp in range(2):
                acc = ACC + 16 * (ap * 2 + jp)
                c = "0" if first else vr(acc, 16)
                a(f"v_mfma_f32_32x32x16_bf16 {vr(acc,16)}, {vr(w+4*jp,4)}, {vr(f+4*ap,4)}, {c}")
                if space and GSP and not (ap == 1 and jp == 1): a(GSP)

    def step(st, first, more, nwait=12):
        a(f"s_waitcnt vmcnt({nwait})")
        w = WF + 8 * (st & 1)
        trreads(st, w)
        a("s_waitcnt lgkmcnt(0)")
        gmfma(w, AF + 8 * st, first, True)
        if more:
            group(st)

    for st in range(4): group(st)
    for st in range(4): step(st, st == 0, True)
    a(f"s_mov_b32 s{sI}, 0")
    a.label("G_LOOP")
    for st in range(4): step(st, False, True)
    a(f"s_add_u32 s{sI}, s{sI}, 1")
    a(f"s_cmp_lt_u32 s{sI}, {1 if 'F' in X else 5}")
    a("s_cbranch_scc1 G_LOOP")
    for st in range(4): step(st, False, False, 12 - 4 * st)
    stamp(a, 6)
    WOR = 72
    OFR = 136
    a(f"s_lshl_b32 s{sW2}, s{sGW}, 17")
    a(f"s_lshl_b32 s{sT1}, s{sNB}, 7")
    a(f"s_add_u32 s{sW2}, s{sW2}, s{sT1}")
    for st in range(4): wdma(st, S_WO)
    a(f"v_sub_f32 v{vT0}, 1.0, v{vG0}")
    a(f"v_sub_f32 v{vT1}, 1.0, v{vG1}")
    a(f"v_mov_b32 v152, v{vTr0}")
    a(f"v_mov_b32 v153, v{vTr1}")
    vTr0, vTr1 = 152, 153
    a("s_nop 7")
    for q in range(4):
        for i in range(16):
            a(f"v_mul_f32 v{ACC+16*q+i}, v{ACC+16*q+i}, v{vT0 if q < 2 else vT1}")
    def trreads2(st, w):
        for jp, vt in enumerate((vTr0, vTr1)):
            a(f"ds_read_b64_tr_b16 {vr(w+4*jp,2)}, v{vt} offset:{st*2048}")
            a(f"ds_read_b64_tr_b16 {vr(w+4*jp+2,2)}, v{vt} offset:{st*2048+1024}")
    for ks in range(8):
        st = ks & 3
        a(f"s_waitcnt vmcnt({6 if ks < 4 else 6 - 2 * (ks - 4)})")
        trreads2(st, WOR + 8 * ks)
        if ks < 4:
            a("s_waitcnt lgkmcnt(0)")
            wdma(st, S_WO)
    FL = 156
    a(f"s_lshl_b32 s{sA0}, s{sOT}, 15")
    a(f"s_lshl_b32 s{sT3}, s{sGW}, 13")
    a(f"s_add_u32 s{sA0}, s{sA0}, s{sT3}")
    a(f"s_add_u32 s{sA0}, s{sA0}, {WS_OF:#x}")
    a(f"s_xor_b32 s{sA1}, s{sA0}, 32768")
    a(f"s_lshl_b32 s{sLK}, s{sGW}, 14")
    a(f"v_add_u32 v154, s{sLK}, v{vL16}")
    poll(a, [(1, FL, vL8, sFG)], sT1)
    a("s_mov_b64 s[22:23], -1")
    a("s_mov_b32 s19, 0")
    a("s_waitcnt lgkmcnt(0)")
    a("s_barrier")
    a("s_setprio 3")
    a("s_branch G_P3")
    a.label("G_RELOAD")
    for ks in range(8):
        dma(sLK, ks * 2048, vL16, S_WS, sA0, ks * 1024, " sc1")
        dma(sLK, ks * 2048 + 1024, vL16, S_WS, sA1, ks * 1024, " sc1")
    a("s_add_u32 s19, s19, 1")
    a(f"s_cmp_lt_u32 s19, {SPIN_MAX}")
    a("s_cselect_b64 s[22:23], -1, 0")
    a("s_setpc_b64 s[20:21]")
    a.label("G_P3")
    a("s_call_b64 s[20:21], G_RELOAD")
    def ord_(ks):
        f = OFR + 8 * (ks & 1)
        a(f"ds_read_b128 {vr(f,4)}, v154 offset:{ks*2048}")
        a(f"ds_read_b128 {vr(f+4,4)}, v154 offset:{ks*2048+1024}")
    def verify(ks):
        f = OFR + 8 * (ks & 1)
        a.label(f"G_V{ks}")
        a("s_waitcnt lgkmcnt(0)")
        a(f"v_max3_u32 v155, v{f}, v{f+1}, v{f+2}")
        a(f"v_max3_u32 v155, v155, v{f+3}, v{f+4}")
        a(f"v_max3_u32 v155, v155, v{f+5}, v{f+6}")
        a(f"v_max_u32 v155, v155, v{f+7}")
        a(f"v_cmp_eq_u32 vcc, -1, v155")
        a("s_nop 1")
        a("s_and_b64 vcc, vcc, s[22:23]")
        a(f"s_cbranch_scc0 G_OK{ks}")
        a("s_call_b64 s[20:21], G_RELOAD")
        a("s_waitcnt vmcnt(0)")
        ord_(ks)
        a(f"s_branch G_V{ks}")
        a.label(f"G_OK{ks}")
    a("s_waitcnt vmcnt(14)")
    ord_(0)
    verify(0)
    stamp(a, 7)
    for ks in range(8):
        f = OFR + 8 * (ks & 1)
        if ks < 7:
            a(f"s_waitcnt vmcnt({12 - 2 * ks})")
            ord_(ks + 1)
        gmfma(WOR + 8 * ks, f, False)
        if ks < 7:
            verify(ks + 1)
    a("s_nop 7")
    a("s_nop 7")
    for q in range(1, 4):
        a(f"s_xor_b32 s{sT0}, s{sGW}, {q}")
        a(f"s_mul_i32 s{sT0}, s{sT0}, 12288")
        a(f"s_add_u32 s{sT0}, s{sT0}, {L_EXCH}")
        a(f"v_add_u32 v{vT0}, s{sT0}, v{vL16}")
        for i in range(4):
            a(f"ds_write_b128 v{vT0}, {vr(ACC+16*q+4*i,4)} offset:{(q-1)*4096 + i*1024}")
    a(f"s_mul_i32 s{sT0}, s{sGW}, 12288")
    a(f"s_add_u32 s{sT0}, s{sT0}, {L_EXCH}")
    a(f"v_add_u32 v{vT0}, s{sT0}, v{vL16}")
    a("s_waitcnt lgkmcnt(0)")
    a("s_barrier")
    R = 72
    for q in range(3):
        for i in range(4):
            a(f"ds_read_b128 {vr(R+16*q+4*i,4)}, v{vT0} offset:{q*4096 + i*1024}")
    a(f"v_and_b32 v{vT0}, 31, v{vLane}")
    a(f"v_lshlrev_b32 v{vT0}, 10, v{vT0}")
    a(f"v_lshrrev_b32 v{vT1}, 5, v{vLane}")
    a(f"v_lshl_add_u32 v{vT0}, v{vT1}, 5, v{vT0}")
    a(f"s_lshl_b32 s{sT0}, s{sOT}, 15")
    a(f"s_lshl_b32 s{sT1}, s{sON}, 6")
    a(f"s_add_u32 s{sT0}, s{sT0}, s{sT1}")
    for q in range(3):
        a(f"s_waitcnt lgkmcnt({8 - 4 * q})")
        for i in range(16):
            a(f"v_add_f32 v{ACC+i}, v{ACC+i}, v{R+16*q+i}")
    cvt16(a, ACC)
    a(f"buffer_store_dwordx4 {vr(ACC,4)}, v{vT0}, {sr(S_OUT,4)}, s{sT0} offen{os.environ.get('OUTF','')}")
    a(f"buffer_store_dwordx4 {vr(ACC+4,4)}, v{vT0}, {sr(S_OUT,4)}, s{sT0} offen offset:16{os.environ.get('OUTF','')}")
    if STAMPS: a("s_waitcnt vmcnt(0)")
    stamp(a, 9); stamp(a, 8, True)
    stamp_flush(a)


def main():
    ref = open(f"cdna_kernels/{NAME}.s.ref").read().split("\n")
    head = [l for l in ref if l.startswith(";") and "@launch" not in l]
    a = A()
    name = gen(a)
    out = "\n".join(head) + "\n"
    if ASLIST:
        out += f"; @launch kernel={name} grid=(256,1,1) block=(768,1,1) lds={LDS_TOTAL}\n"
    else:
        out += f"; @launch grid=(256,1,1) block=(768,1,1) lds={LDS_TOTAL}\n"
    out += '.amdgcn_target "amdgcn-amd-amdhsa--gfx950"\n'
    out += a.text()
    out += f""".section .rodata,"a"
.p2align 6
.amdhsa_kernel {name}
  .amdhsa_next_free_vgpr 168
  .amdhsa_next_free_sgpr {102 if STAMPS else 84}
  .amdhsa_accum_offset 168
  .amdhsa_group_segment_fixed_size 0
  .amdhsa_kernarg_size 88
  .amdhsa_user_sgpr_count 2
  .amdhsa_user_sgpr_kernarg_segment_ptr 1
  .amdhsa_system_sgpr_workgroup_id_x 1
.end_amdhsa_kernel
"""
    path = sys.argv[1] if len(sys.argv) > 1 else f"cdna_kernels/{NAME}.s"
    open(path, "w").write(out)
    print("wrote", path, len(out), "bytes")

main()
```

```python
import struct, sys, math, os

NAME = "gated_mix__mha_block__dense_activation_mish__prompt"
STAMPS = int(os.environ.get("STAMPS", "0"))
ASLIST = int(os.environ.get("ASLIST", "0"))
X = os.environ.get("X", "")
EARLYF = int(os.environ.get("EARLYF", "1"))
REUSE = int(os.environ.get("REUSE", "1"))
DOT = int(os.environ.get("DOT", "1"))
NOB2 = int(os.environ.get("NOB2", "0"))
B3AT = int(os.environ.get("B3AT", "3"))
NTW = os.environ.get("NTW", "")
NTX = os.environ.get("NTX", "")
NTP = os.environ.get("NTP", "")
SENT0 = int(os.environ.get("SENT0", "0"))
STP = int(os.environ.get("STP", "0"))
NODUP = int(os.environ.get("NODUP", "1"))
GCOPY = int(os.environ.get("GCOPY", "1"))
XOOB = int(os.environ.get("XOOB", "1"))
PR1 = int(os.environ.get("PR1", "9"))
PR2 = int(os.environ.get("PR2", "13"))

def f32(x):
    return "0x%08x" % struct.unpack("<I", struct.pack("<f", x))[0]

LOG2E = math.log2(math.e)

WS_QF  = 0x0000000
WS_KV  = 0x0200000
WS_ACT = 0x0600000
WS_G   = 0x0F40000
WS_OF  = 0x1000000
WS_FKV = 0x1800000
WS_FACT = 0x1804000
WS_FO  = 0x1808000
WS_STAMP = 0x2000000
WS_SIZE = 0x10000000

L_GW = 144 * 1024
L_B1 = 145 * 1024
L_RING = 128 * 1024
L_Q = 128 * 1024
L_EXCH = 64 * 1024
LDS_TOTAL = 160 * 1024

SPIN_MAX = 200000


class A:
    def __init__(self):
        self.l = []
        self.n = 0
    def __call__(self, s):
        for line in s.strip("\n").split("\n"):
            self.l.append("    " + line.strip())
    def label(self, s):
        self.l.append(s + ":")
    def raw(self, s):
        self.l.append(s)
    def uniq(self, p):
        self.n += 1
        return f"{p}_{self.n}"
    def text(self):
        return "\n".join(self.l) + "\n"


def vr(b, n):
    return "v[%d:%d]" % (b, b + n - 1)

def sr(b, n):
    return "s[%d:%d]" % (b, b + n - 1)

def srd(a, dst, ptr, nbytes):
    a(f"s_mov_b32 s{dst}, s{ptr}")
    a(f"s_and_b32 s{dst+1}, s{ptr+1}, 0xffff")
    a(f"s_mov_b32 s{dst+2}, {nbytes:#x}")
    a(f"s_mov_b32 s{dst+3}, 0x00020000")

S_X, S_WQ, S_W1, S_WS, S_B1, S_W2, S_WO, S_GW, S_OUT, S_DBG = 28, 32, 36, 40, 44, 48, 52, 56, 60, 64
sW, sRB, sCG, sTG, sTT, sFT0 = 68, 69, 70, 71, 72, 73
sT0, sT1, sT2, sT3 = 74, 75, 76, 77
sEP = 78
vLane, vL16, vT0, vT1 = 1, 2, 3, 4

def estamp(a, i):
    if "E" in X and STAMPS:
        a(f"s_memtime s[{82+2*i}:{83+2*i}]")
        a("s_waitcnt lgkmcnt(0)")

def istamp(a, i):
    if "I" in X and STAMPS:
        a(f"s_memtime s[{82+2*i}:{83+2*i}]")
        a("s_waitcnt lgkmcnt(0)")

def stamp(a, i, real=False):
    if not STAMPS: return
    if ("E" in X or "P" in X) and 2 <= i <= 7: return
    if "I" in X and 4 <= i <= 7: return
    a(f"{'s_memrealtime' if real else 's_memtime'} s[{82+2*i}:{83+2*i}]")
    a("s_waitcnt lgkmcnt(0)")

def stamp_flush(a, n=10):
    if not STAMPS: return
    a("s_mov_b64 exec, 1")
    for i in range(n):
        a(f"v_mov_b32 v{i+1}, s{82+2*i}")
    a(f"s_lshl_b32 s80, s2, 4")
    a(f"s_add_u32 s80, s80, s{sW}")
    a(f"s_lshl_b32 s80, s80, 6")
    a(f"s_add_u32 s80, s80, {WS_STAMP:#x}")
    for i in range(n):
        a(f"buffer_store_dword v{i+1}, off, {sr(S_WS,4)}, s80 offset:{4*i}")
    if STAMPS == 2:
        L = a.uniq("NODBG")
        a(f"s_lshl_b32 s80, s2, 4")
        a(f"s_add_u32 s80, s80, s{sW}")
        a(f"s_cmp_eq_u32 s80, {77*16+8}")
        a(f"s_cbranch_scc0 {L}")
        a("v_sub_u32 v9, v9, v1")
        for i in (3, 4, 5, 6, 7, 8, 10):
            a(f"v_sub_u32 v{i}, v{i}, v2")
        for i in range(2, n):
            a(f"buffer_store_dword v{i+1}, off, {sr(S_DBG,4)}, 0 offset:{4*i}")
        a.label(L)


def mish16(a, acc, tmp, dst, cst):
    cL, c2, cm2, c1 = (vr(cst + 2 * i, 2) for i in range(4))
    for g in range(4):
        e = [vr(acc + 4 * g + 2 * i, 2) for i in range(2)]
        t = [vr(tmp + 2 * i, 2) for i in range(2)]
        u = [vr(tmp + 4 + 2 * i, 2) for i in range(2)]
        for i in range(2): a(f"v_pk_mul_f32 {t[i]}, {e[i]}, {cL}")
        for i in range(4): a(f"v_exp_f32 v{tmp+i}, v{tmp+i}")
        for i in range(2): a(f"v_pk_add_f32 {u[i]}, {t[i]}, {c2}")
        for i in range(2): a(f"v_pk_fma_f32 {u[i]}, {t[i]}, {u[i]}, {c2}")
        for i in range(4): a(f"v_rcp_f32 v{tmp+4+i}, v{tmp+4+i}")
        for i in range(2): a(f"v_pk_fma_f32 {u[i]}, {u[i]}, {cm2}, {c1}")
        for i in range(2): a(f"v_pk_mul_f32 {u[i]}, {u[i]}, {e[i]}")
        a(f"v_cvt_pk_bf16_f32 v{dst + 2 * g}, v{tmp+4}, v{tmp+5}")
        a(f"v_cvt_pk_bf16_f32 v{dst + 2 * g + 1}, v{tmp+6}, v{tmp+7}")

def cvt16(a, acc):
    for i in range(8):
        a(f"v_cvt_pk_bf16_f32 v{acc + i}, v{acc + 2 * i}, v{acc + 2 * i + 1}")

def flag_store(a, soff, vtmp, cnt):
    L = a.uniq("NOFLAG")
    if cnt is None:
        a(f"v_mov_b32 v{vtmp}, s{sEP}")
        a(f"v_mov_b32 v{vtmp+1}, s{sEP+1}")
        a("s_mov_b64 exec, 1")
        a(f"buffer_store_dwordx2 {vr(vtmp,2)}, off, {sr(S_WS,4)}, s{soff} sc1")
        a("s_mov_b64 exec, -1")
        return
    a("s_mov_b64 exec, 1")
    a(f"v_mov_b32 v{vtmp}, {cnt}")
    a(f"v_mov_b32 v{vtmp+1}, 1")
    a(f"ds_add_rtn_u32 v{vtmp}, v{vtmp}, v{vtmp+1}")
    a("s_waitcnt lgkmcnt(0)")
    a(f"v_readfirstlane_b32 s{sT3}, v{vtmp}")
    a(f"v_mov_b32 v{vtmp}, s{sEP}")
    a(f"v_mov_b32 v{vtmp+1}, s{sEP+1}")
    a(f"s_cmp_eq_u32 s{sT3}, 7")
    a(f"s_cbranch_scc0 {L}")
    a(f"buffer_store_dwordx2 {vr(vtmp,2)}, off, {sr(S_WS,4)}, s{soff} sc1")
    a.label(L)
    a("s_mov_b64 exec, -1")

def poll(a, loads, scnt):
    L = a.uniq("POLL"); D = a.uniq("POLLD")
    a(f"s_mov_b32 s{scnt}, 0")
    a.label(L)
    for nf, vd, vo, so in loads:
        op = "buffer_load_dwordx4" if nf == 2 else "buffer_load_dwordx2"
        a(f"{op} {vr(vd, 2*nf)}, v{vo}, {sr(S_WS,4)}, s{so} offen sc1")
    a("s_waitcnt vmcnt(0)")
    first = True
    for nf, vd, vo, so in loads:
        for k in range(nf):
            if first:
                a(f"v_cmp_ne_u64 vcc, {sr(sEP,2)}, {vr(vd+2*k,2)}")
                first = False
            else:
                a(f"v_cmp_ne_u64 {sr(sT2,2)}, {sr(sEP,2)}, {vr(vd+2*k,2)}")
                a("s_nop 1")
                a(f"s_or_b64 vcc, vcc, {sr(sT2,2)}")
    a("s_nop 1")
    a("s_cmp_eq_u64 vcc, 0")
    a(f"s_cbranch_scc1 {D}")
    a("s_sleep 4")
    a(f"s_add_u32 s{scnt}, s{scnt}, 1")
    a(f"s_cmp_lt_u32 s{scnt}, {SPIN_MAX}")
    a(f"s_cbranch_scc1 {L}")
    a.label(D)


def gen(a):
    name = NAME + "_kernel"
    a.raw(".text")
    a.raw(f".globl {name}")
    a.raw(".p2align 8")
    a.raw(f".type {name},@function")
    a.label(name)
    a("s_cmp_ge_u32 s2, 256")
    a("s_cbranch_scc1 K_END")
    stamp(a, 0, True); stamp(a, 1)
    a("s_load_dwordx16 s[4:19], s[0:1], 0")
    a("s_load_dwordx4 s[20:23], s[0:1], 64")
    a("s_load_dwordx2 s[24:25], s[0:1], 80")
    a(f"v_and_b32 v{vLane}, 63, v0")
    a(f"v_lshrrev_b32 v{vT0}, 6, v0")
    a(f"v_lshlrev_b32 v{vL16}, 4, v{vLane}")
    a(f"v_readfirstlane_b32 s{sW}, v{vT0}")
    if "C" not in X:
        a(f"v_lshlrev_b32 v{vT0}, 6, v0")
        a(f"s_cmp_ge_u32 s{sW}, 4")
        a("s_cbranch_scc1 K_NOPC")
        a(f"s_getpc_b64 {sr(sT0,2)}")
        a.label("K_PC")
        a(f"v_min_u32 v{vT0}, K_END-K_PC, v{vT0}")
        a(f"global_load_dword v12, v{vT0}, {sr(sT0,2)}")
        a.label("K_NOPC")
    a(f"s_and_b32 s{sT0}, s2, 7")
    a(f"s_lshr_b32 s{sT1}, s2, 3")
    if os.environ.get("TILE48"):
        a(f"s_and_b32 s{sRB}, s{sT0}, 3")
        a(f"s_lshl_b32 s{sRB}, s{sRB}, 2")
        a(f"s_and_b32 s{sT2}, s{sT1}, 3")
        a(f"s_add_u32 s{sRB}, s{sRB}, s{sT2}")
        a(f"s_lshr_b32 s{sCG}, s{sT0}, 2")
        a(f"s_lshl_b32 s{sCG}, s{sCG}, 3")
        a(f"s_lshr_b32 s{sT2}, s{sT1}, 2")
        a(f"s_add_u32 s{sCG}, s{sCG}, s{sT2}")
    else:
        a(f"s_and_b32 s{sRB}, s{sT0}, 1")
        a(f"s_lshl_b32 s{sRB}, s{sRB}, 3")
        a(f"s_and_b32 s{sT2}, s{sT1}, 7")
        a(f"s_add_u32 s{sRB}, s{sRB}, s{sT2}")
        a(f"s_lshr_b32 s{sCG}, s{sT0}, 1")
        a(f"s_lshl_b32 s{sCG}, s{sCG}, 2")
        a(f"s_lshr_b32 s{sT2}, s{sT1}, 3")
        a(f"s_add_u32 s{sCG}, s{sCG}, s{sT2}")
    a(f"s_and_b32 s{sTG}, s{sW}, 3")
    a(f"s_lshl_b32 s{sTT}, s{sRB}, 2")
    a(f"s_add_u32 s{sTT}, s{sTT}, s{sTG}")
    a(f"s_sub_u32 s{sT0}, s{sCG}, 2")
    a(f"s_cmp_ge_u32 s{sCG}, 14")
    a(f"s_cselect_b32 s{sFT0}, s{sT0}, s{sCG}")
    a(f"s_lshl_b32 s{sFT0}, s{sFT0}, 2")
    a(f"s_cmp_ge_u32 s{sW}, 8")
    a("s_cbranch_scc1 G_START")
    if "N" not in X:
        a(f"s_cmp_ge_u32 s{sW}, 6")
        a("s_cbranch_scc1 A_START")
        a(f"s_cmp_ge_u32 s{sW}, 4")
        a("s_cbranch_scc1 A_PF1")
        a(f"s_bitcmp1_b32 s{sW}, 0")
        a("s_cbranch_scc1 A_PFQ")
        a(f"s_lshl_b32 s{sT0}, s2, 13")
        a(f"s_lshl_b32 s{sT1}, s{sW}, 8")
        a(f"s_add_u32 s{sT0}, s{sT0}, s{sT1}")
        a(f"v_lshrrev_b32 v{vT0}, 3, v{vLane}")
        a(f"v_lshlrev_b32 v{vT0}, 10, v{vT0}")
        a(f"v_and_b32 v{vT1}, 7, v{vLane}")
        a(f"v_lshl_add_u32 v{vT0}, v{vT1}, 6, v{vT0}")
        a("s_waitcnt lgkmcnt(0)")
        srd(a, S_X, 4, 2048 * 512 * 2)
        a(f"buffer_load_dword v12, v{vT0}, {sr(S_X,4)}, s{sT0} offen{NTP}")
        a("s_branch A_START")
        a.label("A_PFQ")
        a(f"s_lshr_b32 s{sT1}, s{sW}, 1")
        a(f"s_lshl_b32 s{sT1}, s{sT1}, 8")
        a(f"s_add_u32 s{sT0}, s2, s{sT1}")
        a(f"s_mul_i32 s{sT0}, s{sT0}, 3072")
        a(f"v_min_u32 v{vT0}, 47, v{vLane}")
        a(f"v_lshlrev_b32 v{vT0}, 6, v{vT0}")
        a("s_waitcnt lgkmcnt(0)")
        srd(a, S_WQ, 6, 512 * 1536 * 2)
        a(f"buffer_load_dword v12, v{vT0}, {sr(S_WQ,4)}, s{sT0} offen{NTP}")
        a("s_branch A_START")
        a.label("A_PF1")
        a(f"s_and_b32 s{sT1}, s{sW}, 1")
        a(f"s_lshl_b32 s{sT1}, s{sT1}, 8")
        a(f"s_add_u32 s{sT0}, s2, s{sT1}")
        a(f"s_mul_i32 s{sT0}, s{sT0}, 3584")
        a(f"v_min_u32 v{vT0}, 55, v{vLane}")
        a(f"v_lshlrev_b32 v{vT0}, 6, v{vT0}")
        a("s_waitcnt lgkmcnt(0)")
        srd(a, S_W1, 12, 512 * 1792 * 2)
        if os.environ.get("PFSL"): a(f"s_sleep {os.environ['PFSL']}")
        a(f"buffer_load_dword v12, v{vT0}, {sr(S_W1,4)}, s{sT0} offen{NTP}")
        a("s_branch A_START")
    if "N" in X: a("s_branch A_START")
    a.label("G_START")
    gen_G(a)
    a("s_endpgm")
    gen_A(a)
    a.label("K_END")
    a("s_endpgm")
    return name

def srds_rest(a):
    srd(a, S_WS, 24, WS_SIZE)
    srd(a, S_B1, 14, 1792 * 2)
    srd(a, S_W2, 16, 1792 * 512 * 2)
    srd(a, S_WO, 8, 512 * 512 * 2)
    srd(a, S_OUT, 20, 2048 * 512 * 2)
    srd(a, S_DBG, 22, 256)


def gen_A(a):
    a.label("A_START")
    vXrd, vW0, vW1, vT2 = 5, 9, 10, 11
    FA, FB = 16, 28
    ACC = 64
    BIAS = 96
    PK = 128
    TMP = 16
    sN, sD = 26, 27
    a(f"s_lshl_b32 s{sT0}, s{sTG}, 12")
    a(f"v_and_b32 v{vT0}, 31, v{vLane}")
    a(f"v_lshrrev_b32 v{vT1}, 5, v{vLane}")
    a(f"v_bfe_u32 v{vT2}, v{vLane}, 1, 3")
    a(f"v_xor_b32 v{vT2}, v{vT2}, v{vT1}")
    a(f"v_lshlrev_b32 v{vT0}, 7, v{vT0}")
    a(f"v_add_u32 v{vT0}, s{sT0}, v{vT0}")
    for ks in range(4):
        a(f"v_xor_b32 v{vXrd+ks}, {2*ks}, v{vT2}")
        a(f"v_lshl_add_u32 v{vXrd+ks}, v{vXrd+ks}, 4, v{vT0}")
    a(f"v_bfe_u32 v{vT0}, v{vLane}, 2, 2")
    a(f"v_lshl_add_u32 v{vT0}, v{vT1}, 3, v{vT0}")
    a(f"v_lshlrev_b32 v{vW0}, 6, v{vT0}")
    a(f"v_bfe_u32 v{vT0}, v{vLane}, 4, 1")
    a(f"v_lshl_add_u32 v{vW0}, v{vT0}, 5, v{vW0}")
    a(f"v_and_b32 v{vT0}, 3, v{vLane}")
    a(f"v_lshl_add_u32 v{vW0}, v{vT0}, 3, v{vW0}")
    a(f"s_lshr_b32 s{sT0}, s{sW}, 2")
    a(f"s_lshl_b32 s{sT0}, s{sT0}, 13")
    a(f"s_add_u32 s{sT0}, s{sT0}, 16384")
    a(f"v_add_u32 v{vW0}, s{sT0}, v{vW0}")
    a(f"v_lshlrev_b32 v{vW1}, 4, v{vT1}")
    a(f"v_add_u32 v{vW1}, {L_GW}, v{vW1}")
    a(f"v_lshlrev_b32 v{vT2}, 3, v{vT1}")
    a(f"s_lshr_b32 s{sT0}, s{sW}, 2")
    a(f"s_lshl_b32 s{sT0}, s{sT0}, 7")
    a(f"s_add_u32 s{sT0}, s{sT0}, {L_B1}")
    a(f"v_add_u32 v{vT2}, s{sT0}, v{vT2}")
    for i in range(32):
        a(f"v_mov_b32 v{ACC+i}, 0")
    a(f"v_and_b32 v13, 27, v{vLane}")
    a(f"v_cmp_eq_u32 vcc, 16, v13")
    a(f"v_mov_b32 v14, 0x3f803f80")
    a("s_nop 0")
    a(f"v_cndmask_b32 v13, 0, v14, vcc")
    for i in range(16):
        a(f"v_mov_b32 v{112+i}, v13")
    for i in range(16):
        a(f"v_mov_b32 v{152+i}, 0")
    for i, c in enumerate((LOG2E, 2.0, -2.0, 1.0)):
        a(f"v_mov_b32 v{144+2*i}, {f32(c)}")
        a(f"v_mov_b32 v{145+2*i}, {f32(c)}")
    a(f"s_mov_b32 s{sN}, 0")
    a("s_waitcnt lgkmcnt(0)")
    srds_rest(a)
    if SENT0:
        a(f"s_and_b32 s{sT0}, s2, 7")
        a(f"s_lshl_b32 s{sT1}, s{sT0}, 2")
        a(f"s_bfe_u32 s{sT0}, s2, 0x20003")
        a(f"s_add_u32 s{sT1}, s{sT1}, s{sT0}")
        a(f"s_lshr_b32 s{sT0}, s2, 5")
        a(f"s_lshl_b32 s{sT0}, s{sT0}, 3")
        a(f"s_add_u32 s{sT0}, s{sT0}, s{sW}")
        a(f"s_lshl_b32 s{sT0}, s{sT0}, 15")
        a(f"s_lshl_b32 s{sT1}, s{sT1}, 10")
        a(f"s_add_u32 s{sT0}, s{sT0}, s{sT1}")
        a(f"s_add_u32 s{sT0}, s{sT0}, {WS_OF:#x}")
        for i in range(4):
            a(f"v_mov_b32 v{104+i}, -1")
        a(f"buffer_store_dwordx4 {vr(104,4)}, v{vL16}, {sr(S_WS,4)}, s{sT0} offen sc1")
    estamp(a, 3)
    a("s_barrier")
    stamp(a, 2)
    estamp(a, 6)

    def reads(ks, F, par, gate=False, only1=False):
        if "R" in X: return
        if not only1:
            a(f"ds_read_b128 {vr(F,4)}, v{vXrd+ks} offset:{par*32768}")
        for t in range(2):
            if only1 and t == 0: continue
            if gate and t == 1:
                a(f"ds_read_b128 {vr(F+8,4)}, v{vW1} offset:{(par*4+ks)*32}")
                continue
            a(f"ds_read_b64_tr_b16 {vr(F+4+4*t,2)}, v{vW0} offset:{par*32768+t*4096+ks*1024}")
            a(f"ds_read_b64_tr_b16 {vr(F+4+4*t+2,2)}, v{vW0} offset:{par*32768+t*4096+ks*1024+256}")

    def mfmas(F, swap0):
        if "M" in X: return
        for t in range(2):
            acc = ACC + 16 * t
            if swap0 and t == 0:
                a(f"v_mfma_f32_32x32x16_bf16 {vr(acc,16)}, {vr(F,4)}, {vr(F+4+4*t,4)}, {vr(acc,16)}")
            elif swap0 and DOT:
                for i in range(4):
                    a(f"v_dot2_f32_bf16 v{acc}, v{F+i}, v{F+8+i}, v{acc}")
            else:
                a(f"v_mfma_f32_32x32x16_bf16 {vr(acc,16)}, {vr(F+4+4*t,4)}, {vr(F,4)}, {vr(acc,16)}")

    FS = [16 + 12 * i for i in range(4)]
    def loop(lab, swap0):
        nr = 4 if swap0 else 5
        a.raw(".p2align 3")
        a.label(lab)
        for par in range(2):
            for j in range(4):
                a(f"s_waitcnt lgkmcnt({2*nr})")
                if j == 1:
                    if par == 1:
                        for k in range(4):
                            a(f"v_xor_b32 v{vXrd+k}, s{sT3}, v{vXrd+k}")
                        a(f"v_xor_b32 v{vW0}, s{sT3}, v{vW0}")
                        if swap0:
                            a(f"v_add_u32 v{vW1}, s{sD}, v{vW1}")
                        else:
                            L = a.uniq("A_NOVM")
                            a(f"s_cmp_eq_u32 s{sN}, 12")
                            a(f"s_cbranch_scc0 {L}")
                            a("s_waitcnt vmcnt(0)")
                            a.label(L)
                    a("s_barrier")
                elif j == 0 and par == 0:
                    a(f"s_add_u32 s{sN}, s{sN}, 2")
                elif j == 3 and par == 1:
                    a(f"s_and_b32 s{sT0}, s{sN}, 7")
                else:
                    a("s_nop 0")
                jj = j + 3
                reads(jj & 3, FS[jj & 3], par if jj < 4 else 1 - par, swap0)
                mfmas(FS[j], swap0)
        a(f"s_cbranch_scc1 {lab}")

    istamp(a, 4)
    a(f"s_mov_b32 s{sT3}, 65536")
    a(f"s_movk_i32 s{sD}, 256")
    a(f"s_cmp_ge_u32 s{sW}, 4")
    a("s_cbranch_scc1 A_L2P")
    for ks in range(3):
        reads(ks, FS[ks], 0)
    loop("A_L1", False)
    a(f"s_cmp_eq_u32 s{sN}, 16")
    a("s_cbranch_scc1 A_MISH")
    stamp(a, 3)
    a("s_waitcnt lgkmcnt(7)")
    for g in range(8):
        a(f"ds_read_b64 {vr(BIAS + 2 * g, 2)}, v{vT2} offset:{g*16}")
    a(f"v_and_b32 v{vT0}, 0x33, v{vLane}")
    a(f"v_bfe_u32 v{vT1}, v{vLane}, 2, 1")
    a(f"v_lshl_add_u32 v{vT0}, v{vT1}, 3, v{vT0}")
    a(f"v_bfe_u32 v{vT1}, v{vLane}, 3, 1")
    a(f"v_lshl_add_u32 v{vT0}, v{vT1}, 2, v{vT0}")
    a(f"v_lshlrev_b32 v{vT0}, 4, v{vT0}")
    a(f"s_lshl_b32 s4, s{sCG}, 17")
    a(f"s_lshl_b32 s5, s{sTT}, 10")
    a(f"s_add_u32 s4, s4, s5")
    a(f"s_lshl_b32 s6, s4, 1")
    a(f"s_add_u32 s4, s4, {WS_QF:#x}")
    a(f"s_add_u32 s5, s4, 65536")
    a(f"s_add_u32 s6, s6, {WS_KV:#x}")
    a(f"s_add_u32 s7, s6, 131072")
    a(f"s_mov_b32 s8, {f32(0.25 * LOG2E)}")
    a(f"s_mov_b32 s9, {f32(0.25 * LOG2E)}")
    for i in range(8):
        a(f"v_pk_mul_f32 {vr(ACC+2*i,2)}, {vr(ACC+2*i,2)}, s[8:9]")
    for i in range(16):
        a(f"v_cvt_pk_bf16_f32 v{PK + i}, v{ACC + 2 * i}, v{ACC + 2 * i + 1}")
    istamp(a, 5)
    a(f"buffer_store_dwordx4 {vr(PK+8,4)}, v{vT0}, {sr(S_WS,4)}, s6 offen sc1")
    a(f"buffer_store_dwordx4 {vr(PK+12,4)}, v{vT0}, {sr(S_WS,4)}, s7 offen sc1")
    a(f"buffer_store_dwordx4 {vr(PK,4)}, v{vL16}, {sr(S_WS,4)}, s4 offen sc1")
    a(f"buffer_store_dwordx4 {vr(PK+4,4)}, v{vL16}, {sr(S_WS,4)}, s5 offen sc1")
    a.label("A_BIAS")
    a("s_waitcnt lgkmcnt(0)")
    istamp(a, 6)
    for g in range(8):
        b = ACC + 4 * g
        a(f"v_lshlrev_b32 v{b}, 16, v{BIAS+2*g}")
        a(f"v_and_b32 v{b+1}, 0xffff0000, v{BIAS+2*g}")
        a(f"v_lshlrev_b32 v{b+2}, 16, v{BIAS+2*g+1}")
        a(f"v_and_b32 v{b+3}, 0xffff0000, v{BIAS+2*g+1}")
    istamp(a, 7)
    a("s_branch A_L1")
    a.label("A_L2P")
    for ks in range(3):
        reads(ks, FS[ks], 0, True)
    loop("A_L2", True)
    a("s_waitcnt lgkmcnt(0)")
    for ks in range(3):
        reads(ks, FS[ks], 0, False, True)
    stamp(a, 3)
    a("s_waitcnt lgkmcnt(7)")
    for g in range(8):
        a(f"ds_read_b64 {vr(BIAS + 2 * g, 2)}, v{vT2} offset:{g*16}")
    a(f"v_and_b32 v{vT0}, 0x2f, v{vLane}")
    a(f"v_lshlrev_b32 v{vT0}, 4, v{vT0}")
    a(f"v_bfe_u32 v{vT1}, v{vLane}, 4, 1")
    a(f"v_lshl_add_u32 v{vT0}, v{vT1}, 17, v{vT0}")
    a(f"s_lshl_b32 s4, s{sCG}, 18")
    a(f"s_lshl_b32 s5, s{sTT}, 11")
    a(f"s_add_u32 s4, s4, s5")
    a(f"s_add_u32 s4, s4, {WS_KV:#x}")
    a(f"s_lshl_b32 s5, s{sTT}, 7")
    a(f"s_add_u32 s5, s5, {WS_G:#x}")
    if GCOPY:
        a(f"s_lshl_b32 s6, s{sCG}, 13")
        a(f"s_add_u32 s5, s5, s6")
    a(f"v_lshlrev_b32 v{vT1}, 2, v{vLane}")
    if DOT: a(f"v_mov_b32 v{ACC+17}, v{ACC+16}")
    for i in range(8):
        a(f"v_cvt_pk_bf16_f32 v{PK + i}, v{ACC + 2 * i}, v{ACC + 2 * i + 1}")
    if DOT:
        a(f"v_permlane32_swap_b32 v{ACC+16}, v{ACC+17}")
        a("s_nop 1")
        a(f"v_add_f32 v{ACC+16}, v{ACC+16}, v{ACC+17}")
    a(f"v_mul_f32 v{PK+8}, {f32(-LOG2E)}, v{ACC+16}")
    a(f"v_exp_f32 v{PK+8}, v{PK+8}")
    a(f"buffer_store_dwordx4 {vr(PK,4)}, v{vT0}, {sr(S_WS,4)}, s4 offen offset:1024 sc1")
    a(f"v_add_f32 v{PK+8}, 1.0, v{PK+8}")
    a(f"v_rcp_f32 v{PK+8}, v{PK+8}")
    a(f"buffer_store_dwordx4 {vr(PK+4,4)}, v{vT0}, {sr(S_WS,4)}, s4 offen offset:1280 sc1")
    a("s_mov_b32 exec_hi, 0")
    a(f"buffer_store_dword v{PK+8}, v{vT1}, {sr(S_WS,4)}, s5 offen sc1")
    a("s_mov_b64 exec, -1")
    a("s_waitcnt lgkmcnt(0)")
    a("s_branch A_BIAS")
    a.label("A_MISH")
    stamp(a, 4)
    a(f"s_mul_i32 s13, s{sTT}, 112")
    a(f"s_lshl_b32 s{sT1}, s{sFT0}, 1")
    a(f"s_add_u32 s13, s13, s{sT1}")
    a(f"s_lshr_b32 s{sT1}, s{sW}, 2")
    a(f"s_lshl_b32 s{sT1}, s{sT1}, 2")
    a(f"s_add_u32 s13, s13, s{sT1}")
    a(f"s_lshl_b32 s13, s13, 10")
    a(f"s_add_u32 s13, s13, {WS_ACT:#x}")
    if NODUP:
        a(f"s_cmp_ge_u32 s{sCG}, 14")
        a(f"s_cselect_b32 s13, 0x40000000, s13")
    a("s_waitcnt lgkmcnt(0)")
    a("s_nop 3")
    mish16(a, ACC, TMP, 128, 144)
    if not STP: a(f"buffer_store_dwordx4 {vr(128,4)}, v{vL16}, {sr(S_WS,4)}, s13 offen sc1")
    if not STP: a(f"buffer_store_dwordx4 {vr(132,4)}, v{vL16}, {sr(S_WS,4)}, s13 offen offset:1024 sc1")
    mish16(a, ACC + 16, TMP, 136, 144)
    if not STP: a(f"buffer_store_dwordx4 {vr(136,4)}, v{vL16}, {sr(S_WS,4)}, s13 offen offset:2048 sc1")
    if not STP: a(f"buffer_store_dwordx4 {vr(140,4)}, v{vL16}, {sr(S_WS,4)}, s13 offen offset:3072 sc1")

    a.label("A_PH2")
    sHead, sQT, sI, sB1, sB2, sPass = 4, 5, 6, 7, 8, 9
    sMask = 10
    vAddr, vIdx, vG = 5, 6, 7
    Q = 8
    KB = [12, 16]
    VB = [112, 120]
    S = [36, 52]
    C = 68
    O = 152
    vFl = 100
    a(f"s_and_b32 s{sT0}, s2, 7")
    a(f"s_lshl_b32 s{sHead}, s{sT0}, 2")
    a(f"s_bfe_u32 s{sT0}, s2, 0x20003")
    a(f"s_add_u32 s{sHead}, s{sHead}, s{sT0}")
    a(f"s_lshr_b32 s{sQT}, s2, 5")
    a(f"s_lshl_b32 s{sQT}, s{sQT}, 3")
    a(f"s_add_u32 s{sQT}, s{sQT}, s{sW}")
    a(f"v_mov_b32 v{vIdx}, 0xdddddddd")
    a(f"s_mov_b32 s{sMask}, 0x0000ffff")
    a(f"s_mov_b32 s{sMask+1}, 0x0000ffff")
    a(f"v_mov_b32 v{vAddr}, v{vL16}")
    a(f"s_mov_b32 s{sB1}, {B3AT if NOB2 else 1}")
    a(f"s_mov_b32 s{sPass}, 0")
    a(f"s_lshl_b32 s{sT0}, s{sW}, 10")
    a(f"s_add_u32 s{sT0}, s{sT0}, {L_Q}")
    a(f"v_add_u32 v{vT1}, s{sT0}, v{vL16}")
    a(f"s_lshl_b32 s12, s{sQT}, 15")
    a(f"s_lshl_b32 s{sT1}, s{sHead}, 10")
    a(f"s_add_u32 s12, s12, s{sT1}")
    a(f"s_add_u32 s12, s12, {WS_OF:#x}")
    if not SENT0:
        for i in range(4):
            a(f"v_mov_b32 v{104+i}, -1")
        if not STP: a(f"buffer_store_dwordx4 {vr(104,4)}, v{vL16}, {sr(S_WS,4)}, s12 offen sc1")
    a("s_setprio 2")
    stamp(a, 5)
    a("s_barrier")
    stamp(a, 6)
    a(f"ds_read_b128 {vr(Q,4)}, v{vT1}")
    a(f"ds_read_b128 {vr(KB[0],4)}, v{vAddr} offset:0")
    if STP:
        for i in range(4):
            a(f"buffer_store_dwordx4 {vr(128+4*i,4)}, v{vL16}, {sr(S_WS,4)}, s13 offen offset:{i*1024} sc1")
        if not SENT0: a(f"buffer_store_dwordx4 {vr(104,4)}, v{vL16}, {sr(S_WS,4)}, s12 offen sc1")
    a("s_waitcnt lgkmcnt(0)")
    a(f"v_mfma_f32_32x32x16_bf16 {vr(S[0],16)}, {vr(KB[0],4)}, {vr(Q,4)}, 0")
    a("s_nop 7")
    a("s_nop 7")
    s0 = S[0]
    a(f"v_max3_f32 v{vT0}, v{s0}, v{s0+1}, v{s0+2}")
    for i in range(3, 15, 2):
        a(f"v_max3_f32 v{vT0}, v{vT0}, v{s0+i}, v{s0+i+1}")
    a(f"v_max_f32 v{vT0}, v{vT0}, v{s0+15}")
    a.label("A_SETMAX")
    a(f"v_mov_b32 v{vT1}, v{vT0}")
    a("s_nop 1")
    a(f"v_permlane32_swap_b32 v{vT0}, v{vT1}")
    a("s_nop 1")
    a(f"v_max_f32 v{vT0}, v{vT0}, v{vT1}")
    for i in range(16):
        a(f"v_sub_f32 v{C+i}, 0, v{vT0}")
    a(f"ds_read_b128 {vr(KB[0],4)}, v{vAddr} offset:0")
    a(f"ds_read_b128 {vr(KB[1],4)}, v{vAddr} offset:2048")
    a(f"s_mov_b64 exec, {sr(sMask,2)}")
    a(f"ds_read_b128 {vr(VB[0],4)}, v{vAddr} offset:1024")
    a(f"ds_read_b128 {vr(VB[0]+4,4)}, v{vAddr} offset:1280")
    a("s_mov_b64 exec, -1")
    a("s_waitcnt lgkmcnt(0)")
    a(f"v_mfma_f32_32x32x16_bf16 {vr(S[0],16)}, {vr(KB[0],4)}, {vr(Q,4)}, {'0' if 'Z' in X else vr(C,16)}")
    a(f"s_mov_b32 s{sI}, 0")
    for i in range(8, 16):
        a(f"v_mov_b32 v{S[1]+i}, 0")
    a("s_nop 7")
    a.raw(".p2align 6")
    a.label("A_LOOP")
    for u in range(4):
        p = u & 1
        cur, nxt = S[p], S[1 - p]
        def E(lo, hi):
            for i in range(lo, hi):
                a(f"v_exp_f32 v{cur+i}, v{cur+i}")
        E(0, 2)
        a(f"v_smfmac_f32_32x32x32_bf16 {vr(O,16)}, {vr(VB[1-p]+4,4)}, {vr(nxt+8,8)}, v{vIdx}")
        E(2, 7)
        a("s_waitcnt lgkmcnt(0)")
        a(f"v_mfma_f32_32x32x16_bf16 {vr(nxt,16)}, {vr(KB[1-p],4)}, {vr(Q,4)}, {'0' if 'Z' in X else vr(C,16)}")
        a(f"ds_read_b128 {vr(KB[p],4)}, v{vAddr} offset:{(u+2)*2048}")
        E(7, 8)
        a(f"s_mov_b64 exec, {sr(sMask,2)}")
        a(f"ds_read_b128 {vr(VB[1-p],4)}, v{vAddr} offset:{(u+1)*2048+1024}")
        a(f"ds_read_b128 {vr(VB[1-p]+4,4)}, v{vAddr} offset:{(u+1)*2048+1280}")
        a("s_mov_b64 exec, -1")
        E(8, 13)
        a(f"v_smfmac_f32_32x32x32_bf16 {vr(O,16)}, {vr(VB[p],4)}, {vr(cur,8)}, v{vIdx}")
        if u == 3:
            a(f"v_add_u32 v{vAddr}, 8192, v{vAddr}")
            E(13, 16)
            a(f"s_add_u32 s{sI}, s{sI}, 1")
            a(f"s_cmp_lt_u32 s{sI}, s{sB1}")
        else:
            a(f"v_exp_f32_e64 v{cur+13}, v{cur+13}")
            E(14, 16)
    a("s_cbranch_scc1 A_LOOP")
    a(f"s_cmp_eq_u32 s{sI}, 1")
    a("s_cbranch_scc0 A_SEG2")
    a(f"s_mov_b32 s{sB1}, 3")
    if EARLYF: a("s_waitcnt vmcnt(0)")
    a("s_barrier")
    a("s_branch A_LOOP")
    a.label("A_SEG2")
    a(f"s_cmp_eq_u32 s{sI}, {B3AT if NOB2 else 3}")
    a("s_cbranch_scc0 A_SEG3")
    a(f"s_mov_b32 s{sB1}, {PR1}")
    a("s_waitcnt vmcnt(0)")
    a("s_barrier")
    a("s_branch A_LOOP")
    a.label("A_SEG3")
    a(f"s_cmp_eq_u32 s{sI}, {PR1}")
    a("s_cbranch_scc0 A_SEG4")
    a(f"s_mov_b32 s{sB1}, {PR2}")
    a("s_setprio 1")
    a(f"v_and_b32 v{vT0}, 31, v{vLane}")
    a(f"v_lshlrev_b32 v{vT0}, 2, v{vT0}")
    a(f"s_lshl_b32 s{sT0}, s{sQT}, 7")
    a(f"s_add_u32 s{sT0}, s{sT0}, {WS_G:#x}")
    if GCOPY:
        a(f"s_lshr_b32 s{sT1}, s{sHead}, 1")
        a(f"s_lshl_b32 s{sT1}, s{sT1}, 13")
        a(f"s_add_u32 s{sT0}, s{sT0}, s{sT1}")
    a(f"buffer_load_dword v{vG}, v{vT0}, {sr(S_WS,4)}, s{sT0} offen sc1")
    a("s_branch A_LOOP")
    a.label("A_SEG4")
    a(f"s_cmp_eq_u32 s{sI}, {PR2}")
    a("s_cbranch_scc0 A_SEG5")
    a(f"s_mov_b32 s{sB1}, 16")
    a("s_setprio 0")
    a("s_branch A_LOOP")
    a.label("A_SEG5")
    a(f"v_smfmac_f32_32x32x32_bf16 {vr(O,16)}, {vr(VB[1]+4,4)}, {vr(S[1]+8,8)}, v{vIdx}")
    a("s_waitcnt lgkmcnt(0)")
    a("s_nop 7")
    a("s_nop 7")
    a(f"s_cmp_lg_u32 s{sPass}, 0")
    a("s_cbranch_scc1 A_FIN")
    a(f"v_max3_f32 v{vT0}, |v{O}|, |v{O+1}|, |v{O+2}|")
    a(f"v_max3_f32 v{vT0}, v{vT0}, |v{O+3}|, |v{O+4}|")
    a(f"v_max3_f32 v{vT0}, v{vT0}, |v{O+5}|, |v{O+6}|")
    a(f"v_max_f32 v{vT0}, v{vT0}, |v{O+7}|")
    a(f"v_mov_b32 v{vT1}, 0x7f800000")
    a(f"v_cmp_nlt_f32 vcc, v{vT0}, v{vT1}")
    a(f"v_mov_b32 v{vT1}, {f32(2.0**30)}")
    a(f"v_cmp_nlt_f32 {sr(sT2,2)}, v{O+8}, v{vT1}")
    a("s_nop 1")
    a(f"s_or_b64 vcc, vcc, {sr(sT2,2)}")
    a("s_cbranch_scc0 A_FIN")
    a(f"s_mov_b32 s{sPass}, 1")
    a(f"s_mov_b32 s{sB1}, 16")
    a(f"v_mov_b32 v{vAddr}, v{vL16}")
    a(f"v_mov_b32 v{vT0}, 0xff800000")
    a(f"s_mov_b32 s{sI}, 0")
    a.label("A_MAXLOOP")
    a(f"ds_read_b128 {vr(KB[0],4)}, v{vAddr} offset:0")
    a("s_waitcnt lgkmcnt(0)")
    a(f"v_mfma_f32_32x32x16_bf16 {vr(S[0],16)}, {vr(KB[0],4)}, {vr(Q,4)}, 0")
    a(f"v_add_u32 v{vAddr}, 2048, v{vAddr}")
    a("s_nop 7")
    a("s_nop 7")
    for i in range(0, 16, 2):
        a(f"v_max3_f32 v{vT0}, v{vT0}, v{s0+i}, v{s0+i+1}")
    a(f"s_add_u32 s{sI}, s{sI}, 1")
    a(f"s_cmp_lt_u32 s{sI}, 64")
    a("s_cbranch_scc1 A_MAXLOOP")
    a(f"v_mov_b32 v{vAddr}, v{vL16}")
    for i in range(16):
        a(f"v_mov_b32 v{O+i}, 0")
    a("s_branch A_SETMAX")
    a.label("A_FIN")
    stamp(a, 7)
    a(f"v_rcp_f32 v{vT0}, v{O+8}")
    a("s_waitcnt vmcnt(0)")
    a(f"v_mul_f32 v{vT0}, v{vT0}, v{vG}")
    for i in range(8):
        a(f"v_mul_f32 v{O+i}, v{O+i}, v{vT0}")
    for i in range(4):
        a(f"v_cvt_pk_bf16_f32 v{O+i}, v{O+2*i}, v{O+2*i+1}")
    for i in range(4):
        a(f"v_min_u32 v{O+i}, -2, v{O+i}")
    a(f"buffer_store_dwordx4 {vr(O,4)}, v{vL16}, {sr(S_WS,4)}, s12 offen sc1")
    stamp(a, 9); stamp(a, 8, True)
    stamp_flush(a)
    a("s_endpgm")


def gen_G(a):
    sXoff, sLX, sWQ0, sW10, sGO = 26, 27, 80, 81, 3
    sGW = sTG
    vDX0, vDX1, vDWq, vDW1, vT2 = 5, 6, 7, 8, 9
    vWe, vWo, vW2w, vGo = 10, 11, 12, 13
    vEp = 14
    RS = 16
    NSETS = int(os.environ.get("NSETS", "9"))
    PER = int(os.environ.get("PER", "1"))
    a("s_setprio 3")
    a(f"s_lshl_b32 s{sXoff}, s{sTT}, 15")
    a(f"s_lshl_b32 s{sLX}, s{sTG}, 12")
    a(f"s_mul_i32 s{sWQ0}, s{sTG}, {16*3072}")
    a(f"s_lshl_b32 s{sT0}, s{sCG}, 6")
    a(f"s_add_u32 s{sWQ0}, s{sWQ0}, s{sT0}")
    a(f"v_lshrrev_b32 v{vT0}, 3, v{vLane}")
    a(f"v_lshrrev_b32 v{vT1}, 4, v{vLane}")
    a(f"v_and_b32 v{vT2}, 7, v{vLane}")
    a(f"v_xor_b32 v{vT2}, v{vT2}, v{vT1}")
    a(f"v_lshlrev_b32 v{vDX0}, 10, v{vT0}")
    a(f"v_lshl_add_u32 v{vDX0}, v{vT2}, 4, v{vDX0}")
    a(f"v_xor_b32 v{vDX1}, 64, v{vDX0}")
    a(f"v_add_u32 v{vDX1}, 8192, v{vDX1}")
    a(f"v_lshrrev_b32 v{vT0}, 2, v{vLane}")
    a(f"v_and_b32 v{vT2}, 3, v{vLane}")
    a(f"v_lshlrev_b32 v{vT2}, 4, v{vT2}")
    a(f"v_mul_u32_u24 v{vDWq}, 3072, v{vT0}")
    a(f"v_add_u32 v{vDWq}, v{vDWq}, v{vT2}")
    a(f"v_mul_u32_u24 v{vDW1}, 3584, v{vT0}")
    a(f"v_add_u32 v{vDW1}, v{vDW1}, v{vT2}")
    sLW = sGO
    a(f"s_lshl_b32 s{sLW}, s{sTG}, 10")
    a("s_waitcnt lgkmcnt(0)")
    estamp(a, 2)
    srd(a, S_X, 4, 2048 * 512 * 2)
    srd(a, S_WQ, 6, 512 * 1536 * 2)
    srd(a, S_GW, 18, 1024)

    q = []
    def vm(tag):
        q.append(tag)
    def wait_tag(tag, extra=""):
        last = max(i for i, t in enumerate(q) if t == tag)
        n = len(q) - 1 - last
        assert n < 64
        a(f"s_waitcnt vmcnt({n}){extra}")

    def dma(lds_s, lds_imm, voff, srdn, s_base, imm, extra=""):
        a(f"s_add_u32 m0, s{lds_s}, {lds_imm}")
        a(f"s_add_u32 s{sT0}, s{s_base}, {imm}")
        a(f"buffer_load_dwordx4 v{voff}, {sr(srdn,4)}, s{sT0} offen{extra} lds")

    ROT = int(os.environ.get("ROT", "0"))
    sRot, sXo, sWo = 82, 83, 78
    sWo = 25
    def issue(n):
        base = (n & 3) * 32768
        st = n if n < 8 else ((n - 4) & 7 if REUSE else n & 7)
        if n == 8 and XOOB and NODUP:
            a(f"s_cmp_ge_u32 s{sCG}, 14")
            a(f"s_cselect_b32 s{sXoff}, 0x40000000, s{sXoff}")
        xb, wb, sti = sXoff, (sWQ0 if n < 8 else sW10), st
        if ROT:
            a(f"s_add_u32 s{sT1}, s{sRot}, {st}")
            a(f"s_and_b32 s{sT1}, s{sT1}, 7")
            a(f"s_lshl_b32 s{sXo}, s{sT1}, 7")
            a(f"s_add_u32 s{sXo}, s{sXo}, s{sXoff}")
            a(f"s_mul_i32 s{sT2}, s{sT1}, {64 * (3072 if n < 8 else 3584)}")
            a(f"s_add_u32 s{sT2}, s{sT2}, s{wb}")
            xb, wb, sti = sXo, sT2, 0
        if not (REUSE and 8 <= n < 12):
            for j in range(4):
                dma(sLX, base + j * 1024, vDX0 if j % 2 == 0 else vDX1, S_X, xb, (j >> 1) * 16384 + sti * 128, NTX); vm(n)
        if n < 8:
            for t in range(3):
                dma(sLW, base + 16384 + t * 4096, vDWq, S_WQ, wb, sti * 64 * 3072 + t * 1024, NTW); vm(n)
        else:
            for t in range(4):
                dma(sLW, base + 16384 + t * 4096, vDW1, S_W1, wb, sti * 64 * 3584 + t * 64, NTW); vm(n)

    if ROT:
        a(f"s_lshr_b32 s{sRot}, s2, 3")
        a(f"s_lshr_b32 s{sT1}, s2, 6")
        a(f"s_lshl_b32 s{sT1}, s{sT1}, 1")
        a(f"s_add_u32 s{sRot}, s{sRot}, s{sT1}")
        if ROT == 2: a(f"s_and_b32 s{sRot}, s{sRot}, 3")
        a(f"s_and_b32 s{sRot}, s{sRot}, 7")
        a(f"s_lshl_b32 s{sT1}, s{sRot}, 7")
        a(f"v_add_u32 v10, s{sT1}, v{vL16}")
        a(f"v_and_b32 v10, 0x3ff, v10")
    estamp(a, 3)
    a(f"s_mov_b32 m0, {L_GW}")
    a("s_nop 0")
    a(f"buffer_load_dwordx4 v{10 if ROT else vL16}, {sr(S_GW,4)}, 0 offen lds"); vm(0)
    issue(0)
    estamp(a, 4)
    issue(1)
    srd(a, S_W1, 12, 512 * 1792 * 2)
    srds_rest(a)
    a(f"s_mul_i32 s{sW10}, s{sTG}, {16*3584}")
    a(f"s_lshl_b32 s{sT0}, s{sFT0}, 6")
    a(f"s_add_u32 s{sW10}, s{sW10}, s{sT0}")
    if NODUP:
        a(f"s_cmp_ge_u32 s{sCG}, 14")
        a(f"s_cselect_b32 s{sW10}, 0x40000000, s{sW10}")
    a(f"s_mov_b32 m0, {L_B1}")
    a(f"s_lshl_b32 s{sT0}, s{sFT0}, 6")
    a(f"buffer_load_dwordx4 v{vL16}, {sr(S_B1,4)}, s{sT0} offen lds"); vm(1)
    a(f"s_lshl_b32 s{sT0}, s2, 4")
    a(f"s_add_u32 s{sT0}, s{sT0}, s{sW}")
    a(f"s_cmp_eq_u32 s{sT0}, 8")
    a("s_cbranch_scc0 G_NOEP")
    a(f"s_memrealtime {sr(sEP,2)}")
    a("s_waitcnt lgkmcnt(0)")
    a(f"s_or_b32 s{sEP}, s{sEP}, 1")
    a(f"v_mov_b32 v{vEp}, s{sEP}")
    a(f"v_mov_b32 v{vEp+1}, s{sEP+1}")
    a("s_mov_b64 exec, 1")
    a(f"buffer_store_dwordx2 {vr(vEp,2)}, off, {sr(S_DBG,4)}, 0 sc1")
    a("s_mov_b64 exec, -1")
    a.label("G_NOEP")
    estamp(a, 5)
    wait_tag(0)
    estamp(a, 6)
    a("s_barrier")
    stamp(a, 2)
    estamp(a, 7)
    ORD = int(os.environ.get("ORD", "0"))
    if ORD <= 1: issue(2)
    for n in range(16):
        if n == 0 and ORD == 0:
            issue(3)
        if n == int(os.environ.get("PFW1", "99")) and "N" not in X:
            a(f"s_lshr_b32 s{sT0}, s2, 3")
            a(f"s_lshl_b32 s{sT0}, s{sT0}, 4")
            a(f"s_lshl_b32 s{sT1}, s{sGW}, 2")
            a(f"s_add_u32 s{sT0}, s{sT0}, s{sT1}")
            a(f"s_mul_i32 s{sT0}, s{sT0}, 3584")
            a(f"s_bfe_u32 s{sT1}, s2, 0x20001")
            a(f"s_lshl_b32 s{sT1}, s{sT1}, 10")
            a(f"s_add_u32 s{sT0}, s{sT0}, s{sT1}")
            a(f"v_mul_u32_u24 v16, 3584, v{vT1}")
            a(f"v_and_b32 v17, 15, v{vLane}")
            a(f"v_lshl_add_u32 v16, v17, 6, v16")
            a(f"buffer_load_dword v17, v16, {sr(S_W1,4)}, s{sT0} offen"); vm("pf")
        if n == int(os.environ.get("PFW2", "99")):
            a(f"v_lshlrev_b32 v16, 6, v{vLane}")
            a(f"s_cmp_ge_u32 s{sGW}, 2")
            a("s_cbranch_scc1 G_PFO")
            a(f"s_mul_i32 s{sT0}, s2, 7168")
            a(f"s_mul_i32 s{sT1}, s{sGW}, 3584")
            a(f"s_add_u32 s{sT0}, s{sT0}, s{sT1}")
            a(f"v_min_u32 v16, {55*64}, v16")
            a(f"buffer_load_dword v17, v16, {sr(S_W2,4)}, s{sT0} offen")
            a("s_branch G_PFD")
            a.label("G_PFO")
            a(f"s_lshl_b32 s{sT0}, s2, 11")
            a(f"v_min_u32 v16, {31*64}, v16")
            a(f"buffer_load_dword v17, v16, {sr(S_WO,4)}, s{sT0} offen")
            a.label("G_PFD")
            vm("pf2")
        if n == 4:
            a(f"buffer_load_dwordx2 {vr(vEp,2)}, off, {sr(S_DBG,4)}, 0 sc1"); vm("ep")
        if n == 10:
            wait_tag("ep")
            a(f"s_mov_b32 s{sT1}, 0")
            a.label("G_EPL")
            a(f"v_readfirstlane_b32 s{sEP}, v{vEp}")
            a(f"v_readfirstlane_b32 s{sEP+1}, v{vEp+1}")
            a(f"s_cmp_lg_u32 s{sEP}, 0")
            a("s_cbranch_scc1 G_EPD")
            a("s_sleep 4")
            a(f"buffer_load_dwordx2 {vr(vEp,2)}, off, {sr(S_DBG,4)}, 0 sc1")
            a("s_waitcnt vmcnt(0)")
            a(f"s_add_u32 s{sT1}, s{sT1}, 1")
            a(f"s_cmp_lt_u32 s{sT1}, {SPIN_MAX}")
            a("s_cbranch_scc1 G_EPL")
            a.label("G_EPD")
        if n + 1 <= 15:
            wait_tag(n + 1)
        a("s_barrier")
        if n == 0 and ORD == 2: issue(2)
        if (1 <= n or ORD >= 1) and n + 3 <= 15:
            issue(n + 3)
        if "P" in X and STAMPS:
            P0 = int(os.environ.get("P0", "8"))
            if P0 <= n + 1 < P0 + 6:
                i = n + 1 - P0 + 2
                a(f"s_memtime s[{82+2*i}:{83+2*i}]")
                a("s_waitcnt lgkmcnt(0)")
        if n + 1 == 12:
            a(f"s_cmp_eq_u32 s{sGW}, 0")
            a("s_cbranch_scc0 G_NOF1")
            a(f"s_lshl_b32 s{sT0}, s{sCG}, 7")
            a(f"s_lshl_b32 s{sT1}, s{sRB}, 3")
            a(f"s_add_u32 s{sT0}, s{sT0}, s{sT1}")
            a(f"s_add_u32 s{sT0}, s{sT0}, {WS_FKV:#x}")
            a("s_mov_b64 exec, 1")
            a(f"buffer_store_dwordx2 {vr(vEp,2)}, off, {sr(S_WS,4)}, s{sT0} sc1")
            a("s_mov_b64 exec, -1")
            a.label("G_NOF1")
    sHead, sKV, sLK, sFK, sFG, sQ = 4, 5, 6, 7, 8, 9
    sA0, sA1, sW2, sOT, sON, sI, sRing, sTT64, sNB = 10, 11, 12, 13, 14, 15, 16, 17, 18
    vL8, vF16 = 5, 6
    FL = 124
    a(f"s_and_b32 s{sT0}, s2, 7")
    a(f"s_lshl_b32 s{sHead}, s{sT0}, 2")
    a(f"s_bfe_u32 s{sT0}, s2, 0x20003")
    a(f"s_add_u32 s{sHead}, s{sHead}, s{sT0}")
    a(f"s_lshl_b32 s{sLK}, s{sGW}, 10")
    a(f"s_lshl_b32 s{sKV}, s{sHead}, 17")
    a(f"s_add_u32 s{sKV}, s{sKV}, {WS_KV:#x}")
    a(f"s_add_u32 s{sKV}, s{sKV}, s{sLK}")
    a(f"s_lshr_b32 s{sT0}, s{sHead}, 1")
    a(f"s_lshl_b32 s{sFK}, s{sT0}, 7")
    a(f"s_add_u32 s{sFK}, s{sFK}, {WS_FKV:#x}")
    a(f"s_lshr_b32 s{sT1}, s2, 5")
    a(f"s_lshl_b32 s{sQ}, s{sHead}, 16")
    a(f"s_lshl_b32 s{sT0}, s{sT1}, 13")
    a(f"s_add_u32 s{sQ}, s{sQ}, s{sT0}")
    a(f"s_add_u32 s{sQ}, s{sQ}, s{sLK}")
    a(f"s_add_u32 s{sQ}, s{sQ}, {WS_QF:#x}")
    a(f"v_lshlrev_b32 v{vL8}, 3, v{vLane}")
    a(f"v_and_b32 v{vF16}, 0x78, v{vL8}")
    stamp(a, 3)
    poll(a, [(1, FL, vF16, sFK)], sT1)
    stamp(a, 4)
    def kvdma(i):
        dma(sLK, i * 4096, vL16, S_WS, sKV, i * 4096, " sc1")
    dma(sLK, L_Q, vL16, S_WS, sQ, 0, " sc1")
    dma(sLK, L_Q + 4096, vL16, S_WS, sQ, 4096, " sc1")
    def pubflags():
        a(f"s_cmp_eq_u32 s{sGW}, 0")
        a("s_cbranch_scc0 G_NOF2")
        a(f"s_lshl_b32 s{sT0}, s{sRB}, 7")
        a(f"s_lshl_b32 s{sT1}, s{sCG}, 3")
        a(f"s_add_u32 s{sT0}, s{sT0}, s{sT1}")
        a(f"s_add_u32 s{sT0}, s{sT0}, {WS_FACT:#x}")
        a(f"s_lshr_b32 s{sT1}, s2, 5")
        a(f"s_lshl_b32 s{sT1}, s{sT1}, 8")
        a(f"s_lshl_b32 s{sT2}, s{sHead}, 3")
        a(f"s_add_u32 s{sT1}, s{sT1}, s{sT2}")
        a(f"s_add_u32 s{sT1}, s{sT1}, {WS_FO:#x}")
        a("s_mov_b64 exec, 1")
        a(f"buffer_store_dwordx2 {vr(vEp,2)}, off, {sr(S_WS,4)}, s{sT0} sc1")
        a(f"buffer_store_dwordx2 {vr(vEp,2)}, off, {sr(S_WS,4)}, s{sT1} sc1")
        a("s_mov_b64 exec, -1")
        a.label("G_NOF2")
    KV0 = int(os.environ.get("KV0", "8"))
    for i in range(KV0): kvdma(i)
    a(f"s_waitcnt vmcnt({KV0-8 if NOB2 else KV0-4})")
    a("s_barrier")
    if not STP:
        for i in range(KV0, 20): kvdma(i)
    if not NOB2:
        a(f"s_waitcnt vmcnt({KV0-8 if STP else 12})")
        a("s_barrier")
    if EARLYF and not NOB2: pubflags()
    for i in range(KV0 if STP else 20, 32): kvdma(i)
    ACC = 8
    AF = 72
    WF = 104
    vG0, vG1 = 120, 121
    vDW, vTr0, vTr1 = 7, 122, 123
    a(f"s_and_b32 s{sT0}, s2, 7")
    a(f"s_lshr_b32 s{sT1}, s2, 3")
    a(f"s_lshr_b32 s{sTT64}, s{sT0}, 1")
    a(f"s_lshl_b32 s{sTT64}, s{sTT64}, 3")
    a(f"s_and_b32 s{sT3}, s{sT1}, 7")
    a(f"s_add_u32 s{sTT64}, s{sTT64}, s{sT3}")
    a(f"s_and_b32 s{sNB}, s{sT0}, 1")
    a(f"s_lshl_b32 s{sNB}, s{sNB}, 2")
    a(f"s_lshr_b32 s{sT1}, s{sT1}, 3")
    a(f"s_add_u32 s{sNB}, s{sNB}, s{sT1}")
    a(f"s_lshr_b32 s{sT1}, s{sGW}, 1")
    a(f"s_lshl_b32 s{sOT}, s{sTT64}, 1")
    a(f"s_add_u32 s{sOT}, s{sOT}, s{sT1}")
    a(f"s_and_b32 s{sT1}, s{sGW}, 1")
    a(f"s_lshl_b32 s{sON}, s{sNB}, 1")
    a(f"s_add_u32 s{sON}, s{sON}, s{sT1}")
    a(f"s_mul_i32 s{sT3}, s{sGW}, {28*1024}")
    a(f"s_mul_i32 s{sA0}, s{sOT}, {112*1024}")
    a(f"s_add_u32 s{sA0}, s{sA0}, s{sT3}")
    a(f"s_add_u32 s{sA0}, s{sA0}, {WS_ACT:#x}")
    a(f"s_xor_b32 s{sT1}, s{sOT}, 1")
    a(f"s_mul_i32 s{sA1}, s{sT1}, {112*1024}")
    a(f"s_add_u32 s{sA1}, s{sA1}, s{sT3}")
    a(f"s_add_u32 s{sA1}, s{sA1}, {WS_ACT:#x}")
    a(f"s_mul_i32 s{sW2}, s{sGW}, {28*16384}")
    a(f"s_lshl_b32 s{sT1}, s{sNB}, 7")
    a(f"s_add_u32 s{sW2}, s{sW2}, s{sT1}")
    a(f"s_lshl_b32 s{sRing}, s{sGW}, 13")
    a(f"s_add_u32 s{sRing}, s{sRing}, {L_RING}")
    a(f"v_lshrrev_b32 v{vT0}, 3, v{vLane}")
    a(f"v_bfe_u32 v{vT1}, v{vLane}, 4, 1")
    a(f"v_lshlrev_b32 v{vT1}, 2, v{vT1}")
    a(f"v_and_b32 v{vDW}, 7, v{vLane}")
    a(f"v_xor_b32 v{vDW}, v{vDW}, v{vT1}")
    a(f"v_lshlrev_b32 v{vDW}, 4, v{vDW}")
    a(f"v_lshl_add_u32 v{vDW}, v{vT0}, 10, v{vDW}")
    a(f"v_bfe_u32 v{vT0}, v{vLane}, 2, 2")
    a(f"v_lshrrev_b32 v{vT1}, 5, v{vLane}")
    a(f"v_lshl_add_u32 v{vT0}, v{vT1}, 2, v{vT0}")
    a(f"v_lshlrev_b32 v{vTr0}, 7, v{vT0}")
    a(f"v_bfe_u32 v{vT0}, v{vLane}, 3, 1")
    a(f"v_lshl_add_u32 v{vTr0}, v{vT0}, 6, v{vTr0}")
    a(f"v_and_b32 v{vT0}, 1, v{vLane}")
    a(f"v_lshl_add_u32 v{vTr0}, v{vT0}, 5, v{vTr0}")
    a(f"v_bfe_u32 v{vT0}, v{vLane}, 4, 1")
    a(f"v_lshl_add_u32 v{vTr0}, v{vT0}, 4, v{vTr0}")
    a(f"v_bfe_u32 v{vT0}, v{vLane}, 1, 1")
    a(f"v_lshl_add_u32 v{vTr0}, v{vT0}, 3, v{vTr0}")
    a(f"s_and_b32 s{sT1}, s{sGW}, 1")
    a(f"s_lshl_b32 s{sT1}, s{sT1}, 6")
    a(f"v_xor_b32 v{vTr0}, s{sT1}, v{vTr0}")
    a(f"v_add_u32 v{vTr0}, s{sRing}, v{vTr0}")
    a(f"v_xor_b32 v{vTr1}, 64, v{vTr0}")
    a(f"s_lshr_b32 s{sFG}, s{sTT64}, 2")
    a(f"s_lshl_b32 s{sFG}, s{sFG}, 8")
    a(f"s_add_u32 s{sFG}, s{sFG}, {WS_FO:#x}")
    a(f"v_and_b32 v{vL8}, 0xf8, v{vL8}")
    a(f"s_lshr_b32 s{sFK}, s{sTT64}, 1")
    a(f"s_lshl_b32 s{sFK}, s{sFK}, 7")
    a(f"s_add_u32 s{sFK}, s{sFK}, {WS_FACT:#x}")
    a("s_waitcnt vmcnt(0)")
    a("s_barrier")
    if NOB2 or not EARLYF: pubflags()
    a(f"s_setprio {os.environ.get('GPRIO', '0')}")
    stamp(a, 5)
    poll(a, [(1, FL, vF16, sFK)], sT1)
    a(f"v_and_b32 v{vT0}, 31, v{vLane}")
    a(f"v_lshlrev_b32 v{vT0}, 2, v{vT0}")
    a(f"s_lshl_b32 s{sT0}, s{sOT}, 7")
    a(f"s_add_u32 s{sT0}, s{sT0}, {WS_G:#x}")
    a(f"s_xor_b32 s{sT1}, s{sT0}, 128")
    a(f"buffer_load_dword v{vG0}, v{vT0}, {sr(S_WS,4)}, s{sT0} offen sc1")
    a(f"buffer_load_dword v{vG1}, v{vT0}, {sr(S_WS,4)}, s{sT1} offen sc1")

    def wdma(st, srdn):
        a(f"s_add_u32 m0, s{sRing}, {st * 2048}")
        a(f"s_add_u32 s{sT0}, s{sW2}, 8192")
        a(f"buffer_load_dwordx4 v{vDW}, {sr(srdn,4)}, s{sW2} offen lds")
        a(f"s_add_u32 m0, s{sRing}, {st * 2048 + 1024}")
        a(f"s_add_u32 s{sW2}, s{sW2}, 16384")
        a(f"buffer_load_dwordx4 v{vDW}, {sr(srdn,4)}, s{sT0} offen lds")

    def group(st):
        wdma(st, S_W2)
        f = AF + 8 * st
        a(f"buffer_load_dwordx4 {vr(f,4)}, v{vL16}, {sr(S_WS,4)}, s{sA0} offen offset:{st*1024} sc1")
        a(f"buffer_load_dwordx4 {vr(f+4,4)}, v{vL16}, {sr(S_WS,4)}, s{sA1} offen offset:{st*1024} sc1")
        if st == 3:
            a(f"s_add_u32 s{sA0}, s{sA0}, 4096")
            a(f"s_add_u32 s{sA1}, s{sA1}, 4096")

    def trreads(st, w):
        for jp, vt in enumerate((vTr0, vTr1)):
            a(f"ds_read_b64_tr_b16 {vr(w+4*jp,2)}, v{vt} offset:{st*2048}")
            a(f"ds_read_b64_tr_b16 {vr(w+4*jp+2,2)}, v{vt} offset:{st*2048+1024}")

    GSP = os.environ.get("GSP", "")
    def gmfma(w, f, first, space=False):
        for ap in range(2):
            for jp in range(2):
                acc = ACC + 16 * (ap * 2 + jp)
                c = "0" if first else vr(acc, 16)
                a(f"v_mfma_f32_32x32x16_bf16 {vr(acc,16)}, {vr(w+4*jp,4)}, {vr(f+4*ap,4)}, {c}")
                if space and GSP and not (ap == 1 and jp == 1): a(GSP)

    def step(st, first, more, nwait=12):
        a(f"s_waitcnt vmcnt({nwait})")
        w = WF + 8 * (st & 1)
        trreads(st, w)
        a("s_waitcnt lgkmcnt(0)")
        gmfma(w, AF + 8 * st, first, True)
        if more:
            group(st)

    for st in range(4): group(st)
    for st in range(4): step(st, st == 0, True)
    a(f"s_mov_b32 s{sI}, 0")
    a.label("G_LOOP")
    for st in range(4): step(st, False, True)
    a(f"s_add_u32 s{sI}, s{sI}, 1")
    a(f"s_cmp_lt_u32 s{sI}, {1 if 'F' in X else 5}")
    a("s_cbranch_scc1 G_LOOP")
    for st in range(4): step(st, False, False, 12 - 4 * st)
    stamp(a, 6)
    WOR = 72
    OFR = 136
    a(f"s_lshl_b32 s{sW2}, s{sGW}, 17")
    a(f"s_lshl_b32 s{sT1}, s{sNB}, 7")
    a(f"s_add_u32 s{sW2}, s{sW2}, s{sT1}")
    for st in range(4): wdma(st, S_WO)
    a(f"v_sub_f32 v{vT0}, 1.0, v{vG0}")
    a(f"v_sub_f32 v{vT1}, 1.0, v{vG1}")
    a(f"v_mov_b32 v152, v{vTr0}")
    a(f"v_mov_b32 v153, v{vTr1}")
    vTr0, vTr1 = 152, 153
    a("s_nop 7")
    for q in range(4):
        for i in range(16):
            a(f"v_mul_f32 v{ACC+16*q+i}, v{ACC+16*q+i}, v{vT0 if q < 2 else vT1}")
    def trreads2(st, w):
        for jp, vt in enumerate((vTr0, vTr1)):
            a(f"ds_read_b64_tr_b16 {vr(w+4*jp,2)}, v{vt} offset:{st*2048}")
            a(f"ds_read_b64_tr_b16 {vr(w+4*jp+2,2)}, v{vt} offset:{st*2048+1024}")
    for ks in range(8):
        st = ks & 3
        a(f"s_waitcnt vmcnt({6 if ks < 4 else 6 - 2 * (ks - 4)})")
        trreads2(st, WOR + 8 * ks)
        if ks < 4:
            a("s_waitcnt lgkmcnt(0)")
            wdma(st, S_WO)
    FL = 156
    a(f"s_lshl_b32 s{sA0}, s{sOT}, 15")
    a(f"s_lshl_b32 s{sT3}, s{sGW}, 13")
    a(f"s_add_u32 s{sA0}, s{sA0}, s{sT3}")
    a(f"s_add_u32 s{sA0}, s{sA0}, {WS_OF:#x}")
    a(f"s_xor_b32 s{sA1}, s{sA0}, 32768")
    a(f"s_lshl_b32 s{sLK}, s{sGW}, 14")
    a(f"v_add_u32 v154, s{sLK}, v{vL16}")
    poll(a, [(1, FL, vL8, sFG)], sT1)
    a("s_mov_b64 s[22:23], -1")
    a("s_mov_b32 s19, 0")
    a("s_waitcnt lgkmcnt(0)")
    a("s_barrier")
    a("s_setprio 3")
    a("s_branch G_P3")
    a.label("G_RELOAD")
    for ks in range(8):
        dma(sLK, ks * 2048, vL16, S_WS, sA0, ks * 1024, " sc1")
        dma(sLK, ks * 2048 + 1024, vL16, S_WS, sA1, ks * 1024, " sc1")
    a("s_add_u32 s19, s19, 1")
    a(f"s_cmp_lt_u32 s19, {SPIN_MAX}")
    a("s_cselect_b64 s[22:23], -1, 0")
    a("s_setpc_b64 s[20:21]")
    a.label("G_P3")
    a("s_call_b64 s[20:21], G_RELOAD")
    def ord_(ks):
        f = OFR + 8 * (ks & 1)
        a(f"ds_read_b128 {vr(f,4)}, v154 offset:{ks*2048}")
        a(f"ds_read_b128 {vr(f+4,4)}, v154 offset:{ks*2048+1024}")
    def verify(ks):
        f = OFR + 8 * (ks & 1)
        a.label(f"G_V{ks}")
        a("s_waitcnt lgkmcnt(0)")
        a(f"v_max3_u32 v155, v{f}, v{f+1}, v{f+2}")
        a(f"v_max3_u32 v155, v155, v{f+3}, v{f+4}")
        a(f"v_max3_u32 v155, v155, v{f+5}, v{f+6}")
        a(f"v_max_u32 v155, v155, v{f+7}")
        a(f"v_cmp_eq_u32 vcc, -1, v155")
        a("s_nop 1")
        a("s_and_b64 vcc, vcc, s[22:23]")
        a(f"s_cbranch_scc0 G_OK{ks}")
        a("s_call_b64 s[20:21], G_RELOAD")
        a("s_waitcnt vmcnt(0)")
        ord_(ks)
        a(f"s_branch G_V{ks}")
        a.label(f"G_OK{ks}")
    a("s_waitcnt vmcnt(14)")
    ord_(0)
    verify(0)
    stamp(a, 7)
    for ks in range(8):
        f = OFR + 8 * (ks & 1)
        if ks < 7:
            a(f"s_waitcnt vmcnt({12 - 2 * ks})")
            ord_(ks + 1)
        gmfma(WOR + 8 * ks, f, False)
        if ks < 7:
            verify(ks + 1)
    a("s_nop 7")
    a("s_nop 7")
    for q in range(1, 4):
        a(f"s_xor_b32 s{sT0}, s{sGW}, {q}")
        a(f"s_mul_i32 s{sT0}, s{sT0}, 12288")
        a(f"s_add_u32 s{sT0}, s{sT0}, {L_EXCH}")
        a(f"v_add_u32 v{vT0}, s{sT0}, v{vL16}")
        for i in range(4):
            a(f"ds_write_b128 v{vT0}, {vr(ACC+16*q+4*i,4)} offset:{(q-1)*4096 + i*1024}")
    a(f"s_mul_i32 s{sT0}, s{sGW}, 12288")
    a(f"s_add_u32 s{sT0}, s{sT0}, {L_EXCH}")
    a(f"v_add_u32 v{vT0}, s{sT0}, v{vL16}")
    a("s_waitcnt lgkmcnt(0)")
    a("s_barrier")
    R = 72
    for q in range(3):
        for i in range(4):
            a(f"ds_read_b128 {vr(R+16*q+4*i,4)}, v{vT0} offset:{q*4096 + i*1024}")
    a(f"v_and_b32 v{vT0}, 31, v{vLane}")
    a(f"v_lshlrev_b32 v{vT0}, 10, v{vT0}")
    a(f"v_lshrrev_b32 v{vT1}, 5, v{vLane}")
    a(f"v_lshl_add_u32 v{vT0}, v{vT1}, 5, v{vT0}")
    a(f"s_lshl_b32 s{sT0}, s{sOT}, 15")
    a(f"s_lshl_b32 s{sT1}, s{sON}, 6")
    a(f"s_add_u32 s{sT0}, s{sT0}, s{sT1}")
    for q in range(3):
        a(f"s_waitcnt lgkmcnt({8 - 4 * q})")
        for i in range(16):
            a(f"v_add_f32 v{ACC+i}, v{ACC+i}, v{R+16*q+i}")
    cvt16(a, ACC)
    a(f"buffer_store_dwordx4 {vr(ACC,4)}, v{vT0}, {sr(S_OUT,4)}, s{sT0} offen{os.environ.get('OUTF','')}")
    a(f"buffer_store_dwordx4 {vr(ACC+4,4)}, v{vT0}, {sr(S_OUT,4)}, s{sT0} offen offset:16{os.environ.get('OUTF','')}")
    if STAMPS: a("s_waitcnt vmcnt(0)")
    stamp(a, 9); stamp(a, 8, True)
    stamp_flush(a)


def main():
    ref = open(f"cdna_kernels/{NAME}.s.ref").read().split("\n")
    head = [l for l in ref if l.startswith(";") and "@launch" not in l]
    a = A()
    name = gen(a)
    out = "\n".join(head) + "\n"
    if ASLIST:
        out += f"; @launch kernel={name} grid=(256,1,1) block=(768,1,1) lds={LDS_TOTAL}\n"
    else:
        out += f"; @launch grid=(256,1,1) block=(768,1,1) lds={LDS_TOTAL}\n"
    out += '.amdgcn_target "amdgcn-amd-amdhsa--gfx950"\n'
    out += a.text()
    out += f""".section .rodata,"a"
.p2align 6
.amdhsa_kernel {name}
  .amdhsa_next_free_vgpr 168
  .amdhsa_next_free_sgpr {102 if STAMPS else 84}
  .amdhsa_accum_offset 168
  .amdhsa_group_segment_fixed_size 0
  .amdhsa_kernarg_size 88
  .amdhsa_user_sgpr_count 2
  .amdhsa_user_sgpr_kernarg_segment_ptr 1
  .amdhsa_system_sgpr_workgroup_id_x 1
.end_amdhsa_kernel
"""
    path = sys.argv[1] if len(sys.argv) > 1 else f"cdna_kernels/{NAME}.s"
    open(path, "w").write(out)
    print("wrote", path, len(out), "bytes")

main()
```

```python
import struct, sys, math, os

NAME = "gated_mix__mha_block__dense_activation_mish__prompt"
STAMPS = int(os.environ.get("STAMPS", "0"))
ASLIST = int(os.environ.get("ASLIST", "0"))
X = os.environ.get("X", "")
if not os.environ.get("PF"): X += "N"
EARLYF = int(os.environ.get("EARLYF", "1"))
REUSE = int(os.environ.get("REUSE", "1"))
DOT = int(os.environ.get("DOT", "1"))
NOB2 = int(os.environ.get("NOB2", "0"))
B3AT = int(os.environ.get("B3AT", "3"))
NTW = os.environ.get("NTW", "")
NTX = os.environ.get("NTX", "")
NTP = os.environ.get("NTP", "")
SENT0 = int(os.environ.get("SENT0", "0"))
STP = int(os.environ.get("STP", "0"))
NODUP = int(os.environ.get("NODUP", "1"))
GCOPY = int(os.environ.get("GCOPY", "1"))
XOOB = int(os.environ.get("XOOB", "1"))
PR1 = int(os.environ.get("PR1", "9"))
PR2 = int(os.environ.get("PR2", "13"))

def f32(x):
    return "0x%08x" % struct.unpack("<I", struct.pack("<f", x))[0]

LOG2E = math.log2(math.e)

WS_QF  = 0x0000000
WS_KV  = 0x0200000
WS_ACT = 0x0600000
WS_G   = 0x0F40000
WS_OF  = 0x1000000
WS_FKV = 0x1800000
WS_FACT = 0x1804000
WS_FO  = 0x1808000
WS_STAMP = 0x2000000
WS_SIZE = 0x10000000

L_GW = 144 * 1024
L_B1 = 145 * 1024
L_RING = 128 * 1024
L_Q = 128 * 1024
L_EXCH = 64 * 1024
LDS_TOTAL = 160 * 1024

SPIN_MAX = 200000


class A:
    def __init__(self):
        self.l = []
        self.n = 0
    def __call__(self, s):
        for line in s.strip("\n").split("\n"):
            self.l.append("    " + line.strip())
    def label(self, s):
        self.l.append(s + ":")
    def raw(self, s):
        self.l.append(s)
    def uniq(self, p):
        self.n += 1
        return f"{p}_{self.n}"
    def text(self):
        return "\n".join(self.l) + "\n"


def vr(b, n):
    return "v[%d:%d]" % (b, b + n - 1)

def sr(b, n):
    return "s[%d:%d]" % (b, b + n - 1)

def srd(a, dst, ptr, nbytes):
    a(f"s_mov_b32 s{dst}, s{ptr}")
    a(f"s_and_b32 s{dst+1}, s{ptr+1}, 0xffff")
    a(f"s_mov_b32 s{dst+2}, {nbytes:#x}")
    a(f"s_mov_b32 s{dst+3}, 0x00020000")

S_X, S_WQ, S_W1, S_WS, S_B1, S_W2, S_WO, S_GW, S_OUT, S_DBG = 28, 32, 36, 40, 44, 48, 52, 56, 60, 64
sW, sRB, sCG, sTG, sTT, sFT0 = 68, 69, 70, 71, 72, 73
sT0, sT1, sT2, sT3 = 74, 75, 76, 77
sEP = 78
vLane, vL16, vT0, vT1 = 1, 2, 3, 4

def estamp(a, i):
    if "E" in X and STAMPS:
        a(f"s_memtime s[{82+2*i}:{83+2*i}]")
        a("s_waitcnt lgkmcnt(0)")

def istamp(a, i):
    if "I" in X and STAMPS:
        a(f"s_memtime s[{82+2*i}:{83+2*i}]")
        a("s_waitcnt lgkmcnt(0)")

def stamp(a, i, real=False):
    if not STAMPS: return
    if ("E" in X or "P" in X) and 2 <= i <= 7: return
    if "I" in X and 4 <= i <= 7: return
    a(f"{'s_memrealtime' if real else 's_memtime'} s[{82+2*i}:{83+2*i}]")
    a("s_waitcnt lgkmcnt(0)")

def stamp_flush(a, n=10):
    if not STAMPS: return
    a("s_mov_b64 exec, 1")
    for i in range(n):
        a(f"v_mov_b32 v{i+1}, s{82+2*i}")
    a(f"s_lshl_b32 s80, s2, 4")
    a(f"s_add_u32 s80, s80, s{sW}")
    a(f"s_lshl_b32 s80, s80, 6")
    a(f"s_add_u32 s80, s80, {WS_STAMP:#x}")
    for i in range(n):
        a(f"buffer_store_dword v{i+1}, off, {sr(S_WS,4)}, s80 offset:{4*i}")
    if STAMPS == 2:
        L = a.uniq("NODBG")
        a(f"s_lshl_b32 s80, s2, 4")
        a(f"s_add_u32 s80, s80, s{sW}")
        a(f"s_cmp_eq_u32 s80, {77*16+8}")
        a(f"s_cbranch_scc0 {L}")
        a("v_sub_u32 v9, v9, v1")
        for i in (3, 4, 5, 6, 7, 8, 10):
            a(f"v_sub_u32 v{i}, v{i}, v2")
        for i in range(2, n):
            a(f"buffer_store_dword v{i+1}, off, {sr(S_DBG,4)}, 0 offset:{4*i}")
        a.label(L)


def mish16(a, acc, tmp, dst, cst):
    cL, c2, cm2, c1 = (vr(cst + 2 * i, 2) for i in range(4))
    for g in range(4):
        e = [vr(acc + 4 * g + 2 * i, 2) for i in range(2)]
        t = [vr(tmp + 2 * i, 2) for i in range(2)]
        u = [vr(tmp + 4 + 2 * i, 2) for i in range(2)]
        for i in range(2): a(f"v_pk_mul_f32 {t[i]}, {e[i]}, {cL}")
        for i in range(4): a(f"v_exp_f32 v{tmp+i}, v{tmp+i}")
        for i in range(2): a(f"v_pk_add_f32 {u[i]}, {t[i]}, {c2}")
        for i in range(2): a(f"v_pk_fma_f32 {u[i]}, {t[i]}, {u[i]}, {c2}")
        for i in range(4): a(f"v_rcp_f32 v{tmp+4+i}, v{tmp+4+i}")
        for i in range(2): a(f"v_pk_fma_f32 {u[i]}, {u[i]}, {cm2}, {c1}")
        for i in range(2): a(f"v_pk_mul_f32 {u[i]}, {u[i]}, {e[i]}")
        a(f"v_cvt_pk_bf16_f32 v{dst + 2 * g}, v{tmp+4}, v{tmp+5}")
        a(f"v_cvt_pk_bf16_f32 v{dst + 2 * g + 1}, v{tmp+6}, v{tmp+7}")

def cvt16(a, acc):
    for i in range(8):
        a(f"v_cvt_pk_bf16_f32 v{acc + i}, v{acc + 2 * i}, v{acc + 2 * i + 1}")

def flag_store(a, soff, vtmp, cnt):
    L = a.uniq("NOFLAG")
    if cnt is None:
        a(f"v_mov_b32 v{vtmp}, s{sEP}")
        a(f"v_mov_b32 v{vtmp+1}, s{sEP+1}")
        a("s_mov_b64 exec, 1")
        a(f"buffer_store_dwordx2 {vr(vtmp,2)}, off, {sr(S_WS,4)}, s{soff} sc1")
        a("s_mov_b64 exec, -1")
        return
    a("s_mov_b64 exec, 1")
    a(f"v_mov_b32 v{vtmp}, {cnt}")
    a(f"v_mov_b32 v{vtmp+1}, 1")
    a(f"ds_add_rtn_u32 v{vtmp}, v{vtmp}, v{vtmp+1}")
    a("s_waitcnt lgkmcnt(0)")
    a(f"v_readfirstlane_b32 s{sT3}, v{vtmp}")
    a(f"v_mov_b32 v{vtmp}, s{sEP}")
    a(f"v_mov_b32 v{vtmp+1}, s{sEP+1}")
    a(f"s_cmp_eq_u32 s{sT3}, 7")
    a(f"s_cbranch_scc0 {L}")
    a(f"buffer_store_dwordx2 {vr(vtmp,2)}, off, {sr(S_WS,4)}, s{soff} sc1")
    a.label(L)
    a("s_mov_b64 exec, -1")

def poll(a, loads, scnt):
    L = a.uniq("POLL"); D = a.uniq("POLLD")
    a(f"s_mov_b32 s{scnt}, 0")
    a.label(L)
    for nf, vd, vo, so in loads:
        op = "buffer_load_dwordx4" if nf == 2 else "buffer_load_dwordx2"
        a(f"{op} {vr(vd, 2*nf)}, v{vo}, {sr(S_WS,4)}, s{so} offen sc1")
    a("s_waitcnt vmcnt(0)")
    first = True
    for nf, vd, vo, so in loads:
        for k in range(nf):
            if first:
                a(f"v_cmp_ne_u64 vcc, {sr(sEP,2)}, {vr(vd+2*k,2)}")
                first = False
            else:
                a(f"v_cmp_ne_u64 {sr(sT2,2)}, {sr(sEP,2)}, {vr(vd+2*k,2)}")
                a("s_nop 1")
                a(f"s_or_b64 vcc, vcc, {sr(sT2,2)}")
    a("s_nop 1")
    a("s_cmp_eq_u64 vcc, 0")
    a(f"s_cbranch_scc1 {D}")
    a("s_sleep 4")
    a(f"s_add_u32 s{scnt}, s{scnt}, 1")
    a(f"s_cmp_lt_u32 s{scnt}, {SPIN_MAX}")
    a(f"s_cbranch_scc1 {L}")
    a.label(D)


def gen(a):
    name = NAME + "_kernel"
    a.raw(".text")
    a.raw(f".globl {name}")
    a.raw(".p2align 8")
    a.raw(f".type {name},@function")
    a.label(name)
    a("s_cmp_ge_u32 s2, 256")
    a("s_cbranch_scc1 K_END")
    stamp(a, 0, True); stamp(a, 1)
    a("s_load_dwordx16 s[4:19], s[0:1], 0")
    a("s_load_dwordx4 s[20:23], s[0:1], 64")
    a("s_load_dwordx2 s[24:25], s[0:1], 80")
    a(f"v_and_b32 v{vLane}, 63, v0")
    a(f"v_lshrrev_b32 v{vT0}, 6, v0")
    a(f"v_lshlrev_b32 v{vL16}, 4, v{vLane}")
    a(f"v_readfirstlane_b32 s{sW}, v{vT0}")
    if "C" not in X:
        a(f"v_lshlrev_b32 v{vT0}, 6, v0")
        a(f"s_cmp_ge_u32 s{sW}, 4")
        a("s_cbranch_scc1 K_NOPC")
        a(f"s_getpc_b64 {sr(sT0,2)}")
        a.label("K_PC")
        a(f"v_min_u32 v{vT0}, K_END-K_PC, v{vT0}")
        a(f"global_load_dword v12, v{vT0}, {sr(sT0,2)}")
        a.label("K_NOPC")
    a(f"s_and_b32 s{sT0}, s2, 7")
    a(f"s_lshr_b32 s{sT1}, s2, 3")
    if os.environ.get("TILE48"):
        a(f"s_and_b32 s{sRB}, s{sT0}, 3")
        a(f"s_lshl_b32 s{sRB}, s{sRB}, 2")
        a(f"s_and_b32 s{sT2}, s{sT1}, 3")
        a(f"s_add_u32 s{sRB}, s{sRB}, s{sT2}")
        a(f"s_lshr_b32 s{sCG}, s{sT0}, 2")
        a(f"s_lshl_b32 s{sCG}, s{sCG}, 3")
        a(f"s_lshr_b32 s{sT2}, s{sT1}, 2")
        a(f"s_add_u32 s{sCG}, s{sCG}, s{sT2}")
    else:
        a(f"s_and_b32 s{sRB}, s{sT0}, 1")
        a(f"s_lshl_b32 s{sRB}, s{sRB}, 3")
        a(f"s_and_b32 s{sT2}, s{sT1}, 7")
        a(f"s_add_u32 s{sRB}, s{sRB}, s{sT2}")
        a(f"s_lshr_b32 s{sCG}, s{sT0}, 1")
        a(f"s_lshl_b32 s{sCG}, s{sCG}, 2")
        a(f"s_lshr_b32 s{sT2}, s{sT1}, 3")
        a(f"s_add_u32 s{sCG}, s{sCG}, s{sT2}")
    a(f"s_and_b32 s{sTG}, s{sW}, 3")
    a(f"s_lshl_b32 s{sTT}, s{sRB}, 2")
    a(f"s_add_u32 s{sTT}, s{sTT}, s{sTG}")
    a(f"s_sub_u32 s{sT0}, s{sCG}, 2")
    a(f"s_cmp_ge_u32 s{sCG}, 14")
    a(f"s_cselect_b32 s{sFT0}, s{sT0}, s{sCG}")
    a(f"s_lshl_b32 s{sFT0}, s{sFT0}, 2")
    a(f"s_cmp_ge_u32 s{sW}, 8")
    a("s_cbranch_scc1 G_START")
    if "N" not in X:
        a(f"s_cmp_ge_u32 s{sW}, 6")
        a("s_cbranch_scc1 A_START")
        a(f"s_cmp_ge_u32 s{sW}, 4")
        a("s_cbranch_scc1 A_PF1")
        a(f"s_bitcmp1_b32 s{sW}, 0")
        a("s_cbranch_scc1 A_PFQ")
        a(f"s_lshl_b32 s{sT0}, s2, 13")
        a(f"s_lshl_b32 s{sT1}, s{sW}, 8")
        a(f"s_add_u32 s{sT0}, s{sT0}, s{sT1}")
        a(f"v_lshrrev_b32 v{vT0}, 3, v{vLane}")
        a(f"v_lshlrev_b32 v{vT0}, 10, v{vT0}")
        a(f"v_and_b32 v{vT1}, 7, v{vLane}")
        a(f"v_lshl_add_u32 v{vT0}, v{vT1}, 6, v{vT0}")
        a("s_waitcnt lgkmcnt(0)")
        srd(a, S_X, 4, 2048 * 512 * 2)
        a(f"buffer_load_dword v12, v{vT0}, {sr(S_X,4)}, s{sT0} offen{NTP}")
        a("s_branch A_START")
        a.label("A_PFQ")
        a(f"s_lshr_b32 s{sT1}, s{sW}, 1")
        a(f"s_lshl_b32 s{sT1}, s{sT1}, 8")
        a(f"s_add_u32 s{sT0}, s2, s{sT1}")
        a(f"s_mul_i32 s{sT0}, s{sT0}, 3072")
        a(f"v_min_u32 v{vT0}, 47, v{vLane}")
        a(f"v_lshlrev_b32 v{vT0}, 6, v{vT0}")
        a("s_waitcnt lgkmcnt(0)")
        srd(a, S_WQ, 6, 512 * 1536 * 2)
        a(f"buffer_load_dword v12, v{vT0}, {sr(S_WQ,4)}, s{sT0} offen{NTP}")
        a("s_branch A_START")
        a.label("A_PF1")
        a(f"s_and_b32 s{sT1}, s{sW}, 1")
        a(f"s_lshl_b32 s{sT1}, s{sT1}, 8")
        a(f"s_add_u32 s{sT0}, s2, s{sT1}")
        a(f"s_mul_i32 s{sT0}, s{sT0}, 3584")
        a(f"v_min_u32 v{vT0}, 55, v{vLane}")
        a(f"v_lshlrev_b32 v{vT0}, 6, v{vT0}")
        a("s_waitcnt lgkmcnt(0)")
        srd(a, S_W1, 12, 512 * 1792 * 2)
        if os.environ.get("PFSL"): a(f"s_sleep {os.environ['PFSL']}")
        a(f"buffer_load_dword v12, v{vT0}, {sr(S_W1,4)}, s{sT0} offen{NTP}")
        a("s_branch A_START")
    if "N" in X: a("s_branch A_START")
    a.label("G_START")
    gen_G(a)
    a("s_endpgm")
    gen_A(a)
    a.label("K_END")
    a("s_endpgm")
    return name

def srds_rest(a):
    srd(a, S_WS, 24, WS_SIZE)
    srd(a, S_B1, 14, 1792 * 2)
    srd(a, S_W2, 16, 1792 * 512 * 2)
    srd(a, S_WO, 8, 512 * 512 * 2)
    srd(a, S_OUT, 20, 2048 * 512 * 2)
    srd(a, S_DBG, 22, 256)


def gen_A(a):
    a.label("A_START")
    vXrd, vW0, vW1, vT2 = 5, 9, 10, 11
    FA, FB = 16, 28
    ACC = 64
    BIAS = 96
    PK = 128
    TMP = 16
    sN, sD = 26, 27
    a(f"s_lshl_b32 s{sT0}, s{sTG}, 12")
    a(f"v_and_b32 v{vT0}, 31, v{vLane}")
    a(f"v_lshrrev_b32 v{vT1}, 5, v{vLane}")
    a(f"v_bfe_u32 v{vT2}, v{vLane}, 1, 3")
    a(f"v_xor_b32 v{vT2}, v{vT2}, v{vT1}")
    a(f"v_lshlrev_b32 v{vT0}, 7, v{vT0}")
    a(f"v_add_u32 v{vT0}, s{sT0}, v{vT0}")
    for ks in range(4):
        a(f"v_xor_b32 v{vXrd+ks}, {2*ks}, v{vT2}")
        a(f"v_lshl_add_u32 v{vXrd+ks}, v{vXrd+ks}, 4, v{vT0}")
    a(f"v_bfe_u32 v{vT0}, v{vLane}, 2, 2")
    a(f"v_lshl_add_u32 v{vT0}, v{vT1}, 3, v{vT0}")
    a(f"v_lshlrev_b32 v{vW0}, 6, v{vT0}")
    a(f"v_bfe_u32 v{vT0}, v{vLane}, 4, 1")
    a(f"v_lshl_add_u32 v{vW0}, v{vT0}, 5, v{vW0}")
    a(f"v_and_b32 v{vT0}, 3, v{vLane}")
    a(f"v_lshl_add_u32 v{vW0}, v{vT0}, 3, v{vW0}")
    a(f"s_lshr_b32 s{sT0}, s{sW}, 2")
    a(f"s_lshl_b32 s{sT0}, s{sT0}, 13")
    a(f"s_add_u32 s{sT0}, s{sT0}, 16384")
    a(f"v_add_u32 v{vW0}, s{sT0}, v{vW0}")
    a(f"v_lshlrev_b32 v{vW1}, 4, v{vT1}")
    a(f"v_add_u32 v{vW1}, {L_GW}, v{vW1}")
    a(f"v_lshlrev_b32 v{vT2}, 3, v{vT1}")
    a(f"s_lshr_b32 s{sT0}, s{sW}, 2")
    a(f"s_lshl_b32 s{sT0}, s{sT0}, 7")
    a(f"s_add_u32 s{sT0}, s{sT0}, {L_B1}")
    a(f"v_add_u32 v{vT2}, s{sT0}, v{vT2}")
    for i in range(32):
        a(f"v_mov_b32 v{ACC+i}, 0")
    a(f"v_and_b32 v13, 27, v{vLane}")
    a(f"v_cmp_eq_u32 vcc, 16, v13")
    a(f"v_mov_b32 v14, 0x3f803f80")
    a("s_nop 0")
    a(f"v_cndmask_b32 v13, 0, v14, vcc")
    for i in range(16):
        a(f"v_mov_b32 v{112+i}, v13")
    for i in range(16):
        a(f"v_mov_b32 v{152+i}, 0")
    for i, c in enumerate((LOG2E, 2.0, -2.0, 1.0)):
        a(f"v_mov_b32 v{144+2*i}, {f32(c)}")
        a(f"v_mov_b32 v{145+2*i}, {f32(c)}")
    a(f"s_mov_b32 s{sN}, 0")
    a("s_waitcnt lgkmcnt(0)")
    srds_rest(a)
    if SENT0:
        a(f"s_and_b32 s{sT0}, s2, 7")
        a(f"s_lshl_b32 s{sT1}, s{sT0}, 2")
        a(f"s_bfe_u32 s{sT0}, s2, 0x20003")
        a(f"s_add_u32 s{sT1}, s{sT1}, s{sT0}")
        a(f"s_lshr_b32 s{sT0}, s2, 5")
        a(f"s_lshl_b32 s{sT0}, s{sT0}, 3")
        a(f"s_add_u32 s{sT0}, s{sT0}, s{sW}")
        a(f"s_lshl_b32 s{sT0}, s{sT0}, 15")
        a(f"s_lshl_b32 s{sT1}, s{sT1}, 10")
        a(f"s_add_u32 s{sT0}, s{sT0}, s{sT1}")
        a(f"s_add_u32 s{sT0}, s{sT0}, {WS_OF:#x}")
        for i in range(4):
            a(f"v_mov_b32 v{104+i}, -1")
        a(f"buffer_store_dwordx4 {vr(104,4)}, v{vL16}, {sr(S_WS,4)}, s{sT0} offen sc1")
    estamp(a, 3)
    a("s_barrier")
    stamp(a, 2)
    estamp(a, 6)

    def reads(ks, F, par, gate=False, only1=False):
        if "R" in X: return
        if not only1:
            a(f"ds_read_b128 {vr(F,4)}, v{vXrd+ks} offset:{par*32768}")
        for t in range(2):
            if only1 and t == 0: continue
            if gate and t == 1:
                a(f"ds_read_b128 {vr(F+8,4)}, v{vW1} offset:{(par*4+ks)*32}")
                continue
            a(f"ds_read_b64_tr_b16 {vr(F+4+4*t,2)}, v{vW0} offset:{par*32768+t*4096+ks*1024}")
            a(f"ds_read_b64_tr_b16 {vr(F+4+4*t+2,2)}, v{vW0} offset:{par*32768+t*4096+ks*1024+256}")

    def mfmas(F, swap0):
        if "M" in X: return
        for t in range(2):
            acc = ACC + 16 * t
            if swap0 and t == 0:
                a(f"v_mfma_f32_32x32x16_bf16 {vr(acc,16)}, {vr(F,4)}, {vr(F+4+4*t,4)}, {vr(acc,16)}")
            elif swap0 and DOT:
                for i in range(4):
                    a(f"v_dot2_f32_bf16 v{acc}, v{F+i}, v{F+8+i}, v{acc}")
            else:
                a(f"v_mfma_f32_32x32x16_bf16 {vr(acc,16)}, {vr(F+4+4*t,4)}, {vr(F,4)}, {vr(acc,16)}")

    FS = [16 + 12 * i for i in range(4)]
    def loop(lab, swap0):
        nr = 4 if swap0 else 5
        a.raw(".p2align 3")
        a.label(lab)
        for par in range(2):
            for j in range(4):
                a(f"s_waitcnt lgkmcnt({2*nr})")
                if j == 1:
                    if par == 1:
                        for k in range(4):
                            a(f"v_xor_b32 v{vXrd+k}, s{sT3}, v{vXrd+k}")
                        a(f"v_xor_b32 v{vW0}, s{sT3}, v{vW0}")
                        if swap0:
                            a(f"v_add_u32 v{vW1}, s{sD}, v{vW1}")
                        else:
                            L = a.uniq("A_NOVM")
                            a(f"s_cmp_eq_u32 s{sN}, 12")
                            a(f"s_cbranch_scc0 {L}")
                            a("s_waitcnt vmcnt(0)")
                            a.label(L)
                    a("s_barrier")
                elif j == 0 and par == 0:
                    a(f"s_add_u32 s{sN}, s{sN}, 2")
                elif j == 3 and par == 1:
                    a(f"s_and_b32 s{sT0}, s{sN}, 7")
                else:
                    a("s_nop 0")
                jj = j + 3
                reads(jj & 3, FS[jj & 3], par if jj < 4 else 1 - par, swap0)
                mfmas(FS[j], swap0)
        a(f"s_cbranch_scc1 {lab}")

    istamp(a, 4)
    a(f"s_mov_b32 s{sT3}, 65536")
    a(f"s_movk_i32 s{sD}, 256")
    a(f"s_cmp_ge_u32 s{sW}, 4")
    a("s_cbranch_scc1 A_L2P")
    for ks in range(3):
        reads(ks, FS[ks], 0)
    loop("A_L1", False)
    a(f"s_cmp_eq_u32 s{sN}, 16")
    a("s_cbranch_scc1 A_MISH")
    stamp(a, 3)
    a("s_waitcnt lgkmcnt(7)")
    for g in range(8):
        a(f"ds_read_b64 {vr(BIAS + 2 * g, 2)}, v{vT2} offset:{g*16}")
    a(f"v_and_b32 v{vT0}, 0x33, v{vLane}")
    a(f"v_bfe_u32 v{vT1}, v{vLane}, 2, 1")
    a(f"v_lshl_add_u32 v{vT0}, v{vT1}, 3, v{vT0}")
    a(f"v_bfe_u32 v{vT1}, v{vLane}, 3, 1")
    a(f"v_lshl_add_u32 v{vT0}, v{vT1}, 2, v{vT0}")
    a(f"v_lshlrev_b32 v{vT0}, 4, v{vT0}")
    a(f"s_lshl_b32 s4, s{sCG}, 17")
    a(f"s_lshl_b32 s5, s{sTT}, 10")
    a(f"s_add_u32 s4, s4, s5")
    a(f"s_lshl_b32 s6, s4, 1")
    a(f"s_add_u32 s4, s4, {WS_QF:#x}")
    a(f"s_add_u32 s5, s4, 65536")
    a(f"s_add_u32 s6, s6, {WS_KV:#x}")
    a(f"s_add_u32 s7, s6, 131072")
    a(f"s_mov_b32 s8, {f32(0.25 * LOG2E)}")
    a(f"s_mov_b32 s9, {f32(0.25 * LOG2E)}")
    for i in range(8):
        a(f"v_pk_mul_f32 {vr(ACC+2*i,2)}, {vr(ACC+2*i,2)}, s[8:9]")
    for i in range(16):
        a(f"v_cvt_pk_bf16_f32 v{PK + i}, v{ACC + 2 * i}, v{ACC + 2 * i + 1}")
    istamp(a, 5)
    a(f"buffer_store_dwordx4 {vr(PK+8,4)}, v{vT0}, {sr(S_WS,4)}, s6 offen sc1")
    a(f"buffer_store_dwordx4 {vr(PK+12,4)}, v{vT0}, {sr(S_WS,4)}, s7 offen sc1")
    a(f"buffer_store_dwordx4 {vr(PK,4)}, v{vL16}, {sr(S_WS,4)}, s4 offen sc1")
    a(f"buffer_store_dwordx4 {vr(PK+4,4)}, v{vL16}, {sr(S_WS,4)}, s5 offen sc1")
    a.label("A_BIAS")
    a("s_waitcnt lgkmcnt(0)")
    istamp(a, 6)
    for g in range(8):
        b = ACC + 4 * g
        a(f"v_lshlrev_b32 v{b}, 16, v{BIAS+2*g}")
        a(f"v_and_b32 v{b+1}, 0xffff0000, v{BIAS+2*g}")
        a(f"v_lshlrev_b32 v{b+2}, 16, v{BIAS+2*g+1}")
        a(f"v_and_b32 v{b+3}, 0xffff0000, v{BIAS+2*g+1}")
    istamp(a, 7)
    a("s_branch A_L1")
    a.label("A_L2P")
    for ks in range(3):
        reads(ks, FS[ks], 0, True)
    loop("A_L2", True)
    a("s_waitcnt lgkmcnt(0)")
    for ks in range(3):
        reads(ks, FS[ks], 0, False, True)
    stamp(a, 3)
    a("s_waitcnt lgkmcnt(7)")
    for g in range(8):
        a(f"ds_read_b64 {vr(BIAS + 2 * g, 2)}, v{vT2} offset:{g*16}")
    a(f"v_and_b32 v{vT0}, 0x2f, v{vLane}")
    a(f"v_lshlrev_b32 v{vT0}, 4, v{vT0}")
    a(f"v_bfe_u32 v{vT1}, v{vLane}, 4, 1")
    a(f"v_lshl_add_u32 v{vT0}, v{vT1}, 17, v{vT0}")
    a(f"s_lshl_b32 s4, s{sCG}, 18")
    a(f"s_lshl_b32 s5, s{sTT}, 11")
    a(f"s_add_u32 s4, s4, s5")
    a(f"s_add_u32 s4, s4, {WS_KV:#x}")
    a(f"s_lshl_b32 s5, s{sTT}, 7")
    a(f"s_add_u32 s5, s5, {WS_G:#x}")
    if GCOPY:
        a(f"s_lshl_b32 s6, s{sCG}, 13")
        a(f"s_add_u32 s5, s5, s6")
    a(f"v_lshlrev_b32 v{vT1}, 2, v{vLane}")
    if DOT: a(f"v_mov_b32 v{ACC+17}, v{ACC+16}")
    for i in range(8):
        a(f"v_cvt_pk_bf16_f32 v{PK + i}, v{ACC + 2 * i}, v{ACC + 2 * i + 1}")
    if DOT:
        a(f"v_permlane32_swap_b32 v{ACC+16}, v{ACC+17}")
        a("s_nop 1")
        a(f"v_add_f32 v{ACC+16}, v{ACC+16}, v{ACC+17}")
    a(f"v_mul_f32 v{PK+8}, {f32(-LOG2E)}, v{ACC+16}")
    a(f"v_exp_f32 v{PK+8}, v{PK+8}")
    a(f"buffer_store_dwordx4 {vr(PK,4)}, v{vT0}, {sr(S_WS,4)}, s4 offen offset:1024 sc1")
    a(f"v_add_f32 v{PK+8}, 1.0, v{PK+8}")
    a(f"v_rcp_f32 v{PK+8}, v{PK+8}")
    a(f"buffer_store_dwordx4 {vr(PK+4,4)}, v{vT0}, {sr(S_WS,4)}, s4 offen offset:1280 sc1")
    a("s_mov_b32 exec_hi, 0")
    a(f"buffer_store_dword v{PK+8}, v{vT1}, {sr(S_WS,4)}, s5 offen sc1")
    a("s_mov_b64 exec, -1")
    a("s_waitcnt lgkmcnt(0)")
    a("s_branch A_BIAS")
    a.label("A_MISH")
    stamp(a, 4)
    a(f"s_mul_i32 s13, s{sTT}, 112")
    a(f"s_lshl_b32 s{sT1}, s{sFT0}, 1")
    a(f"s_add_u32 s13, s13, s{sT1}")
    a(f"s_lshr_b32 s{sT1}, s{sW}, 2")
    a(f"s_lshl_b32 s{sT1}, s{sT1}, 2")
    a(f"s_add_u32 s13, s13, s{sT1}")
    a(f"s_lshl_b32 s13, s13, 10")
    a(f"s_add_u32 s13, s13, {WS_ACT:#x}")
    if NODUP:
        a(f"s_cmp_ge_u32 s{sCG}, 14")
        a(f"s_cselect_b32 s13, 0x40000000, s13")
    a("s_waitcnt lgkmcnt(0)")
    a("s_nop 3")
    mish16(a, ACC, TMP, 128, 144)
    if not STP: a(f"buffer_store_dwordx4 {vr(128,4)}, v{vL16}, {sr(S_WS,4)}, s13 offen sc1")
    if not STP: a(f"buffer_store_dwordx4 {vr(132,4)}, v{vL16}, {sr(S_WS,4)}, s13 offen offset:1024 sc1")
    mish16(a, ACC + 16, TMP, 136, 144)
    if not STP: a(f"buffer_store_dwordx4 {vr(136,4)}, v{vL16}, {sr(S_WS,4)}, s13 offen offset:2048 sc1")
    if not STP: a(f"buffer_store_dwordx4 {vr(140,4)}, v{vL16}, {sr(S_WS,4)}, s13 offen offset:3072 sc1")

    a.label("A_PH2")
    sHead, sQT, sI, sB1, sB2, sPass = 4, 5, 6, 7, 8, 9
    sMask = 10
    vAddr, vIdx, vG = 5, 6, 7
    Q = 8
    KB = [12, 16]
    VB = [112, 120]
    S = [36, 52]
    C = 68
    O = 152
    vFl = 100
    a(f"s_and_b32 s{sT0}, s2, 7")
    a(f"s_lshl_b32 s{sHead}, s{sT0}, 2")
    a(f"s_bfe_u32 s{sT0}, s2, 0x20003")
    a(f"s_add_u32 s{sHead}, s{sHead}, s{sT0}")
    a(f"s_lshr_b32 s{sQT}, s2, 5")
    a(f"s_lshl_b32 s{sQT}, s{sQT}, 3")
    a(f"s_add_u32 s{sQT}, s{sQT}, s{sW}")
    a(f"v_mov_b32 v{vIdx}, 0xdddddddd")
    a(f"s_mov_b32 s{sMask}, 0x0000ffff")
    a(f"s_mov_b32 s{sMask+1}, 0x0000ffff")
    a(f"v_mov_b32 v{vAddr}, v{vL16}")
    a(f"s_mov_b32 s{sB1}, {B3AT if NOB2 else 1}")
    a(f"s_mov_b32 s{sPass}, 0")
    a(f"s_lshl_b32 s{sT0}, s{sW}, 10")
    a(f"s_add_u32 s{sT0}, s{sT0}, {L_Q}")
    a(f"v_add_u32 v{vT1}, s{sT0}, v{vL16}")
    a(f"s_lshl_b32 s12, s{sQT}, 15")
    a(f"s_lshl_b32 s{sT1}, s{sHead}, 10")
    a(f"s_add_u32 s12, s12, s{sT1}")
    a(f"s_add_u32 s12, s12, {WS_OF:#x}")
    if not SENT0:
        for i in range(4):
            a(f"v_mov_b32 v{104+i}, -1")
        if not STP: a(f"buffer_store_dwordx4 {vr(104,4)}, v{vL16}, {sr(S_WS,4)}, s12 offen sc1")
    a("s_setprio 2")
    stamp(a, 5)
    a("s_barrier")
    stamp(a, 6)
    a(f"ds_read_b128 {vr(Q,4)}, v{vT1}")
    a(f"ds_read_b128 {vr(KB[0],4)}, v{vAddr} offset:0")
    if STP:
        for i in range(4):
            a(f"buffer_store_dwordx4 {vr(128+4*i,4)}, v{vL16}, {sr(S_WS,4)}, s13 offen offset:{i*1024} sc1")
        if not SENT0: a(f"buffer_store_dwordx4 {vr(104,4)}, v{vL16}, {sr(S_WS,4)}, s12 offen sc1")
    a("s_waitcnt lgkmcnt(0)")
    a(f"v_mfma_f32_32x32x16_bf16 {vr(S[0],16)}, {vr(KB[0],4)}, {vr(Q,4)}, 0")
    a("s_nop 7")
    a("s_nop 7")
    s0 = S[0]
    a(f"v_max3_f32 v{vT0}, v{s0}, v{s0+1}, v{s0+2}")
    for i in range(3, 15, 2):
        a(f"v_max3_f32 v{vT0}, v{vT0}, v{s0+i}, v{s0+i+1}")
    a(f"v_max_f32 v{vT0}, v{vT0}, v{s0+15}")
    a.label("A_SETMAX")
    a(f"v_mov_b32 v{vT1}, v{vT0}")
    a("s_nop 1")
    a(f"v_permlane32_swap_b32 v{vT0}, v{vT1}")
    a("s_nop 1")
    a(f"v_max_f32 v{vT0}, v{vT0}, v{vT1}")
    for i in range(16):
        a(f"v_sub_f32 v{C+i}, 0, v{vT0}")
    a(f"ds_read_b128 {vr(KB[0],4)}, v{vAddr} offset:0")
    a(f"ds_read_b128 {vr(KB[1],4)}, v{vAddr} offset:2048")
    a(f"s_mov_b64 exec, {sr(sMask,2)}")
    a(f"ds_read_b128 {vr(VB[0],4)}, v{vAddr} offset:1024")
    a(f"ds_read_b128 {vr(VB[0]+4,4)}, v{vAddr} offset:1280")
    a("s_mov_b64 exec, -1")
    a("s_waitcnt lgkmcnt(0)")
    a(f"v_mfma_f32_32x32x16_bf16 {vr(S[0],16)}, {vr(KB[0],4)}, {vr(Q,4)}, {'0' if 'Z' in X else vr(C,16)}")
    a(f"s_mov_b32 s{sI}, 0")
    for i in range(8, 16):
        a(f"v_mov_b32 v{S[1]+i}, 0")
    a("s_nop 7")
    a.raw(".p2align 6")
    a.label("A_LOOP")
    for u in range(4):
        p = u & 1
        cur, nxt = S[p], S[1 - p]
        def E(lo, hi):
            for i in range(lo, hi):
                a(f"v_exp_f32 v{cur+i}, v{cur+i}")
        E(0, 2)
        a(f"v_smfmac_f32_32x32x32_bf16 {vr(O,16)}, {vr(VB[1-p]+4,4)}, {vr(nxt+8,8)}, v{vIdx}")
        E(2, 7)
        a("s_waitcnt lgkmcnt(0)")
        a(f"v_mfma_f32_32x32x16_bf16 {vr(nxt,16)}, {vr(KB[1-p],4)}, {vr(Q,4)}, {'0' if 'Z' in X else vr(C,16)}")
        a(f"ds_read_b128 {vr(KB[p],4)}, v{vAddr} offset:{(u+2)*2048}")
        E(7, 8)
        a(f"s_mov_b64 exec, {sr(sMask,2)}")
        a(f"ds_read_b128 {vr(VB[1-p],4)}, v{vAddr} offset:{(u+1)*2048+1024}")
        a(f"ds_read_b128 {vr(VB[1-p]+4,4)}, v{vAddr} offset:{(u+1)*2048+1280}")
        a("s_mov_b64 exec, -1")
        E(8, 13)
        a(f"v_smfmac_f32_32x32x32_bf16 {vr(O,16)}, {vr(VB[p],4)}, {vr(cur,8)}, v{vIdx}")
        if u == 3:
            a(f"v_add_u32 v{vAddr}, 8192, v{vAddr}")
            E(13, 16)
            a(f"s_add_u32 s{sI}, s{sI}, 1")
            a(f"s_cmp_lt_u32 s{sI}, s{sB1}")
        else:
            a(f"v_exp_f32_e64 v{cur+13}, v{cur+13}")
            E(14, 16)
    a("s_cbranch_scc1 A_LOOP")
    a(f"s_cmp_eq_u32 s{sI}, 1")
    a("s_cbranch_scc0 A_SEG2")
    a(f"s_mov_b32 s{sB1}, 3")
    if EARLYF: a("s_waitcnt vmcnt(0)")
    a("s_barrier")
    a("s_branch A_LOOP")
    a.label("A_SEG2")
    a(f"s_cmp_eq_u32 s{sI}, {B3AT if NOB2 else 3}")
    a("s_cbranch_scc0 A_SEG3")
    a(f"s_mov_b32 s{sB1}, {PR1}")
    a("s_waitcnt vmcnt(0)")
    a("s_barrier")
    a("s_branch A_LOOP")
    a.label("A_SEG3")
    a(f"s_cmp_eq_u32 s{sI}, {PR1}")
    a("s_cbranch_scc0 A_SEG4")
    a(f"s_mov_b32 s{sB1}, {PR2}")
    a("s_setprio 1")
    a(f"v_and_b32 v{vT0}, 31, v{vLane}")
    a(f"v_lshlrev_b32 v{vT0}, 2, v{vT0}")
    a(f"s_lshl_b32 s{sT0}, s{sQT}, 7")
    a(f"s_add_u32 s{sT0}, s{sT0}, {WS_G:#x}")
    if GCOPY:
        a(f"s_lshr_b32 s{sT1}, s{sHead}, 1")
        a(f"s_lshl_b32 s{sT1}, s{sT1}, 13")
        a(f"s_add_u32 s{sT0}, s{sT0}, s{sT1}")
    a(f"buffer_load_dword v{vG}, v{vT0}, {sr(S_WS,4)}, s{sT0} offen sc1")
    a("s_branch A_LOOP")
    a.label("A_SEG4")
    a(f"s_cmp_eq_u32 s{sI}, {PR2}")
    a("s_cbranch_scc0 A_SEG5")
    a(f"s_mov_b32 s{sB1}, 16")
    a("s_setprio 0")
    a("s_branch A_LOOP")
    a.label("A_SEG5")
    a(f"v_smfmac_f32_32x32x32_bf16 {vr(O,16)}, {vr(VB[1]+4,4)}, {vr(S[1]+8,8)}, v{vIdx}")
    a("s_waitcnt lgkmcnt(0)")
    a("s_nop 7")
    a("s_nop 7")
    a(f"s_cmp_lg_u32 s{sPass}, 0")
    a("s_cbranch_scc1 A_FIN")
    a(f"v_max3_f32 v{vT0}, |v{O}|, |v{O+1}|, |v{O+2}|")
    a(f"v_max3_f32 v{vT0}, v{vT0}, |v{O+3}|, |v{O+4}|")
    a(f"v_max3_f32 v{vT0}, v{vT0}, |v{O+5}|, |v{O+6}|")
    a(f"v_max_f32 v{vT0}, v{vT0}, |v{O+7}|")
    a(f"v_mov_b32 v{vT1}, 0x7f800000")
    a(f"v_cmp_nlt_f32 vcc, v{vT0}, v{vT1}")
    a(f"v_mov_b32 v{vT1}, {f32(2.0**30)}")
    a(f"v_cmp_nlt_f32 {sr(sT2,2)}, v{O+8}, v{vT1}")
    a("s_nop 1")
    a(f"s_or_b64 vcc, vcc, {sr(sT2,2)}")
    a("s_cbranch_scc0 A_FIN")
    a(f"s_mov_b32 s{sPass}, 1")
    a(f"s_mov_b32 s{sB1}, 16")
    a(f"v_mov_b32 v{vAddr}, v{vL16}")
    a(f"v_mov_b32 v{vT0}, 0xff800000")
    a(f"s_mov_b32 s{sI}, 0")
    a.label("A_MAXLOOP")
    a(f"ds_read_b128 {vr(KB[0],4)}, v{vAddr} offset:0")
    a("s_waitcnt lgkmcnt(0)")
    a(f"v_mfma_f32_32x32x16_bf16 {vr(S[0],16)}, {vr(KB[0],4)}, {vr(Q,4)}, 0")
    a(f"v_add_u32 v{vAddr}, 2048, v{vAddr}")
    a("s_nop 7")
    a("s_nop 7")
    for i in range(0, 16, 2):
        a(f"v_max3_f32 v{vT0}, v{vT0}, v{s0+i}, v{s0+i+1}")
    a(f"s_add_u32 s{sI}, s{sI}, 1")
    a(f"s_cmp_lt_u32 s{sI}, 64")
    a("s_cbranch_scc1 A_MAXLOOP")
    a(f"v_mov_b32 v{vAddr}, v{vL16}")
    for i in range(16):
        a(f"v_mov_b32 v{O+i}, 0")
    a("s_branch A_SETMAX")
    a.label("A_FIN")
    stamp(a, 7)
    a(f"v_rcp_f32 v{vT0}, v{O+8}")
    a("s_waitcnt vmcnt(0)")
    a(f"v_mul_f32 v{vT0}, v{vT0}, v{vG}")
    for i in range(8):
        a(f"v_mul_f32 v{O+i}, v{O+i}, v{vT0}")
    for i in range(4):
        a(f"v_cvt_pk_bf16_f32 v{O+i}, v{O+2*i}, v{O+2*i+1}")
    for i in range(4):
        a(f"v_min_u32 v{O+i}, -2, v{O+i}")
    a(f"buffer_store_dwordx4 {vr(O,4)}, v{vL16}, {sr(S_WS,4)}, s12 offen sc1")
    stamp(a, 9); stamp(a, 8, True)
    stamp_flush(a)
    a("s_endpgm")


def gen_G(a):
    sXoff, sLX, sWQ0, sW10, sGO = 26, 27, 80, 81, 3
    sGW = sTG
    vDX0, vDX1, vDWq, vDW1, vT2 = 5, 6, 7, 8, 9
    vWe, vWo, vW2w, vGo = 10, 11, 12, 13
    vEp = 14
    RS = 16
    NSETS = int(os.environ.get("NSETS", "9"))
    PER = int(os.environ.get("PER", "1"))
    a("s_setprio 3")
    a(f"s_lshl_b32 s{sXoff}, s{sTT}, 15")
    a(f"s_lshl_b32 s{sLX}, s{sTG}, 12")
    a(f"s_mul_i32 s{sWQ0}, s{sTG}, {16*3072}")
    a(f"s_lshl_b32 s{sT0}, s{sCG}, 6")
    a(f"s_add_u32 s{sWQ0}, s{sWQ0}, s{sT0}")
    a(f"v_lshrrev_b32 v{vT0}, 3, v{vLane}")
    a(f"v_lshrrev_b32 v{vT1}, 4, v{vLane}")
    a(f"v_and_b32 v{vT2}, 7, v{vLane}")
    a(f"v_xor_b32 v{vT2}, v{vT2}, v{vT1}")
    a(f"v_lshlrev_b32 v{vDX0}, 10, v{vT0}")
    a(f"v_lshl_add_u32 v{vDX0}, v{vT2}, 4, v{vDX0}")
    a(f"v_xor_b32 v{vDX1}, 64, v{vDX0}")
    a(f"v_add_u32 v{vDX1}, 8192, v{vDX1}")
    a(f"v_lshrrev_b32 v{vT0}, 2, v{vLane}")
    a(f"v_and_b32 v{vT2}, 3, v{vLane}")
    a(f"v_lshlrev_b32 v{vT2}, 4, v{vT2}")
    a(f"v_mul_u32_u24 v{vDWq}, 3072, v{vT0}")
    a(f"v_add_u32 v{vDWq}, v{vDWq}, v{vT2}")
    a(f"v_mul_u32_u24 v{vDW1}, 3584, v{vT0}")
    a(f"v_add_u32 v{vDW1}, v{vDW1}, v{vT2}")
    sLW = sGO
    a(f"s_lshl_b32 s{sLW}, s{sTG}, 10")
    a("s_waitcnt lgkmcnt(0)")
    estamp(a, 2)
    srd(a, S_X, 4, 2048 * 512 * 2)
    srd(a, S_WQ, 6, 512 * 1536 * 2)
    srd(a, S_GW, 18, 1024)

    q = []
    def vm(tag):
        q.append(tag)
    def wait_tag(tag, extra=""):
        last = max(i for i, t in enumerate(q) if t == tag)
        n = len(q) - 1 - last
        assert n < 64
        a(f"s_waitcnt vmcnt({n}){extra}")

    def dma(lds_s, lds_imm, voff, srdn, s_base, imm, extra=""):
        a(f"s_add_u32 m0, s{lds_s}, {lds_imm}")
        a(f"s_add_u32 s{sT0}, s{s_base}, {imm}")
        a(f"buffer_load_dwordx4 v{voff}, {sr(srdn,4)}, s{sT0} offen{extra} lds")

    ROT = int(os.environ.get("ROT", "1"))
    sRot, sXo, sWo = 82, 83, 78
    sWo = 25
    def issue(n):
        base = (n & 3) * 32768
        st = n if n < 8 else ((n - 4) & 7 if REUSE else n & 7)
        if n == 8 and XOOB and NODUP:
            a(f"s_cmp_ge_u32 s{sCG}, 14")
            a(f"s_cselect_b32 s{sXoff}, 0x40000000, s{sXoff}")
        xb, wb, sti = sXoff, (sWQ0 if n < 8 else sW10), st
        if ROT:
            a(f"s_add_u32 s{sT1}, s{sRot}, {st}")
            a(f"s_and_b32 s{sT1}, s{sT1}, 7")
            a(f"s_lshl_b32 s{sXo}, s{sT1}, 7")
            a(f"s_add_u32 s{sXo}, s{sXo}, s{sXoff}")
            a(f"s_mul_i32 s{sT2}, s{sT1}, {64 * (3072 if n < 8 else 3584)}")
            a(f"s_add_u32 s{sT2}, s{sT2}, s{wb}")
            xb, wb, sti = sXo, sT2, 0
        if not (REUSE and 8 <= n < 12):
            for j in range(4):
                dma(sLX, base + j * 1024, vDX0 if j % 2 == 0 else vDX1, S_X, xb, (j >> 1) * 16384 + sti * 128, NTX); vm(n)
        if n < 8:
            for t in range(3):
                dma(sLW, base + 16384 + t * 4096, vDWq, S_WQ, wb, sti * 64 * 3072 + t * 1024, NTW); vm(n)
        else:
            for t in range(4):
                dma(sLW, base + 16384 + t * 4096, vDW1, S_W1, wb, sti * 64 * 3584 + t * 64, NTW); vm(n)

    if ROT:
        a(f"s_lshr_b32 s{sRot}, s2, 3")
        a(f"s_lshr_b32 s{sT1}, s2, 6")
        a(f"s_lshl_b32 s{sT1}, s{sT1}, 1")
        a(f"s_add_u32 s{sRot}, s{sRot}, s{sT1}")
        if ROT == 2: a(f"s_and_b32 s{sRot}, s{sRot}, 3")
        if ROT == 3:
            a(f"s_bfe_u32 s{sT1}, s2, 0x10001")
            a(f"s_add_u32 s{sRot}, s{sRot}, s{sT1}")
        if ROT == 4:
            a(f"s_bfe_u32 s{sT1}, s2, 0x20001")
            a(f"s_add_u32 s{sRot}, s{sRot}, s{sT1}")
            a(f"s_and_b32 s{sT1}, s2, 1")
            a(f"s_lshl_b32 s{sT1}, s{sT1}, 2")
            a(f"s_add_u32 s{sRot}, s{sRot}, s{sT1}")
        a(f"s_and_b32 s{sRot}, s{sRot}, 7")
        a(f"s_lshl_b32 s{sT1}, s{sRot}, 7")
        a(f"v_add_u32 v10, s{sT1}, v{vL16}")
        a(f"v_and_b32 v10, 0x3ff, v10")
    estamp(a, 3)
    a(f"s_mov_b32 m0, {L_GW}")
    a("s_nop 0")
    a(f"buffer_load_dwordx4 v{10 if ROT else vL16}, {sr(S_GW,4)}, 0 offen lds"); vm(0)
    issue(0)
    estamp(a, 4)
    issue(1)
    srd(a, S_W1, 12, 512 * 1792 * 2)
    srds_rest(a)
    a(f"s_mul_i32 s{sW10}, s{sTG}, {16*3584}")
    a(f"s_lshl_b32 s{sT0}, s{sFT0}, 6")
    a(f"s_add_u32 s{sW10}, s{sW10}, s{sT0}")
    if NODUP:
        a(f"s_cmp_ge_u32 s{sCG}, 14")
        a(f"s_cselect_b32 s{sW10}, 0x40000000, s{sW10}")
    a(f"s_mov_b32 m0, {L_B1}")
    a(f"s_lshl_b32 s{sT0}, s{sFT0}, 6")
    a(f"buffer_load_dwordx4 v{vL16}, {sr(S_B1,4)}, s{sT0} offen lds"); vm(1)
    a(f"s_lshl_b32 s{sT0}, s2, 4")
    a(f"s_add_u32 s{sT0}, s{sT0}, s{sW}")
    a(f"s_cmp_eq_u32 s{sT0}, 8")
    a("s_cbranch_scc0 G_NOEP")
    a(f"s_memrealtime {sr(sEP,2)}")
    a("s_waitcnt lgkmcnt(0)")
    a(f"s_or_b32 s{sEP}, s{sEP}, 1")
    a(f"v_mov_b32 v{vEp}, s{sEP}")
    a(f"v_mov_b32 v{vEp+1}, s{sEP+1}")
    a("s_mov_b64 exec, 1")
    a(f"buffer_store_dwordx2 {vr(vEp,2)}, off, {sr(S_DBG,4)}, 0 sc1")
    a("s_mov_b64 exec, -1")
    a.label("G_NOEP")
    estamp(a, 5)
    wait_tag(0)
    estamp(a, 6)
    a("s_barrier")
    stamp(a, 2)
    estamp(a, 7)
    ORD = int(os.environ.get("ORD", "0"))
    if ORD <= 1: issue(2)
    for n in range(16):
        if n == 0 and ORD == 0:
            issue(3)
        if n == int(os.environ.get("PFW1", "99")) and "N" not in X:
            a(f"s_lshr_b32 s{sT0}, s2, 3")
            a(f"s_lshl_b32 s{sT0}, s{sT0}, 4")
            a(f"s_lshl_b32 s{sT1}, s{sGW}, 2")
            a(f"s_add_u32 s{sT0}, s{sT0}, s{sT1}")
            a(f"s_mul_i32 s{sT0}, s{sT0}, 3584")
            a(f"s_bfe_u32 s{sT1}, s2, 0x20001")
            a(f"s_lshl_b32 s{sT1}, s{sT1}, 10")
            a(f"s_add_u32 s{sT0}, s{sT0}, s{sT1}")
            a(f"v_mul_u32_u24 v16, 3584, v{vT1}")
            a(f"v_and_b32 v17, 15, v{vLane}")
            a(f"v_lshl_add_u32 v16, v17, 6, v16")
            a(f"buffer_load_dword v17, v16, {sr(S_W1,4)}, s{sT0} offen"); vm("pf")
        if n == int(os.environ.get("PFW2", "99")):
            a(f"v_lshlrev_b32 v16, 6, v{vLane}")
            a(f"s_cmp_ge_u32 s{sGW}, 2")
            a("s_cbranch_scc1 G_PFO")
            a(f"s_mul_i32 s{sT0}, s2, 7168")
            a(f"s_mul_i32 s{sT1}, s{sGW}, 3584")
            a(f"s_add_u32 s{sT0}, s{sT0}, s{sT1}")
            a(f"v_min_u32 v16, {55*64}, v16")
            a(f"buffer_load_dword v17, v16, {sr(S_W2,4)}, s{sT0} offen")
            a("s_branch G_PFD")
            a.label("G_PFO")
            a(f"s_lshl_b32 s{sT0}, s2, 11")
            a(f"v_min_u32 v16, {31*64}, v16")
            a(f"buffer_load_dword v17, v16, {sr(S_WO,4)}, s{sT0} offen")
            a.label("G_PFD")
            vm("pf2")
        if n == 4:
            a(f"buffer_load_dwordx2 {vr(vEp,2)}, off, {sr(S_DBG,4)}, 0 sc1"); vm("ep")
        if n == 10:
            wait_tag("ep")
            a(f"s_mov_b32 s{sT1}, 0")
            a.label("G_EPL")
            a(f"v_readfirstlane_b32 s{sEP}, v{vEp}")
            a(f"v_readfirstlane_b32 s{sEP+1}, v{vEp+1}")
            a(f"s_cmp_lg_u32 s{sEP}, 0")
            a("s_cbranch_scc1 G_EPD")
            a("s_sleep 4")
            a(f"buffer_load_dwordx2 {vr(vEp,2)}, off, {sr(S_DBG,4)}, 0 sc1")
            a("s_waitcnt vmcnt(0)")
            a(f"s_add_u32 s{sT1}, s{sT1}, 1")
            a(f"s_cmp_lt_u32 s{sT1}, {SPIN_MAX}")
            a("s_cbranch_scc1 G_EPL")
            a.label("G_EPD")
        if n + 1 <= 15:
            wait_tag(n + 1)
        a("s_barrier")
        if n == 0 and ORD == 2: issue(2)
        if (1 <= n or ORD >= 1) and n + 3 <= 15:
            issue(n + 3)
        if "P" in X and STAMPS:
            P0 = int(os.environ.get("P0", "8"))
            if P0 <= n + 1 < P0 + 6:
                i = n + 1 - P0 + 2
                a(f"s_memtime s[{82+2*i}:{83+2*i}]")
                a("s_waitcnt lgkmcnt(0)")
        if n + 1 == 12:
            a(f"s_cmp_eq_u32 s{sGW}, 0")
            a("s_cbranch_scc0 G_NOF1")
            a(f"s_lshl_b32 s{sT0}, s{sCG}, 7")
            a(f"s_lshl_b32 s{sT1}, s{sRB}, 3")
            a(f"s_add_u32 s{sT0}, s{sT0}, s{sT1}")
            a(f"s_add_u32 s{sT0}, s{sT0}, {WS_FKV:#x}")
            a("s_mov_b64 exec, 1")
            a(f"buffer_store_dwordx2 {vr(vEp,2)}, off, {sr(S_WS,4)}, s{sT0} sc1")
            a("s_mov_b64 exec, -1")
            a.label("G_NOF1")
    sHead, sKV, sLK, sFK, sFG, sQ = 4, 5, 6, 7, 8, 9
    sA0, sA1, sW2, sOT, sON, sI, sRing, sTT64, sNB = 10, 11, 12, 13, 14, 15, 16, 17, 18
    vL8, vF16 = 5, 6
    FL = 124
    a(f"s_and_b32 s{sT0}, s2, 7")
    a(f"s_lshl_b32 s{sHead}, s{sT0}, 2")
    a(f"s_bfe_u32 s{sT0}, s2, 0x20003")
    a(f"s_add_u32 s{sHead}, s{sHead}, s{sT0}")
    a(f"s_lshl_b32 s{sLK}, s{sGW}, 10")
    a(f"s_lshl_b32 s{sKV}, s{sHead}, 17")
    a(f"s_add_u32 s{sKV}, s{sKV}, {WS_KV:#x}")
    a(f"s_add_u32 s{sKV}, s{sKV}, s{sLK}")
    a(f"s_lshr_b32 s{sT0}, s{sHead}, 1")
    a(f"s_lshl_b32 s{sFK}, s{sT0}, 7")
    a(f"s_add_u32 s{sFK}, s{sFK}, {WS_FKV:#x}")
    a(f"s_lshr_b32 s{sT1}, s2, 5")
    a(f"s_lshl_b32 s{sQ}, s{sHead}, 16")
    a(f"s_lshl_b32 s{sT0}, s{sT1}, 13")
    a(f"s_add_u32 s{sQ}, s{sQ}, s{sT0}")
    a(f"s_add_u32 s{sQ}, s{sQ}, s{sLK}")
    a(f"s_add_u32 s{sQ}, s{sQ}, {WS_QF:#x}")
    a(f"v_lshlrev_b32 v{vL8}, 3, v{vLane}")
    a(f"v_and_b32 v{vF16}, 0x78, v{vL8}")
    stamp(a, 3)
    poll(a, [(1, FL, vF16, sFK)], sT1)
    stamp(a, 4)
    def kvdma(i):
        dma(sLK, i * 4096, vL16, S_WS, sKV, i * 4096, " sc1")
    dma(sLK, L_Q, vL16, S_WS, sQ, 0, " sc1")
    dma(sLK, L_Q + 4096, vL16, S_WS, sQ, 4096, " sc1")
    def pubflags():
        a(f"s_cmp_eq_u32 s{sGW}, 0")
        a("s_cbranch_scc0 G_NOF2")
        a(f"s_lshl_b32 s{sT0}, s{sRB}, 7")
        a(f"s_lshl_b32 s{sT1}, s{sCG}, 3")
        a(f"s_add_u32 s{sT0}, s{sT0}, s{sT1}")
        a(f"s_add_u32 s{sT0}, s{sT0}, {WS_FACT:#x}")
        a(f"s_lshr_b32 s{sT1}, s2, 5")
        a(f"s_lshl_b32 s{sT1}, s{sT1}, 8")
        a(f"s_lshl_b32 s{sT2}, s{sHead}, 3")
        a(f"s_add_u32 s{sT1}, s{sT1}, s{sT2}")
        a(f"s_add_u32 s{sT1}, s{sT1}, {WS_FO:#x}")
        a("s_mov_b64 exec, 1")
        a(f"buffer_store_dwordx2 {vr(vEp,2)}, off, {sr(S_WS,4)}, s{sT0} sc1")
        a(f"buffer_store_dwordx2 {vr(vEp,2)}, off, {sr(S_WS,4)}, s{sT1} sc1")
        a("s_mov_b64 exec, -1")
        a.label("G_NOF2")
    KV0 = int(os.environ.get("KV0", "8"))
    for i in range(KV0): kvdma(i)
    a(f"s_waitcnt vmcnt({KV0-8 if NOB2 else KV0-4})")
    a("s_barrier")
    if not STP:
        for i in range(KV0, 20): kvdma(i)
    if not NOB2:
        a(f"s_waitcnt vmcnt({KV0-8 if STP else 12})")
        a("s_barrier")
    if EARLYF and not NOB2: pubflags()
    for i in range(KV0 if STP else 20, 32): kvdma(i)
    ACC = 8
    AF = 72
    WF = 104
    vG0, vG1 = 120, 121
    vDW, vTr0, vTr1 = 7, 122, 123
    a(f"s_and_b32 s{sT0}, s2, 7")
    a(f"s_lshr_b32 s{sT1}, s2, 3")
    a(f"s_lshr_b32 s{sTT64}, s{sT0}, 1")
    a(f"s_lshl_b32 s{sTT64}, s{sTT64}, 3")
    a(f"s_and_b32 s{sT3}, s{sT1}, 7")
    a(f"s_add_u32 s{sTT64}, s{sTT64}, s{sT3}")
    a(f"s_and_b32 s{sNB}, s{sT0}, 1")
    a(f"s_lshl_b32 s{sNB}, s{sNB}, 2")
    a(f"s_lshr_b32 s{sT1}, s{sT1}, 3")
    a(f"s_add_u32 s{sNB}, s{sNB}, s{sT1}")
    a(f"s_lshr_b32 s{sT1}, s{sGW}, 1")
    a(f"s_lshl_b32 s{sOT}, s{sTT64}, 1")
    a(f"s_add_u32 s{sOT}, s{sOT}, s{sT1}")
    a(f"s_and_b32 s{sT1}, s{sGW}, 1")
    a(f"s_lshl_b32 s{sON}, s{sNB}, 1")
    a(f"s_add_u32 s{sON}, s{sON}, s{sT1}")
    a(f"s_mul_i32 s{sT3}, s{sGW}, {28*1024}")
    a(f"s_mul_i32 s{sA0}, s{sOT}, {112*1024}")
    a(f"s_add_u32 s{sA0}, s{sA0}, s{sT3}")
    a(f"s_add_u32 s{sA0}, s{sA0}, {WS_ACT:#x}")
    a(f"s_xor_b32 s{sT1}, s{sOT}, 1")
    a(f"s_mul_i32 s{sA1}, s{sT1}, {112*1024}")
    a(f"s_add_u32 s{sA1}, s{sA1}, s{sT3}")
    a(f"s_add_u32 s{sA1}, s{sA1}, {WS_ACT:#x}")
    a(f"s_mul_i32 s{sW2}, s{sGW}, {28*16384}")
    a(f"s_lshl_b32 s{sT1}, s{sNB}, 7")
    a(f"s_add_u32 s{sW2}, s{sW2}, s{sT1}")
    a(f"s_lshl_b32 s{sRing}, s{sGW}, 13")
    a(f"s_add_u32 s{sRing}, s{sRing}, {L_RING}")
    a(f"v_lshrrev_b32 v{vT0}, 3, v{vLane}")
    a(f"v_bfe_u32 v{vT1}, v{vLane}, 4, 1")
    a(f"v_lshlrev_b32 v{vT1}, 2, v{vT1}")
    a(f"v_and_b32 v{vDW}, 7, v{vLane}")
    a(f"v_xor_b32 v{vDW}, v{vDW}, v{vT1}")
    a(f"v_lshlrev_b32 v{vDW}, 4, v{vDW}")
    a(f"v_lshl_add_u32 v{vDW}, v{vT0}, 10, v{vDW}")
    a(f"v_bfe_u32 v{vT0}, v{vLane}, 2, 2")
    a(f"v_lshrrev_b32 v{vT1}, 5, v{vLane}")
    a(f"v_lshl_add_u32 v{vT0}, v{vT1}, 2, v{vT0}")
    a(f"v_lshlrev_b32 v{vTr0}, 7, v{vT0}")
    a(f"v_bfe_u32 v{vT0}, v{vLane}, 3, 1")
    a(f"v_lshl_add_u32 v{vTr0}, v{vT0}, 6, v{vTr0}")
    a(f"v_and_b32 v{vT0}, 1, v{vLane}")
    a(f"v_lshl_add_u32 v{vTr0}, v{vT0}, 5, v{vTr0}")
    a(f"v_bfe_u32 v{vT0}, v{vLane}, 4, 1")
    a(f"v_lshl_add_u32 v{vTr0}, v{vT0}, 4, v{vTr0}")
    a(f"v_bfe_u32 v{vT0}, v{vLane}, 1, 1")
    a(f"v_lshl_add_u32 v{vTr0}, v{vT0}, 3, v{vTr0}")
    a(f"s_and_b32 s{sT1}, s{sGW}, 1")
    a(f"s_lshl_b32 s{sT1}, s{sT1}, 6")
    a(f"v_xor_b32 v{vTr0}, s{sT1}, v{vTr0}")
    a(f"v_add_u32 v{vTr0}, s{sRing}, v{vTr0}")
    a(f"v_xor_b32 v{vTr1}, 64, v{vTr0}")
    a(f"s_lshr_b32 s{sFG}, s{sTT64}, 2")
    a(f"s_lshl_b32 s{sFG}, s{sFG}, 8")
    a(f"s_add_u32 s{sFG}, s{sFG}, {WS_FO:#x}")
    a(f"v_and_b32 v{vL8}, 0xf8, v{vL8}")
    a(f"s_lshr_b32 s{sFK}, s{sTT64}, 1")
    a(f"s_lshl_b32 s{sFK}, s{sFK}, 7")
    a(f"s_add_u32 s{sFK}, s{sFK}, {WS_FACT:#x}")
    a("s_waitcnt vmcnt(0)")
    a("s_barrier")
    if NOB2 or not EARLYF: pubflags()
    a(f"s_setprio {os.environ.get('GPRIO', '0')}")
    stamp(a, 5)
    poll(a, [(1, FL, vF16, sFK)], sT1)
    a(f"v_and_b32 v{vT0}, 31, v{vLane}")
    a(f"v_lshlrev_b32 v{vT0}, 2, v{vT0}")
    a(f"s_lshl_b32 s{sT0}, s{sOT}, 7")
    a(f"s_add_u32 s{sT0}, s{sT0}, {WS_G:#x}")
    a(f"s_xor_b32 s{sT1}, s{sT0}, 128")
    a(f"buffer_load_dword v{vG0}, v{vT0}, {sr(S_WS,4)}, s{sT0} offen sc1")
    a(f"buffer_load_dword v{vG1}, v{vT0}, {sr(S_WS,4)}, s{sT1} offen sc1")

    def wdma(st, srdn):
        a(f"s_add_u32 m0, s{sRing}, {st * 2048}")
        a(f"s_add_u32 s{sT0}, s{sW2}, 8192")
        a(f"buffer_load_dwordx4 v{vDW}, {sr(srdn,4)}, s{sW2} offen lds")
        a(f"s_add_u32 m0, s{sRing}, {st * 2048 + 1024}")
        a(f"s_add_u32 s{sW2}, s{sW2}, 16384")
        a(f"buffer_load_dwordx4 v{vDW}, {sr(srdn,4)}, s{sT0} offen lds")

    def group(st):
        wdma(st, S_W2)
        f = AF + 8 * st
        a(f"buffer_load_dwordx4 {vr(f,4)}, v{vL16}, {sr(S_WS,4)}, s{sA0} offen offset:{st*1024} sc1")
        a(f"buffer_load_dwordx4 {vr(f+4,4)}, v{vL16}, {sr(S_WS,4)}, s{sA1} offen offset:{st*1024} sc1")
        if st == 3:
            a(f"s_add_u32 s{sA0}, s{sA0}, 4096")
            a(f"s_add_u32 s{sA1}, s{sA1}, 4096")

    def trreads(st, w):
        for jp, vt in enumerate((vTr0, vTr1)):
            a(f"ds_read_b64_tr_b16 {vr(w+4*jp,2)}, v{vt} offset:{st*2048}")
            a(f"ds_read_b64_tr_b16 {vr(w+4*jp+2,2)}, v{vt} offset:{st*2048+1024}")

    GSP = os.environ.get("GSP", "")
    def gmfma(w, f, first, space=False):
        for ap in range(2):
            for jp in range(2):
                acc = ACC + 16 * (ap * 2 + jp)
                c = "0" if first else vr(acc, 16)
                a(f"v_mfma_f32_32x32x16_bf16 {vr(acc,16)}, {vr(w+4*jp,4)}, {vr(f+4*ap,4)}, {c}")
                if space and GSP and not (ap == 1 and jp == 1): a(GSP)

    def step(st, first, more, nwait=12):
        a(f"s_waitcnt vmcnt({nwait})")
        w = WF + 8 * (st & 1)
        trreads(st, w)
        a("s_waitcnt lgkmcnt(0)")
        gmfma(w, AF + 8 * st, first, True)
        if more:
            group(st)

    for st in range(4): group(st)
    for st in range(4): step(st, st == 0, True)
    a(f"s_mov_b32 s{sI}, 0")
    a.label("G_LOOP")
    for st in range(4): step(st, False, True)
    a(f"s_add_u32 s{sI}, s{sI}, 1")
    a(f"s_cmp_lt_u32 s{sI}, {1 if 'F' in X else 5}")
    a("s_cbranch_scc1 G_LOOP")
    for st in range(4): step(st, False, False, 12 - 4 * st)
    stamp(a, 6)
    WOR = 72
    OFR = 136
    a(f"s_lshl_b32 s{sW2}, s{sGW}, 17")
    a(f"s_lshl_b32 s{sT1}, s{sNB}, 7")
    a(f"s_add_u32 s{sW2}, s{sW2}, s{sT1}")
    for st in range(4): wdma(st, S_WO)
    a(f"v_sub_f32 v{vT0}, 1.0, v{vG0}")
    a(f"v_sub_f32 v{vT1}, 1.0, v{vG1}")
    a(f"v_mov_b32 v152, v{vTr0}")
    a(f"v_mov_b32 v153, v{vTr1}")
    vTr0, vTr1 = 152, 153
    a("s_nop 7")
    for q in range(4):
        for i in range(16):
            a(f"v_mul_f32 v{ACC+16*q+i}, v{ACC+16*q+i}, v{vT0 if q < 2 else vT1}")
    def trreads2(st, w):
        for jp, vt in enumerate((vTr0, vTr1)):
            a(f"ds_read_b64_tr_b16 {vr(w+4*jp,2)}, v{vt} offset:{st*2048}")
            a(f"ds_read_b64_tr_b16 {vr(w+4*jp+2,2)}, v{vt} offset:{st*2048+1024}")
    for ks in range(8):
        st = ks & 3
        a(f"s_waitcnt vmcnt({6 if ks < 4 else 6 - 2 * (ks - 4)})")
        trreads2(st, WOR + 8 * ks)
        if ks < 4:
            a("s_waitcnt lgkmcnt(0)")
            wdma(st, S_WO)
    FL = 156
    a(f"s_lshl_b32 s{sA0}, s{sOT}, 15")
    a(f"s_lshl_b32 s{sT3}, s{sGW}, 13")
    a(f"s_add_u32 s{sA0}, s{sA0}, s{sT3}")
    a(f"s_add_u32 s{sA0}, s{sA0}, {WS_OF:#x}")
    a(f"s_xor_b32 s{sA1}, s{sA0}, 32768")
    a(f"s_lshl_b32 s{sLK}, s{sGW}, 14")
    a(f"v_add_u32 v154, s{sLK}, v{vL16}")
    poll(a, [(1, FL, vL8, sFG)], sT1)
    a("s_mov_b64 s[22:23], -1")
    a("s_mov_b32 s19, 0")
    a("s_waitcnt lgkmcnt(0)")
    a("s_barrier")
    a("s_setprio 3")
    a("s_branch G_P3")
    a.label("G_RELOAD")
    for ks in range(8):
        dma(sLK, ks * 2048, vL16, S_WS, sA0, ks * 1024, " sc1")
        dma(sLK, ks * 2048 + 1024, vL16, S_WS, sA1, ks * 1024, " sc1")
    a("s_add_u32 s19, s19, 1")
    a(f"s_cmp_lt_u32 s19, {SPIN_MAX}")
    a("s_cselect_b64 s[22:23], -1, 0")
    a("s_setpc_b64 s[20:21]")
    a.label("G_P3")
    a("s_call_b64 s[20:21], G_RELOAD")
    def ord_(ks):
        f = OFR + 8 * (ks & 1)
        a(f"ds_read_b128 {vr(f,4)}, v154 offset:{ks*2048}")
        a(f"ds_read_b128 {vr(f+4,4)}, v154 offset:{ks*2048+1024}")
    def verify(ks):
        f = OFR + 8 * (ks & 1)
        a.label(f"G_V{ks}")
        a("s_waitcnt lgkmcnt(0)")
        a(f"v_max3_u32 v155, v{f}, v{f+1}, v{f+2}")
        a(f"v_max3_u32 v155, v155, v{f+3}, v{f+4}")
        a(f"v_max3_u32 v155, v155, v{f+5}, v{f+6}")
        a(f"v_max_u32 v155, v155, v{f+7}")
        a(f"v_cmp_eq_u32 vcc, -1, v155")
        a("s_nop 1")
        a("s_and_b64 vcc, vcc, s[22:23]")
        a(f"s_cbranch_scc0 G_OK{ks}")
        a("s_call_b64 s[20:21], G_RELOAD")
        a("s_waitcnt vmcnt(0)")
        ord_(ks)
        a(f"s_branch G_V{ks}")
        a.label(f"G_OK{ks}")
    a("s_waitcnt vmcnt(14)")
    ord_(0)
    verify(0)
    stamp(a, 7)
    for ks in range(8):
        f = OFR + 8 * (ks & 1)
        if ks < 7:
            a(f"s_waitcnt vmcnt({12 - 2 * ks})")
            ord_(ks + 1)
        gmfma(WOR + 8 * ks, f, False)
        if ks < 7:
            verify(ks + 1)
    a("s_nop 7")
    a("s_nop 7")
    for q in range(1, 4):
        a(f"s_xor_b32 s{sT0}, s{sGW}, {q}")
        a(f"s_mul_i32 s{sT0}, s{sT0}, 12288")
        a(f"s_add_u32 s{sT0}, s{sT0}, {L_EXCH}")
        a(f"v_add_u32 v{vT0}, s{sT0}, v{vL16}")
        for i in range(4):
            a(f"ds_write_b128 v{vT0}, {vr(ACC+16*q+4*i,4)} offset:{(q-1)*4096 + i*1024}")
    a(f"s_mul_i32 s{sT0}, s{sGW}, 12288")
    a(f"s_add_u32 s{sT0}, s{sT0}, {L_EXCH}")
    a(f"v_add_u32 v{vT0}, s{sT0}, v{vL16}")
    a("s_waitcnt lgkmcnt(0)")
    a("s_barrier")
    R = 72
    for q in range(3):
        for i in range(4):
            a(f"ds_read_b128 {vr(R+16*q+4*i,4)}, v{vT0} offset:{q*4096 + i*1024}")
    a(f"v_and_b32 v{vT0}, 31, v{vLane}")
    a(f"v_lshlrev_b32 v{vT0}, 10, v{vT0}")
    a(f"v_lshrrev_b32 v{vT1}, 5, v{vLane}")
    a(f"v_lshl_add_u32 v{vT0}, v{vT1}, 5, v{vT0}")
    a(f"s_lshl_b32 s{sT0}, s{sOT}, 15")
    a(f"s_lshl_b32 s{sT1}, s{sON}, 6")
    a(f"s_add_u32 s{sT0}, s{sT0}, s{sT1}")
    for q in range(3):
        a(f"s_waitcnt lgkmcnt({8 - 4 * q})")
        for i in range(16):
            a(f"v_add_f32 v{ACC+i}, v{ACC+i}, v{R+16*q+i}")
    cvt16(a, ACC)
    a(f"buffer_store_dwordx4 {vr(ACC,4)}, v{vT0}, {sr(S_OUT,4)}, s{sT0} offen{os.environ.get('OUTF','')}")
    a(f"buffer_store_dwordx4 {vr(ACC+4,4)}, v{vT0}, {sr(S_OUT,4)}, s{sT0} offen offset:16{os.environ.get('OUTF','')}")
    if STAMPS: a("s_waitcnt vmcnt(0)")
    stamp(a, 9); stamp(a, 8, True)
    stamp_flush(a)


def main():
    ref = open(f"cdna_kernels/{NAME}.s.ref").read().split("\n")
    head = [l for l in ref if l.startswith(";") and "@launch" not in l]
    a = A()
    name = gen(a)
    out = "\n".join(head) + "\n"
    if ASLIST:
        out += f"; @launch kernel={name} grid=(256,1,1) block=(768,1,1) lds={LDS_TOTAL}\n"
    else:
        out += f"; @launch grid=(256,1,1) block=(768,1,1) lds={LDS_TOTAL}\n"
    out += """;
"""
    out += '.amdgcn_target "amdgcn-amd-amdhsa--gfx950"\n'
    out += a.text()
    out += f""".section .rodata,"a"
.p2align 6
.amdhsa_kernel {name}
  .amdhsa_next_free_vgpr 168
  .amdhsa_next_free_sgpr {102 if STAMPS else 84}
  .amdhsa_accum_offset 168
  .amdhsa_group_segment_fixed_size 0
  .amdhsa_kernarg_size 88
  .amdhsa_user_sgpr_count 2
  .amdhsa_user_sgpr_kernarg_segment_ptr 1
  .amdhsa_system_sgpr_workgroup_id_x 1
.end_amdhsa_kernel
"""
    path = sys.argv[1] if len(sys.argv) > 1 else f"cdna_kernels/{NAME}.s"
    open(path, "w").write(out)
    print("wrote", path, len(out), "bytes")

main()
```

```python
import struct, sys, math, os

NAME = "gated_mix__mha_block__dense_activation_mish__prompt"
STAMPS = int(os.environ.get("STAMPS", "0"))
ASLIST = int(os.environ.get("ASLIST", "0"))
X = os.environ.get("X", "")
if not os.environ.get("PF"): X += "N"
EARLYF = int(os.environ.get("EARLYF", "1"))
REUSE = int(os.environ.get("REUSE", "1"))
DOT = int(os.environ.get("DOT", "1"))
NOB2 = int(os.environ.get("NOB2", "0"))
B3AT = int(os.environ.get("B3AT", "3"))
NTW = os.environ.get("NTW", "")
NTX = os.environ.get("NTX", "")
NTP = os.environ.get("NTP", "")
SENT0 = int(os.environ.get("SENT0", "0"))
STP = int(os.environ.get("STP", "0"))
NODUP = int(os.environ.get("NODUP", "1"))
GCOPY = int(os.environ.get("GCOPY", "1"))
XOOB = int(os.environ.get("XOOB", "1"))
SENT = int(os.environ.get("SENT", "0"))
PR1 = int(os.environ.get("PR1", "9"))
PR2 = int(os.environ.get("PR2", "13"))

def f32(x):
    return "0x%08x" % struct.unpack("<I", struct.pack("<f", x))[0]

LOG2E = math.log2(math.e)

WS_QF  = 0x0000000
WS_KV  = 0x0200000
WS_ACT = 0x0600000
WS_G   = 0x0F40000
WS_OF  = 0x1000000
WS_FKV = 0x1800000
WS_FACT = 0x1804000
WS_FO  = 0x1808000
WS_STAMP = 0x2000000
WS_SIZE = 0x10000000

L_GW = 144 * 1024
L_B1 = 145 * 1024
L_RING = 128 * 1024
L_Q = 128 * 1024
L_EXCH = 64 * 1024
LDS_TOTAL = 160 * 1024

SPIN_MAX = 200000


class A:
    def __init__(self):
        self.l = []
        self.n = 0
    def __call__(self, s):
        for line in s.strip("\n").split("\n"):
            self.l.append("    " + line.strip())
    def label(self, s):
        self.l.append(s + ":")
    def raw(self, s):
        self.l.append(s)
    def uniq(self, p):
        self.n += 1
        return f"{p}_{self.n}"
    def text(self):
        return "\n".join(self.l) + "\n"


def vr(b, n):
    return "v[%d:%d]" % (b, b + n - 1)

def sr(b, n):
    return "s[%d:%d]" % (b, b + n - 1)

def srd(a, dst, ptr, nbytes):
    a(f"s_mov_b32 s{dst}, s{ptr}")
    a(f"s_and_b32 s{dst+1}, s{ptr+1}, 0xffff")
    a(f"s_mov_b32 s{dst+2}, {nbytes:#x}")
    a(f"s_mov_b32 s{dst+3}, 0x00020000")

S_X, S_WQ, S_W1, S_WS, S_B1, S_W2, S_WO, S_GW, S_OUT, S_DBG = 28, 32, 36, 40, 44, 48, 52, 56, 60, 64
sW, sRB, sCG, sTG, sTT, sFT0 = 68, 69, 70, 71, 72, 73
sT0, sT1, sT2, sT3 = 74, 75, 76, 77
sEP = 78
vLane, vL16, vT0, vT1 = 1, 2, 3, 4

def estamp(a, i):
    if "E" in X and STAMPS:
        a(f"s_memtime s[{82+2*i}:{83+2*i}]")
        a("s_waitcnt lgkmcnt(0)")

def istamp(a, i):
    if "I" in X and STAMPS:
        a(f"s_memtime s[{82+2*i}:{83+2*i}]")
        a("s_waitcnt lgkmcnt(0)")

def stamp(a, i, real=False):
    if not STAMPS: return
    if ("E" in X or "P" in X) and 2 <= i <= 7: return
    if "I" in X and 4 <= i <= 7: return
    a(f"{'s_memrealtime' if real else 's_memtime'} s[{82+2*i}:{83+2*i}]")
    a("s_waitcnt lgkmcnt(0)")

def stamp_flush(a, n=10):
    if not STAMPS: return
    a("s_mov_b64 exec, 1")
    for i in range(n):
        a(f"v_mov_b32 v{i+1}, s{82+2*i}")
    a(f"s_lshl_b32 s80, s2, 4")
    a(f"s_add_u32 s80, s80, s{sW}")
    a(f"s_lshl_b32 s80, s80, 6")
    a(f"s_add_u32 s80, s80, {WS_STAMP:#x}")
    for i in range(n):
        a(f"buffer_store_dword v{i+1}, off, {sr(S_WS,4)}, s80 offset:{4*i}")
    if STAMPS == 2:
        L = a.uniq("NODBG")
        a(f"s_lshl_b32 s80, s2, 4")
        a(f"s_add_u32 s80, s80, s{sW}")
        a(f"s_cmp_eq_u32 s80, {77*16+8}")
        a(f"s_cbranch_scc0 {L}")
        a("v_sub_u32 v9, v9, v1")
        for i in (3, 4, 5, 6, 7, 8, 10):
            a(f"v_sub_u32 v{i}, v{i}, v2")
        for i in range(2, n):
            a(f"buffer_store_dword v{i+1}, off, {sr(S_DBG,4)}, 0 offset:{4*i}")
        a.label(L)


def mish16(a, acc, tmp, dst, cst):
    cL, c2, cm2, c1 = (vr(cst + 2 * i, 2) for i in range(4))
    for g in range(4):
        e = [vr(acc + 4 * g + 2 * i, 2) for i in range(2)]
        t = [vr(tmp + 2 * i, 2) for i in range(2)]
        u = [vr(tmp + 4 + 2 * i, 2) for i in range(2)]
        for i in range(2): a(f"v_pk_mul_f32 {t[i]}, {e[i]}, {cL}")
        for i in range(4): a(f"v_exp_f32 v{tmp+i}, v{tmp+i}")
        for i in range(2): a(f"v_pk_add_f32 {u[i]}, {t[i]}, {c2}")
        for i in range(2): a(f"v_pk_fma_f32 {u[i]}, {t[i]}, {u[i]}, {c2}")
        for i in range(4): a(f"v_rcp_f32 v{tmp+4+i}, v{tmp+4+i}")
        for i in range(2): a(f"v_pk_fma_f32 {u[i]}, {u[i]}, {cm2}, {c1}")
        for i in range(2): a(f"v_pk_mul_f32 {u[i]}, {u[i]}, {e[i]}")
        a(f"v_cvt_pk_bf16_f32 v{dst + 2 * g}, v{tmp+4}, v{tmp+5}")
        a(f"v_cvt_pk_bf16_f32 v{dst + 2 * g + 1}, v{tmp+6}, v{tmp+7}")

def cvt16(a, acc):
    for i in range(8):
        a(f"v_cvt_pk_bf16_f32 v{acc + i}, v{acc + 2 * i}, v{acc + 2 * i + 1}")

def flag_store(a, soff, vtmp, cnt):
    L = a.uniq("NOFLAG")
    if cnt is None:
        a(f"v_mov_b32 v{vtmp}, s{sEP}")
        a(f"v_mov_b32 v{vtmp+1}, s{sEP+1}")
        a("s_mov_b64 exec, 1")
        a(f"buffer_store_dwordx2 {vr(vtmp,2)}, off, {sr(S_WS,4)}, s{soff} sc1")
        a("s_mov_b64 exec, -1")
        return
    a("s_mov_b64 exec, 1")
    a(f"v_mov_b32 v{vtmp}, {cnt}")
    a(f"v_mov_b32 v{vtmp+1}, 1")
    a(f"ds_add_rtn_u32 v{vtmp}, v{vtmp}, v{vtmp+1}")
    a("s_waitcnt lgkmcnt(0)")
    a(f"v_readfirstlane_b32 s{sT3}, v{vtmp}")
    a(f"v_mov_b32 v{vtmp}, s{sEP}")
    a(f"v_mov_b32 v{vtmp+1}, s{sEP+1}")
    a(f"s_cmp_eq_u32 s{sT3}, 7")
    a(f"s_cbranch_scc0 {L}")
    a(f"buffer_store_dwordx2 {vr(vtmp,2)}, off, {sr(S_WS,4)}, s{soff} sc1")
    a.label(L)
    a("s_mov_b64 exec, -1")

def poll(a, loads, scnt):
    L = a.uniq("POLL"); D = a.uniq("POLLD")
    a(f"s_mov_b32 s{scnt}, 0")
    a.label(L)
    for nf, vd, vo, so in loads:
        op = "buffer_load_dwordx4" if nf == 2 else "buffer_load_dwordx2"
        a(f"{op} {vr(vd, 2*nf)}, v{vo}, {sr(S_WS,4)}, s{so} offen sc1")
    a("s_waitcnt vmcnt(0)")
    first = True
    for nf, vd, vo, so in loads:
        for k in range(nf):
            if first:
                a(f"v_cmp_ne_u64 vcc, {sr(sEP,2)}, {vr(vd+2*k,2)}")
                first = False
            else:
                a(f"v_cmp_ne_u64 {sr(sT2,2)}, {sr(sEP,2)}, {vr(vd+2*k,2)}")
                a("s_nop 1")
                a(f"s_or_b64 vcc, vcc, {sr(sT2,2)}")
    a("s_nop 1")
    a("s_cmp_eq_u64 vcc, 0")
    a(f"s_cbranch_scc1 {D}")
    a("s_sleep 4")
    a(f"s_add_u32 s{scnt}, s{scnt}, 1")
    a(f"s_cmp_lt_u32 s{scnt}, {SPIN_MAX}")
    a(f"s_cbranch_scc1 {L}")
    a.label(D)


def gen(a):
    name = NAME + "_kernel"
    a.raw(".text")
    a.raw(f".globl {name}")
    a.raw(".p2align 8")
    a.raw(f".type {name},@function")
    a.label(name)
    a("s_cmp_ge_u32 s2, 256")
    a("s_cbranch_scc1 K_END")
    stamp(a, 0, True); stamp(a, 1)
    a("s_load_dwordx16 s[4:19], s[0:1], 0")
    a("s_load_dwordx4 s[20:23], s[0:1], 64")
    a("s_load_dwordx2 s[24:25], s[0:1], 80")
    a(f"v_and_b32 v{vLane}, 63, v0")
    a(f"v_lshrrev_b32 v{vT0}, 6, v0")
    a(f"v_lshlrev_b32 v{vL16}, 4, v{vLane}")
    a(f"v_readfirstlane_b32 s{sW}, v{vT0}")
    if "C" not in X:
        a(f"v_lshlrev_b32 v{vT0}, 6, v0")
        a(f"s_cmp_ge_u32 s{sW}, 4")
        a("s_cbranch_scc1 K_NOPC")
        a(f"s_getpc_b64 {sr(sT0,2)}")
        a.label("K_PC")
        a(f"v_min_u32 v{vT0}, K_END-K_PC, v{vT0}")
        a(f"global_load_dword v12, v{vT0}, {sr(sT0,2)}")
        a.label("K_NOPC")
    a(f"s_and_b32 s{sT0}, s2, 7")
    a(f"s_lshr_b32 s{sT1}, s2, 3")
    if os.environ.get("TILE48"):
        a(f"s_and_b32 s{sRB}, s{sT0}, 3")
        a(f"s_lshl_b32 s{sRB}, s{sRB}, 2")
        a(f"s_and_b32 s{sT2}, s{sT1}, 3")
        a(f"s_add_u32 s{sRB}, s{sRB}, s{sT2}")
        a(f"s_lshr_b32 s{sCG}, s{sT0}, 2")
        a(f"s_lshl_b32 s{sCG}, s{sCG}, 3")
        a(f"s_lshr_b32 s{sT2}, s{sT1}, 2")
        a(f"s_add_u32 s{sCG}, s{sCG}, s{sT2}")
    else:
        a(f"s_and_b32 s{sRB}, s{sT0}, 1")
        a(f"s_lshl_b32 s{sRB}, s{sRB}, 3")
        a(f"s_and_b32 s{sT2}, s{sT1}, 7")
        a(f"s_add_u32 s{sRB}, s{sRB}, s{sT2}")
        a(f"s_lshr_b32 s{sCG}, s{sT0}, 1")
        a(f"s_lshl_b32 s{sCG}, s{sCG}, 2")
        a(f"s_lshr_b32 s{sT2}, s{sT1}, 3")
        a(f"s_add_u32 s{sCG}, s{sCG}, s{sT2}")
    a(f"s_and_b32 s{sTG}, s{sW}, 3")
    a(f"s_lshl_b32 s{sTT}, s{sRB}, 2")
    a(f"s_add_u32 s{sTT}, s{sTT}, s{sTG}")
    a(f"s_sub_u32 s{sT0}, s{sCG}, 2")
    a(f"s_cmp_ge_u32 s{sCG}, 14")
    a(f"s_cselect_b32 s{sFT0}, s{sT0}, s{sCG}")
    a(f"s_lshl_b32 s{sFT0}, s{sFT0}, 2")
    a(f"s_cmp_ge_u32 s{sW}, 8")
    a("s_cbranch_scc1 G_START")
    if "N" not in X:
        a(f"s_cmp_ge_u32 s{sW}, 6")
        a("s_cbranch_scc1 A_START")
        a(f"s_cmp_ge_u32 s{sW}, 4")
        a("s_cbranch_scc1 A_PF1")
        a(f"s_bitcmp1_b32 s{sW}, 0")
        a("s_cbranch_scc1 A_PFQ")
        a(f"s_lshl_b32 s{sT0}, s2, 13")
        a(f"s_lshl_b32 s{sT1}, s{sW}, 8")
        a(f"s_add_u32 s{sT0}, s{sT0}, s{sT1}")
        a(f"v_lshrrev_b32 v{vT0}, 3, v{vLane}")
        a(f"v_lshlrev_b32 v{vT0}, 10, v{vT0}")
        a(f"v_and_b32 v{vT1}, 7, v{vLane}")
        a(f"v_lshl_add_u32 v{vT0}, v{vT1}, 6, v{vT0}")
        a("s_waitcnt lgkmcnt(0)")
        srd(a, S_X, 4, 2048 * 512 * 2)
        a(f"buffer_load_dword v12, v{vT0}, {sr(S_X,4)}, s{sT0} offen{NTP}")
        a("s_branch A_START")
        a.label("A_PFQ")
        a(f"s_lshr_b32 s{sT1}, s{sW}, 1")
        a(f"s_lshl_b32 s{sT1}, s{sT1}, 8")
        a(f"s_add_u32 s{sT0}, s2, s{sT1}")
        a(f"s_mul_i32 s{sT0}, s{sT0}, 3072")
        a(f"v_min_u32 v{vT0}, 47, v{vLane}")
        a(f"v_lshlrev_b32 v{vT0}, 6, v{vT0}")
        a("s_waitcnt lgkmcnt(0)")
        srd(a, S_WQ, 6, 512 * 1536 * 2)
        a(f"buffer_load_dword v12, v{vT0}, {sr(S_WQ,4)}, s{sT0} offen{NTP}")
        a("s_branch A_START")
        a.label("A_PF1")
        a(f"s_and_b32 s{sT1}, s{sW}, 1")
        a(f"s_lshl_b32 s{sT1}, s{sT1}, 8")
        a(f"s_add_u32 s{sT0}, s2, s{sT1}")
        a(f"s_mul_i32 s{sT0}, s{sT0}, 3584")
        a(f"v_min_u32 v{vT0}, 55, v{vLane}")
        a(f"v_lshlrev_b32 v{vT0}, 6, v{vT0}")
        a("s_waitcnt lgkmcnt(0)")
        srd(a, S_W1, 12, 512 * 1792 * 2)
        if os.environ.get("PFSL"): a(f"s_sleep {os.environ['PFSL']}")
        a(f"buffer_load_dword v12, v{vT0}, {sr(S_W1,4)}, s{sT0} offen{NTP}")
        a("s_branch A_START")
    if "N" in X: a("s_branch A_START")
    a.label("G_START")
    gen_G(a)
    a("s_endpgm")
    gen_A(a)
    a.label("K_END")
    a("s_endpgm")
    return name

def srds_rest(a):
    srd(a, S_WS, 24, WS_SIZE)
    srd(a, S_B1, 14, 1792 * 2)
    srd(a, S_W2, 16, 1792 * 512 * 2)
    srd(a, S_WO, 8, 512 * 512 * 2)
    srd(a, S_OUT, 20, 2048 * 512 * 2)
    srd(a, S_DBG, 22, 256)


def gen_A(a):
    a.label("A_START")
    vXrd, vW0, vW1, vT2 = 5, 9, 10, 11
    FA, FB = 16, 28
    ACC = 64
    BIAS = 96
    PK = 128
    TMP = 16
    sN, sD = 26, 27
    a(f"s_lshl_b32 s{sT0}, s{sTG}, 12")
    a(f"v_and_b32 v{vT0}, 31, v{vLane}")
    a(f"v_lshrrev_b32 v{vT1}, 5, v{vLane}")
    a(f"v_bfe_u32 v{vT2}, v{vLane}, 1, 3")
    a(f"v_xor_b32 v{vT2}, v{vT2}, v{vT1}")
    a(f"v_lshlrev_b32 v{vT0}, 7, v{vT0}")
    a(f"v_add_u32 v{vT0}, s{sT0}, v{vT0}")
    for ks in range(4):
        a(f"v_xor_b32 v{vXrd+ks}, {2*ks}, v{vT2}")
        a(f"v_lshl_add_u32 v{vXrd+ks}, v{vXrd+ks}, 4, v{vT0}")
    a(f"v_bfe_u32 v{vT0}, v{vLane}, 2, 2")
    a(f"v_lshl_add_u32 v{vT0}, v{vT1}, 3, v{vT0}")
    a(f"v_lshlrev_b32 v{vW0}, 6, v{vT0}")
    a(f"v_bfe_u32 v{vT0}, v{vLane}, 4, 1")
    a(f"v_lshl_add_u32 v{vW0}, v{vT0}, 5, v{vW0}")
    a(f"v_and_b32 v{vT0}, 3, v{vLane}")
    a(f"v_lshl_add_u32 v{vW0}, v{vT0}, 3, v{vW0}")
    a(f"s_lshr_b32 s{sT0}, s{sW}, 2")
    a(f"s_lshl_b32 s{sT0}, s{sT0}, 13")
    a(f"s_add_u32 s{sT0}, s{sT0}, 16384")
    a(f"v_add_u32 v{vW0}, s{sT0}, v{vW0}")
    a(f"v_lshlrev_b32 v{vW1}, 4, v{vT1}")
    a(f"v_add_u32 v{vW1}, {L_GW}, v{vW1}")
    a(f"v_lshlrev_b32 v{vT2}, 3, v{vT1}")
    a(f"s_lshr_b32 s{sT0}, s{sW}, 2")
    a(f"s_lshl_b32 s{sT0}, s{sT0}, 7")
    a(f"s_add_u32 s{sT0}, s{sT0}, {L_B1}")
    a(f"v_add_u32 v{vT2}, s{sT0}, v{vT2}")
    for i in range(32):
        a(f"v_mov_b32 v{ACC+i}, 0")
    a(f"v_and_b32 v13, 27, v{vLane}")
    a(f"v_cmp_eq_u32 vcc, 16, v13")
    a(f"v_mov_b32 v14, 0x3f803f80")
    a("s_nop 0")
    a(f"v_cndmask_b32 v13, 0, v14, vcc")
    for i in range(16):
        a(f"v_mov_b32 v{112+i}, v13")
    for i in range(16):
        a(f"v_mov_b32 v{152+i}, 0")
    for i, c in enumerate((LOG2E, 2.0, -2.0, 1.0)):
        a(f"v_mov_b32 v{144+2*i}, {f32(c)}")
        a(f"v_mov_b32 v{145+2*i}, {f32(c)}")
    a(f"s_mov_b32 s{sN}, 0")
    a("s_waitcnt lgkmcnt(0)")
    srds_rest(a)
    if SENT0:
        a(f"s_and_b32 s{sT0}, s2, 7")
        a(f"s_lshl_b32 s{sT1}, s{sT0}, 2")
        a(f"s_bfe_u32 s{sT0}, s2, 0x20003")
        a(f"s_add_u32 s{sT1}, s{sT1}, s{sT0}")
        a(f"s_lshr_b32 s{sT0}, s2, 5")
        a(f"s_lshl_b32 s{sT0}, s{sT0}, 3")
        a(f"s_add_u32 s{sT0}, s{sT0}, s{sW}")
        a(f"s_lshl_b32 s{sT0}, s{sT0}, 15")
        a(f"s_lshl_b32 s{sT1}, s{sT1}, 10")
        a(f"s_add_u32 s{sT0}, s{sT0}, s{sT1}")
        a(f"s_add_u32 s{sT0}, s{sT0}, {WS_OF:#x}")
        for i in range(4):
            a(f"v_mov_b32 v{104+i}, -1")
        a(f"buffer_store_dwordx4 {vr(104,4)}, v{vL16}, {sr(S_WS,4)}, s{sT0} offen sc1")
    estamp(a, 3)
    a("s_barrier")
    stamp(a, 2)
    estamp(a, 6)

    def reads(ks, F, par, gate=False, only1=False):
        if "R" in X: return
        if not only1:
            a(f"ds_read_b128 {vr(F,4)}, v{vXrd+ks} offset:{par*32768}")
        for t in range(2):
            if only1 and t == 0: continue
            if gate and t == 1:
                a(f"ds_read_b128 {vr(F+8,4)}, v{vW1} offset:{(par*4+ks)*32}")
                continue
            a(f"ds_read_b64_tr_b16 {vr(F+4+4*t,2)}, v{vW0} offset:{par*32768+t*4096+ks*1024}")
            a(f"ds_read_b64_tr_b16 {vr(F+4+4*t+2,2)}, v{vW0} offset:{par*32768+t*4096+ks*1024+256}")

    def mfmas(F, swap0):
        if "M" in X: return
        for t in range(2):
            acc = ACC + 16 * t
            if swap0 and t == 0:
                a(f"v_mfma_f32_32x32x16_bf16 {vr(acc,16)}, {vr(F,4)}, {vr(F+4+4*t,4)}, {vr(acc,16)}")
            elif swap0 and DOT:
                for i in range(4):
                    a(f"v_dot2_f32_bf16 v{acc}, v{F+i}, v{F+8+i}, v{acc}")
            else:
                a(f"v_mfma_f32_32x32x16_bf16 {vr(acc,16)}, {vr(F+4+4*t,4)}, {vr(F,4)}, {vr(acc,16)}")

    FS = [16 + 12 * i for i in range(4)]
    def loop(lab, swap0):
        nr = 4 if swap0 else 5
        a.raw(".p2align 3")
        a.label(lab)
        for par in range(2):
            for j in range(4):
                a(f"s_waitcnt lgkmcnt({2*nr})")
                if j == 1:
                    if par == 1:
                        for k in range(4):
                            a(f"v_xor_b32 v{vXrd+k}, s{sT3}, v{vXrd+k}")
                        a(f"v_xor_b32 v{vW0}, s{sT3}, v{vW0}")
                        if swap0:
                            a(f"v_add_u32 v{vW1}, s{sD}, v{vW1}")
                        else:
                            L = a.uniq("A_NOVM")
                            a(f"s_cmp_eq_u32 s{sN}, 12")
                            a(f"s_cbranch_scc0 {L}")
                            a("s_waitcnt vmcnt(0)")
                            a.label(L)
                    a("s_barrier")
                elif j == 0 and par == 0:
                    a(f"s_add_u32 s{sN}, s{sN}, 2")
                elif j == 3 and par == 1:
                    a(f"s_and_b32 s{sT0}, s{sN}, 7")
                else:
                    a("s_nop 0")
                jj = j + 3
                reads(jj & 3, FS[jj & 3], par if jj < 4 else 1 - par, swap0)
                mfmas(FS[j], swap0)
        a(f"s_cbranch_scc1 {lab}")

    istamp(a, 4)
    a(f"s_mov_b32 s{sT3}, 65536")
    a(f"s_movk_i32 s{sD}, 256")
    a(f"s_cmp_ge_u32 s{sW}, 4")
    a("s_cbranch_scc1 A_L2P")
    for ks in range(3):
        reads(ks, FS[ks], 0)
    loop("A_L1", False)
    a(f"s_cmp_eq_u32 s{sN}, 16")
    a("s_cbranch_scc1 A_MISH")
    stamp(a, 3)
    a("s_waitcnt lgkmcnt(7)")
    for g in range(8):
        a(f"ds_read_b64 {vr(BIAS + 2 * g, 2)}, v{vT2} offset:{g*16}")
    a(f"v_and_b32 v{vT0}, 0x33, v{vLane}")
    a(f"v_bfe_u32 v{vT1}, v{vLane}, 2, 1")
    a(f"v_lshl_add_u32 v{vT0}, v{vT1}, 3, v{vT0}")
    a(f"v_bfe_u32 v{vT1}, v{vLane}, 3, 1")
    a(f"v_lshl_add_u32 v{vT0}, v{vT1}, 2, v{vT0}")
    a(f"v_lshlrev_b32 v{vT0}, 4, v{vT0}")
    a(f"s_lshl_b32 s4, s{sCG}, 17")
    a(f"s_lshl_b32 s5, s{sTT}, 10")
    a(f"s_add_u32 s4, s4, s5")
    a(f"s_lshl_b32 s6, s4, 1")
    a(f"s_add_u32 s4, s4, {WS_QF:#x}")
    a(f"s_add_u32 s5, s4, 65536")
    a(f"s_add_u32 s6, s6, {WS_KV:#x}")
    a(f"s_add_u32 s7, s6, 131072")
    a(f"s_mov_b32 s8, {f32(0.25 * LOG2E)}")
    a(f"s_mov_b32 s9, {f32(0.25 * LOG2E)}")
    for i in range(8):
        a(f"v_pk_mul_f32 {vr(ACC+2*i,2)}, {vr(ACC+2*i,2)}, s[8:9]")
    for i in range(16):
        a(f"v_cvt_pk_bf16_f32 v{PK + i}, v{ACC + 2 * i}, v{ACC + 2 * i + 1}")
    istamp(a, 5)
    a(f"buffer_store_dwordx4 {vr(PK+8,4)}, v{vT0}, {sr(S_WS,4)}, s6 offen sc1")
    a(f"buffer_store_dwordx4 {vr(PK+12,4)}, v{vT0}, {sr(S_WS,4)}, s7 offen sc1")
    a(f"buffer_store_dwordx4 {vr(PK,4)}, v{vL16}, {sr(S_WS,4)}, s4 offen sc1")
    a(f"buffer_store_dwordx4 {vr(PK+4,4)}, v{vL16}, {sr(S_WS,4)}, s5 offen sc1")
    a.label("A_BIAS")
    a("s_waitcnt lgkmcnt(0)")
    istamp(a, 6)
    for g in range(8):
        b = ACC + 4 * g
        a(f"v_lshlrev_b32 v{b}, 16, v{BIAS+2*g}")
        a(f"v_and_b32 v{b+1}, 0xffff0000, v{BIAS+2*g}")
        a(f"v_lshlrev_b32 v{b+2}, 16, v{BIAS+2*g+1}")
        a(f"v_and_b32 v{b+3}, 0xffff0000, v{BIAS+2*g+1}")
    istamp(a, 7)
    a("s_branch A_L1")
    a.label("A_L2P")
    for ks in range(3):
        reads(ks, FS[ks], 0, True)
    loop("A_L2", True)
    a("s_waitcnt lgkmcnt(0)")
    for ks in range(3):
        reads(ks, FS[ks], 0, False, True)
    stamp(a, 3)
    a("s_waitcnt lgkmcnt(7)")
    for g in range(8):
        a(f"ds_read_b64 {vr(BIAS + 2 * g, 2)}, v{vT2} offset:{g*16}")
    a(f"v_and_b32 v{vT0}, 0x2f, v{vLane}")
    a(f"v_lshlrev_b32 v{vT0}, 4, v{vT0}")
    a(f"v_bfe_u32 v{vT1}, v{vLane}, 4, 1")
    a(f"v_lshl_add_u32 v{vT0}, v{vT1}, 17, v{vT0}")
    a(f"s_lshl_b32 s4, s{sCG}, 18")
    a(f"s_lshl_b32 s5, s{sTT}, 11")
    a(f"s_add_u32 s4, s4, s5")
    a(f"s_add_u32 s4, s4, {WS_KV:#x}")
    a(f"s_lshl_b32 s5, s{sTT}, 7")
    a(f"s_add_u32 s5, s5, {WS_G:#x}")
    if GCOPY:
        a(f"s_lshl_b32 s6, s{sCG}, 13")
        a(f"s_add_u32 s5, s5, s6")
    a(f"v_lshlrev_b32 v{vT1}, 2, v{vLane}")
    if DOT: a(f"v_mov_b32 v{ACC+17}, v{ACC+16}")
    for i in range(8):
        a(f"v_cvt_pk_bf16_f32 v{PK + i}, v{ACC + 2 * i}, v{ACC + 2 * i + 1}")
    if DOT:
        a(f"v_permlane32_swap_b32 v{ACC+16}, v{ACC+17}")
        a("s_nop 1")
        a(f"v_add_f32 v{ACC+16}, v{ACC+16}, v{ACC+17}")
    a(f"v_mul_f32 v{PK+8}, {f32(-LOG2E)}, v{ACC+16}")
    a(f"v_exp_f32 v{PK+8}, v{PK+8}")
    a(f"buffer_store_dwordx4 {vr(PK,4)}, v{vT0}, {sr(S_WS,4)}, s4 offen offset:1024 sc1")
    a(f"v_add_f32 v{PK+8}, 1.0, v{PK+8}")
    a(f"v_rcp_f32 v{PK+8}, v{PK+8}")
    a(f"buffer_store_dwordx4 {vr(PK+4,4)}, v{vT0}, {sr(S_WS,4)}, s4 offen offset:1280 sc1")
    a("s_mov_b32 exec_hi, 0")
    a(f"buffer_store_dword v{PK+8}, v{vT1}, {sr(S_WS,4)}, s5 offen sc1")
    a("s_mov_b64 exec, -1")
    a("s_waitcnt lgkmcnt(0)")
    a("s_branch A_BIAS")
    a.label("A_MISH")
    stamp(a, 4)
    a(f"s_mul_i32 s13, s{sTT}, 112")
    a(f"s_lshl_b32 s{sT1}, s{sFT0}, 1")
    a(f"s_add_u32 s13, s13, s{sT1}")
    a(f"s_lshr_b32 s{sT1}, s{sW}, 2")
    a(f"s_lshl_b32 s{sT1}, s{sT1}, 2")
    a(f"s_add_u32 s13, s13, s{sT1}")
    a(f"s_lshl_b32 s13, s13, 10")
    a(f"s_add_u32 s13, s13, {WS_ACT:#x}")
    if NODUP:
        a(f"s_cmp_ge_u32 s{sCG}, 14")
        a(f"s_cselect_b32 s13, 0x40000000, s13")
    a("s_waitcnt lgkmcnt(0)")
    a("s_nop 3")
    mish16(a, ACC, TMP, 128, 144)
    if not STP: a(f"buffer_store_dwordx4 {vr(128,4)}, v{vL16}, {sr(S_WS,4)}, s13 offen sc1")
    if not STP: a(f"buffer_store_dwordx4 {vr(132,4)}, v{vL16}, {sr(S_WS,4)}, s13 offen offset:1024 sc1")
    mish16(a, ACC + 16, TMP, 136, 144)
    if not STP: a(f"buffer_store_dwordx4 {vr(136,4)}, v{vL16}, {sr(S_WS,4)}, s13 offen offset:2048 sc1")
    if not STP: a(f"buffer_store_dwordx4 {vr(140,4)}, v{vL16}, {sr(S_WS,4)}, s13 offen offset:3072 sc1")

    a.label("A_PH2")
    sHead, sQT, sI, sB1, sB2, sPass = 4, 5, 6, 7, 8, 9
    sMask = 10
    vAddr, vIdx, vG = 5, 6, 7
    Q = 8
    KB = [12, 16]
    VB = [112, 120]
    S = [36, 52]
    C = 68
    O = 152
    vFl = 100
    a(f"s_and_b32 s{sT0}, s2, 7")
    a(f"s_lshl_b32 s{sHead}, s{sT0}, 2")
    a(f"s_bfe_u32 s{sT0}, s2, 0x20003")
    a(f"s_add_u32 s{sHead}, s{sHead}, s{sT0}")
    a(f"s_lshr_b32 s{sQT}, s2, 5")
    a(f"s_lshl_b32 s{sQT}, s{sQT}, 3")
    a(f"s_add_u32 s{sQT}, s{sQT}, s{sW}")
    a(f"v_mov_b32 v{vIdx}, 0xdddddddd")
    a(f"s_mov_b32 s{sMask}, 0x0000ffff")
    a(f"s_mov_b32 s{sMask+1}, 0x0000ffff")
    a(f"v_mov_b32 v{vAddr}, v{vL16}")
    a(f"s_mov_b32 s{sB1}, {B3AT if NOB2 else 1}")
    a(f"s_mov_b32 s{sPass}, 0")
    a(f"s_lshl_b32 s{sT0}, s{sW}, 10")
    a(f"s_add_u32 s{sT0}, s{sT0}, {L_Q}")
    a(f"v_add_u32 v{vT1}, s{sT0}, v{vL16}")
    a(f"s_lshl_b32 s12, s{sQT}, 15")
    a(f"s_lshl_b32 s{sT1}, s{sHead}, 10")
    a(f"s_add_u32 s12, s12, s{sT1}")
    a(f"s_add_u32 s12, s12, {WS_OF:#x}")
    if not SENT0 and SENT:
        for i in range(4):
            a(f"v_mov_b32 v{104+i}, -1")
        if not STP: a(f"buffer_store_dwordx4 {vr(104,4)}, v{vL16}, {sr(S_WS,4)}, s12 offen sc1")
    a("s_setprio 2")
    stamp(a, 5)
    a("s_barrier")
    stamp(a, 6)
    a(f"ds_read_b128 {vr(Q,4)}, v{vT1}")
    a(f"ds_read_b128 {vr(KB[0],4)}, v{vAddr} offset:0")
    if STP:
        for i in range(4):
            a(f"buffer_store_dwordx4 {vr(128+4*i,4)}, v{vL16}, {sr(S_WS,4)}, s13 offen offset:{i*1024} sc1")
        if not SENT0: a(f"buffer_store_dwordx4 {vr(104,4)}, v{vL16}, {sr(S_WS,4)}, s12 offen sc1")
    a("s_waitcnt lgkmcnt(0)")
    a(f"v_mfma_f32_32x32x16_bf16 {vr(S[0],16)}, {vr(KB[0],4)}, {vr(Q,4)}, 0")
    a("s_nop 7")
    a("s_nop 7")
    s0 = S[0]
    a(f"v_max3_f32 v{vT0}, v{s0}, v{s0+1}, v{s0+2}")
    for i in range(3, 15, 2):
        a(f"v_max3_f32 v{vT0}, v{vT0}, v{s0+i}, v{s0+i+1}")
    a(f"v_max_f32 v{vT0}, v{vT0}, v{s0+15}")
    a.label("A_SETMAX")
    a(f"v_mov_b32 v{vT1}, v{vT0}")
    a("s_nop 1")
    a(f"v_permlane32_swap_b32 v{vT0}, v{vT1}")
    a("s_nop 1")
    a(f"v_max_f32 v{vT0}, v{vT0}, v{vT1}")
    for i in range(16):
        a(f"v_sub_f32 v{C+i}, 0, v{vT0}")
    a(f"ds_read_b128 {vr(KB[0],4)}, v{vAddr} offset:0")
    a(f"ds_read_b128 {vr(KB[1],4)}, v{vAddr} offset:2048")
    a(f"s_mov_b64 exec, {sr(sMask,2)}")
    a(f"ds_read_b128 {vr(VB[0],4)}, v{vAddr} offset:1024")
    a(f"ds_read_b128 {vr(VB[0]+4,4)}, v{vAddr} offset:1280")
    a("s_mov_b64 exec, -1")
    a("s_waitcnt lgkmcnt(0)")
    a(f"v_mfma_f32_32x32x16_bf16 {vr(S[0],16)}, {vr(KB[0],4)}, {vr(Q,4)}, {'0' if 'Z' in X else vr(C,16)}")
    a(f"s_mov_b32 s{sI}, 0")
    for i in range(8, 16):
        a(f"v_mov_b32 v{S[1]+i}, 0")
    a("s_nop 7")
    a.raw(".p2align 6")
    a.label("A_LOOP")
    for u in range(4):
        p = u & 1
        cur, nxt = S[p], S[1 - p]
        def E(lo, hi):
            for i in range(lo, hi):
                a(f"v_exp_f32 v{cur+i}, v{cur+i}")
        E(0, 2)
        a(f"v_smfmac_f32_32x32x32_bf16 {vr(O,16)}, {vr(VB[1-p]+4,4)}, {vr(nxt+8,8)}, v{vIdx}")
        E(2, 7)
        a("s_waitcnt lgkmcnt(0)")
        a(f"v_mfma_f32_32x32x16_bf16 {vr(nxt,16)}, {vr(KB[1-p],4)}, {vr(Q,4)}, {'0' if 'Z' in X else vr(C,16)}")
        a(f"ds_read_b128 {vr(KB[p],4)}, v{vAddr} offset:{(u+2)*2048}")
        E(7, 8)
        a(f"s_mov_b64 exec, {sr(sMask,2)}")
        a(f"ds_read_b128 {vr(VB[1-p],4)}, v{vAddr} offset:{(u+1)*2048+1024}")
        a(f"ds_read_b128 {vr(VB[1-p]+4,4)}, v{vAddr} offset:{(u+1)*2048+1280}")
        a("s_mov_b64 exec, -1")
        E(8, 13)
        a(f"v_smfmac_f32_32x32x32_bf16 {vr(O,16)}, {vr(VB[p],4)}, {vr(cur,8)}, v{vIdx}")
        if u == 3:
            a(f"v_add_u32 v{vAddr}, 8192, v{vAddr}")
            E(13, 16)
            a(f"s_add_u32 s{sI}, s{sI}, 1")
            a(f"s_cmp_lt_u32 s{sI}, s{sB1}")
        else:
            a(f"v_exp_f32_e64 v{cur+13}, v{cur+13}")
            E(14, 16)
    a("s_cbranch_scc1 A_LOOP")
    a(f"s_cmp_eq_u32 s{sI}, 1")
    a("s_cbranch_scc0 A_SEG2")
    a(f"s_mov_b32 s{sB1}, 3")
    if EARLYF: a("s_waitcnt vmcnt(0)")
    a("s_barrier")
    a("s_branch A_LOOP")
    a.label("A_SEG2")
    a(f"s_cmp_eq_u32 s{sI}, {B3AT if NOB2 else 3}")
    a("s_cbranch_scc0 A_SEG3")
    a(f"s_mov_b32 s{sB1}, {PR1}")
    a("s_waitcnt vmcnt(0)")
    a("s_barrier")
    a("s_branch A_LOOP")
    a.label("A_SEG3")
    a(f"s_cmp_eq_u32 s{sI}, {PR1}")
    a("s_cbranch_scc0 A_SEG4")
    a(f"s_mov_b32 s{sB1}, {PR2}")
    a("s_setprio 1")
    a(f"v_and_b32 v{vT0}, 31, v{vLane}")
    a(f"v_lshlrev_b32 v{vT0}, 2, v{vT0}")
    a(f"s_lshl_b32 s{sT0}, s{sQT}, 7")
    a(f"s_add_u32 s{sT0}, s{sT0}, {WS_G:#x}")
    if GCOPY:
        a(f"s_lshr_b32 s{sT1}, s{sHead}, 1")
        a(f"s_lshl_b32 s{sT1}, s{sT1}, 13")
        a(f"s_add_u32 s{sT0}, s{sT0}, s{sT1}")
    a(f"buffer_load_dword v{vG}, v{vT0}, {sr(S_WS,4)}, s{sT0} offen sc1")
    if not SENT: a(f"buffer_load_dwordx2 {vr(vFl,2)}, off, {sr(S_DBG,4)}, 0 sc1")
    a("s_branch A_LOOP")
    a.label("A_SEG4")
    a(f"s_cmp_eq_u32 s{sI}, {PR2}")
    a("s_cbranch_scc0 A_SEG5")
    a(f"s_mov_b32 s{sB1}, 16")
    a("s_setprio 0")
    a("s_branch A_LOOP")
    a.label("A_SEG5")
    a(f"v_smfmac_f32_32x32x32_bf16 {vr(O,16)}, {vr(VB[1]+4,4)}, {vr(S[1]+8,8)}, v{vIdx}")
    a("s_waitcnt lgkmcnt(0)")
    a("s_nop 7")
    a("s_nop 7")
    a(f"s_cmp_lg_u32 s{sPass}, 0")
    a("s_cbranch_scc1 A_FIN")
    a(f"v_max3_f32 v{vT0}, |v{O}|, |v{O+1}|, |v{O+2}|")
    a(f"v_max3_f32 v{vT0}, v{vT0}, |v{O+3}|, |v{O+4}|")
    a(f"v_max3_f32 v{vT0}, v{vT0}, |v{O+5}|, |v{O+6}|")
    a(f"v_max_f32 v{vT0}, v{vT0}, |v{O+7}|")
    a(f"v_mov_b32 v{vT1}, 0x7f800000")
    a(f"v_cmp_nlt_f32 vcc, v{vT0}, v{vT1}")
    a(f"v_mov_b32 v{vT1}, {f32(2.0**30)}")
    a(f"v_cmp_nlt_f32 {sr(sT2,2)}, v{O+8}, v{vT1}")
    a("s_nop 1")
    a(f"s_or_b64 vcc, vcc, {sr(sT2,2)}")
    a("s_cbranch_scc0 A_FIN")
    a(f"s_mov_b32 s{sPass}, 1")
    a(f"s_mov_b32 s{sB1}, 16")
    a(f"v_mov_b32 v{vAddr}, v{vL16}")
    a(f"v_mov_b32 v{vT0}, 0xff800000")
    a(f"s_mov_b32 s{sI}, 0")
    a.label("A_MAXLOOP")
    a(f"ds_read_b128 {vr(KB[0],4)}, v{vAddr} offset:0")
    a("s_waitcnt lgkmcnt(0)")
    a(f"v_mfma_f32_32x32x16_bf16 {vr(S[0],16)}, {vr(KB[0],4)}, {vr(Q,4)}, 0")
    a(f"v_add_u32 v{vAddr}, 2048, v{vAddr}")
    a("s_nop 7")
    a("s_nop 7")
    for i in range(0, 16, 2):
        a(f"v_max3_f32 v{vT0}, v{vT0}, v{s0+i}, v{s0+i+1}")
    a(f"s_add_u32 s{sI}, s{sI}, 1")
    a(f"s_cmp_lt_u32 s{sI}, 64")
    a("s_cbranch_scc1 A_MAXLOOP")
    a(f"v_mov_b32 v{vAddr}, v{vL16}")
    for i in range(16):
        a(f"v_mov_b32 v{O+i}, 0")
    a("s_branch A_SETMAX")
    a.label("A_FIN")
    stamp(a, 7)
    a(f"v_rcp_f32 v{vT0}, v{O+8}")
    a("s_waitcnt vmcnt(0)")
    a(f"v_mul_f32 v{vT0}, v{vT0}, v{vG}")
    for i in range(8):
        a(f"v_mul_f32 v{O+i}, v{O+i}, v{vT0}")
    for i in range(4):
        a(f"v_cvt_pk_bf16_f32 v{O+i}, v{O+2*i}, v{O+2*i+1}")
    for i in range(4):
        a(f"v_min_u32 v{O+i}, -2, v{O+i}")
    a(f"buffer_store_dwordx4 {vr(O,4)}, v{vL16}, {sr(S_WS,4)}, s12 offen sc1")
    if not SENT:
        a(f"s_lshr_b32 s{sT0}, s{sQT}, 1")
        a(f"s_lshl_b32 s{sT0}, s{sT0}, 9")
        a(f"s_lshl_b32 s{sT1}, s{sHead}, 4")
        a(f"s_add_u32 s{sT0}, s{sT0}, s{sT1}")
        a(f"s_and_b32 s{sT1}, s{sQT}, 1")
        a(f"s_lshl_b32 s{sT1}, s{sT1}, 3")
        a(f"s_add_u32 s{sT0}, s{sT0}, s{sT1}")
        a(f"s_add_u32 s{sT0}, s{sT0}, {WS_FO + 0x4000:#x}")
        a("s_waitcnt vmcnt(0)")
        a("s_mov_b64 exec, 1")
        a(f"buffer_store_dwordx2 {vr(vFl,2)}, off, {sr(S_WS,4)}, s{sT0} sc1")
    stamp(a, 9); stamp(a, 8, True)
    stamp_flush(a)
    a("s_endpgm")


def gen_G(a):
    sXoff, sLX, sWQ0, sW10, sGO = 26, 27, 80, 81, 3
    sGW = sTG
    vDX0, vDX1, vDWq, vDW1, vT2 = 5, 6, 7, 8, 9
    vWe, vWo, vW2w, vGo = 10, 11, 12, 13
    vEp = 14
    RS = 16
    NSETS = int(os.environ.get("NSETS", "9"))
    PER = int(os.environ.get("PER", "1"))
    a("s_setprio 3")
    a(f"s_lshl_b32 s{sXoff}, s{sTT}, 15")
    a(f"s_lshl_b32 s{sLX}, s{sTG}, 12")
    a(f"s_mul_i32 s{sWQ0}, s{sTG}, {16*3072}")
    a(f"s_lshl_b32 s{sT0}, s{sCG}, 6")
    a(f"s_add_u32 s{sWQ0}, s{sWQ0}, s{sT0}")
    a(f"v_lshrrev_b32 v{vT0}, 3, v{vLane}")
    a(f"v_lshrrev_b32 v{vT1}, 4, v{vLane}")
    a(f"v_and_b32 v{vT2}, 7, v{vLane}")
    a(f"v_xor_b32 v{vT2}, v{vT2}, v{vT1}")
    a(f"v_lshlrev_b32 v{vDX0}, 10, v{vT0}")
    a(f"v_lshl_add_u32 v{vDX0}, v{vT2}, 4, v{vDX0}")
    a(f"v_xor_b32 v{vDX1}, 64, v{vDX0}")
    a(f"v_add_u32 v{vDX1}, 8192, v{vDX1}")
    a(f"v_lshrrev_b32 v{vT0}, 2, v{vLane}")
    a(f"v_and_b32 v{vT2}, 3, v{vLane}")
    a(f"v_lshlrev_b32 v{vT2}, 4, v{vT2}")
    a(f"v_mul_u32_u24 v{vDWq}, 3072, v{vT0}")
    a(f"v_add_u32 v{vDWq}, v{vDWq}, v{vT2}")
    a(f"v_mul_u32_u24 v{vDW1}, 3584, v{vT0}")
    a(f"v_add_u32 v{vDW1}, v{vDW1}, v{vT2}")
    sLW = sGO
    a(f"s_lshl_b32 s{sLW}, s{sTG}, 10")
    a("s_waitcnt lgkmcnt(0)")
    estamp(a, 2)
    srd(a, S_X, 4, 2048 * 512 * 2)
    srd(a, S_WQ, 6, 512 * 1536 * 2)
    srd(a, S_GW, 18, 1024)

    q = []
    def vm(tag):
        q.append(tag)
    def wait_tag(tag, extra=""):
        last = max(i for i, t in enumerate(q) if t == tag)
        n = len(q) - 1 - last
        assert n < 64
        a(f"s_waitcnt vmcnt({n}){extra}")

    def dma(lds_s, lds_imm, voff, srdn, s_base, imm, extra=""):
        a(f"s_add_u32 m0, s{lds_s}, {lds_imm}")
        a(f"s_add_u32 s{sT0}, s{s_base}, {imm}")
        a(f"buffer_load_dwordx4 v{voff}, {sr(srdn,4)}, s{sT0} offen{extra} lds")

    ROT = int(os.environ.get("ROT", "1"))
    sRot, sXo, sWo = 82, 83, 78
    sWo = 25
    def issue(n):
        base = (n & 3) * 32768
        st = n if n < 8 else ((n - 4) & 7 if REUSE else n & 7)
        if n == 8 and XOOB and NODUP:
            a(f"s_cmp_ge_u32 s{sCG}, 14")
            a(f"s_cselect_b32 s{sXoff}, 0x40000000, s{sXoff}")
        xb, wb, sti = sXoff, (sWQ0 if n < 8 else sW10), st
        if ROT:
            a(f"s_add_u32 s{sT1}, s{sRot}, {st}")
            a(f"s_and_b32 s{sT1}, s{sT1}, 7")
            a(f"s_lshl_b32 s{sXo}, s{sT1}, 7")
            a(f"s_add_u32 s{sXo}, s{sXo}, s{sXoff}")
            a(f"s_mul_i32 s{sT2}, s{sT1}, {64 * (3072 if n < 8 else 3584)}")
            a(f"s_add_u32 s{sT2}, s{sT2}, s{wb}")
            xb, wb, sti = sXo, sT2, 0
        if not (REUSE and 8 <= n < 12):
            for j in range(4):
                dma(sLX, base + j * 1024, vDX0 if j % 2 == 0 else vDX1, S_X, xb, (j >> 1) * 16384 + sti * 128, NTX); vm(n)
        if n < 8:
            for t in range(3):
                dma(sLW, base + 16384 + t * 4096, vDWq, S_WQ, wb, sti * 64 * 3072 + t * 1024, NTW); vm(n)
        else:
            for t in range(4):
                dma(sLW, base + 16384 + t * 4096, vDW1, S_W1, wb, sti * 64 * 3584 + t * 64, NTW); vm(n)

    if ROT:
        a(f"s_lshr_b32 s{sRot}, s2, 3")
        a(f"s_lshr_b32 s{sT1}, s2, 6")
        a(f"s_lshl_b32 s{sT1}, s{sT1}, 1")
        a(f"s_add_u32 s{sRot}, s{sRot}, s{sT1}")
        if ROT == 2: a(f"s_and_b32 s{sRot}, s{sRot}, 3")
        if ROT == 3:
            a(f"s_bfe_u32 s{sT1}, s2, 0x10001")
            a(f"s_add_u32 s{sRot}, s{sRot}, s{sT1}")
        if ROT == 4:
            a(f"s_bfe_u32 s{sT1}, s2, 0x20001")
            a(f"s_add_u32 s{sRot}, s{sRot}, s{sT1}")
            a(f"s_and_b32 s{sT1}, s2, 1")
            a(f"s_lshl_b32 s{sT1}, s{sT1}, 2")
            a(f"s_add_u32 s{sRot}, s{sRot}, s{sT1}")
        a(f"s_and_b32 s{sRot}, s{sRot}, 7")
        a(f"s_lshl_b32 s{sT1}, s{sRot}, 7")
        a(f"v_add_u32 v10, s{sT1}, v{vL16}")
        a(f"v_and_b32 v10, 0x3ff, v10")
    estamp(a, 3)
    a(f"s_mov_b32 m0, {L_GW}")
    a("s_nop 0")
    a(f"buffer_load_dwordx4 v{10 if ROT else vL16}, {sr(S_GW,4)}, 0 offen lds"); vm(0)
    issue(0)
    estamp(a, 4)
    issue(1)
    srd(a, S_W1, 12, 512 * 1792 * 2)
    srds_rest(a)
    a(f"s_mul_i32 s{sW10}, s{sTG}, {16*3584}")
    a(f"s_lshl_b32 s{sT0}, s{sFT0}, 6")
    a(f"s_add_u32 s{sW10}, s{sW10}, s{sT0}")
    if NODUP:
        a(f"s_cmp_ge_u32 s{sCG}, 14")
        a(f"s_cselect_b32 s{sW10}, 0x40000000, s{sW10}")
    a(f"s_mov_b32 m0, {L_B1}")
    a(f"s_lshl_b32 s{sT0}, s{sFT0}, 6")
    a(f"buffer_load_dwordx4 v{vL16}, {sr(S_B1,4)}, s{sT0} offen lds"); vm(1)
    a(f"s_lshl_b32 s{sT0}, s2, 4")
    a(f"s_add_u32 s{sT0}, s{sT0}, s{sW}")
    a(f"s_cmp_eq_u32 s{sT0}, 8")
    a("s_cbranch_scc0 G_NOEP")
    a(f"s_memrealtime {sr(sEP,2)}")
    a("s_waitcnt lgkmcnt(0)")
    a(f"s_or_b32 s{sEP}, s{sEP}, 1")
    a(f"v_mov_b32 v{vEp}, s{sEP}")
    a(f"v_mov_b32 v{vEp+1}, s{sEP+1}")
    a("s_mov_b64 exec, 1")
    a(f"buffer_store_dwordx2 {vr(vEp,2)}, off, {sr(S_DBG,4)}, 0 sc1")
    a("s_mov_b64 exec, -1")
    a.label("G_NOEP")
    estamp(a, 5)
    wait_tag(0)
    estamp(a, 6)
    a("s_barrier")
    stamp(a, 2)
    estamp(a, 7)
    ORD = int(os.environ.get("ORD", "0"))
    if ORD <= 1: issue(2)
    for n in range(16):
        if n == 0 and ORD == 0:
            issue(3)
        if n == int(os.environ.get("PFW1", "99")) and "N" not in X:
            a(f"s_lshr_b32 s{sT0}, s2, 3")
            a(f"s_lshl_b32 s{sT0}, s{sT0}, 4")
            a(f"s_lshl_b32 s{sT1}, s{sGW}, 2")
            a(f"s_add_u32 s{sT0}, s{sT0}, s{sT1}")
            a(f"s_mul_i32 s{sT0}, s{sT0}, 3584")
            a(f"s_bfe_u32 s{sT1}, s2, 0x20001")
            a(f"s_lshl_b32 s{sT1}, s{sT1}, 10")
            a(f"s_add_u32 s{sT0}, s{sT0}, s{sT1}")
            a(f"v_mul_u32_u24 v16, 3584, v{vT1}")
            a(f"v_and_b32 v17, 15, v{vLane}")
            a(f"v_lshl_add_u32 v16, v17, 6, v16")
            a(f"buffer_load_dword v17, v16, {sr(S_W1,4)}, s{sT0} offen"); vm("pf")
        if n == int(os.environ.get("PFW2", "99")):
            a(f"v_lshlrev_b32 v16, 6, v{vLane}")
            a(f"s_cmp_ge_u32 s{sGW}, 2")
            a("s_cbranch_scc1 G_PFO")
            a(f"s_mul_i32 s{sT0}, s2, 7168")
            a(f"s_mul_i32 s{sT1}, s{sGW}, 3584")
            a(f"s_add_u32 s{sT0}, s{sT0}, s{sT1}")
            a(f"v_min_u32 v16, {55*64}, v16")
            a(f"buffer_load_dword v17, v16, {sr(S_W2,4)}, s{sT0} offen")
            a("s_branch G_PFD")
            a.label("G_PFO")
            a(f"s_lshl_b32 s{sT0}, s2, 11")
            a(f"v_min_u32 v16, {31*64}, v16")
            a(f"buffer_load_dword v17, v16, {sr(S_WO,4)}, s{sT0} offen")
            a.label("G_PFD")
            vm("pf2")
        if n == 4:
            a(f"buffer_load_dwordx2 {vr(vEp,2)}, off, {sr(S_DBG,4)}, 0 sc1"); vm("ep")
        if n == 10:
            wait_tag("ep")
            a(f"s_mov_b32 s{sT1}, 0")
            a.label("G_EPL")
            a(f"v_readfirstlane_b32 s{sEP}, v{vEp}")
            a(f"v_readfirstlane_b32 s{sEP+1}, v{vEp+1}")
            a(f"s_cmp_lg_u32 s{sEP}, 0")
            a("s_cbranch_scc1 G_EPD")
            a("s_sleep 4")
            a(f"buffer_load_dwordx2 {vr(vEp,2)}, off, {sr(S_DBG,4)}, 0 sc1")
            a("s_waitcnt vmcnt(0)")
            a(f"s_add_u32 s{sT1}, s{sT1}, 1")
            a(f"s_cmp_lt_u32 s{sT1}, {SPIN_MAX}")
            a("s_cbranch_scc1 G_EPL")
            a.label("G_EPD")
        if n + 1 <= 15:
            wait_tag(n + 1)
        a("s_barrier")
        if n == 0 and ORD == 2: issue(2)
        if (1 <= n or ORD >= 1) and n + 3 <= 15:
            issue(n + 3)
        if "P" in X and STAMPS:
            P0 = int(os.environ.get("P0", "8"))
            if P0 <= n + 1 < P0 + 6:
                i = n + 1 - P0 + 2
                a(f"s_memtime s[{82+2*i}:{83+2*i}]")
                a("s_waitcnt lgkmcnt(0)")
        if n + 1 == 12:
            a(f"s_cmp_eq_u32 s{sGW}, 0")
            a("s_cbranch_scc0 G_NOF1")
            a(f"s_lshl_b32 s{sT0}, s{sCG}, 7")
            a(f"s_lshl_b32 s{sT1}, s{sRB}, 3")
            a(f"s_add_u32 s{sT0}, s{sT0}, s{sT1}")
            a(f"s_add_u32 s{sT0}, s{sT0}, {WS_FKV:#x}")
            a("s_mov_b64 exec, 1")
            a(f"buffer_store_dwordx2 {vr(vEp,2)}, off, {sr(S_WS,4)}, s{sT0} sc1")
            a("s_mov_b64 exec, -1")
            a.label("G_NOF1")
    sHead, sKV, sLK, sFK, sFG, sQ = 4, 5, 6, 7, 8, 9
    sA0, sA1, sW2, sOT, sON, sI, sRing, sTT64, sNB = 10, 11, 12, 13, 14, 15, 16, 17, 18
    vL8, vF16 = 5, 6
    FL = 124
    a(f"s_and_b32 s{sT0}, s2, 7")
    a(f"s_lshl_b32 s{sHead}, s{sT0}, 2")
    a(f"s_bfe_u32 s{sT0}, s2, 0x20003")
    a(f"s_add_u32 s{sHead}, s{sHead}, s{sT0}")
    a(f"s_lshl_b32 s{sLK}, s{sGW}, 10")
    a(f"s_lshl_b32 s{sKV}, s{sHead}, 17")
    a(f"s_add_u32 s{sKV}, s{sKV}, {WS_KV:#x}")
    a(f"s_add_u32 s{sKV}, s{sKV}, s{sLK}")
    a(f"s_lshr_b32 s{sT0}, s{sHead}, 1")
    a(f"s_lshl_b32 s{sFK}, s{sT0}, 7")
    a(f"s_add_u32 s{sFK}, s{sFK}, {WS_FKV:#x}")
    a(f"s_lshr_b32 s{sT1}, s2, 5")
    a(f"s_lshl_b32 s{sQ}, s{sHead}, 16")
    a(f"s_lshl_b32 s{sT0}, s{sT1}, 13")
    a(f"s_add_u32 s{sQ}, s{sQ}, s{sT0}")
    a(f"s_add_u32 s{sQ}, s{sQ}, s{sLK}")
    a(f"s_add_u32 s{sQ}, s{sQ}, {WS_QF:#x}")
    a(f"v_lshlrev_b32 v{vL8}, 3, v{vLane}")
    a(f"v_and_b32 v{vF16}, 0x78, v{vL8}")
    stamp(a, 3)
    poll(a, [(1, FL, vF16, sFK)], sT1)
    stamp(a, 4)
    def kvdma(i):
        dma(sLK, i * 4096, vL16, S_WS, sKV, i * 4096, " sc1")
    dma(sLK, L_Q, vL16, S_WS, sQ, 0, " sc1")
    dma(sLK, L_Q + 4096, vL16, S_WS, sQ, 4096, " sc1")
    def pubflags():
        a(f"s_cmp_eq_u32 s{sGW}, 0")
        a("s_cbranch_scc0 G_NOF2")
        a(f"s_lshl_b32 s{sT0}, s{sRB}, 7")
        a(f"s_lshl_b32 s{sT1}, s{sCG}, 3")
        a(f"s_add_u32 s{sT0}, s{sT0}, s{sT1}")
        a(f"s_add_u32 s{sT0}, s{sT0}, {WS_FACT:#x}")
        a(f"s_lshr_b32 s{sT1}, s2, 5")
        a(f"s_lshl_b32 s{sT1}, s{sT1}, 8")
        a(f"s_lshl_b32 s{sT2}, s{sHead}, 3")
        a(f"s_add_u32 s{sT1}, s{sT1}, s{sT2}")
        a(f"s_add_u32 s{sT1}, s{sT1}, {WS_FO:#x}")
        a("s_mov_b64 exec, 1")
        a(f"buffer_store_dwordx2 {vr(vEp,2)}, off, {sr(S_WS,4)}, s{sT0} sc1")
        a(f"buffer_store_dwordx2 {vr(vEp,2)}, off, {sr(S_WS,4)}, s{sT1} sc1")
        a("s_mov_b64 exec, -1")
        a.label("G_NOF2")
    KV0 = int(os.environ.get("KV0", "8"))
    for i in range(KV0): kvdma(i)
    a(f"s_waitcnt vmcnt({KV0-8 if NOB2 else KV0-4})")
    a("s_barrier")
    if not STP:
        for i in range(KV0, 20): kvdma(i)
    if not NOB2:
        a(f"s_waitcnt vmcnt({KV0-8 if STP else 12})")
        a("s_barrier")
    if EARLYF and not NOB2: pubflags()
    for i in range(KV0 if STP else 20, 32): kvdma(i)
    ACC = 8
    AF = 72
    WF = 104
    vG0, vG1 = 120, 121
    vDW, vTr0, vTr1 = 7, 122, 123
    a(f"s_and_b32 s{sT0}, s2, 7")
    a(f"s_lshr_b32 s{sT1}, s2, 3")
    a(f"s_lshr_b32 s{sTT64}, s{sT0}, 1")
    a(f"s_lshl_b32 s{sTT64}, s{sTT64}, 3")
    a(f"s_and_b32 s{sT3}, s{sT1}, 7")
    a(f"s_add_u32 s{sTT64}, s{sTT64}, s{sT3}")
    a(f"s_and_b32 s{sNB}, s{sT0}, 1")
    a(f"s_lshl_b32 s{sNB}, s{sNB}, 2")
    a(f"s_lshr_b32 s{sT1}, s{sT1}, 3")
    a(f"s_add_u32 s{sNB}, s{sNB}, s{sT1}")
    a(f"s_lshr_b32 s{sT1}, s{sGW}, 1")
    a(f"s_lshl_b32 s{sOT}, s{sTT64}, 1")
    a(f"s_add_u32 s{sOT}, s{sOT}, s{sT1}")
    a(f"s_and_b32 s{sT1}, s{sGW}, 1")
    a(f"s_lshl_b32 s{sON}, s{sNB}, 1")
    a(f"s_add_u32 s{sON}, s{sON}, s{sT1}")
    a(f"s_mul_i32 s{sT3}, s{sGW}, {28*1024}")
    a(f"s_mul_i32 s{sA0}, s{sOT}, {112*1024}")
    a(f"s_add_u32 s{sA0}, s{sA0}, s{sT3}")
    a(f"s_add_u32 s{sA0}, s{sA0}, {WS_ACT:#x}")
    a(f"s_xor_b32 s{sT1}, s{sOT}, 1")
    a(f"s_mul_i32 s{sA1}, s{sT1}, {112*1024}")
    a(f"s_add_u32 s{sA1}, s{sA1}, s{sT3}")
    a(f"s_add_u32 s{sA1}, s{sA1}, {WS_ACT:#x}")
    a(f"s_mul_i32 s{sW2}, s{sGW}, {28*16384}")
    a(f"s_lshl_b32 s{sT1}, s{sNB}, 7")
    a(f"s_add_u32 s{sW2}, s{sW2}, s{sT1}")
    a(f"s_lshl_b32 s{sRing}, s{sGW}, 13")
    a(f"s_add_u32 s{sRing}, s{sRing}, {L_RING}")
    a(f"v_lshrrev_b32 v{vT0}, 3, v{vLane}")
    a(f"v_bfe_u32 v{vT1}, v{vLane}, 4, 1")
    a(f"v_lshlrev_b32 v{vT1}, 2, v{vT1}")
    a(f"v_and_b32 v{vDW}, 7, v{vLane}")
    a(f"v_xor_b32 v{vDW}, v{vDW}, v{vT1}")
    a(f"v_lshlrev_b32 v{vDW}, 4, v{vDW}")
    a(f"v_lshl_add_u32 v{vDW}, v{vT0}, 10, v{vDW}")
    a(f"v_bfe_u32 v{vT0}, v{vLane}, 2, 2")
    a(f"v_lshrrev_b32 v{vT1}, 5, v{vLane}")
    a(f"v_lshl_add_u32 v{vT0}, v{vT1}, 2, v{vT0}")
    a(f"v_lshlrev_b32 v{vTr0}, 7, v{vT0}")
    a(f"v_bfe_u32 v{vT0}, v{vLane}, 3, 1")
    a(f"v_lshl_add_u32 v{vTr0}, v{vT0}, 6, v{vTr0}")
    a(f"v_and_b32 v{vT0}, 1, v{vLane}")
    a(f"v_lshl_add_u32 v{vTr0}, v{vT0}, 5, v{vTr0}")
    a(f"v_bfe_u32 v{vT0}, v{vLane}, 4, 1")
    a(f"v_lshl_add_u32 v{vTr0}, v{vT0}, 4, v{vTr0}")
    a(f"v_bfe_u32 v{vT0}, v{vLane}, 1, 1")
    a(f"v_lshl_add_u32 v{vTr0}, v{vT0}, 3, v{vTr0}")
    a(f"s_and_b32 s{sT1}, s{sGW}, 1")
    a(f"s_lshl_b32 s{sT1}, s{sT1}, 6")
    a(f"v_xor_b32 v{vTr0}, s{sT1}, v{vTr0}")
    a(f"v_add_u32 v{vTr0}, s{sRing}, v{vTr0}")
    a(f"v_xor_b32 v{vTr1}, 64, v{vTr0}")
    a(f"s_lshr_b32 s{sFG}, s{sTT64}, 2")
    a(f"s_lshl_b32 s{sFG}, s{sFG}, 8")
    a(f"s_add_u32 s{sFG}, s{sFG}, {WS_FO:#x}")
    a(f"v_and_b32 v{vL8}, 0xf8, v{vL8}")
    a(f"s_lshr_b32 s{sFK}, s{sTT64}, 1")
    a(f"s_lshl_b32 s{sFK}, s{sFK}, 7")
    a(f"s_add_u32 s{sFK}, s{sFK}, {WS_FACT:#x}")
    a("s_waitcnt vmcnt(0)")
    a("s_barrier")
    if NOB2 or not EARLYF: pubflags()
    a(f"s_setprio {os.environ.get('GPRIO', '0')}")
    stamp(a, 5)
    poll(a, [(1, FL, vF16, sFK)], sT1)
    a(f"v_and_b32 v{vT0}, 31, v{vLane}")
    a(f"v_lshlrev_b32 v{vT0}, 2, v{vT0}")
    a(f"s_lshl_b32 s{sT0}, s{sOT}, 7")
    a(f"s_add_u32 s{sT0}, s{sT0}, {WS_G:#x}")
    a(f"s_xor_b32 s{sT1}, s{sT0}, 128")
    a(f"buffer_load_dword v{vG0}, v{vT0}, {sr(S_WS,4)}, s{sT0} offen sc1")
    a(f"buffer_load_dword v{vG1}, v{vT0}, {sr(S_WS,4)}, s{sT1} offen sc1")

    def wdma(st, srdn):
        a(f"s_add_u32 m0, s{sRing}, {st * 2048}")
        a(f"s_add_u32 s{sT0}, s{sW2}, 8192")
        a(f"buffer_load_dwordx4 v{vDW}, {sr(srdn,4)}, s{sW2} offen lds")
        a(f"s_add_u32 m0, s{sRing}, {st * 2048 + 1024}")
        a(f"s_add_u32 s{sW2}, s{sW2}, 16384")
        a(f"buffer_load_dwordx4 v{vDW}, {sr(srdn,4)}, s{sT0} offen lds")

    def group(st):
        wdma(st, S_W2)
        f = AF + 8 * st
        a(f"buffer_load_dwordx4 {vr(f,4)}, v{vL16}, {sr(S_WS,4)}, s{sA0} offen offset:{st*1024} sc1")
        a(f"buffer_load_dwordx4 {vr(f+4,4)}, v{vL16}, {sr(S_WS,4)}, s{sA1} offen offset:{st*1024} sc1")
        if st == 3:
            a(f"s_add_u32 s{sA0}, s{sA0}, 4096")
            a(f"s_add_u32 s{sA1}, s{sA1}, 4096")

    def trreads(st, w):
        for jp, vt in enumerate((vTr0, vTr1)):
            a(f"ds_read_b64_tr_b16 {vr(w+4*jp,2)}, v{vt} offset:{st*2048}")
            a(f"ds_read_b64_tr_b16 {vr(w+4*jp+2,2)}, v{vt} offset:{st*2048+1024}")

    GSP = os.environ.get("GSP", "")
    def gmfma(w, f, first, space=False):
        for ap in range(2):
            for jp in range(2):
                acc = ACC + 16 * (ap * 2 + jp)
                c = "0" if first else vr(acc, 16)
                a(f"v_mfma_f32_32x32x16_bf16 {vr(acc,16)}, {vr(w+4*jp,4)}, {vr(f+4*ap,4)}, {c}")
                if space and GSP and not (ap == 1 and jp == 1): a(GSP)

    def step(st, first, more, nwait=12):
        a(f"s_waitcnt vmcnt({nwait})")
        w = WF + 8 * (st & 1)
        trreads(st, w)
        a("s_waitcnt lgkmcnt(0)")
        gmfma(w, AF + 8 * st, first, True)
        if more:
            group(st)

    for st in range(4): group(st)
    for st in range(4): step(st, st == 0, True)
    a(f"s_mov_b32 s{sI}, 0")
    a.label("G_LOOP")
    for st in range(4): step(st, False, True)
    a(f"s_add_u32 s{sI}, s{sI}, 1")
    a(f"s_cmp_lt_u32 s{sI}, {1 if 'F' in X else 5}")
    a("s_cbranch_scc1 G_LOOP")
    for st in range(4): step(st, False, False, 12 - 4 * st)
    stamp(a, 6)
    WOR = 72
    OFR = 136
    a(f"s_lshl_b32 s{sW2}, s{sGW}, 17")
    a(f"s_lshl_b32 s{sT1}, s{sNB}, 7")
    a(f"s_add_u32 s{sW2}, s{sW2}, s{sT1}")
    for st in range(4): wdma(st, S_WO)
    a(f"v_sub_f32 v{vT0}, 1.0, v{vG0}")
    a(f"v_sub_f32 v{vT1}, 1.0, v{vG1}")
    a(f"v_mov_b32 v152, v{vTr0}")
    a(f"v_mov_b32 v153, v{vTr1}")
    vTr0, vTr1 = 152, 153
    a("s_nop 7")
    for q in range(4):
        for i in range(16):
            a(f"v_mul_f32 v{ACC+16*q+i}, v{ACC+16*q+i}, v{vT0 if q < 2 else vT1}")
    def trreads2(st, w):
        for jp, vt in enumerate((vTr0, vTr1)):
            a(f"ds_read_b64_tr_b16 {vr(w+4*jp,2)}, v{vt} offset:{st*2048}")
            a(f"ds_read_b64_tr_b16 {vr(w+4*jp+2,2)}, v{vt} offset:{st*2048+1024}")
    for ks in range(8):
        st = ks & 3
        a(f"s_waitcnt vmcnt({6 if ks < 4 else 6 - 2 * (ks - 4)})")
        trreads2(st, WOR + 8 * ks)
        if ks < 4:
            a("s_waitcnt lgkmcnt(0)")
            wdma(st, S_WO)
    FL = 156
    a(f"s_lshl_b32 s{sA0}, s{sOT}, 15")
    a(f"s_lshl_b32 s{sT3}, s{sGW}, 13")
    a(f"s_add_u32 s{sA0}, s{sA0}, s{sT3}")
    a(f"s_add_u32 s{sA0}, s{sA0}, {WS_OF:#x}")
    a(f"s_xor_b32 s{sA1}, s{sA0}, 32768")
    a(f"s_lshl_b32 s{sLK}, s{sGW}, 14")
    a(f"v_add_u32 v154, s{sLK}, v{vL16}")
    if SENT: poll(a, [(1, FL, vL8, sFG)], sT1)
    else:
        a(f"v_lshlrev_b32 v{vL8}, 3, v{vLane}")
        a(f"s_lshl_b32 s{sFG}, s{sTT64}, 9")
        a(f"s_add_u32 s{sFG}, s{sFG}, {WS_FO + 0x4000:#x}")
    a("s_mov_b64 s[22:23], -1")
    a("s_mov_b32 s19, 0")
    a("s_waitcnt lgkmcnt(0)")
    a("s_barrier")
    a("s_setprio 3")
    a("s_branch G_P3")
    a.label("G_RELOAD")
    for ks in range(8):
        dma(sLK, ks * 2048, vL16, S_WS, sA0, ks * 1024, " sc1")
        dma(sLK, ks * 2048 + 1024, vL16, S_WS, sA1, ks * 1024, " sc1")
    a("s_add_u32 s19, s19, 1")
    a(f"s_cmp_lt_u32 s19, {SPIN_MAX}")
    a("s_cselect_b64 s[22:23], -1, 0")
    a("s_setpc_b64 s[20:21]")
    a.label("G_P3")
    if not SENT: poll(a, [(1, FL, vL8, sFG)], sT1)
    a("s_call_b64 s[20:21], G_RELOAD")
    def ord_(ks):
        f = OFR + 8 * (ks & 1)
        a(f"ds_read_b128 {vr(f,4)}, v154 offset:{ks*2048}")
        a(f"ds_read_b128 {vr(f+4,4)}, v154 offset:{ks*2048+1024}")
    def verify(ks):
        f = OFR + 8 * (ks & 1)
        a.label(f"G_V{ks}")
        a("s_waitcnt lgkmcnt(0)")
        if not SENT: return
        a(f"v_max3_u32 v155, v{f}, v{f+1}, v{f+2}")
        a(f"v_max3_u32 v155, v155, v{f+3}, v{f+4}")
        a(f"v_max3_u32 v155, v155, v{f+5}, v{f+6}")
        a(f"v_max_u32 v155, v155, v{f+7}")
        a(f"v_cmp_eq_u32 vcc, -1, v155")
        a("s_nop 1")
        a("s_and_b64 vcc, vcc, s[22:23]")
        a(f"s_cbranch_scc0 G_OK{ks}")
        a("s_call_b64 s[20:21], G_RELOAD")
        a("s_waitcnt vmcnt(0)")
        ord_(ks)
        a(f"s_branch G_V{ks}")
        a.label(f"G_OK{ks}")
    a("s_waitcnt vmcnt(14)")
    ord_(0)
    verify(0)
    stamp(a, 7)
    for ks in range(8):
        f = OFR + 8 * (ks & 1)
        if ks < 7:
            a(f"s_waitcnt vmcnt({12 - 2 * ks})")
            ord_(ks + 1)
        gmfma(WOR + 8 * ks, f, False)
        if ks < 7:
            verify(ks + 1)
    a("s_nop 7")
    a("s_nop 7")
    for q in range(1, 4):
        a(f"s_xor_b32 s{sT0}, s{sGW}, {q}")
        a(f"s_mul_i32 s{sT0}, s{sT0}, 12288")
        a(f"s_add_u32 s{sT0}, s{sT0}, {L_EXCH}")
        a(f"v_add_u32 v{vT0}, s{sT0}, v{vL16}")
        for i in range(4):
            a(f"ds_write_b128 v{vT0}, {vr(ACC+16*q+4*i,4)} offset:{(q-1)*4096 + i*1024}")
    a(f"s_mul_i32 s{sT0}, s{sGW}, 12288")
    a(f"s_add_u32 s{sT0}, s{sT0}, {L_EXCH}")
    a(f"v_add_u32 v{vT0}, s{sT0}, v{vL16}")
    a("s_waitcnt lgkmcnt(0)")
    a("s_barrier")
    R = 72
    for q in range(3):
        for i in range(4):
            a(f"ds_read_b128 {vr(R+16*q+4*i,4)}, v{vT0} offset:{q*4096 + i*1024}")
    a(f"v_and_b32 v{vT0}, 31, v{vLane}")
    a(f"v_lshlrev_b32 v{vT0}, 10, v{vT0}")
    a(f"v_lshrrev_b32 v{vT1}, 5, v{vLane}")
    a(f"v_lshl_add_u32 v{vT0}, v{vT1}, 5, v{vT0}")
    a(f"s_lshl_b32 s{sT0}, s{sOT}, 15")
    a(f"s_lshl_b32 s{sT1}, s{sON}, 6")
    a(f"s_add_u32 s{sT0}, s{sT0}, s{sT1}")
    for q in range(3):
        a(f"s_waitcnt lgkmcnt({8 - 4 * q})")
        for i in range(16):
            a(f"v_add_f32 v{ACC+i}, v{ACC+i}, v{R+16*q+i}")
    cvt16(a, ACC)
    a(f"buffer_store_dwordx4 {vr(ACC,4)}, v{vT0}, {sr(S_OUT,4)}, s{sT0} offen{os.environ.get('OUTF','')}")
    a(f"buffer_store_dwordx4 {vr(ACC+4,4)}, v{vT0}, {sr(S_OUT,4)}, s{sT0} offen offset:16{os.environ.get('OUTF','')}")
    if STAMPS: a("s_waitcnt vmcnt(0)")
    stamp(a, 9); stamp(a, 8, True)
    stamp_flush(a)


def main():
    ref = open(f"cdna_kernels/{NAME}.s.ref").read().split("\n")
    head = [l for l in ref if l.startswith(";") and "@launch" not in l]
    a = A()
    name = gen(a)
    out = "\n".join(head) + "\n"
    if ASLIST:
        out += f"; @launch kernel={name} grid=(256,1,1) block=(768,1,1) lds={LDS_TOTAL}\n"
    else:
        out += f"; @launch grid=(256,1,1) block=(768,1,1) lds={LDS_TOTAL}\n"
    out += """;
"""
    out += '.amdgcn_target "amdgcn-amd-amdhsa--gfx950"\n'
    out += a.text()
    out += f""".section .rodata,"a"
.p2align 6
.amdhsa_kernel {name}
  .amdhsa_next_free_vgpr 168
  .amdhsa_next_free_sgpr {102 if STAMPS else 84}
  .amdhsa_accum_offset 168
  .amdhsa_group_segment_fixed_size 0
  .amdhsa_kernarg_size 88
  .amdhsa_user_sgpr_count 2
  .amdhsa_user_sgpr_kernarg_segment_ptr 1
  .amdhsa_system_sgpr_workgroup_id_x 1
.end_amdhsa_kernel
"""
    path = sys.argv[1] if len(sys.argv) > 1 else f"cdna_kernels/{NAME}.s"
    open(path, "w").write(out)
    print("wrote", path, len(out), "bytes")

main()
```
